```python
import torch

def _softmax(x, axis=-1):
    return torch.softmax(x, dim=axis)

def _gelu(x):
    return torch.nn.functional.gelu(x, approximate='tanh')

def _silu(x):
    return torch.nn.functional.silu(x)

def _sigmoid(x):
    return torch.sigmoid(x)

def _layernorm(x, axis=-1, eps=1e-05):
    m = x.mean(dim=axis, keepdim=True)
    v = x.var(dim=axis, keepdim=True, unbiased=False)
    return (x - m) / torch.sqrt(v + eps)

def _scatter_add(tgt, idx, src, axis=0):
    return tgt.clone().index_add_(axis, idx, src)

def _segment_sum(src, seg, n):
    out = torch.zeros((n,) + src.shape[1:], dtype=src.dtype)
    return out.index_add_(0, seg, src)

def _pad(x, pw):
    flat = tuple((v for pair in reversed(pw) for v in pair))
    return torch.nn.functional.pad(x, flat)
kernel_name = 'sequential_preLN__memory_aug_recurrent_mem_tr__mixer_gmlp__prompt'

def setup_inputs():

    _w = lambda a: (lambda t: t.to(torch.bfloat16) if t.is_floating_point() else t)(torch.as_tensor(a))

    def _A_setup():
        B, S, Dm = (1, 2048, 640)
        H, Dh = (32, 192)
        M, seg = (8, 32)
        seg = min(seg, S)
        S = S // seg * seg
        return {'x': _w((lambda *s: torch.randn(*s, dtype=torch.bfloat16) * 0.05)(B, S, Dm)), 'mem0': _w((lambda *s: torch.randn(*s, dtype=torch.bfloat16) * 0.2)(B, M, Dm)), 'Wq': _w((lambda *s: torch.randn(*s, dtype=torch.bfloat16) * 1.6)(Dm, H, Dh) * Dm ** (-0.5)), 'Wk': _w((lambda *s: torch.randn(*s, dtype=torch.bfloat16) * 1.6)(Dm, H, Dh) * Dm ** (-0.5)), 'Wv': _w((lambda *s: torch.randn(*s, dtype=torch.bfloat16) * 0.2)(Dm, H, Dh) * Dm ** (-0.5)), 'Wo': _w((lambda *s: torch.randn(*s, dtype=torch.bfloat16) * 0.2)(H, Dh, Dm) * (H * Dh) ** (-0.5)), 'seg_len': seg}
    _A_in = _A_setup()

    def _B_setup():
        B, S, D, F = (1, 2048, 640, 1536)
        Fh = F // 2
        return {'x': _w((lambda *s: torch.randn(*s, dtype=torch.bfloat16) * 0.05)(B, S, D)), 'w_in': _w((lambda *s: torch.randn(*s, dtype=torch.bfloat16) * 0.4)(D, 2 * Fh)), 'w_sp': _w(0.01 * (lambda *s: torch.randn(*s, dtype=torch.bfloat16) * 0.4)(S, S)), 'b_sp': _w(1.0 + 0.01 * (lambda *s: torch.randn(*s, dtype=torch.bfloat16) * 0.05)(S)), 'w_out': _w((lambda *s: torch.randn(*s, dtype=torch.bfloat16) * 0.05)(Fh, D))}
    _B_in = _B_setup()
    return {'A_x': _A_in['x'], 'A_mem0': _A_in['mem0'], 'A_Wq': _A_in['Wq'], 'A_Wk': _A_in['Wk'], 'A_Wv': _A_in['Wv'], 'A_Wo': _A_in['Wo'], 'A_seg_len': _A_in['seg_len'], 'B_x': _B_in['x'], 'B_w_in': _B_in['w_in'], 'B_w_sp': _B_in['w_sp'], 'B_b_sp': _B_in['b_sp'], 'B_w_out': _B_in['w_out']}

def reference(A_x, A_mem0, A_Wq, A_Wk, A_Wv, A_Wo, A_seg_len, B_x, B_w_in, B_w_sp, B_b_sp, B_w_out):

    def _A_ref(x, mem0, Wq, Wk, Wv, Wo, seg_len):
        B, S, Dm = x.shape
        H, Dh = (Wq.shape[1], Wq.shape[2])
        M = mem0.shape[1]
        scale = Dh ** (-0.5)
        n_seg = S // seg_len
        L = M + seg_len
        idx = torch.arange(L)
        mask = (idx[:, None] < M) | (idx[:, None] >= idx[None, :])
        mem = mem0
        outs = []
        for s in range(n_seg):
            xs = x[:, s * seg_len:(s + 1) * seg_len, :].clone()
            h = torch.concatenate([mem, xs], axis=1)
            q = torch.einsum('btd,dhe->bhte', h, Wq)
            k = torch.einsum('btd,dhe->bhte', h, Wk)
            v = torch.einsum('btd,dhe->bhte', h, Wv)
            scores = torch.einsum('bhqe,bhke->bhqk', q, k) * scale
            scores = torch.where(mask[None, None], scores, -1000000000.0)
            p = _softmax(scores, axis=-1)
            o = torch.einsum('bhqk,bhke->bhqe', p, v)
            o = torch.einsum('bhte,hed->btd', o, Wo)
            mem = o[:, :M, :].clone()
            outs.append(o[:, M:, :])
        return torch.concatenate(outs, axis=1)

    def _B_ref(x, w_in, w_sp, b_sp, w_out):
        B, S, D = x.shape
        F = w_in.shape[-1]
        Fh = F // 2
        z = _gelu(torch.einsum('bsd,df->bsf', x, w_in))
        z1 = z[..., :Fh].clone()
        z2 = _layernorm(z[..., Fh:], axis=-1)
        g = torch.einsum('ts,bsf->btf', w_sp, z2) + b_sp[None, :, None]
        return torch.einsum('bsf,fd->bsd', z1 * g, w_out)
    x = A_x
    h = x + _A_ref(_layernorm(x, axis=-1), A_mem0, A_Wq, A_Wk, A_Wv, A_Wo, A_seg_len)
    h2 = h + _B_ref(_layernorm(h, axis=-1), B_w_in, B_w_sp, B_b_sp, B_w_out)
    return h2
```

```python
def V(i, n=1): return f'v{i}' if n == 1 else f'v[{i}:{i+n-1}]'
def A(i, n=1): return f'a{i}' if n == 1 else f'a[{i}:{i+n-1}]'
def S(i, n=1): return f's{i}' if n == 1 else f's[{i}:{i+n-1}]'
def R(loc, n=1, off=0):
    f, i = loc
    return (V if f == 'v' else A)(i + off, n)

class K:
    def __init__(self):
        self.L = []
        self.lc = 0
        self.ld = 0
        self.vc = 0
        self.vd = 0
        self.uid = 0
    def __call__(self, s):
        for line in s.strip('\n').split('\n'):
            line = line.strip()
            if line: self.L.append('    ' + line)
    def raw(self, s): self.L.append(s)
    def label(self, name): self.L.append(name + ':')
    def c(self, s): self.L.append('    ; ' + s)
    def newlabel(self, p='L'):
        self.uid += 1
        return f'{p}_{self.uid}'
    def lds(self, s):
        self(s); self.lc += 1; return self.lc
    def wl(self, t):
        if t > self.ld:
            n = min(self.lc - t, 15)
            self(f's_waitcnt lgkmcnt({n})'); self.ld = self.lc - n
    def wl_all(self, force=False):
        if force or self.ld < self.lc: self('s_waitcnt lgkmcnt(0)')
        self.ld = self.lc
    def vm(self, s):
        self(s); self.vc += 1; return self.vc
    def wv(self, t):
        if t > self.vd:
            n = min(self.vc - t, 63)
            self(f's_waitcnt vmcnt({n})'); self.vd = self.vc - n
    def wv_all(self, force=False):
        if force or self.vd < self.vc: self('s_waitcnt vmcnt(0)')
        self.vd = self.vc
    def nop(self, n):
        while n > 0:
            m = min(n, 16); self(f's_nop {m-1}'); n -= m
    def srd(self, d, base, nbytes):
        self(f's_mov_b32 s{d}, s{base}')
        self(f's_and_b32 s{d+1}, s{base+1}, 0xffff')
        self(f's_mov_b32 s{d+2}, {nbytes:#x}')
        self(f's_mov_b32 s{d+3}, 0x20000')
    def begin(self, name):
        self.raw(f'.globl {name}\n.p2align 8\n.type {name},@function\n{name}:')
        self.lc = self.ld = self.vc = self.vd = 0
    def text(self): return '\n'.join(self.L) + '\n'

def descriptor(name, vgpr, accum, sgpr=102):
    return f'''.p2align 6
.amdhsa_kernel {name}
  .amdhsa_next_free_vgpr {vgpr}
  .amdhsa_next_free_sgpr {sgpr}
  .amdhsa_accum_offset {accum}
  .amdhsa_group_segment_fixed_size 0
  .amdhsa_kernarg_size 120
  .amdhsa_user_sgpr_count 2
  .amdhsa_user_sgpr_kernarg_segment_ptr 1
  .amdhsa_system_sgpr_workgroup_id_x 1
  .amdhsa_float_denorm_mode_32 3
  .amdhsa_float_denorm_mode_16_64 3
.end_amdhsa_kernel
'''
```

```python
import sys
from asmlib import *

NAME = 'sequential_preLN__memory_aug_recurrent_mem_tr__mixer_gmlp__prompt'
KA = dict(x=0, mem0=8, Wq=16, Wk=24, Wv=32, Wo=40, w_in=64, w_sp=72, b_sp=80, w_out=88, out=96, dbg=104, ws=112)
WS_BYTES = 0x10000000
WBYTES = 640 * 6144 * 2
XN   = 0x0000000
FL   = 0x0800000
FU, FQK, FKM, FPX = FL, FL + 0x40000, FL + 0x80000, FL + 0xC0000
DUMMY = 0x0C20000
STAMPS = 0x0C30000
TRACE = 0x0D00000
ST   = 0x0C00000
ZR   = 0x0A00000
QF   = 0x1000000
UF   = 0x4000000
ZM   = 0xC000000
KM   = 0xA400000
PX   = 0xAA00000
HH   = 0xB000000
Z1F  = 0xB400000
Z2F  = 0xB800000
YF   = 0xBC00000
VF   = 0x9000000
FP1  = 0x0900000
FH   = 0x0940000
FG1  = 0x0980000
FWT  = 0x0990000
FY   = 0x0994000
WSF  = ZM + 0xD0000
WST  = 66560
MB   = ZM + 0xC0000
WOF  = 0xA000000
FWO  = 0x099C000
P_OFF, M_OFF = 0, 20480
LDS_BYTES = 163840
WL = 0
BIG = 0x7ff00000

def mbmap(off):
    return (off >> 13) * 16384 + (off & 8191)

def v_mbmap(k, d, t):
    k(f'v_lshrrev_b32 v{t}, 13, v{d}')
    k(f'v_lshlrev_b32 v{t}, 13, v{t}')
    k(f'v_add_u32 v{d}, v{d}, v{t}')

NINIT = 96
def dbg_srd(k):
    k.srd(88, 4, 256)

def init_done(k, p):
    if LST: k('s_memrealtime s[60:61]\ns_waitcnt vmcnt(0)\ns_memrealtime s[62:63]')
    k(f"""
    s_waitcnt vmcnt(0)
    s_barrier
    s_cmp_lg_u32 s21, 0
    s_cbranch_scc1 {p}_id
    s_lshl_b32 s34, s34, 16
    s_add_u32 s34, s34, 1
    v_mov_b32 v8, s34
    v_mov_b32 v9, {BIG:#x}
    v_cmp_eq_u32 vcc, 0, v1
    s_nop 1
    v_cndmask_b32_e64 v9, v9, 0, vcc
    s_cmp_ge_u32 s35, 2
    s_cbranch_scc1 {p}_na
    s_lshl_b32 s35, s35, 2
    buffer_store_dword v8, v9, s[88:91], s35 offen offset:132 sc1""")
    k.label(f'{p}_na')
    k(f"""
    buffer_atomic_add v8, v9, s[88:91], 0 offen sc0 sc1
    s_waitcnt vmcnt(0)
    v_readfirstlane_b32 s28, v8
    s_add_u32 s28, s28, s34
    s_and_b32 s29, s28, 0xffff
    s_cmp_lg_u32 s29, {NINIT}
    s_cbranch_scc1 {p}_id
    s_lshr_b32 s28, s28, 16
    s_cmp_gt_u32 s28, 32
    s_cselect_b32 s28, 2, 1
    v_mov_b32 v8, s28
    buffer_store_dword v8, v9, s[88:91], 0 offen offset:128 sc1""")
    k.label(f'{p}_id')

def gen_init_ln(k, p):
    k(f's_load_dwordx2 s[28:29], s[0:1], {KA["x"]}')
    k(f"""
    v_lshlrev_b32 v2, 4, v1
    v_and_b32 v3, 15, v1
    v_lshrrev_b32 v4, 4, v1
    v_mul_u32_u24 v5, 1280, v3
    v_lshl_add_u32 v5, v4, 4, v5
    s_min_u32 s31, s30, 63
    s_mul_i32 s31, s31, 40960
    s_lshr_b32 s32, s21, 1
    s_mul_i32 s32, s32, 20480
    s_and_b32 s33, s21, 1
    s_mul_i32 s33, s33, 640
    s_add_u32 s32, s32, s33
    s_add_u32 s32, s32, s31
    s_waitcnt lgkmcnt(0)""")
    k.srd(12, 28, 2048 * 1280)
    for i in range(10):
        k(f'buffer_load_dwordx4 {V(16+4*i,4)}, v5, s[12:15], s32 offen offset:{64*i}')
    rot_wait(k, 8)
    k(f"""
    v_lshlrev_b32 v6, 4, v0
    v_mov_b32 v8, 0
    v_mov_b32 v9, 0
    v_mov_b32 v10, 0
    v_mov_b32 v11, 0
    s_mul_i32 s28, s30, 24576
    s_add_u32 s28, s28, {FL:#x}""")
    for j in range(6):
        k('buffer_store_dwordx4 v[8:11], v6, s[8:11], s28 offen sc1\ns_add_u32 s28, s28, 4096')
    k(f"""
    v_mov_b32 v60, -1
    v_mov_b32 v61, -1
    v_mov_b32 v62, -1
    v_mov_b32 v63, -1
    s_lshr_b32 s28, s30, 1
    s_mul_i32 s28, s28, 24576
    s_min_u32 s28, s28, {0xD0000 - 24576:#x}
    s_and_b32 s29, s30, 1
    s_lshl_b32 s29, s29, 20
    s_add_u32 s28, s28, s29
    s_add_u32 s28, s28, {ZM:#x}""")
    for j in range(6):
        k('buffer_store_dwordx4 v[60:63], v6, s[8:11], s28 offen sc1\ns_add_u32 s28, s28, 4096')
    k(f"""
    s_cmp_ge_u32 s30, 64
    s_cbranch_scc1 {p}_nl
    s_mov_b32 s34, 0x3f803f80
    s_mov_b32 s35, 0xffff0000
    s_lshl_b32 s28, s21, 7
    v_lshlrev_b32 v7, 3, v3
    v_add_u32 v7, s28, v7
    v_xor_b32 v6, 128, v7
    s_waitcnt vmcnt(12)""")
    for i in range(0, 40, 2):
        c = (lambda r: '0') if i == 0 else (lambda r: f'v{r}')
        k(f'v_dot2_f32_bf16 v12, v{16+i}, s34, {c(12)}')
        k(f'v_dot2_f32_bf16 v13, v{16+i}, v{16+i}, {c(13)}')
        k(f'v_dot2_f32_bf16 v14, v{17+i}, s34, {c(14)}')
        k(f'v_dot2_f32_bf16 v15, v{17+i}, v{17+i}, {c(15)}')
    k.nop(3)
    k('v_pk_add_f32 v[12:13], v[12:13], v[14:15]')
    for sw in ('v_permlane32_swap_b32', 'v_permlane16_swap_b32'):
        k(f'v_mov_b32 v14, v12\nv_mov_b32 v15, v13\ns_nop 1\n{sw} v12, v14\n{sw} v13, v15\nv_pk_add_f32 v[12:13], v[12:13], v[14:15]')
    k(f"""
    ds_write_b64 v7, v[12:13]
    s_waitcnt lgkmcnt(0)
    s_barrier
    ds_read_b64 v[14:15], v6
    s_mul_i32 s28, s21, 10240
    s_add_u32 s31, s31, s28
    s_waitcnt lgkmcnt(0)
    v_pk_add_f32 v[12:13], v[12:13], v[14:15]
    v_mul_f32 v12, {1.0/640!r}, v12
    v_mul_f32 v13, {1.0/640!r}, v13
    v_fma_f32 v13, -v12, v12, v13
    v_max_f32 v13, 0, v13
    v_add_f32 v13, 1e-5, v13
    v_rsq_f32 v14, v13
    s_nop 0
    v_mul_f32_e64 v12, -v12, v14""")
    for i in range(10):
        for j in range(4):
            r = 16 + 4 * i + j; tp = 56 + 2 * (j & 1)
            k(f'v_lshlrev_b32 v{tp}, 16, v{r}')
            k(f'v_and_b32 v{tp+1}, s35, v{r}')
            k(f'v_pk_fma_f32 {V(tp,2)}, {V(tp,2)}, v[14:15], v[12:13] op_sel_hi:[1,0,0]')
            k(f'v_cvt_pk_bf16_f32 v{r}, v{tp}, v{tp+1}')
        k(f'buffer_store_dwordx4 {V(16+4*i,4)}, v2, s[8:11], s31 offen offset:{1024*(i%4)} sc1')
        if i % 4 == 3: k('s_add_u32 s31, s31, 4096')
    k.label(f'{p}_nl')
    k('s_mov_b32 s34, 0\ns_mov_b32 s35, s30')
    init_done(k, p)

def gen_init_x(k, p):
    k(f"""
    s_load_dwordx2 s[28:29], s[0:1], {KA["mem0"]}
    v_lshlrev_b32 v5, 4, v0
    s_lshl_b32 s31, s30, 12
    v_add_u32 v8, s31, v5
    v_lshrrev_b32 v9, 8, v8
    v_bfe_u32 v10, v8, 5, 1
    v_lshl_add_u32 v9, v9, 1, v10
    v_bfe_u32 v10, v8, 6, 2
    v_bfe_u32 v11, v8, 4, 1
    v_lshl_add_u32 v10, v10, 1, v11
    v_mul_u32_u24 v10, 1280, v10
    v_lshl_add_u32 v10, v9, 4, v10
    v_mov_b32 v11, {BIG:#x}
    v_cmp_gt_u32 vcc, 10240, v8
    v_add_u32 v8, {M_OFF}, v8""")
    v_mbmap(k, 8, 9)
    k(f"""
    v_cndmask_b32 v10, v11, v10, vcc
    v_cndmask_b32 v8, v11, v8, vcc
    v_lshlrev_b32 v6, 2, v1
    s_mov_b32 s36, -1
    s_mov_b32 s37, -1
    s_lshl_b32 s38, s30, 14
    s_lshl_b32 s33, s21, 11
    s_add_u32 s38, s38, s33
    s_add_u32 s38, s38, {ZR + 0xB0000:#x}
    s_waitcnt lgkmcnt(0)""")
    k.srd(12, 28, 8 * 1280)
    k('buffer_load_dwordx4 v[16:19], v10, s[12:15], 0 offen\nbuffer_store_dword v6, v6, s[8:11], s38 offen sc1\ns_waitcnt vmcnt(0)')
    for rep in range(5):
        for hf in ((0, 1), (1, 0))[rep & 1]:
            k(f"""
            s_add_u32 s33, s38, {hf*8192 + rep*256 + 512}
            s_memtime s[40:41]
            s_waitcnt lgkmcnt(0)
            buffer_store_dword v6, v6, s[8:11], s33 offen sc1
            s_waitcnt vmcnt(0)
            s_memtime s[42:43]
            s_waitcnt lgkmcnt(0)
            s_sub_u32 s42, s42, s40
            s_min_u32 s{36+hf}, s{36+hf}, s42""")
    rot_wait(k, 12)
    k(f"""
    v_mov_b32 v12, -1
    v_mov_b32 v13, -1
    v_mov_b32 v14, -1
    v_mov_b32 v15, -1
    s_add_u32 s29, s31, {ST:#x}
    buffer_store_dwordx4 v[12:15], v5, s[8:11], s29 offen sc1
    s_and_b32 s28, s31, 0x7000
    s_add_u32 s29, s28, {ZR + 0xA0000:#x}
    buffer_store_dwordx4 v[12:15], v5, s[8:11], s29 offen sc1
    s_mov_b32 s28, {MB - 0x100000:#x}
    s_mov_b32 s29, {MB - 0x100000 + 8192:#x}
    v_min_u32 v16, -2, v16
    v_min_u32 v17, -2, v17
    v_min_u32 v18, -2, v18
    v_min_u32 v19, -2, v19
    buffer_store_dwordx4 v[16:19], v8, s[8:11], s28 offen sc1
    buffer_store_dwordx4 v[16:19], v8, s[8:11], s29 offen sc1
    s_cmp_lt_u32 s37, s36
    s_cselect_b32 s34, 1, 0
    s_lshl_b32 s28, s21, 2
    v_mov_b32 v4, s28
    v_mov_b32 v7, s34
    ds_write_b32 v4, v7
    v_mov_b32 v4, 0
    s_waitcnt lgkmcnt(0)
    s_barrier
    ds_read_b128 v[20:23], v4
    s_waitcnt lgkmcnt(0)
    v_add3_u32 v20, v20, v21, v22
    v_add_u32 v20, v20, v23
    s_nop 0
    v_readfirstlane_b32 s34, v20
    s_mov_b32 s35, 2""")
    init_done(k, p)

class Wmap:
    def __init__(self, keys, size, ldskeys):
        self.size = size; self.loc = {}; self.tmp = {}; self.slot = {}
        a = 0; v = 128; t = 32
        for key in keys:
            if key in ldskeys:
                self.tmp[key] = ('v', t); self.slot[key] = (t - 32) // 4; t += size
            elif a < 256:
                self.loc[key] = ('a', a); a += size
            else:
                self.loc[key] = ('v', v); v += size
        assert a == 256 and v == 256 and t == 128, (a, v, t)
    def ld(self, key):
        return self.loc.get(key) or self.tmp[key]

NT1 = ''
NT2 = ''
LST = False
def lstamp(k, c):
    if LST and c in (0, 3, 6, 9): k(f's_memrealtime s[{60+2*(c//3)}:{61+2*(c//3)}]')

def gen_loader(k, kind, sparse, wm):
    k.c('---- weight loader')
    for i in range(3):
        k(f'v_add_u32 v8, {64*i}, v1')
        k(f'v_mul_u32_u24 v9, 2731, v8')
        k(f'v_lshrrev_b32 v9, 16, v9')
        k(f'v_mul_u32_u24 v10, 24, v9')
        k(f'v_sub_u32 v10, v8, v10')
        k(f'v_mul_u32_u24 v9, 12288, v9')
        k(f'v_lshl_add_u32 v{4+i}, v10, 4, v9')
    k('''
    v_lshrrev_b32 v8, 3, v1
    v_mul_u32_u24 v8, 1280, v8
    v_and_b32 v9, 7, v1
    v_lshl_add_u32 v7, v9, 4, v8
    v_lshrrev_b32 v8, 4, v1
    v_bfe_u32 v9, v1, 2, 2
    v_and_b32 v10, 3, v1''')
    if sparse:
        k('''
        v_lshrrev_b32 v11, 1, v8
        v_lshlrev_b32 v11, 4, v11
        v_and_b32 v12, 1, v8
        v_lshl_add_u32 v11, v12, 2, v11
        v_and_b32 v12, 1, v9
        v_add_u32 v11, v11, v12
        v_lshrrev_b32 v12, 1, v9
        v_lshl_add_u32 v11, v12, 3, v11''')
    else:
        k('v_lshl_add_u32 v11, v8, 3, v9')
    k('v_mul_u32_u24 v11, 384, v11')
    k('v_lshl_add_u32 v11, v10, 3, v11')
    if kind == 'QK':
        k('''
        s_lshr_b32 s28, s21, 1
        s_mul_i32 s28, s28, 24576
        s_and_b32 s29, s21, 1
        s_mul_i32 s29, s29, 192
        s_add_u32 s28, s28, s29''')
    else:
        k('s_mul_i32 s28, s21, 96')
    k('v_add_u32 v11, s28, v11')
    if kind == 'VO':
        if sparse:
            k('v_and_b32 v12, 1, v9')
            k('v_lshrrev_b32 v13, 1, v9')
            k('v_lshl_add_u32 v12, v12, 1, v13')
            k('v_lshl_add_u32 v12, v8, 3, v12')
        else:      k('v_lshl_add_u32 v12, v8, 2, v9')
        k('v_lshlrev_b32 v12, 7, v12')
        k('v_lshl_add_u32 v12, v10, 3, v12')
        k('s_lshl_b32 s28, s21, 5')
        k('s_add_u32 s28, s28, 24576')
        k('v_add_u32 v12, s28, v12')
    k('''
    s_mul_i32 s30, s20, 384
    s_mul_i32 s28, s21, 196608
    s_add_u32 s30, s30, s28
    s_mul_i32 s31, s20, 245760
    s_mul_i32 s28, s21, 61440
    s_add_u32 s31, s31, s28
    s_mul_i32 s32, s21, 6144''')
    tick = {}
    def issue(c):
        slot = (c % 3) * 49152
        for m in range(2):
            for i in range(6):
                k(f's_add_u32 m0, s32, {slot + m*24576 + i*1024}')
                if m == 0 or kind == 'QK':
                    k(f's_add_u32 s33, s30, {c*786432 + (i//3)*98304}')
                    tick[c] = k.vm(f'buffer_load_dwordx4 v{4+i%3}, {S(12+4*m,4)}, s33 offen{NT1} lds')
                else:
                    k(f's_add_u32 s33, s31, {i*10240 + c*128}')
                    tick[c] = k.vm(f'buffer_load_dwordx4 v7, s[16:19], s33 offen{NT1} lds')
    for c in range(3): issue(c)
    for c in range(10):
        slot = (c % 3) * 49152
        k.wv(tick[c])
        k('s_barrier')
        lstamp(k, c)
        k(f'v_add_u32 v13, {slot}, v11')
        if kind == 'VO': k(f'v_add_u32 v14, {slot}, v12')
        nt = 6 if kind == 'QK' else 3
        for t in range(nt):
            for pi in range(4):
                fr, tq = pi >> 1, pi & 1
                if sparse:
                    key = (t, c) if kind == 'QK' else ('v', t, c)
                    dst = R(wm.ld(key), 2, 2 * pi); row = 32 * fr + 2 * tq
                else:
                    key = (t, 2 * c + fr) if kind == 'QK' else ('v', t, 2 * c + fr)
                    dst = R(wm.ld(key), 2, 2 * tq); row = 32 * fr + 4 * tq
                k.lds(f'ds_read_b64_tr_b16 {dst}, v13 offset:{row*384 + t*32}')
        if kind == 'VO':
            for kk in range(6):
                for hf in range(2):
                    if sparse:
                        dst = R(wm.ld(('o', c, kk >> 1)), 2, 4 * (kk & 1) + 2 * hf); row = 32 * kk + 4 * hf
                    else:
                        dst = R(wm.ld(('o', c, kk)), 2, 2 * hf); row = 32 * kk + 16 * hf
                    k.lds(f'ds_read_b64_tr_b16 {dst}, v14 offset:{row*128}')
        k.wl_all()
        k('s_barrier')
        if c + 3 < 10: issue(c + 3)
    k(f'''
    v_lshlrev_b32 v2, 4, v1
    s_mul_i32 s28, s21, 24576
    v_add_u32 v3, s28, v2''')
    for i in range(24):
        k.lds(f'ds_write_b128 v3, {V(32+4*i,4)} offset:{WL + 1024*i}')
    k.wl_all()

def stream(k, ops, loads, rings, dist, preissued=None, maxper=2, tail=(), group=1, minpos=None):
    first = {}; last = {}
    for i, (_, keys, _) in enumerate(ops):
        for key in keys:
            first.setdefault(key, i); last[key] = i
    for key, i in tail:
        first[key] = i; last[key] = i
    order = sorted(first, key=lambda x: first[x])
    reg = {}; tk = {}; pos = {}
    nxt = {n: 0 for n in rings}; occ = {}
    if preissued:
        for key, (r, t) in preissued.items():
            reg[key] = r; tk[key] = t
            ring = loads[key][0]
            if r in rings[ring]:
                occ[(ring, r)] = key
                nxt[ring] = (rings[ring].index(r) + 1) % len(rings[ring])
    for key in order:
        if key in reg: continue
        ring = loads[key][0]
        r = rings[ring][nxt[ring]]; nxt[ring] = (nxt[ring] + 1) % len(rings[ring])
        p = first[key] - dist
        if (ring, r) in occ: p = max(p, last[occ[(ring, r)]] + 1)
        if minpos and key in minpos: p = max(p, minpos[key])
        occ[(ring, r)] = key
        p = max(p, 0)
        assert p <= first[key] - first[key] % group, (key, p, first[key])
        reg[key] = r; pos[key] = p
    pend = sorted(pos, key=lambda x: (first[x]))
    tailkeys = set(key for key, _ in tail); tout = []
    def issue(key):
        for f in loads[key][1]:
            tk[key] = k.lds(f(reg[key]))
        pend.remove(key)
        if key in tailkeys: tout.append((key, reg[key]))
    for i, (fn, keys, post) in enumerate(ops):
        n = 0
        for key in list(pend):
            if pos[key] <= i and (n < maxper or first[key] <= i + group or i == 0):
                issue(key); n += 1
        if i % group == 0:
            need = [tk[key] for j in range(i, min(i + group, len(ops))) for key in ops[j][1]]
            if need: k.wl(max(need))
        k(fn(reg))
        for p in post:
            if callable(p): p()
            else: k(p)
    for key in list(pend): issue(key)
    return tout

def role_common(k, mats):
    w = dict(Wq=92, Wk=94, Wv=96, Wo=98)
    k.srd(12, w[mats[0]], WBYTES)
    k.srd(16, w[mats[1]], WBYTES)

def flag_addr(k, d):
    k(f'''
    s_lshl_b32 s28, s20, 7
    v_mov_b32 v{d}, {BIG:#x}
    v_mov_b32 v{d+1}, s28
    v_cmp_eq_u32 vcc, 0, v0
    s_nop 1
    v_cndmask_b32 v{d}, v{d}, v{d+1}, vcc
    v_mov_b32 v{d+1}, 1''')

MF = 'v_mfma_f32_16x16x32_bf16'
SM = 'v_smfmac_f32_16x16x64_bf16'

def regmap(keys, v0):
    loc = {}; a = 0; v = v0
    for key in keys:
        if a < 256: loc[key] = ('a', a); a += 4
        else: loc[key] = ('v', v); v += 4
    assert v == 256, v
    return loc

def gen_loader2(k, kind, loc, p, cfg, setup, start, after):
    k.c('---- weight loader')
    NS = 3; SB0 = 61440
    if kind == 'PJ':
        for i in range(3):
            k(f"""
            v_add_u32 v100, {64*i}, v1
            v_mul_u32_u24 v101, 2731, v100
            v_lshrrev_b32 v101, 16, v101
            v_mul_u32_u24 v102, 24, v101
            v_sub_u32 v102, v100, v102
            v_mul_u32_u24 v101, 12288, v101
            v_lshl_add_u32 v{96+i}, v102, 4, v101""")
    k("""
    v_lshrrev_b32 v100, 3, v1
    v_and_b32 v101, 7, v1
    v_lshlrev_b32 v101, 4, v101
    v_mul_u32_u24 v99, 12288, v100
    v_add_u32 v99, v99, v101""")
    if kind == 'VU':
        k('v_mul_u32_u24 v96, 1280, v100\nv_add_u32 v96, v96, v101')
    k("""
    v_lshrrev_b32 v100, 4, v1
    v_bfe_u32 v101, v1, 2, 2
    v_and_b32 v102, 3, v1
    v_lshl_add_u32 v103, v100, 3, v101
    v_lshlrev_b32 v104, 7, v103
    v_lshl_add_u32 v104, v102, 3, v104
    v_add_u32 v104, 24576, v104""")
    if kind == 'PJ':
        k("""
        v_mul_u32_u24 v103, 384, v103
        v_lshl_add_u32 v103, v102, 3, v103
        s_lshl_b32 s28, s21, 7
        v_add_u32 v103, s28, v103
        s_mul_i32 s80, s20, 384
        s_mul_i32 s28, s21, 196608
        s_add_u32 s80, s80, s28
        s_add_u32 s81, s80, s33""")
    else:
        k("""
        v_and_b32 v103, 1, v101
        v_lshlrev_b32 v103, 4, v103
        v_lshrrev_b32 v105, 1, v101
        v_add_u32 v103, v103, v105
        v_lshl_add_u32 v103, v100, 2, v103
        v_lshlrev_b32 v103, 7, v103
        v_lshl_add_u32 v103, v102, 3, v103
        s_lshl_b32 s28, s21, 5
        v_add_u32 v103, s28, v103
        s_lshr_b32 s28, s21, 1
        s_lshl_b32 s28, s28, 6
        v_add_u32 v104, s28, v104
        s_mul_i32 s80, s20, 245760
        s_mul_i32 s28, s21, 61440
        s_add_u32 s80, s80, s28
        s_mul_i32 s81, s20, 384
        s_mul_i32 s28, s21, 196608
        s_add_u32 s81, s81, s28
        s_add_u32 s81, s81, 256""")
    k('s_mul_i32 s82, s21, 6144\ns_lshl_b32 s84, s21, 11')
    tick = {}
    def issue(c):
        slot = SB0 + (c % NS) * 32768
        if 3 <= c: tick[c - 1] = k.vm('buffer_load_dwordx4 v[92:95], v100, s[88:91], 0 offen sc1')
        for i in range(6):
            k(f's_add_u32 m0, s82, {slot + i*1024}')
            if kind == 'PJ':
                k(f's_add_u32 s85, s80, {c*786432 + (i//3)*98304}')
                k.vm(f'buffer_load_dwordx4 v{96+i%3}, s[12:15], s85 offen{NT2} lds')
            else:
                k(f's_add_u32 s85, s80, {i*10240 + c*128}')
                k.vm(f'buffer_load_dwordx4 v96, s[12:15], s85 offen{NT2} lds')
        for i in range(2):
            k(f's_add_u32 m0, s84, {slot + 24576 + i*1024}')
            k(f's_add_u32 s85, s81, {c*786432 + i*98304}')
            tick[c] = k.vm(f'buffer_load_dwordx4 v99, s[16:19], s85 offen{NT2} lds')
    k('v_mov_b32 v100, 128\nv_mov_b32 v92, 0\nv_mov_b32 v93, 0\nv_mov_b32 v94, 0\nv_mov_b32 v95, 0\ns_mov_b32 s86, 0\nv_lshlrev_b32 v2, 4, v1')
    for c in range(NS): issue(c)
    setup()
    for c in range(10):
        slot = SB0 + (c % NS) * 32768
        k.wv(tick[c])
        k('s_barrier')
        lstamp(k, c)
        k(f'v_add_u32 v105, {slot}, v103')
        k(f'v_add_u32 v106, {slot}, v104')
        def areads(nt, areg, rs, keyf):
            for t in range(nt):
                for pi in range(4):
                    fr, tq = pi >> 1, pi & 1
                    k(f'ds_read_b64_tr_b16 {R(loc[keyf(t, 2*c+fr)], 2, 2*tq)}, v{areg} offset:{(32*fr+4*tq)*rs + t*32}')
        if kind == 'PJ':
            k(f's_cmp_eq_u32 s21, 3\ns_cbranch_scc1 {p}_l{c}v')
            areads(4, 105, 384, lambda t, kk: (t, kk))
            k(f's_branch {p}_l{c}e')
            k.label(f'{p}_l{c}v')
            areads(4, 106, 128, lambda t, kk: (t, kk))
            k.label(f'{p}_l{c}e')
        else:
            areads(2, 106, 128, lambda t, kk: ('v', t, kk))
            for kk in range(6):
                for hf in range(2):
                    k(f'ds_read_b64_tr_b16 {R(loc[("o", c, kk)], 2, 2*hf)}, v105 offset:{(32*kk+2*hf)*128}')
        k('s_waitcnt lgkmcnt(0)')
        if c + NS < 10 or c == 9: k('s_barrier')
        if c == 2:
            k(f'v_cmp_eq_u32 vcc, 0, v95\ns_cbranch_vccnz {p}_r0')
            rot_check(k, 95)
            k(f's_branch {p}_r1')
            k.label(f'{p}_r0')
            rot_wait(k, 101)
            k.label(f'{p}_r1')
        if 2 <= c <= 5:
            k(f's_cmp_lg_u32 s86, 0\ns_cbranch_scc1 {p}_g{c}\nv_min_u32 v101, v93, v94\nv_cmp_ne_u32 vcc, 0, v101')
            if c < 5: k(f's_cbranch_vccz {p}_g{c}')
            else:
                k(f's_cbranch_vccnz {p}_gs')
                load_sel(k, cfg, 101, 107)
                k.label(f'{p}_gs')
            start()
            k('s_mov_b32 s86, 1')
            k.label(f'{p}_g{c}')
        if c == 8:
            k(f'v_cmp_ne_u32 vcc, 0, v92\ns_cbranch_vccz {p}_gw')
            sel_from(k, cfg, 92)
            k(f's_branch {p}_gx')
            k.label(f'{p}_gw')
            load_sel(k, cfg, 101, 107)
            k.label(f'{p}_gx')
        if c + NS < 10: issue(c + NS)
        after(c)

def gen_pj(k, p, end, cfg={}):
    loc = regmap([(t, kk) for kk in range(20) for t in range(4)], 192)
    k(f"""
    s_cmp_eq_u32 s24, 0
    s_cselect_b64 s[28:29], s[94:95], s[92:93]
    s_lshl_b32 s33, s24, 7""")
    k.srd(12, 28, WBYTES)
    k.srd(16, 96, WBYTES)
    XB = 0
    def dma_list(slot):
        return [f's_add_u32 m0, s34, {slot}\ns_add_u32 s29, s35, 4096\nbuffer_load_dwordx4 v2, s[8:11], s35 offen sc1 lds'] + \
               [f'buffer_load_dwordx4 v2, s[8:11], s35 offen offset:{1024*i} sc1 lds' for i in (1, 2, 3)] + \
               [f's_add_u32 m0, m0, 4096\ns_add_u32 s35, s35, 20480\nbuffer_load_dwordx4 v2, s[8:11], s29 offen sc1 lds']
    def setup():
        flag_addr(k, 6)
        k(f"""
        s_mul_i32 s35, s21, 5120
        s_add_u32 s34, s35, {XB}
        s_lshl_b32 s38, s21, 11
        s_mul_i32 s28, s24, 12288
        s_sub_u32 s38, s38, s28
        s_add_u32 s38, s38, {QF + 12288:#x}
        s_lshl_b32 s28, s24, 11
        s_add_u32 s28, s28, {VF:#x}
        s_mov_b32 s44, 6144
        s_cmp_eq_u32 s21, 3
        s_cselect_b32 s38, s28, s38
        s_cselect_b32 s44, 4096, s44
        s_cselect_b32 s45, 1, 3
        s_lshl_b32 s28, s45, 13
        s_mul_i32 s28, s20, s28
        s_add_u32 s38, s38, s28
        s_lshl_b32 s45, s45, 18
        s_mov_b32 s36, {DUMMY + 4096:#x}
        s_mov_b32 s37, {DUMMY:#x}
        s_mul_i32 s43, s24, {FP1 - FQK:#x}
        s_add_u32 s43, s43, {FQK:#x}
        s_mov_b32 s40, 40960
        s_mov_b32 s41, 0
        s_mov_b32 s42, 20480
        v_add_u32 v4, {XB + 40960}, v2
        v_add_u32 v5, {XB}, v2""")
        for i in range(3):
            d = 24 + i
            k(f"""
            s_mul_i32 s28, s21, 12
            s_add_u32 s28, s28, {4*i}
            v_lshrrev_b32 v8, 4, v1
            v_add_u32 v8, s28, v8
            v_and_b32 v9, 15, v1
            v_lshlrev_b32 v9, 4, v9
            s_lshl_b32 s28, s20, 8
            v_lshl_add_u32 v{d}, v8, 14, v9
            v_add_u32 v{d}, s28, v{d}
            v_subrev_u32 v10, 40, v8
            v_lshl_add_u32 v10, v10, 8, v9
            s_mul_i32 s28, s20, 640
            v_add_u32 v11, s28, v10
            s_mul_i32 s28, s20, 384
            s_add_u32 s28, s28, {M_OFF - 640}
            v_add_u32 v12, s28, v10
            v_cmp_gt_u32 vcc, 640, v10
            s_nop 1
            v_cndmask_b32 v11, v12, v11, vcc""")
            v_mbmap(k, 11, 12)
            k(f"""
            v_add_u32 v11, {MB - ZM:#x}, v11
            v_mov_b32 v12, {BIG:#x}
            v_cmp_gt_u32 vcc, 1024, v10
            s_nop 1
            v_cndmask_b32 v11, v12, v11, vcc
            v_cmp_gt_u32 vcc, 40, v8
            s_nop 1
            v_cndmask_b32 v{d}, v11, v{d}, vcc""")
        k('s_cmp_eq_u32 s24, 0\ns_cselect_b64 vcc, -1, 0')
        for i in range(3): k(f'v_cndmask_b32 v{24+i}, v12, v{24+i}, vcc')
        k(f'v_mov_b32 v28, -1\nv_mov_b32 v29, -1\nv_mov_b32 v30, -1\nv_mov_b32 v31, -1\ns_mov_b32 s46, {ZM + 0x200000:#x}')
    def start():
        for slot in (0, 20480, 40960):
            for s_ in dma_list(slot): k(s_)
    def after(c):
        if c < 8: return
        ops = []; loads = {}
        for kk in (range(18) if c == 8 else range(18, 20)):
            for tt in range(2):
                loads[(kk, tt)] = ('x', [lambda r, kk=kk, tt=tt: f'ds_read_b128 {V(r,4)}, v2 offset:{XB + tt*20480 + kk*1024}'])
                for t in range(4):
                    acc = V((8, 76)[tt] + 4 * t, 4); c_ = '0' if kk == 0 else acc
                    ops.append((lambda rg, key=(t, kk), acc=acc, c_=c_, xk=(kk, tt): f'{MF} {acc}, {R(loc[key],4)}, {V(rg[xk],4)}, {c_}', [(kk, tt)], []))
        stream(k, ops, loads, dict(x=[32, 36, 40, 44, 48]), 12, maxper=1, group=4)
    gen_loader2(k, 'PJ', loc, p, cfg, setup, start, after)
    ustamp(k, cfg, 5)
    k('s_add_u32 s28, s38, s44')
    k.nop(4)
    for tt in range(2):
        a = (8, 76)[tt]
        for j in range(2):
            d = 52 + 8 * tt + 4 * j
            for i in range(4): k(f'v_cvt_pk_bf16_f32 v{d+i}, v{a+8*j+i}, v{a+8*j+4+i}')
            k(f'buffer_store_dwordx4 {V(d,4)}, v2, s[8:11], {"s38" if tt == 0 else "s28"} offen offset:{1024*j} sc1')
    k(f"""
    s_add_u32 s38, s38, s45
    s_mov_b32 s22, 1
    s_waitcnt vmcnt(0)
    s_barrier
    buffer_store_dword v7, v6, s[8:11], s43 offen sc1
    s_add_u32 s43, s43, 4096""")
    for s_ in dma_list('s41'): k(s_)
    ACC = (8, 76)
    XR = [96 + 4 * i for i in range(8)]
    NPF = 4
    for n in range(NPF): k.lds(f'ds_read_b128 {V(XR[n],4)}, v4 offset:{n*1024}')
    k.label(f'{p}_loop')
    k.lc += NPF; k.ld = k.lc - NPF
    pre = {('x', n): k.ld + 1 + n for n in range(NPF)}
    stamp(k, cfg, 0)
    mats = []; items = []; ev = []
    for n in range(NPF, 40 + NPF):
        u, kk = (n // 20) % 2, n % 20
        ev.append((4 * (n - NPF) + (0 if n & 1 else 4) - 3, dict(id=('x', n), kind='n', lds=True, fn=f'ds_read_b128 {V(XR[n%8],4)}, v{4+u} offset:{kk*1024}',
                   order=[('bar', n // 20 - 1)] if n >= 20 else [])))
    for u in range(2):
        a0 = ACC[u]; pa = ACC[1 - u]; b = 80 * u
        for kk in range(20):
            n = 20 * u + kk
            for t in range(4):
                acc = V(a0 + 4 * t, 4)
                need = [('x', n), ('x', n | 1)] if t == 0 and not (n & 1) else []
                mats.append((f'{MF} {acc}, {R(loc[(t,kk)],4)}, {V(XR[n%8],4)}, {"0" if kk == 0 else acc}', need))
        E = lambda g_, fn, **kw: ev.append((b + g_, dict(id=('e', u, len(ev)), kind='n', fn=fn, **kw)))
        for j in range(2):
            for i in range(4):
                it = dict(id=('c', u, j, i), kind='v', fn=f'v_cvt_pk_bf16_f32 v{64+4*j+i}, v{pa+8*j+i}, v{pa+8*j+4+i}', after=b + 3)
                if j == 0 and i == 0: it['states'] = (max(b - 1, 0), 8)
                items.append(it)
            E(6 + 4 * j, f'buffer_store_dwordx4 {V(64+4*j,4)}, v2, s[8:11], s36 offen offset:{1024*j} sc1', order=[('c', u, j, 3)])
        E(0, f's_add_u32 s28, s41, {XB}'); E(0, f'v_add_u32 v{5-u}, s28, v2')
        if u == 0:
            E(12, 's_mov_b32 s36, s38'); E(12, 's_add_u32 s38, s38, s45')
            if RING2 < 64:
                E(13, f's_and_b32 s87, s22, {RING2 - 1}'); E(13, f's_cmp_eq_u32 s87, {RING2 - 1}'); E(14, f's_cselect_b32 s87, {RING2}, 0'); E(14, 's_mul_i32 s87, s87, s45'); E(16, 's_sub_u32 s38, s38, s87')
            for i, s_ in enumerate(['s_lshr_b32 s47, s46, 21', 's_xor_b32 s47, s47, s53', 's_and_b32 s47, s47, 1', 's_xor_b32 s47, s47, 1', 's_lshl_b32 s47, s47, 13', 's_add_u32 s47, s47, s46', 's_add_u32 s46, s46, 0x100000',
                                     's_cmp_eq_u32 s22, 63', 's_cselect_b32 s47, 0xe00000, s47']):
                E(18 + i // 2, s_)
        else:
            E(12, 's_add_u32 s36, s36, s44'); E(12, 's_add_u32 s22, s22, 1')
        if u == 0:
            E(40, f's_cmp_lt_u32 s22, {cfg.get("pje", 6)}'); E(40, f's_cselect_b32 s49, s37, {DUMMY:#x}')
            E(57, f's_cbranch_scc0 {p}_ne\ns_waitcnt vmcnt(0)', label=f'{p}_ne')
            E(69, 'buffer_store_dword v7, v6, s[8:11], s49 offen sc1')
        E(58, f's_waitcnt vmcnt({6 if u else 2})')
        ev.append((b + 58, dict(id=('bar', u), kind='bar', fn='s_barrier')))
        E(59, 's_add_u32 m0, s34, s42'); E(59, 's_add_u32 s29, s35, 4096')
        for i in range(4): E(60 + 2 * i, f'buffer_load_dwordx4 v2, s[8:11], s35 offen offset:{1024*i} sc1 lds')
        E(67, 's_add_u32 m0, m0, 4096'); E(67, 's_add_u32 s35, s35, 20480')
        E(68, 'buffer_load_dwordx4 v2, s[8:11], s29 offen sc1 lds')
        if u == 0:
            for i in range(3): E(70 + 2 * i, f'buffer_store_dwordx4 v[28:31], v{24+i}, s[8:11], s47 offen sc1')
        else:
            E(70, 'buffer_store_dword v7, v6, s[8:11], s37 offen sc1')
            E(72, 's_mov_b32 s37, s43'); E(72, 's_add_u32 s43, s43, 4096')
        E(75, 's_mov_b32 s28, s40'); E(75, 's_mov_b32 s40, s41'); E(76, 's_mov_b32 s41, s42'); E(76, 's_mov_b32 s42, s28')
        if u == 1: E(78, 's_cmp_lt_u32 s22, 64')
    ev.sort(key=lambda x: x[0])
    for g_, it in ev:
        it['after'] = g_; items.append(it)
    sched(k, mats, items, [False] * 160, pre=pre)
    k(f's_cbranch_scc1 {p}_loop')
    k.wl_all(True)
    k.nop(4)
    for i in range(8):
        k(f'v_cvt_pk_bf16_f32 v{64+i}, v{76+8*(i//4)+i%4}, v{80+8*(i//4)+i%4}')
    for j in range(2):
        k(f'buffer_store_dwordx4 {V(64+4*j,4)}, v2, s[8:11], s36 offen offset:{1024*j} sc1')
    k(f"""
    s_waitcnt vmcnt(0)
    s_barrier
    buffer_store_dword v7, v6, s[8:11], s37 offen sc1
    s_branch {end}""")

def xn_ready(k, p, cfg):
    pass

def gen_vu(k, p, end, fail, cfg={}):
    loc = regmap([('v', t, kk) for kk in range(20) for t in range(2)] + [('o', ci, kk) for ci in range(10) for kk in range(6)], 112)
    role_common(k, ('Wo', 'Wv'))
    XB = 0; VX = 98304; NP = cfg.get('np', 3)
    def xdma():
        out = []
        for j in range(3):
            for i in range(4 if j < 2 else 2):
                pre_ = f's_add_u32 m0, s34, {4096*j}\ns_add_u32 s29, s35, {4096*j}\n' if i == 0 else ''
                out.append(pre_ + f'buffer_load_dwordx4 v2, s[8:11], s29 offen offset:{1024*i} sc1 lds')
        out[-1] += '\ns_add_u32 s35, s35, 40960'
        return out
    vdma = ['s_mov_b32 m0, s46\ns_xor_b32 s46, s46, 16384\nbuffer_load_dwordx4 v2, s[8:11], s45 offen sc1 lds',
            'buffer_load_dwordx4 v2, s[8:11], s45 offen offset:1024 sc1 lds\ns_add_u32 s45, s45, 262144']
    def setup():
        flag_addr(k, 6)
        k(f"""
        s_and_b32 s28, s21, 1
        s_mul_i32 s29, s28, 20480
        v_add_u32 v4, s29, v2
        v_add_u32 v5, {VX}, v2
        s_mul_i32 s28, s28, 6144
        s_lshr_b32 s29, s21, 1
        s_lshl_b32 s29, s29, 10
        s_add_u32 s28, s28, s29
        s_add_u32 s28, s28, 4096
        v_add_u32 v3, s28, v5
        v_and_b32 v108, 1, v1
        v_mul_u32_u24 v108, {FP1 - FQK:#x}, v108
        s_lshl_b32 s28, s20, 7
        v_add_u32 v108, s28, v108
        s_mul_i32 s35, s21, 10240
        s_add_u32 s34, s35, {XB}
        s_lshl_b32 s36, s21, 15
        s_lshl_b32 s28, s20, 10
        s_add_u32 s36, s36, s28
        s_add_u32 s36, s36, {UF:#x}
        s_mov_b32 s37, {DUMMY:#x}
        s_mov_b32 s43, {FU:#x}
        s_mov_b32 s44, {FQK:#x}
        s_mov_b32 s47, 1
        s_lshr_b32 s28, s21, 1
        s_mul_i32 s45, s28, 6144
        s_and_b32 s28, s21, 1
        s_lshl_b32 s28, s28, 11
        s_add_u32 s45, s45, s28
        s_add_u32 s46, s45, {VX}
        s_lshl_b32 s45, s21, 11
        s_lshl_b32 s28, s20, 13
        s_add_u32 s45, s45, s28
        s_add_u32 s45, s45, {VF:#x}""")
    def start():
        for s_ in xdma(): k(s_)
    gen_loader2(k, 'VU', loc, p, cfg, setup, start, lambda c: None)
    ustamp(k, cfg, 5)
    for j in range(3):
        k(f's_add_u32 m0, s34, {40960 + 4096*j}\ns_add_u32 s29, s35, {NP*40960 + 4096*j}')
        for i in range(4 if j < 2 else 2): k(f'buffer_load_dwordx4 v2, s[8:11], s29 offen offset:{1024*i} sc1 lds')
    k.label(f'{p}_loop')
    stamp(k, cfg, 0)
    k('s_barrier')
    stamp(k, cfg, 1)
    ops = []; loads = {}
    for kk in range(20):
        loads[('x', kk)] = ('x', [lambda r, kk=kk: f'ds_read_b128 {V(r,4)}, v4 offset:{kk*1024}'])
        for t in range(2):
            acc = V(8 + 4 * t, 4); c = '0' if kk == 0 else acc
            ops.append((lambda rg, key=('v', t, kk), acc=acc, c=c, kk=kk: f'{MF} {acc}, {R(loc[key],4)}, {V(rg[("x",kk)],4)}, {c}', [('x', kk)], []))
    stream(k, ops, loads, dict(x=[48 + 4 * i for i in range(8)]), 12, group=2)
    k(f's_cmp_eq_u32 s47, 0\ns_cbranch_scc1 {p}_nf')
    poll_flag(k, f'{p}_f0', 108, 's44', 109, fail, sleep=1)
    for s_ in vdma: k(s_)
    k.label(f'{p}_nf')
    k.nop(6)
    for i in range(4): k(f'v_cvt_pk_bf16_f32 v{32+i}, v{8+i}, v{12+i}')
    k.lds('ds_write_b128 v3, v[32:35]')
    k(f's_add_u32 s44, s44, 4096\ns_min_u32 s44, s44, {FQK + 63*4096:#x}')
    k.wl_all()
    stamp(k, cfg, 2)
    k('s_waitcnt vmcnt(0)')
    k('s_barrier')
    stamp(k, cfg, 3)
    pre = {}
    for kk in range(6):
        for tt in range(2):
            r = 48 + 4 * (2 * kk + tt)
            pre[('V', kk, tt)] = (r, k.lds(f'ds_read_b128 {V(r,4)}, v5 offset:{tt*6144 + kk*1024}'))
    k(f's_cmp_eq_u32 s22, {NP}\ns_cbranch_scc1 {p}_pl')
    k(f"""
    buffer_store_dword v7, v6, s[8:11], s37 offen sc1
    buffer_load_dword v109, v108, s[8:11], s44 offen sc1
    s_mov_b32 s37, s43
    s_add_u32 s43, s43, 4096
    s_mov_b32 s38, s36
    s_add_u32 s36, s36, 1310720
    v_xor_b32 v5, 16384, v5
    v_xor_b32 v3, 16384, v3""")
    ops = []; loads = {key: ('none', []) for key in pre}
    def epi(ci):
        a = 8 + 8 * (ci % 3); d = 32 + 4 * (ci % 3)
        return [f'v_cvt_pk_bf16_f32 v{d+i}, v{a+2*i}, v{a+2*i+1}' for i in range(4)] + \
               [f'buffer_store_dwordx4 {V(d,4)}, v2, s[8:11], s38 offen sc1\ns_add_u32 s38, s38, 131072']
    posts = {}
    xd = xdma()
    for i, s_ in enumerate(xd): posts.setdefault(12 * (i // 2) + 2 + 3 * (i % 2), []).append(s_)
    posts.setdefault(72, []).append('s_waitcnt vmcnt(15)\nv_cmp_eq_u32 vcc, 0, v109')
    def chk():
        k(f's_mov_b32 s47, 1\ns_cbranch_vccnz {p}_late\ns_mov_b32 s47, 0')
        for s_ in vdma: k(s_)
        k.label(f'{p}_late')
    posts.setdefault(74, []).append(chk)
    for ci in range(10):
        e = epi(ci - 1) if ci > 0 else []
        for n in range(12):
            kk, tt = n >> 1, n & 1
            acc = V(8 + 8 * (ci % 3) + 4 * tt, 4); c = '0' if kk == 0 else acc; vk = ('V', kk, tt)
            post = ([e[n - 7]] if 7 <= n < 7 + len(e) else []) + posts.get(12 * ci + n, [])
            ops.append((lambda rg, key=('o', ci, kk), acc=acc, c=c, vk=vk: f'{MF} {acc}, {V(rg[vk],4)}, {R(loc[key],4)}, {c}', [vk], post))
    stream(k, ops, loads, dict(none=[]), 12, preissued=pre)
    k.nop(8)
    for s_ in epi(9): k(s_)
    stamp(k, cfg, 4)
    k(f"""
    s_waitcnt vmcnt(0)
    s_barrier
    buffer_store_dword v7, v6, s[8:11], s37 offen sc1
    s_mov_b32 s37, {DUMMY:#x}
    s_add_u32 s22, s22, 1
    s_branch {p}_loop""")
    k.label(f'{p}_pl')
    k(f"""
    v_xor_b32 v5, 16384, v5
    v_xor_b32 v3, 16384, v3
    v_xor_b32 v4, 40960, v4
    s_mov_b32 s38, {DUMMY + 4096:#x}
    s_mov_b32 s48, 0
    s_add_u32 s35, s35, 40960""")
    k.label(f'{p}_pll')
    k.lc += 12; k.ld = k.lc - 12
    k.vd = k.vc
    pre = {('V', n): k.ld + 1 + n for n in range(12)}
    mats = []; items = []; ev = []; endt = {}
    uacc = lambda ci, tt: 8 + 8 * (ci & 1) + 4 * tt
    def utile(ci):
        for n in range(12):
            kk, tt = n >> 1, n & 1
            a = V(uacc(ci, tt), 4)
            mats.append((f'{MF} {a}, {V(48+4*n,4)}, {R(loc[("o",ci,kk)],4)}, {"0" if kk == 0 else a}', [('V', n)] if ci == 0 else []))
        endt[ci] = len(mats) - 1
    for ci in range(5): utile(ci)
    XR = [44, 96, 100, 104]
    for kk in range(20):
        ev.append((max(60 + 2 * kk - 7, 60 + 2 * (kk - 4) + 1), dict(id=('x', kk), kind='n', lds=True, fn=f'ds_read_b128 {V(XR[kk%4],4)}, v4 offset:{kk*1024}')))
        for t in range(2):
            a = V(24 + 4 * t, 4)
            mats.append((f'{MF} {a}, {R(loc[("v",t,kk)],4)}, {V(XR[kk%4],4)}, {"0" if kk == 0 else a}', [('x', kk)]))
    for ci in range(5, 10): utile(ci)
    def uepi(ci, e_):
        a = uacc(ci, 0); d = 32 + 4 * (ci & 1)
        for i in range(4):
            it = dict(id=('u', ci, i), kind='v', fn=f'v_cvt_pk_bf16_f32 v{d+i}, v{a+2*i}, v{a+2*i+1}', after=e_ + 3)
            if i == 0: it['states'] = (max(e_, 0), 8)
            items.append(it)
        ev.append((e_ + 7, dict(id=('us', ci), kind='n', vm=True, fn=f'buffer_store_dwordx4 {V(d,4)}, v2, s[8:11], s38 offen sc1', order=[('u', ci, 3)])))
        ev.append((e_ + 7, dict(id=('ua', ci), kind='n', fn='s_mov_b32 s38, s36' if ci == 9 else 's_add_u32 s38, s38, 131072')))
    uepi(9, -1)
    for ci in range(5): uepi(ci, endt[ci])
    for i in range(4):
        it = dict(id=('w', i), kind='v', fn=f'v_cvt_pk_bf16_f32 v{40+i}, v{24+i}, v{28+i}', after=102)
        if i == 0: it['states'] = (99, 8)
        items.append(it)
    ev.append((106, dict(id='ww', kind='n', lds=True, fn='ds_write_b128 v3, v[40:43]', order=[('w', 3)])))
    for ci in range(5, 9): uepi(ci, endt[ci])
    ev.append((1, dict(id='fl', kind='n', vm=True, fn='buffer_load_dword v109, v108, s[8:11], s44 offen sc1')))
    ev.append((12, dict(id='s0', kind='n', fn='s_add_u32 s49, s34, s48')))
    ev.append((13, dict(id='s1', kind='n', fn='s_add_u32 s36, s36, 1310720')))
    for i_, t_ in enumerate(wrap('s36', UF, 1310720).split('\n')): ev.append((16 + i_ // 2, dict(id=('wr', i_), kind='n', fn=t_)))
    ev.append((13, dict(id='s2', kind='n', fn='s_xor_b32 s48, s48, 40960')))
    g_ = 20
    for j in range(3):
        ev.append((g_, dict(id=('m', j), kind='n', fn=f's_add_u32 m0, s49, {4096*j}')))
        ev.append((g_, dict(id=('m2', j), kind='n', fn=f's_add_u32 s29, s35, {4096*j}')))
        g_ += 1
        for i in range(4 if j < 2 else 2):
            ev.append((g_, dict(id=('xd', j, i), kind='n', vm=True, fn=f'buffer_load_dwordx4 v2, s[8:11], s29 offen offset:{1024*i} sc1 lds'))); g_ += 2
    ev.append((g_, dict(id='s3', kind='n', fn='s_add_u32 s35, s35, 40960')))
    ev.append((68, dict(id='fc', kind='n', vdeps=['fl'], fn='v_cmp_eq_u32 vcc, 0, v109')))
    ev.append((70, dict(id='fb', kind='n', fn=f's_cbranch_vccnz {p}_plate', label=f'{p}_pon')))
    ev.append((70, dict(id='v0', kind='n', fn='s_mov_b32 m0, s46')))
    ev.append((72, dict(id='v1', kind='n', vm=True, fn='buffer_load_dwordx4 v2, s[8:11], s45 offen sc1 lds')))
    ev.append((74, dict(id='v2', kind='n', vm=True, fn='buffer_load_dwordx4 v2, s[8:11], s45 offen offset:1024 sc1 lds')))
    ev.append((108, dict(id='v3', kind='n', fn='s_xor_b32 s46, s46, 16384')))
    ev.append((108, dict(id='v4', kind='n', fn='s_add_u32 s45, s45, 262144')))
    for i_, t_ in enumerate(wrap('s45', VF, 262144, RING2).split('\n')): ev.append((116 + i_ // 2, dict(id=('wr2', i_), kind='n', fn=t_)))
    ev.append((109, dict(id='v5', kind='n', fn='s_add_u32 s44, s44, 4096')))
    ev.append((109, dict(id='v6', kind='n', fn=f's_min_u32 s44, s44, {FQK + 63*4096:#x}')))
    ev.append((140, dict(id='bar', kind='bar', deps=['ww'], vdeps=['v2'], fn='s_barrier')))
    ev.append((56, dict(id='bar0', kind='bar', vdeps=[('us', 9)], fn='s_barrier')))
    ev.append((58, dict(id='fs', kind='n', vm=True, fn='buffer_store_dword v7, v6, s[8:11], s37 offen sc1')))
    ev.append((144, dict(id='t0', kind='n', fn='s_mov_b32 s37, s43')))
    ev.append((144, dict(id='t1', kind='n', fn='s_add_u32 s43, s43, 4096')))
    ev.append((145, dict(id='t2', kind='n', fn='s_add_u32 s22, s22, 1')))
    ev.append((145, dict(id='t3', kind='n', fn='v_xor_b32 v4, 40960, v4')))
    ev.append((146, dict(id='t4', kind='n', fn='v_xor_b32 v3, 16384, v3')))
    for n in range(12):
        ev.append((148 + n - 0.1, dict(id=('R', n), kind='n', lds=True, fn=f'ds_read_b128 {V(48+4*n,4)}, v5 offset:{(n&1)*6144 + (n>>1)*1024}', g=148 + n)))
    ev.sort(key=lambda x: x[0])
    for g_, it in ev:
        it['after'] = it.get('g', g_); items.append(it)
    sched(k, mats, items, [False] * 160, pre=pre)
    k(f"""
    v_xor_b32 v5, 16384, v5
    s_cmp_lt_u32 s22, 64
    s_cbranch_scc1 {p}_pll""")
    k.wl_all(True)
    k.nop(4)
    for i in range(4): k(f'v_cvt_pk_bf16_f32 v{36+i}, v{16+2*i}, v{17+2*i}')
    k(f"""
    buffer_store_dwordx4 v[36:39], v2, s[8:11], s38 offen sc1
    s_waitcnt vmcnt(0)
    s_barrier
    buffer_store_dword v7, v6, s[8:11], s37 offen sc1
    s_branch {end}""")
    k.label(f'{p}_plate')
    poll_flag(k, f'{p}_f1', 108, 's44', 109, fail, sleep=2)
    k(f's_branch {p}_pon')

TMO = 400000
FAIL = 'mega_kernel_fail'
PL = 8
CS = 1600
SCL = (192 ** -0.5) * 1.4426950408889634

def region(k, d, sreg):
    k(f"""
    s_lshr_b32 s28, {sreg}, 1
    s_xor_b32 s28, s28, s53
    s_and_b32 s28, s28, 1
    s_xor_b32 s28, s28, 1
    s_lshl_b32 s28, s28, 13
    s_lshl_b32 s{d}, {sreg}, 20
    s_add_u32 s{d}, s{d}, s28
    s_add_u32 s{d}, s{d}, {MB:#x}""")

def sel_from(k, cfg, v):
    if LST: k('s_memrealtime s[68:69]')
    k(f'v_readfirstlane_b32 s53, v{v}')
    k('s_sub_u32 s53, s53, 1')
    if cfg.get('sel') is not None: k(f's_mov_b32 s53, {cfg["sel"]}')
    k(f"""
    s_and_b32 s53, s53, 1
    s_lshl_b32 s52, s53, 13
    s_add_u32 s52, s52, {ZR:#x}
    s_lshr_b32 s55, s25, 2
    s_and_b32 s55, s55, {cfg.get('nl', 16) - 1}
    s_mul_i32 s55, s55, {cfg.get('lstride', 256)}
    s_mov_b32 s58, 0""")

def load_sel(k, cfg, t=16, t2=18):
    l = k.newlabel('L_go')
    k(f'v_mov_b32 v{t}, 128\ns_mov_b32 s39, 0')
    k.label(l)
    k(f'buffer_load_dword v{t+1}, v{t}, s[88:91], 0 offen sc1')
    k(f'buffer_load_dword v{t2}, v{t}, s[88:91], 0 offen offset:12 sc1')
    tmo(k, FAIL)
    k(f's_waitcnt vmcnt(0)\nv_cmp_eq_u32 vcc, 0, v{t2}\ns_cbranch_vccnz {l}')
    rot_check(k, t2)
    k(f'v_cmp_ne_u32 vcc, 0, v{t+1}\ns_cbranch_vccnz {l}k\ns_sleep 3\ns_branch {l}')
    k.label(l + 'k')
    sel_from(k, cfg, t + 1)

def zregion(k, d, base):
    k(f"""
    s_lshr_b32 s28, s22, 1
    s_xor_b32 s28, s28, s53
    s_and_b32 s28, s28, 1
    s_xor_b32 s28, s28, 1
    s_lshl_b32 s28, s28, 13
    s_lshl_b32 s{d}, s22, 20
    s_add_u32 s{d}, s{d}, s28
    s_add_u32 s{d}, s{d}, s{base}""")

RING = 64
def wrap(reg, base, stride, n=None):
    n = n or RING
    if n >= 64: return 's_nop 0'
    return f's_cmp_ge_u32 {reg}, {base + n*stride:#x}\ns_cselect_b32 s87, {n*stride:#x}, 0\ns_sub_u32 {reg}, {reg}, s87'

def maxtree(k, d, regs):
    k(f'v_max3_u32 v{d}, v{regs[0]}, v{regs[1]}, v{regs[2]}')
    i = 3
    while i + 1 < len(regs):
        k(f'v_max3_u32 v{d}, v{d}, v{regs[i]}, v{regs[i+1]}'); i += 2
    if i < len(regs): k(f'v_max_u32 v{d}, v{d}, v{regs[i]}')

def tmo(k, fail):
    k(f's_add_u32 s39, s39, 1')
    k(f's_cmp_gt_u32 s39, {TMO}')
    k(f's_cbranch_scc1 {fail}')

def memaddr_setup(k, MEMB):
    k(f"""
    s_lshl_b32 s28, s21, 10
    v_add_u32 v7, s28, v2
    v_add_u32 v4, {M_OFF}, v7
    v_add_u32 v5, {M_OFF + 4096}, v7
    v_add_u32 v7, {MEMB}, v7
    v_and_b32 v8, 0x1ff, v2
    s_lshl_b32 s28, s21, 9
    v_add_u32 v8, s28, v8
    v_add_u32 v6, {M_OFF + 8192}, v8
    v_add_u32 v8, {MEMB + 8192}, v8
    v_add_u32 v9, {MEMB}, v2""")
    for d in (4, 5, 6): v_mbmap(k, d, 11)
    k("""
    v_and_b32 v11, 2, v1
    v_mov_b32 v10, 0x4444
    v_mov_b32 v12, 0xeeee
    v_cmp_ne_u32 vcc, 0, v11
    s_nop 1
    v_cndmask_b32 v10, v10, v12, vcc""")

def poll_mem(k, p, fail, D=0):
    twait(k, D)
    k('s_mov_b32 s39, 0')
    k.label(f'{p}_poll')
    for i in range(3):
        k(f'buffer_load_dwordx4 {V(16+4*i,4)}, v{4+i}, s[8:11], s40 offen sc1')
    tmo(k, fail)
    k('s_waitcnt vmcnt(0)')
    k('ds_write_b128 v7, v[16:19]')
    k('ds_write_b128 v7, v[20:23] offset:4096')
    k('ds_write_b128 v8, v[24:27]')
    maxtree(k, 11, list(range(16, 28)))
    k('v_cmp_eq_u32 vcc, -1, v11')
    k(f's_cbranch_vccnz {p}_poll')
    k('s_waitcnt lgkmcnt(0)')
    k('s_barrier')
    tref(k, D)
    k('s_add_u32 s58, s58, s39')

def tref(k, D):
    if D: k('s_memtime s[54:55]')

def twait(k, D):
    if not D: return
    l = k.newlabel('L_tw')
    k.label(l)
    k(f"""
    s_memtime s[56:57]
    s_waitcnt lgkmcnt(0)
    s_sub_u32 s56, s56, s54
    s_cmp_lt_u32 s56, {D}
    s_cbranch_scc1 {l}""")

def wload8(wm, key):
    return [lambda r, key=key: f'ds_read_b128 {V(r,4)}, v3 offset:{WL + wm.slot[key]*1024}',
            lambda r, key=key: f'ds_read_b128 {V(r+4,4)}, v3 offset:{WL + wm.slot[key]*1024 + 1024}']

def pairpost(a, b, d):
    return [f'v_permlane32_swap_b32 v{a+i}, v{b+i}' for i in range(4)] + \
           [f'v_add_f32 v{a+i}, v{a+i}, v{b+i}' for i in range(4)] + \
           [f'v_cvt_pk_bf16_f32 v{d}, v{a}, v{a+1}', f'v_cvt_pk_bf16_f32 v{d+1}, v{a+2}, v{a+3}']

def xlane(k, op, m, t):
    k(f"""
    v_mov_b32 v{t}, v{m}
    s_nop 1
    v_permlane32_swap_b32 v{m}, v{t}
    {op} v{m}, v{m}, v{t}
    v_mov_b32 v{t}, v{m}
    s_nop 1
    v_permlane16_swap_b32 v{m}, v{t}
    {op} v{m}, v{m}, v{t}""")

def stamp(k, cfg, idx):
    if cfg.get('hprof'):
        if idx == 0 or (idx == 2 and len(cfg['hprof']) < 4): k(f's_memtime s[{60+2*(4 if idx else 0)}:{61+2*(4 if idx else 0)}]')
        return
    if cfg.get('trace'):
        k(f's_memrealtime s[{60+2*idx}:{61+2*idx}]'); return
    if cfg.get('stamp') is None: return
    l = k.newlabel('L_st')
    k(f's_cmp_lg_u32 s22, {cfg["stamp"]}')
    k(f's_cbranch_scc1 {l}')
    k(f'{"s_memtime" if cfg.get("cyc") else "s_memrealtime"} s[{60+2*idx}:{61+2*idx}]')
    k.label(l)

def trace_out(k, cfg, t0):
    if not cfg.get('trace'): return
    k(f"""
    s_waitcnt lgkmcnt(0)
    s_lshl_b32 s28, s25, 2
    s_add_u32 s28, s28, s21
    s_lshl_b32 s28, s28, 6
    s_add_u32 s28, s28, s22
    s_lshl_b32 s28, s28, 5
    s_add_u32 s28, s28, {TRACE:#x}
    v_mov_b32 v{t0}, s60
    v_mov_b32 v{t0+1}, s62
    v_mov_b32 v{t0+2}, s64
    v_mov_b32 v{t0+3}, s66
    v_mov_b32 v{t0+4}, s68
    v_mov_b32 v{t0+5}, s59
    v_mov_b32 v{t0+8}, 0
    buffer_store_dwordx4 {V(t0,4)}, v{t0+8}, s[8:11], s28 offen
    buffer_store_dwordx2 {V(t0+4,2)}, v{t0+8}, s[8:11], s28 offen offset:16
    s_nop 1""")

def ustamp(k, cfg, idx):
    if cfg.get('stamp') is None or (LST and idx < 5): return
    k(f's_memrealtime s[{60+2*idx}:{61+2*idx}]')

HU1, HU2 = 0xA0000, 0xA4000

def delay(k, n):
    if n >= 64: k(f's_sleep {n // 64}')
    r = (n % 64) // 4
    if r: k.nop(r)

def hu_wait(k, p, base, starget, t0, fail, cfg, line=0):
    depth = cfg.get('depth', 3)
    nref = cfg.get('nref', 1)
    k(f's_add_u32 s28, s55, {base:#x}\nv_mov_b32 v{t0}, s28')
    k('s_mov_b32 s39, 0')
    k('s_waitcnt vmcnt(0)')
    for i in range(depth):
        k(f'buffer_load_dword v{t0+1+i}, v{t0}, s[8:11], s52 offen sc1')
        if i + 1 < depth: k.nop(cfg.get('spr', 16))
    k.label(f'{p}_hu')
    for i in range(depth):
        k(f's_waitcnt vmcnt({depth-1})')
        k(f'v_cmp_gt_i32 vcc, {starget}, v{t0+1+i}')
        k(f's_cbranch_vccz {p}_hud')
        k(f'buffer_load_dword v{t0+1+i}, v{t0}, s[8:11], s52 offen sc1')
    tmo(k, fail)
    k(f's_branch {p}_hu')
    k.label(f'{p}_hud')

class Gaps:
    def __init__(self, k): self.k = k

def pf_setup(k, sreg, mul, add, cfg):
    k(f"""
    s_lshr_b32 s28, s20, 2
    s_mul_i32 s28, s28, {mul}
    s_add_u32 s28, s28, {add}
    s_lshr_b32 s29, s28, 2
    s_lshl_b32 s29, s29, 17
    s_and_b32 s28, s28, 3
    s_lshl_b32 s28, s28, 13
    s_add_u32 s{sreg}, s28, s29
    s_and_b32 s28, s20, 3
    s_lshl_b32 s28, s28, 15
    s_add_u32 s{sreg}, s{sreg}, s28
    s_add_u32 s{sreg}, s{sreg}, {UF + cfg.get('pfa', 1) * 1310720:#x}""")

def mem_front(k, p, w, fail, cfg, own_ops, zero_regs, behind=None, nb=0):
    o0, o1 = 16 + 4 * w, 32 + 4 * w
    def ld():
        k(f'buffer_load_dwordx4 {V(o0,4)}, v4, s[8:11], s40 offen sc1')
        k(f'buffer_load_dwordx4 {V(o1,4)}, v5, s[8:11], s40 offen sc1')
        k(f'buffer_load_dwordx4 v[48:51], v6, s[8:11], s40 offen sc1')
    def take(x):
        k(f's_waitcnt vmcnt({2+x})')
        k(f'ds_write_b128 v7, {V(o0,4)}')
        k(f'v_max3_u32 v11, v{o0}, v{o0+1}, v{o0+2}')
        k(f's_waitcnt vmcnt({1+x})')
        k(f'ds_write_b128 v7, {V(o1,4)} offset:4096')
        k(f'v_max3_u32 v11, v11, v{o0+3}, v{o1}')
        k(f'v_max3_u32 v11, v11, v{o1+1}, v{o1+2}')
        k(f's_waitcnt vmcnt({x})')
        if cfg.get('cyc'): stamp(k, cfg, 3)
        k(f'ds_write_b128 v8, v[48:51]')
        k(f'v_max3_u32 v11, v11, v{o1+3}, v48')
        k(f'v_max3_u32 v11, v11, v49, v50')
        k(f'v_max_u32 v11, v11, v51')
        k('v_cmp_eq_u32 vcc, -1, v11')
    ld()
    if behind: behind()
    k('s_mov_b32 s39, 1')
    take(nb)
    k.label(f'{p}_go2')
    own = list(own_ops)
    nf = cfg.get('nfront', 3)
    for i in range(nf): k(own.pop(0))
    k(f's_cbranch_vccnz {p}_slow')
    k('s_waitcnt lgkmcnt(0)')
    k('s_barrier')
    if cfg.get('stamp') is not None: k('s_add_u32 s58, s58, s39')
    if cfg.get('trace'): k('s_mov_b32 s59, s39')
    def slow():
        k.label(f'{p}_slow')
        k('s_mov_b64 exec, vcc')
        ld()
        k('s_mov_b64 exec, -1')
        k.nop(3)
        for r in zero_regs[:4 * nf]: k(f'v_mov_b32 v{r}, 0')
        tmo(k, fail)
        take(0)
        k(f's_cbranch_vccnz {p}_slow')
        k(f's_branch {p}_go2')
    return own, slow

def sched(k, mats, items, sm, pre_n=0, pre=None):
    tk = dict(pre or {}); vt = {}
    nq = [it for it in items if it['kind'] in ('n', 'bar')]
    vq = [it for it in items if it['kind'] in ('v', 'v2')]
    done = set(); pos = 0; matpos = {}
    def ready(it, i):
        if it.get('after', -1) > i: return False
        if any(d not in done for d in it.get('order', [])): return False
        st = it.get('states')
        if st is not None and (st[0] not in matpos or pos - matpos[st[0]] < st[1]): return False
        return True
    def emit(it):
        nonlocal pos
        n0 = len(k.L)
        for d in it.get('deps', []): k.wl(tk[d])
        for d in it.get('vdeps', []): k.wv(vt[d])
        if it.get('lds'): tk[it['id']] = k.lds(it['fn'])
        elif it.get('vm'): vt[it['id']] = k.vm(it['fn'])
        else: k(it['fn'])
        if it.get('label'):
            k.label(it['label']); n0 += 1
        done.add(it['id']); it['pos'] = pos + len(k.L) - n0
        matpos[it['id']] = it['pos']
        used = len(k.L) - n0 + (1 if it['kind'] == 'v2' else 0)
        pos += len(k.L) - n0
        return used
    def waitneed(i):
        return i < len(mats) and any(d in tk and tk[d] > k.ld for d in mats[i][1])
    for _ in range(pre_n): emit(nq.pop(0))
    for i, (fn, need) in enumerate(mats):
        for d in need:
            while d not in tk:
                it = nq.pop(0); assert ready(it, i), (it, i); emit(it)
        n0 = len(k.L)
        if need: k.wl(max(tk[d] for d in need))
        k(fn); pos += len(k.L) - n0; matpos[i] = pos
        slots = 2
        wantv = bool(vq) and ready(vq[0], i)
        nmax = 1 if wantv else 2
        if waitneed(i + 1) and all(d in tk for d in mats[i + 1][1]):
            look = [tk[d] for j in range(i + 1, min(i + 4, len(mats))) for d in mats[j][1] if d in tk and tk[d] <= k.lc - 2 or (j == i + 1)]
            k.wl(max(look)); pos += 1; slots -= 1; nmax -= 1
        while nmax > 0 and slots > 0 and nq and ready(nq[0], i):
            it_ = nq.pop(0); u = emit(it_); slots -= u; nmax -= u
            for _ in range(it_.get('glue', 0)): slots -= emit(nq.pop(0))
        nv = 0
        while slots > 0 and vq and ready(vq[0], i) and (nv == 0 or not sm[i]):
            it_ = vq.pop(0); slots -= emit(it_); nv += 1
            for x in list(nq):
                if x.get('now') == it_['id']:
                    nq.remove(x); slots -= emit(x)
        if nv == 0 and slots > 0 and vq and vq[0].get('states') and vq[0]['states'][0] in matpos and vq[0].get('after', -1) <= i + 3:
            k.nop(slots); pos += slots
    while nq or vq:
        cand = [q for q in (vq, nq) if q and ready(q[0], len(mats))]
        if cand: emit(cand[0].pop(0))
        else: k.nop(1); pos += 1
    return tk, pos, matpos

def gen_h(k, p, end, fail, cfg):
    keys = [(t, ks) for pr in range(3) for ks in range(10) for t in (2 * pr, 2 * pr + 1)]
    ldsk = [(t, ks) for pr in range(3) for ks in (8, 9) for t in (2 * pr, 2 * pr + 1)]
    wm = Wmap(keys, 8, set(ldsk))
    role_common(k, ('Wq', 'Wk'))
    gen_loader(k, 'QK', True, wm)
    ustamp(k, cfg, 5)
    load_sel(k, cfg)
    MEMB = 98304; QKT = MEMB + 10240; ZER = QKT + 4 * CS + 128; KXB = 131072
    RING = [80, 88, 96, 104, 112]
    hu = cfg.get('hu', 1)
    memaddr_setup(k, MEMB)
    k(f"""
    v_and_b32 v11, 15, v1
    v_lshrrev_b32 v12, 2, v11
    v_mul_u32_u24 v12, 272, v12
    v_lshrrev_b32 v13, 4, v1
    v_lshl_add_u32 v121, v13, 4, v2
    v_add_u32 v121, {QKT}, v121
    v_lshl_add_u32 v12, v13, 5, v12
    v_and_b32 v13, 3, v1
    v_lshl_add_u32 v12, v13, 2, v12
    s_lshr_b32 s28, s21, 1
    s_lshl_b32 s28, s28, 7
    s_and_b32 s29, s21, 1
    s_mul_i32 s29, s29, 3264
    s_add_u32 s28, s28, s29
    s_add_u32 s28, s28, {QKT}
    v_add_u32 v120, s28, v12
    v_add_u32 v126, 1088, v120
    v_add_u32 v127, 2176, v120
    v_add_u32 v0, {KXB}, v2
    s_mul_i32 s48, s21, 3072
    s_add_u32 s47, s48, {KXB}
    s_mul_i32 s28, s20, 24576
    s_add_u32 s48, s48, s28
    s_add_u32 s48, s48, {QF + 12288:#x}
    s_lshl_b32 s28, s20, 7
    v_mov_b32 v122, s28
    s_mov_b32 s43, {FQK:#x}""")
    def kxdma():
        k('s_mov_b32 m0, s49')
        k('s_xor_b32 s47, s47, 16384')
        for i in range(3):
            k(f'buffer_load_dwordx4 v2, s[8:11], s48 offen offset:{1024*i} sc1 lds')
        k('s_mov_b32 s49, s47')
        k('s_add_u32 s48, s48, 786432')
        k(wrap('s48', QF, 786432, RING2))
    poll_flag(k, f'{p}_pz', 122, 's43', 17, fail, sleep=1)
    k('s_mov_b32 s49, s47')
    kxdma()
    k(f's_sub_u32 s49, s47, {KXB + 16384 - 116736}')
    k(f"""
    v_lshrrev_b32 v13, 4, v1
    s_waitcnt lgkmcnt(0)
    s_mov_b32 s22, 0
    s_cmp_eq_u32 s21, 0
    s_cbranch_scc1 {p}_w0
    s_cmp_eq_u32 s21, 1
    s_cbranch_scc1 {p}_w1
    s_cmp_eq_u32 s21, 2
    s_cbranch_scc1 {p}_w2
    s_branch {p}_w3""")
    slows = []
    def main(pp, w):
        pr_ = [f'v_mov_b32 v{56+i}, 0' for i in range(24)] + [f(RING[i]) for i, key in enumerate(ldsk[:5]) for f in wload8(wm, key)]
        h1n = cfg.get('h1n', 4)
        if w == 3 and h1n >= 0: pr_.insert(h1n, 'buffer_store_dword v15, v123, s[8:11], s52 offen sc1\nv_mov_b32 v15, s22')
        if w == 3 and h1n < 0: pr_.append('v_mov_b32 v15, s22')
        for s_ in pr_: (k.lds if s_.startswith('ds_') else k)(s_)
        k('s_sub_u32 s46, s22, 1')
        region(k, 40, 's46')
        if w == 0: region(k, 41, 's22')
        k.wl_all()
        k('s_waitcnt vmcnt(0)')
        if cfg.get('trace'): stamp(k, cfg, 3)
        if hu and cfg.get('nref2', 1) > 1: k('s_barrier')
        if hu and w < cfg.get('nref2', 1):
            k('s_sub_u32 s46, s22, 1')
            hu_wait(k, pp, HU2, 's46', 52 - 4 * (w == 0) * 8, fail, cfg, w)
            delay(k, cfg.get('d2', 0))
        k('s_barrier')
        if cfg.get('trace'): stamp(k, cfg, 4)
        wreg = {key: R(wm.loc[key], 8) for key in wm.loc}
        for i, key in enumerate(ldsk): wreg[key] = V(RING[i % 5], 8)
        smt = lambda t, ks: f'{SM} {V(56+4*t,4)}, {V(16+4*ks,4)}, {wreg[(t,ks)]}, v10'
        own, slow = mem_front(k, pp, w, fail, cfg, [smt(t, ks) for ks in (w, w + 4) for t in range(6)], list(range(56, 80)), *((kxdma, 3) if not cfg.get('kxlate', 1) else ()))
        slows.append(slow)
        if w == 0 or cfg.get('trace'): stamp(k, cfg, 0)
        rest = [ks for ks in range(8) if ks not in (w, w + 4)]
        order = [rest[:3] + [8] + rest[3:] + [9], rest[:2] + [8] + rest[2:5] + [9] + rest[5:], [8] + rest[:1] + [9] + rest[1:]]
        mats = []; items = []; idx = {}
        for n_, ks in enumerate(order[0]):
            it = dict(id=('A', ks), kind='n', lds=True, fn=f'ds_read_b128 {V(16+4*ks,4)}, v9 offset:{1024*ks}')
            items.append(it)
        for s_ in own: mats.append((s_, []))
        for pr in range(3):
            sq = [(t, ks) for ks in order[pr] for t in (2 * pr, 2 * pr + 1)]
            if pr == 2: sq = sq[:-6] + sq[-6::2] + sq[-5::2]
            for (t, ks) in sq:
                need = [('A', ks)] if pr == 0 else []
                if (t, ks) in ldsk[5:]: need = need + [('W', t, ks, 1)]
                idx[(t, ks)] = len(mats)
                mats.append((smt(t, ks), need))
        nsm = len(mats)
        endp = [idx[(2 * pr + 1, order[pr][-1])] for pr in range(3)]
        ev = []
        for i, key in enumerate(ldsk[5:]):
            for h_, f in enumerate(wload8(wm, key)):
                ev.append((max(idx[ldsk[i]], idx[key] - 16), dict(id=('W',) + key + (h_,), kind='n', lds=True, fn=f(RING[i % 5]), after=idx[ldsk[i]])))
        for pr in range(3):
            a = 56 + 8 * pr
            e0 = idx[(2 * pr, order[pr][-1])]
            if pr == 2 and w != 0:
                items.append(dict(id=('p', pr, 0), kind='v', fn=f'v_pk_add_f32 {V(a,2)}, {V(a,2)}, {V(a+2,2)}', states=(e0, 8), after=endp[pr]))
                items.append(dict(id=('p', pr, 1), kind='v', fn=f'v_pk_add_f32 {V(a+4,2)}, {V(a+4,2)}, {V(a+6,2)}', states=(endp[pr], 8)))
            else:
                items.append(dict(id=('p', pr, 0), kind='v', fn=f'v_add_f32 v{a}, v{a}, v{a+2}', states=(e0, 8), after=e0 + 1))
                items.append(dict(id=('p', pr, 5), kind='v', fn=f'v_add_f32 v{a+1}, v{a+1}, v{a+3}'))
                items.append(dict(id=('p', pr, 1), kind='v', fn=f'v_add_f32 v{a+4}, v{a+4}, v{a+6}', states=(endp[pr], 8)))
                items.append(dict(id=('p', pr, 6), kind='v', fn=f'v_add_f32 v{a+5}, v{a+5}, v{a+7}'))
            items.append(dict(id=('p', pr, 2), kind='v', fn=f'v_cvt_pk_bf16_f32 v124, v{a}, v{a+4}'))
            items.append(dict(id=('p', pr, 3), kind='v', fn=f'v_cvt_pk_bf16_f32 v125, v{a+1}, v{a+5}'))
            wgap = endp[pr] + (8 if pr < 2 else 4)
            ev.append((wgap, dict(id=('pw', pr), kind='n', lds=True, fn=f'ds_write2_b32 v{(120,126,127)[pr]}, v124, v125 offset0:0 offset1:4', order=[('p', pr, 3)], now=('p', pr, 3) if pr == 2 else None)))
        if cfg.get('kxlate', 1):
            kd = K(); sv = k.L; k.L = kd.L; kxdma(); k.L = sv
            for i_, t_ in enumerate(kd.L): ev.append((3 + (0, 0, 1, 2, 3, 4, 4, 6, 6, 7)[i_], dict(id=('kx', i_), kind='n', fn=t_.strip())))
        if cfg.get('pf', 1) and w >= 2:
            ev.append((10, dict(id='pf', kind='n', fn='buffer_load_dword v12, v13, s[8:11], s50 offen sc1')))
            ev.append((10, dict(id='pf2', kind='n', fn='s_add_u32 s50, s50, 1310720')))
        bx = endp[1] + cfg.get('bx', 14)
        bw = endp[0] + 15
        ev.append((bw, dict(id='barW', kind='bar', fn='s_barrier', deps=[('pw', 0)], after=bw, order=[('pw', 0)])))
        ev.append((bx, dict(id='barX', kind='bar', fn='s_barrier', deps=[('pw', 1)], after=bx, order=[('pw', 1)])))
        sm = [True] * nsm
        if w == 0:
            kko = [0, 3, 1, 4, 2, 5]
            kxo = [6 * kt + kk for kk in kko for kt in range(2)]
            kxr = [(16 + 4 * w, endp[0] + 1, None), (32 + 4 * w, endp[0] + 2, None), (56, endp[0] + 10, ('p', 0, 3)), (60, endp[0] + 11, ('p', 0, 3))] + \
                  [(16 + 4 * ks, idx[(5, ks)], None) for ks in order[2]]
            kxreg = {}
            for i, (r, g_, o_) in zip(kxo, kxr):
                kxreg[i] = r
                ev.append((g_, dict(id=('K', i), kind='n', lds=True, fn=f'ds_read_b128 {V(r,4)}, v0 offset:{1024*i}', after=g_, order=[o_] if o_ else [])))
            seq = []
            for kk in kko[:4]: seq += [('x0', kk), ('x1', kk), ('m', kk)]
            seq += [('m', 2), ('m', 5), ('x1', 2), ('x1', 5), ('x0', 2), ('x0', 5)]
            by = nsm + cfg.get('by', 8)
            FR = {0: 96, 3: 100, 1: 80, 4: 84, 2: 88, 5: 92}
            for kk in kko:
                bar, g_ = {0: ('barW', endp[1] + 9), 1: ('barX', bx), 2: ('barY', by)}[kk % 3]
                ev.append((g_ + 0.5, dict(id=('F', kk), kind='n', lds=True, order=[bar], fn=f'ds_read_b128 {V(FR[kk],4)}, v121 offset:{1088*kk}')))
            ev.append((by, dict(id='barY', kind='bar', fn='s_barrier', deps=[('pw', 2)], after=by, order=[('pw', 2)], glue=2)))
            started = set()
            for j_, (ty, kk) in enumerate(seq):
                F = V(FR[kk], 4); d_ = {'x0': 'v[64:67]', 'x1': 'v[68:71]', 'm': 'v[116:119]'}[ty]
                c_ = d_ if ty in started else ('v[12:15]' if ty == 'm' else '0'); started.add(ty)
                i_ = kk + (6 if ty == 'x1' else 0)
                need = [('F', kk)] + ([] if ty == 'm' else [('K', i_)])
                if j_ == 0: need = [('F', 0), ('F', 3), ('K', 0), ('K', 6), ('K', 3), ('K', 9)]
                if j_ == 6: need = [('F', 1), ('F', 4), ('K', 1), ('K', 7), ('K', 4), ('K', 10)]
                mats.append((f'{MF} {d_}, {F if ty == "m" else V(kxreg[i_],4)}, {F}, {c_}', need))
                sm.append(False)
            lm = nsm + 13
            UP = 'row_ror:8 row_mask:0xf bank_mask:0xc'
            items.append(dict(id='c0', kind='v', fn='v_max3_f32 v72, v116, v117, v118', states=(lm, 8), after=lm))
            items.append(dict(id='c1', kind='v', fn='v_max_f32 v72, v72, v119'))
            items.append(dict(id='c2', kind='v', fn=f'v_mov_b32_dpp v116, v118 {UP}'))
            items.append(dict(id='c3', kind='v', fn=f'v_mov_b32_dpp v117, v119 {UP}'))
            items.append(dict(id='c4', kind='v', fn='v_max3_f32 v72, v72, v68, v69', states=(nsm + 15, 8)))
            items.append(dict(id='c5', kind='v', fn='v_max3_f32 v72, v72, v70, v71'))
            items.append(dict(id='c6', kind='v', fn='v_max3_f32 v72, v72, v64, v65', states=(nsm + 17, 8)))
        else:
            ev.append((nsm + 99, dict(id='barY', kind='bar', fn='s_barrier', deps=[('pw', 2)], order=[('pw', 2)])))
            if w == 3 and h1n < 0:
                g_ = {-1: nsm + 100, -2: nsm + 98}.get(h1n, nsm + 2 + h1n)
                ev.append((g_, dict(id='hu1', kind='n', fn='buffer_store_dword v15, v123, s[8:11], s52 offen sc1')))
        for i_, g_ in enumerate(cfg.get('hprof', ())):
            if g_ < len(mats): ev.append((g_ - 0.01, dict(id=('hp', i_), kind='n', fn=f's_memtime s[{62+2*i_}:{63+2*i_}]', after=g_)))
        ev.sort(key=lambda x: x[0])
        for g_, it in ev:
            it['after'] = max(it.get('after', -1), min(int(g_), len(mats)) if g_ < len(mats) else len(mats))
            items.append(it)
        sched(k, mats, items, sm, pre_n=2)
        if w == 0 or cfg.get('trace'): stamp(k, cfg, 1)
    def loop_end(pp):
        if not pp.endswith('w3'): trace_out(k, cfg, 56)
        k(f"""
        s_add_u32 s22, s22, 1
        s_cmp_lt_u32 s22, 64
        s_cbranch_scc1 {pp}_loop
        s_branch {end}""")
    k.label(f'{p}_w0')
    k(f"""
    s_mul_i32 s28, s20, 640
    v_and_b32 v12, 7, v1
    v_lshlrev_b32 v12, 4, v12
    v_lshl_add_u32 v122, v13, 7, v12
    v_lshrrev_b32 v14, 3, v11
    v_lshl_add_u32 v122, v14, 3, v122
    v_add_u32 v122, s28, v122
    v_lshl_add_u32 v123, v14, 2, v12
    v_and_b32 v14, 1, v13
    v_lshl_add_u32 v123, v14, 3, v123
    s_add_u32 s28, s28, 512
    v_add_u32 v123, s28, v123""")
    v_mbmap(k, 122, 12); v_mbmap(k, 123, 12)
    k(f"""
    v_cmp_lt_u32 s[44:45], 1, v13
    v_mov_b32 v12, {BIG:#x}
    v_cmp_lt_u32 vcc, 1, v13
    v_mov_b32 v1, {SCL!r}
    s_nop 0
    v_cndmask_b32 v123, v12, v123, vcc
    v_mov_b32 v12, 0xff800000
    v_cndmask_b32_e64 v12, v12, 0, vcc
    v_mov_b32 v13, v12
    v_mov_b32 v14, v12
    v_mov_b32 v15, v12
    s_mov_b32 s42, {SCL!r}
    s_mov_b32 s43, {SCL!r}""")
    k.label(f'{p}_w0_loop')
    main(f'{p}_w0', 0)
    UP = 'row_ror:8 row_mask:0xf bank_mask:0xc'
    HUS = 'buffer_store_dword v11, v1, s[8:11], s52 offen sc1'
    NEG = 'op_sel_hi:[1,1,0] neg_lo:[0,0,1] neg_hi:[0,0,1]'
    k(f"""
    v_max3_f32 v72, v72, v66, v67
    v_mov_b32 v73, v72
    v_mov_b32_dpp v64, v68 {UP}
    v_mov_b32_dpp v65, v69 {UP}
    v_permlane32_swap_b32 v72, v73
    v_max_f32 v72, v72, v73
    v_mov_b32 v73, v72
    v_mov_b32_dpp v66, v70 {UP}
    v_mov_b32_dpp v67, v71 {UP}
    v_permlane16_swap_b32 v72, v73
    v_max_f32 v72, v72, v73
    v_mul_f32 v74, v72, v1
    v_xor_b32 v0, 16384, v0
    v_mul_f32_dpp v74, v72, v1 {UP}
    v_pk_fma_f32 v[64:65], v[64:65], s[42:43], v[74:75] {NEG}
    v_pk_fma_f32 v[66:67], v[66:67], s[42:43], v[74:75] {NEG}
    v_pk_fma_f32 v[116:117], v[116:117], s[42:43], v[74:75] {NEG}
    v_exp_f32 v64, v64
    v_exp_f32 v65, v65
    v_exp_f32 v66, v66
    v_exp_f32 v67, v67
    v_exp_f32 v116, v116
    v_exp_f32 v117, v117
    v_pk_add_f32 v[72:73], v[64:65], v[66:67]
    v_pk_add_f32 v[72:73], v[72:73], v[116:117]
    v_add_f32 v72, v72, v73
    s_nop 0
    s_nop 0
    v_add_f32_dpp v72, v72, v72 row_ror:8 row_mask:0xf bank_mask:0xf""")
    xlane(k, 'v_add_f32', 72, 73)
    k(f"""
    v_rcp_f32 v72, v72
    s_nop 0
    v_pk_mul_f32 v[64:65], v[64:65], v[72:73] op_sel_hi:[1,0]
    v_pk_mul_f32 v[66:67], v[66:67], v[72:73] op_sel_hi:[1,0]
    v_cvt_pk_bf16_f32 v74, v64, v65
    v_cvt_pk_bf16_f32 v75, v66, v67
    buffer_store_dwordx2 v[74:75], v122, s[8:11], s41 offen sc1
    v_pk_mul_f32 v[116:117], v[116:117], v[72:73] op_sel_hi:[1,0]
    v_cvt_pk_bf16_f32 v76, v116, v117
    buffer_store_dword v76, v123, s[8:11], s41 offen sc1""")
    stamp(k, cfg, 2)
    loop_end(f'{p}_w0')
    k.label(f'{p}_w1')
    k(f"""
    v_mov_b32 v123, v122
    v_lshlrev_b32 v12, 4, v11
    v_lshl_add_u32 v122, v13, 7, v12
    v_subrev_u32 v122, 128, v122
    v_mov_b32 v12, {BIG:#x}
    v_cmp_lt_u32 vcc, 7, v11
    s_nop 1
    v_cndmask_b32 v122, v12, v122, vcc
    v_cmp_eq_u32 vcc, 0, v1
    s_nop 1
    v_cndmask_b32 v123, v12, v123, vcc
    v_mov_b32 v14, 1
    s_mul_i32 s42, s20, 3072
    s_add_u32 s42, s42, {KM:#x}
    s_mov_b32 s43, {FKM:#x}""")
    k.label(f'{p}_w1_loop')
    main(f'{p}_w1', 1)
    delay(k, cfg.get('kmdelay', 0))
    tk = []
    for kk in range(6):
        tk.append(k.lds(f'ds_read_b128 {V(88+4*kk,4)}, v121 offset:{1088*kk}'))
    for kk in range(6):
        k.wl(tk[kk])
        k(f'buffer_store_dwordx4 {V(88+4*kk,4)}, v122, s[8:11], s42 offen offset:{512*kk} sc1')
    k(f"""
    s_waitcnt vmcnt(0)
    buffer_store_dword v14, v123, s[8:11], s43 offen sc1
    s_add_u32 s42, s42, 98304
    s_add_u32 s43, s43, 4096""")
    loop_end(f'{p}_w1')
    k.label(f'{p}_w2')
    pf_setup(k, 50, 2, 0, cfg)
    k('v_lshlrev_b32 v13, 7, v1')
    k.label(f'{p}_w2_loop')
    k(f's_add_u32 s43, s43, 4096')
    k(f's_min_u32 s43, s43, {FQK + 63*4096:#x}')
    k(f's_cmp_eq_u32 s22, 0\ns_cbranch_scc1 {p}_w2_go\ns_cmp_lg_u32 s22, 1\ns_cbranch_scc1 {p}_w2_n1\ns_sub_u32 s44, s43, 4096')
    poll_flag(k, f'{p}_w2_f1', 122, 's44', 16, fail, sleep=2)
    k(f's_mul_i32 s28, s20, 24576\ns_add_u32 s28, s28, {QF + 12288 + 786432:#x}')
    for j in range(3):
        k(f's_mov_b32 m0, {KXB + 16384 + 4096*j}\ns_add_u32 s29, s28, {4096*j}')
        for i in range(4): k(f'buffer_load_dwordx4 v2, s[8:11], s29 offen offset:{1024*i} sc1 lds')
    k.label(f'{p}_w2_n1')
    poll_flag(k, f'{p}_w2_fl', 122, 's43', 16, fail, sleep=2)
    k.label(f'{p}_w2_go')
    main(f'{p}_w2', 2)
    loop_end(f'{p}_w2')
    k.label(f'{p}_w3')
    k(f"""
    s_cmp_eq_u32 s20, {cfg.get('ref1', 0)}
    s_cselect_b32 s28, {cfg.get('nl', 16)}, 0
    v_cmp_gt_u32 vcc, s28, v1
    v_mul_u32_u24 v14, {cfg.get('lstride', 256)}, v1
    v_add_u32 v14, {HU1:#x}, v14
    v_mov_b32 v12, {BIG:#x}
    v_cndmask_b32 v123, v12, v14, vcc
    v_mov_b32 v15, -1
    v_lshlrev_b32 v13, 7, v1""")
    pf_setup(k, 50, 2, 1, cfg)
    k.label(f'{p}_w3_loop')
    main(f'{p}_w3', 3)
    loop_end(f'{p}_w3')
    for f in slows: f()

def gen_z(k, p, end, fail, cfg):
    keys = [('v', t, ks) for ks in range(10) for t in range(3)] + [('o', ci, ks) for ci in range(10) for ks in range(3)]
    l1 = [('v', 0, 8), ('v', 0, 9), ('v', 1, 8), ('v', 2, 8), ('v', 1, 9)]
    l2 = [('o', 1, 2), ('o', 3, 0), ('o', 4, 1), ('o', 5, 2), ('o', 7, 0), ('o', 8, 1), ('o', 9, 2)]
    wm = Wmap(keys, 8, set(l1 + l2))
    role_common(k, ('Wv', 'Wo'))
    gen_loader(k, 'VO', True, wm)
    ustamp(k, cfg, 5)
    load_sel(k, cfg)
    MEMB = 98304; VT = MEMB + 10240
    RING = [108, 116]
    hu = cfg.get('hu', 1)
    memaddr_setup(k, MEMB)
    def plane(d, c, t):
        k(f"""
        v_mul_u32_u24 v{d}, 768, v{c}
        v_and_b32 v{t}, 1, v{c}
        v_lshl_add_u32 v{d}, v{t}, 5, v{d}
        v_lshrrev_b32 v{t}, 1, v{c}
        v_lshl_add_u32 v{d}, v{t}, 7, v{d}""")
    k('v_and_b32 v11, 15, v1\nv_lshrrev_b32 v16, 4, v1\nv_and_b32 v17, 3, v1')
    plane(12, 16, 18); plane(14, 17, 18)
    k(f"""
    v_lshl_add_u32 v12, v11, 2, v12
    s_mul_i32 s28, s21, 192
    s_add_u32 s28, s28, {VT}
    v_add_u32 v12, s28, v12
    v_lshl_add_u32 v14, v16, 6, v14
    v_bfe_u32 v18, v1, 2, 2
    v_lshl_add_u32 v14, v18, 3, v14
    v_add_u32 v14, {VT}, v14
    v_lshlrev_b32 v15, 4, v11
    v_lshrrev_b32 v18, 1, v16
    v_lshl_add_u32 v15, v18, 3, v15
    v_and_b32 v18, 1, v16
    v_lshl_add_u32 v15, v18, 16, v15
    s_lshl_b32 s28, s20, 8
    s_lshl_b32 s42, s21, 14
    s_add_u32 s42, s42, s28
    s_add_u32 s42, s42, {ZM:#x}
    v_lshlrev_b32 v13, 7, v1
    s_add_u32 s30, s21, 15""")
    pf_setup(k, 44, 3, 's30', cfg)
    k(f"""
    s_mov_b32 s22, 0
    s_cmp_eq_u32 s21, 0
    s_cbranch_scc1 {p}_w0_loop
    s_cmp_eq_u32 s21, 1
    s_cbranch_scc1 {p}_w1_loop
    s_cmp_eq_u32 s21, 2
    s_cbranch_scc1 {p}_w2_loop
    s_branch {p}_w3_loop""")
    slows = []
    for w in range(4):
        pp = f'{p}_w{w}'
        k.label(f'{pp}_loop')
        for i in range(52): k(f'v_mov_b32 v{56+i}, 0')
        for i, key in enumerate(l1[:2]):
            for f in wload8(wm, key): k.lds(f(RING[i]))
        k('s_sub_u32 s46, s22, 1')
        region(k, 40, 's46')
        zregion(k, 43, 42)
        for pr in range(1, 5): k(f's_add_u32 s{47+pr}, s43, {131072*pr}')
        k.wl_all()
        if hu and w < cfg.get('nref2', 1):
            k('s_sub_u32 s46, s22, 1')
            delay(k, cfg.get('zpre', 0))
            hu_wait(k, pp, HU2, 's46', 52 - 4 * (w == 0) * 8, fail, cfg, w)
            delay(k, cfg.get('d2', 0))
        k('s_barrier')
        if cfg.get('trace'): stamp(k, cfg, 4); k('s_memtime s[66:67]')
        wreg = {key: R(wm.loc[key], 8) for key in wm.loc}
        for i, key in enumerate(l1): wreg[key] = V(RING[i % 2], 8)
        smt = lambda t, ks: f'{SM} {V(56+4*t,4)}, {V(16+4*ks,4)}, {wreg[("v",t,ks)]}, v10'
        own, slow = mem_front(k, pp, w, fail, cfg, [smt(t, ks) for ks in (w, w + 4) for t in range(3)], list(range(56, 68)))
        slows.append(slow)
        stamp(k, cfg, 0)
        rest = [ks for ks in range(8) if ks not in (w, w + 4)]
        o0 = rest[:1] + [8] + rest[1:3] + [9] + rest[3:]
        o1 = rest[:2] + [8] + rest[2:5] + [9] + rest[5:]
        mats = []; items = []; idx = {}; ev = []
        for ks in o0:
            items.append(dict(id=('A', ks), kind='n', lds=True, fn=f'ds_read_b128 {V(16+4*ks,4)}, v9 offset:{1024*ks}'))
        for s_ in own: mats.append((s_, []))
        for ks in o0:
            idx[('v', 0, ks)] = len(mats); mats.append((smt(0, ks), [('A', ks)]))
        sq = [(t, ks) for ks in o1 for t in (1, 2)]
        sq = sq[:-6] + sq[-6::2] + sq[-5::2]
        for (t, ks) in sq:
            key = ('v', t, ks)
            idx[key] = len(mats); mats.append((smt(t, ks), [('W',) + key + (1,)] if key in l1[2:] else []))
        n1 = len(mats)
        for i, key in enumerate(l1[2:]):
            for h_, f in enumerate(wload8(wm, key)):
                ev.append((idx[l1[i]], dict(id=('W',) + key + (h_,), kind='n', lds=True, fn=f(RING[i % 2]))))
        ends = [idx[('v', 0, o0[-1])], n1 - 4, n1 - 1]
        items.append(dict(id=('p', 0, 0), kind='v', fn='v_add_f32 v56, v56, v58', states=(ends[0], 8), after=ends[0]))
        items.append(dict(id=('p', 0, 5), kind='v', fn='v_add_f32 v57, v57, v59'))
        items.append(dict(id=('p', 0, 1), kind='v', fn='v_cvt_pk_bf16_f32 v124, v56, v57'))
        ev.append((ends[0] + 7, dict(id=('pw', 0), kind='n', lds=True, fn='ds_write_b32 v12, v124', order=[('p', 0, 1)])))
        items.append(dict(id=('p', 1, 0), kind='v', fn='v_pk_add_f32 v[60:61], v[60:61], v[62:63]', states=(ends[1], 8), after=n1))
        items.append(dict(id=('p', 1, 1), kind='v', fn='v_cvt_pk_bf16_f32 v125, v60, v61'))
        items.append(dict(id=('p', 2, 0), kind='v', fn='v_pk_add_f32 v[64:65], v[64:65], v[66:67]', states=(ends[2], 8)))
        items.append(dict(id=('p', 2, 1), kind='v', fn='v_cvt_pk_bf16_f32 v126, v64, v65'))
        done = {w, w + 4}; freed = []
        for ks in o1:
            done.add(ks)
            for j in range(5):
                if j not in [x[0] for x in freed] and 2 * j in done and 2 * j + 1 in done: freed.append((j, idx[('v', 2, ks)]))
        dst = sorted([(g_, 16 + 8 * j) for j, g_ in freed] + [(idx[l1[4]], RING[0]), (idx[l1[3]], RING[1])])
        for key, (g_, r) in zip(l2, dst):
            wreg[key] = V(r, 8)
            for h_, f in enumerate(wload8(wm, key)):
                ev.append((g_, dict(id=('W',) + key + (h_,), kind='n', lds=True, fn=f(r))))
        if cfg.get('pf', 1) and w >= 1:
            ev.append((8, dict(id='pf', kind='n', fn='buffer_load_dword v127, v13, s[8:11], s44 offen sc1')))
            ev.append((9, dict(id='pf2', kind='n', fn='s_add_u32 s44, s44, 1310720')))
        ev.append((n1 + 50, dict(id=('pw', 1), kind='n', lds=True, fn='ds_write2_b32 v12, v125, v126 offset0:16 offset1:32', order=[('p', 2, 1)])))
        ev.sort(key=lambda x: x[0])
        for g_, it in ev:
            it['after'] = min(g_, n1); items.append(it)
        sched(k, mats, items, [True] * n1, pre_n=4)
        k.wl_all()
        k('s_barrier')
        stamp(k, cfg, 1)
        mats = []; items = []
        for ks in range(3):
            for u in range(2):
                items.append(dict(id=('AV', ks, u), kind='n', lds=True, fn=f'ds_read_b64_tr_b16 {V(56+4*ks+2*u,2)}, v14 offset:{(64*ks+8*u)*4}'))
        for it in items: it['t'] = k.lds(it['fn'])
        tks = {ks: items[2 * ks + 1]['t'] for ks in range(3)}
        items = []
        for pr in range(5):
            for ci in (2 * pr, 2 * pr + 1):
                for ks in range(3):
                    pre_ = f's_waitcnt lgkmcnt({4 - 2*ks})\n' if pr == 0 and ci == 0 else ''
                    mats.append((pre_ + f'{SM} {V(68+4*ci,4)}, {V(56+4*ks,4)}, {wreg[("o",ci,ks)]}, v10', []))
            a = 68 + 8 * pr; e_ = 6 * pr + 5
            if pr >= cfg.get('zpk', 4):
                items.append(dict(id=('q', pr, 0), kind='v', fn=f'v_pk_add_f32 {V(a,2)}, {V(a,2)}, {V(a+2,2)}', states=(e_ - 3, 8), after=e_ - 2))
                items.append(dict(id=('q', pr, 2), kind='v', fn=f'v_cvt_pk_bf16_f32 v{a+2}, v{a}, v{a+1}'))
                items.append(dict(id=('q', pr, 1), kind='v', fn=f'v_pk_add_f32 {V(a+4,2)}, {V(a+4,2)}, {V(a+6,2)}', states=(e_, 8)))
            else:
                items.append(dict(id=('q', pr, 0), kind='v', fn=f'v_add_f32 v{a}, v{a}, v{a+2}', states=(e_ - 3, 8), after=e_ - 2))
                items.append(dict(id=('q', pr, 6), kind='v', fn=f'v_add_f32 v{a+1}, v{a+1}, v{a+3}'))
                items.append(dict(id=('q', pr, 2), kind='v', fn=f'v_cvt_pk_bf16_f32 v{a+2}, v{a}, v{a+1}'))
                items.append(dict(id=('q', pr, 1), kind='v', fn=f'v_add_f32 v{a+4}, v{a+4}, v{a+6}', states=(e_, 8)))
                items.append(dict(id=('q', pr, 7), kind='v', fn=f'v_add_f32 v{a+5}, v{a+5}, v{a+7}'))
            items.append(dict(id=('q', pr, 3), kind='v', fn=f'v_cvt_pk_bf16_f32 v{a+3}, v{a+4}, v{a+5}'))
            items.append(dict(id=('q', pr, 4), kind='v2', fn=f'v_permlane16_swap_b32 v{a+2}, v{a+3}', states=(('q', pr, 3), 2)))
            items.append(dict(id=('q', pr, 5), kind='n', fn=f'buffer_store_dwordx2 {V(a+2,2)}, v15, s[8:11], {"s43" if pr == 0 else "s%d" % (47+pr)} offen sc1', order=[('q', pr, 4)]))
        for pr in range(4):
            i_ = [j for j, it in enumerate(items) if it['id'] == ('q', pr, 4)][0]
            j_ = [j for j, it in enumerate(items) if it['id'] == ('q', pr + 1, 0)][0]
            items.insert(j_, items.pop(i_))
        k.ld = k.lc
        sched(k, mats, items, [True] * 30)
        stamp(k, cfg, 2)
        trace_out(k, cfg, 56)
        k(f"""
        s_add_u32 s22, s22, 1
        s_cmp_lt_u32 s22, 64
        s_cbranch_scc1 {pp}_loop
        s_branch {end}""")
    for f in slows: f()

def gen_c(k, p, end, fail, cfg):
    load_sel(k, cfg)
    RED = 0
    k(f"""
    v_lshlrev_b32 v2, 4, v1
    v_and_b32 v4, 7, v1
    v_bfe_u32 v5, v1, 3, 1
    v_lshrrev_b32 v6, 4, v1
    s_mul_i32 s28, s21, 5120
    v_mul_u32_u24 v7, 640, v5
    v_lshl_add_u32 v7, v6, 7, v7
    v_lshl_add_u32 v7, v4, 4, v7
    v_add_u32 v7, s28, v7""")
    for t in range(4):
        k(f'v_add_u32 v{16+t}, {1280*t}, v7')
    k(f"""
    v_lshl_add_u32 v7, v5, 2, v6
    v_mul_u32_u24 v7, 640, v7
    v_lshl_add_u32 v7, v4, 4, v7
    s_add_u32 s28, s28, 512
    v_add_u32 v20, s28, v7""")
    for t in range(5): v_mbmap(k, 16 + t, 7)
    k(f"""
    s_lshl_b32 s28, s21, 10
    v_lshlrev_b32 v21, 7, v4
    v_add_u32 v21, s28, v21
    v_lshrrev_b32 v7, 1, v6
    v_lshlrev_b32 v22, 5, v7
    v_lshrrev_b32 v7, 1, v4
    v_lshl_add_u32 v22, v7, 6, v22
    v_and_b32 v7, 1, v4
    v_lshl_add_u32 v22, v7, 4, v22
    v_and_b32 v7, 1, v6
    v_lshl_add_u32 v22, v7, 3, v22
    s_lshl_b32 s28, s20, 8
    s_add_u32 s28, s28, {M_OFF}
    v_add_u32 v22, s28, v22""")
    v_mbmap(k, 22, 7)
    k(f"""
    v_mov_b32 v7, {BIG:#x}
    v_cmp_ne_u32 s[44:45], 0, v5
    s_nop 1
    v_cndmask_b32 v22, v22, v7, s[44:45]
    s_lshl_b32 s28, s21, 10
    v_add_u32 v23, s28, v2
    s_lshl_b32 s42, s20, 15
    s_lshl_b32 s28, s21, 13
    s_add_u32 s42, s42, s28
    s_add_u32 s42, s42, {UF:#x}
    s_lshl_b32 s48, s20, 14
    s_lshl_b32 s28, s21, 11
    s_add_u32 s48, s48, s28
    s_add_u32 s48, s48, {ZM:#x}
    v_mul_u32_u24 v26, {cfg.get('lstride', 256)}, v1
    v_add_u32 v26, {HU2:#x}, v26
    s_cmp_eq_u32 s20, {cfg.get('ref2', 0)}
    s_cselect_b32 s28, {cfg.get('nl', 16)}, 0
    s_cmp_eq_u32 s21, {cfg.get('huwave', 1)}
    s_cselect_b32 s28, s28, 0
    v_cmp_gt_u32 vcc, s28, v1
    s_nop 1
    v_cndmask_b32 v26, v7, v26, vcc
    s_mov_b32 s46, {FU:#x}
    s_mov_b32 s22, 0""")
    hupos = cfg.get('hupos', 9)
    hu = cfg.get('hu', 0 if cfg.get('hu') == 0 else 1)
    reg = lambda j: 64 + 4 * j
    def ld(j):
        if j < 2: k(f'buffer_load_dwordx4 {V(reg(j),4)}, v2, s[8:11], s43 offen offset:{1024*j} sc1')
        else:     k(f'buffer_load_dwordx4 {V(reg(j),4)}, v{14+j}, s[8:11], s40 offen sc1')
    UB = 8192
    k(f"""
    v_and_b32 v21, 31, v1
    v_lshlrev_b32 v21, 7, v21
    v_mov_b32 v25, 0
    s_lshl_b32 s28, s21, 13
    s_sub_u32 s42, s42, s28
    s_add_u32 s28, s28, {UB}
    v_add_u32 v3, s28, v2
    s_mul_i32 s50, s21, 11264
    s_min_u32 s50, s50, {21*1024}
    s_add_u32 s42, s42, s50
    s_add_u32 s50, s50, {UB}""")
    k.label(f'{p}_loop')
    zregion(k, 43, 48)
    region(k, 40, 's22')
    k(f'v_mov_b32 v27, s22\ns_cmp_eq_u32 s21, 3\ns_cbranch_scc1 {p}_w3\n' + ('' if cfg.get('ctrig', 1) else 's_waitcnt vmcnt(0)\n') + 's_barrier')
    for j in range(3):
        k(f's_add_u32 m0, s50, {4096*j}\ns_add_u32 s28, s42, {4096*j}')
        for i in range(4 if j < 2 else 3):
            k(f'buffer_load_dwordx4 v2, s[8:11], s28 offen offset:{1024*i} sc1 lds')
    k('s_add_u32 s42, s42, 1310720')
    k(wrap('s42', UF, 1310720))
    k('s_waitcnt vmcnt(0)')
    if cfg.get('trace'): stamp(k, cfg, 0)
    k(f's_branch {p}_go')
    k.label(f'{p}_w3')
    k('s_sub_u32 s47, s22, 1')
    if cfg.get('ctrig', 1): hu_wait(k, p + '_g', HU2, 's47', 108, fail, dict(cfg, depth=cfg.get('tdepth', 2)))
    k(f'v_cmp_eq_u32 vcc, 0, v25\ns_cbranch_vccz {p}_fk')
    poll_flag(k, f'{p}_fl', 21, 's46', 24, fail, sleep=2)
    k(f's_branch {p}_tg')
    k.label(f'{p}_fk')
    for i in range(cfg.get('textra', 1)):
        k('buffer_load_dword v109, v108, s[8:11], s52 offen sc1\ns_waitcnt vmcnt(0)')
    k.label(f'{p}_tg')
    k(f"""
    s_barrier
    s_add_u32 s46, s46, 4096
    buffer_load_dword v25, v21, s[8:11], s46 offen sc1
    s_cmp_lg_u32 s22, 0
    s_cbranch_scc1 {p}_n0
    s_mov_b32 s47, {FKM:#x}""")
    poll_flag(k, f'{p}_f0', 21, 's47', 24, fail, sleep=2)
    k.label(f'{p}_n0')
    hu_wait(k, p, HU1, 's22', 108, fail, cfg)
    k.label(f'{p}_go')
    k('s_barrier')
    stamp(k, cfg, 4)
    k('s_mov_b32 s39, 1')
    def rnd(first):
        for j in range(7):
            ld(j)
            if j == 1 and first and cfg.get('zbar', 1): k('s_barrier')
        if not first:
            k('s_mov_b64 exec, -1')
            tmo(k, fail)
        extra = 0
        def huf(pos):
            nonlocal extra
            if first and hu and pos == hupos:
                k('buffer_store_dword v27, v26, s[8:11], s52 offen sc1'); extra += 1
            if first and hu and pos + 20 == hupos:
                k('s_barrier')
                k('buffer_store_dword v27, v26, s[8:11], s52 offen sc1'); extra += 1
        huf(-1)
        if first:
            for i in range(8): k(f'ds_read_b128 {V(32+4*i,4)}, v3 offset:{1024*i}')
        k(f's_waitcnt vmcnt({5+extra}) lgkmcnt(0)')
        huf(0)
        maxtree(k, 24, list(range(64, 72)))
        for t in range(5):
            k(f's_waitcnt vmcnt({4-t+extra})')
            huf(t + 1)
            b = 72 + 4 * t
            a0, a1 = (32 + 8 * t, 36 + 8 * t) if t < 4 else (64, 68)
            k(f'{MF} v[8:11], {V(a0,4)}, {V(b,4)}, {"0" if t == 0 else "v[8:11]"}')
            k(f'v_max3_u32 v24, v24, v{b}, v{b+1}')
            k(f'{MF} v[12:15], {V(a1,4)}, {V(b,4)}, {"0" if t == 0 else "v[12:15]"}')
            k(f'v_max3_u32 v24, v24, v{b+2}, v{b+3}')
        k('v_cmp_eq_u32 vcc, -1, v24')
    def fold():
        k.nop(6)
        for i in range(4):
            k(f'v_add_f32_dpp v{8+i}, v{12+i}, v{8+i} row_ror:8 row_mask:0xf bank_mask:0xf')
        k(f'ds_write_b128 v23, v[8:11] offset:{RED}')
    rnd(True)
    fold()
    k(f's_cbranch_vccnz {p}_retry')
    k.label(f'{p}_ok')
    stamp(k, cfg, 1)
    if hu and hupos == 7: k('buffer_store_dword v27, v26, s[8:11], s52 offen sc1')
    if hu and hupos == 9: k('s_barrier\nbuffer_store_dword v27, v26, s[8:11], s52 offen sc1')
    k(f"""
    s_cmp_lg_u32 s21, 0
    s_waitcnt lgkmcnt(0)
    s_barrier
    s_cbranch_scc1 {p}_nx
    ds_read_b128 v[96:99], v2 offset:{RED + 1024}
    ds_read_b128 v[100:103], v2 offset:{RED + 2048}
    ds_read_b128 v[104:107], v2 offset:{RED + 3072}
    s_waitcnt lgkmcnt(2)
    v_pk_add_f32 v[8:9], v[8:9], v[96:97]
    v_pk_add_f32 v[10:11], v[10:11], v[98:99]
    s_waitcnt lgkmcnt(0)
    v_pk_add_f32 v[100:101], v[100:101], v[104:105]
    v_pk_add_f32 v[102:103], v[102:103], v[106:107]
    v_pk_add_f32 v[8:9], v[8:9], v[100:101]
    v_pk_add_f32 v[10:11], v[10:11], v[102:103]
    v_cvt_pk_bf16_f32 v8, v8, v9
    v_cvt_pk_bf16_f32 v9, v10, v11
    buffer_store_dwordx2 v[8:9], v22, s[8:11], s40 offen sc1""")
    stamp(k, cfg, 2)
    k.label(f'{p}_nx')
    if hu and hupos == 8: k('buffer_store_dword v27, v26, s[8:11], s52 offen sc1')
    if cfg.get('stamp') is not None: k('s_add_u32 s58, s58, s39')
    if cfg.get('trace'): k('s_mov_b32 s59, s39')
    trace_out(k, cfg, 116)
    k(f"""
    s_add_u32 s22, s22, 1
    s_cmp_lt_u32 s22, 63
    s_cbranch_scc1 {p}_loop""")
    k(f's_branch {end}')
    k.label(f'{p}_retry')
    k('s_mov_b64 exec, vcc')
    rnd(False)
    k(f's_cbranch_vccnz {p}_retry')
    fold()
    k(f's_branch {p}_ok')

def poll_flag(k, lab, vaddr, sreg, tmp, fail, sleep=0, slow=None):
    k('s_mov_b32 s39, 0')
    k.label(lab)
    k(f'buffer_load_dword v{tmp}, v{vaddr}, s[8:11], {sreg} offen sc1')
    tmo(k, fail)
    k(f's_waitcnt vmcnt(0)')
    k(f'v_cmp_eq_u32 vcc, 0, v{tmp}')
    if sleep:
        k(f's_cbranch_vccz {lab}_ok')
        k(f's_sleep {sleep}')
        if slow: k(f's_cmp_ge_i32 s22, {slow[0]}\ns_cbranch_scc1 {lab}\ns_sleep {slow[1]}')
        k(f's_branch {lab}')
        k.label(lab + '_ok')
    else:
        k(f's_cbranch_vccnz {lab}')

def softmax_regs(k, regs, t0):
    n = len(regs)
    k(f'v_max3_f32 v{t0}, v{regs[0]}, v{regs[1]}, v{regs[2]}')
    i = 3
    while i + 1 < n:
        k(f'v_max3_f32 v{t0}, v{t0}, v{regs[i]}, v{regs[i+1]}'); i += 2
    if i < n: k(f'v_max_f32 v{t0}, v{t0}, v{regs[i]}')
    xlane(k, 'v_max_f32', t0, t0 + 1)
    k(f'v_mul_f32 v{t0}, s42, v{t0}')
    for r in regs: k(f'v_fma_f32 v{r}, v{r}, s42, -v{t0}')
    for r in regs: k(f'v_exp_f32 v{r}, v{r}')
    k(f'v_pk_add_f32 {V(t0,2)}, {V(regs[0],2)}, {V(regs[2],2)}')
    for i in range(4, n, 2): k(f'v_pk_add_f32 {V(t0,2)}, {V(t0,2)}, {V(regs[i],2)}')
    k(f'v_add_f32 v{t0}, v{t0}, v{t0+1}')
    xlane(k, 'v_add_f32', t0, t0 + 1)
    k(f'v_rcp_f32 v{t0}, v{t0}')
    k('s_nop 0')
    for i in range(0, n, 2):
        k(f'v_pk_mul_f32 {V(regs[i],2)}, {V(regs[i],2)}, {V(t0,2)} op_sel_hi:[1,0]')

def gen_x(k, p, end, fail, cfg):
    k(f"""
    s_and_b32 s31, s20, 4
    s_add_u32 s31, s31, s21
    s_and_b32 s32, s20, 3
    s_lshl_b32 s30, s31, 2
    s_add_u32 s30, s30, s32
    v_lshlrev_b32 v2, 4, v1
    v_and_b32 v4, 15, v1
    v_lshrrev_b32 v5, 4, v1
    s_lshl_b32 s28, s30, 7
    v_mov_b32 v6, s28
    v_mov_b32 v7, {BIG:#x}
    v_cmp_eq_u32 vcc, 0, v1
    s_nop 1
    v_cndmask_b32 v8, v7, v6, vcc
    v_mov_b32 v9, 1
    v_and_b32 v10, 7, v1
    v_lshlrev_b32 v10, 4, v10
    v_lshl_add_u32 v10, v5, 7, v10
    v_lshlrev_b32 v11, 4, v4
    v_lshl_add_u32 v11, v5, 3, v11
    v_cmp_gt_u32 vcc, 2, v5
    s_nop 1
    v_cndmask_b32 v11, v7, v11, vcc
    v_mov_b32 v7, 0xff800000
    v_cndmask_b32_e64 v16, v7, 0, vcc
    v_mov_b32 v17, v16
    v_mov_b32 v18, v16
    v_mov_b32 v19, v16
    v_lshlrev_b32 v3, 2, v5""")
    for r in range(4):
        k(f"""
        v_add_u32 v20, {r}, v3
        v_cmp_le_u32 vcc, v20, v4
        s_nop 1
        v_cndmask_b32_e64 v{12+r}, v7, 0, vcc""")
    k(f"""
    v_and_b32 v23, 1, v1
    v_mul_u32_u24 v23, {FP1 - FQK:#x}, v23
    v_add_u32 v23, v23, v6
    v_add_u32 v22, 4096, v23
    v_add_u32 v21, {FKM - FQK:#x}, v6
    v_cmp_gt_u32 vcc, 32, v1
    s_mul_i32 s45, s30, 3072
    s_add_u32 s45, s45, {KM:#x}
    v_cndmask_b32 v22, v21, v22, vcc
    v_mov_b32 v62, v21
    s_mul_i32 s33, s30, 24576
    s_add_u32 s33, s33, {QF:#x}
    s_lshl_b32 s47, s30, 11
    s_add_u32 s47, s47, {PX:#x}
    s_lshl_b32 s46, s31, 11
    s_lshl_b32 s28, s32, 8
    s_add_u32 s46, s46, s28
    s_add_u32 s46, s46, {PX + 65536:#x}
    s_mov_b32 s44, {FQK:#x}
    s_mov_b32 s42, {SCL!r}
    v_mov_b32 v50, 0
    v_mov_b32 v51, 0""")
    RG = lambda st, i: V(64 + i, 4) if st == 0 else A(i, 4)
    def qkload(st):
        for j in range(6):
            k(f's_add_u32 s28, s33, {4096*j}')
            for i in range(4):
                k(f'buffer_load_dwordx4 {RG(st, 16*j+4*i)}, v2, s[8:11], s28 offen offset:{1024*i} sc1')
        k('s_add_u32 s33, s33, 786432')
        k(wrap('s33', QF, 786432, RING2))
    poll_flag(k, f'{p}_f1', 23, 's44', 20, fail, sleep=4)
    qkload(0)
    k('v_mov_b32 v63, 0\ns_waitcnt vmcnt(0)')
    for st in range(2):
        Q = lambda qt, kk: RG(st, 4 * (6 * qt + kk))
        Kf = lambda kt, kk: RG(st, 48 + 4 * (6 * kt + kk))
        k.label(f'{p}_loop{st}')
        stamp(k, cfg, 0)
        k('v_cmp_eq_u32 vcc, 0, v63')
        for kk in range(6):
            k(f'{MF} v[24:27], {Kf(0,kk)}, {Q(0,kk)}, {"v[12:15]" if kk == 0 else "v[24:27]"}')
            k(f'{MF} v[32:35], {Kf(0,kk)}, {Q(1,kk)}, {"0" if kk == 0 else "v[32:35]"}')
            k(f'{MF} v[36:39], {Kf(1,kk)}, {Q(1,kk)}, {"v[12:15]" if kk == 0 else "v[36:39]"}')
        k(f's_cbranch_vccz {p}_go{st}')
        poll_flag(k, f'{p}_f2{st}', 22, 's44', 20, fail, sleep=1, slow=(60, cfg.get('slowx', 3)))
        k.label(f'{p}_go{st}')
        stamp(k, cfg, 1)
        for kk in range(6):
            k(f'buffer_load_dwordx4 {V(160+4*kk,4)}, v10, s[8:11], s45 offen offset:{512*kk} sc1')
        def mm(x):
            for kk in range(6):
                k(f's_waitcnt vmcnt({5-kk+x})')
                k(f'{MF} v[40:43], {V(160+4*kk,4)}, {Q(1,kk)}, {"v[16:19]" if kk == 0 else "v[40:43]"}')
                k(f'{MF} v[28:31], {V(160+4*kk,4)}, {Q(0,kk)}, {"v[16:19]" if kk == 0 else "v[28:31]"}')
        if st == 1:
            k(f's_cmp_lg_u32 s22, 63\ns_cbranch_scc1 {p}_nq')
            mm(0)
            k(f's_branch {p}_nq2')
            k.label(f'{p}_nq')
        qkload(1 - st)
        mm(24)
        if st == 1: k.label(f'{p}_nq2')
        else:
            k(f's_cmp_lg_u32 s22, 62\ns_cbranch_scc1 {p}_nl\nv_mov_b32 v22, v62')
            k.label(f'{p}_nl')
        k.nop(7)
        softmax_regs(k, list(range(32, 44)), 20)
        for i in range(6): k(f'v_cvt_pk_bf16_f32 v{56+i}, v{32+2*i}, v{33+2*i}')
        k('buffer_store_dwordx4 v[56:59], v2, s[8:11], s47 offen offset:1024 sc1\nbuffer_store_dwordx2 v[60:61], v11, s[8:11], s46 offen offset:1024 sc1')
        softmax_regs(k, list(range(24, 32)), 44)
        k(f"""
        v_cvt_pk_bf16_f32 v48, v24, v25
        v_cvt_pk_bf16_f32 v49, v26, v27
        v_cvt_pk_bf16_f32 v52, v28, v29
        v_cvt_pk_bf16_f32 v53, v30, v31
        buffer_store_dwordx4 v[48:51], v2, s[8:11], s47 offen sc1
        buffer_store_dwordx2 v[52:53], v11, s[8:11], s46 offen sc1
        s_add_u32 s28, s44, {FPX - FQK:#x}
        s_add_u32 s44, s44, 4096
        buffer_load_dword v63, v22, s[8:11], s44 offen sc1
        s_add_u32 s45, s45, 98304
        s_add_u32 s46, s46, 81920
        s_add_u32 s47, s47, 81920
        s_waitcnt vmcnt(1)
        buffer_store_dword v9, v8, s[8:11], s28 offen sc1""")
        stamp(k, cfg, 2)
        k('s_add_u32 s22, s22, 1\ns_waitcnt vmcnt(1)')
    k(f"""
    s_cmp_lt_u32 s22, 64
    s_cbranch_scc1 {p}_loop0
    s_branch {end}""")

def gen_o(k, p, end, fail, cfg):
    k(f's_load_dwordx2 s[28:29], s[0:1], {KA["x"]}')
    k('s_waitcnt lgkmcnt(0)')
    k.srd(12, 28, 2048 * 1280)
    k(f"""
    v_lshlrev_b32 v2, 4, v1
    v_and_b32 v4, 7, v1
    v_lshlrev_b32 v4, 7, v4
    s_lshl_b32 s28, s21, 10
    v_add_u32 v4, s28, v4
    v_and_b32 v5, 15, v1
    v_lshrrev_b32 v6, 4, v1
    v_mul_u32_u24 v5, 1280, v5
    v_lshl_add_u32 v5, v6, 3, v5
    s_and_b32 s30, s21, 1
    s_mul_i32 s30, s30, 20480
    s_lshr_b32 s29, s21, 1
    s_lshl_b32 s28, s20, 1
    s_add_u32 s29, s29, s28
    s_lshl_b32 s28, s29, 6
    s_add_u32 s28, s28, s30
    v_add_u32 v5, s28, v5
    s_lshl_b32 s28, s29, 10
    s_add_u32 s28, s28, s30
    v_add_u32 v13, s28, v2
    s_lshl_b32 s28, s21, 13
    v_add_u32 v6, s28, v2
    s_lshl_b32 s28, s21, 11
    v_add_u32 v7, s28, v2
    s_lshl_b32 s50, s20, 16
    s_add_u32 s50, s50, s28
    s_add_u32 s50, s50, {ZM:#x}
    s_mov_b32 s48, 0xffff0000""")
    flag_addr(k, 14)
    NG = 3
    k(f"""
    v_add_u32 v8, 0x100000, v4
    v_add_u32 v3, {0x100000 + FU - FPX + NG*4096:#x}, v4
    v_cmp_gt_u32 vcc, 32, v1
    s_mul_i32 s51, s22, 1310720
    s_lshl_b32 s29, s20, 17
    v_cndmask_b32 v3, v3, v8, vcc
    s_add_u32 s51, s51, s29
    s_lshl_b32 s29, s21, 13
    s_add_u32 s51, s51, s29
    s_add_u32 s51, s51, {UF:#x}
    s_lshl_b32 s43, s22, 12
    s_add_u32 s44, s43, {FU:#x}""")
    def uload():
        for ct in range(4):
            for j in range(2):
                k(f's_add_u32 s29, s51, {32768*ct + 4096*j}')
                for i in range(4):
                    k(f'buffer_load_dwordx4 {A(32*ct+16*j+4*i,4)}, v2, s[8:11], s29 offen offset:{1024*i} sc1')
        k(f's_add_u32 s51, s51, {NG*1310720}')
        k(wrap('s51', UF, 1310720))
    poll_flag(k, f'{p}_f1', 4, 's44', 20, fail, sleep=cfg.get('sl1', 8))
    uload()
    k.label(f'{p}_loop')
    stamp(k, cfg, 0)
    k('s_lshl_b32 s43, s22, 12')
    k('s_mul_i32 s45, s22, 40960')
    k('buffer_load_dwordx2 v[16:17], v5, s[12:15], s45 offen')
    k('buffer_load_dwordx2 v[18:19], v5, s[12:15], s45 offen offset:32')
    k(f's_add_u32 s44, s43, {FKM:#x}')
    poll_flag(k, f'{p}_f3', 4, 's44', 20, fail, sleep=3, slow=(60, cfg.get('slowo', 6)))
    zregion(k, 47, 50)
    k('s_mov_b32 s39, 0')
    k.label(f'{p}_z')
    for ct in range(4):
        k(f's_add_u32 s49, s47, {16384*ct}')
        for b in range(2):
            k(f'buffer_load_dwordx4 {V(208+8*ct+4*b,4)}, v2, s[8:11], s49 offen offset:{1024*b} sc1')
    tmo(k, fail)
    k('s_waitcnt vmcnt(0)')
    maxtree(k, 20, list(range(208, 240)))
    k('v_cmp_eq_u32 vcc, -1, v20')
    k(f's_cbranch_vccnz {p}_z')
    k(f"""
    s_add_u32 s44, s43, {FPX - 0x100000:#x}
    s_cmp_lt_u32 s22, {64 - NG}
    s_cselect_b64 vcc, -1, 0
    v_cndmask_b32 v3, v8, v3, vcc
    s_mul_i32 s47, s22, 81920
    s_add_u32 s47, s47, {PX:#x}
    s_lshl_b32 s29, s21, 12
    s_add_u32 s46, s47, s29
    s_add_u32 s46, s46, 65536
    s_lshl_b32 s29, s21, 14
    s_add_u32 s47, s47, s29""")
    poll_flag(k, f'{p}_f2', 3, 's44', 20, fail, sleep=1, slow=(60, cfg.get('slowo', 6)))
    stamp(k, cfg, 1)
    def pxl(n):
        k(f'buffer_load_dwordx4 {V(128+4*n,4)}, v2, s[8:11], {"s47" if n < 16 else "s46"} offen offset:{1024*(n%4)} sc1')
        if n % 4 == 3 and n < 12: k('s_add_u32 s47, s47, 4096')
    UPF = cfg.get('oup', 10)
    for n in range(UPF): pxl(n)
    acc = lambda ct, qt: V(24 + 4 * (4 * (ct >> 1) + 2 * qt + (ct & 1)), 4)
    for n in range(20):
        k(f's_waitcnt vmcnt({min(UPF - 1, 19 - n)})')
        h, qt = n >> 1, n & 1
        for ct in range(4):
            a_ = A(32 * ct + 4 * h, 4) if h < 8 else V(208 + 8 * ct + 4 * (h - 8), 4)
            k(f'{MF} {acc(ct,qt)}, {a_}, {V(128+4*n,4)}, {"0" if h == 0 else acc(ct,qt)}')
            if ct == 0 and n + UPF < 20: pxl(n + UPF)
    k.nop(4)
    for t in (0, 1, 4, 5, 2, 3, 6, 7):
        k(f'ds_write_b128 v6, {V(24+4*t,4)} offset:{1024*t}')
    k("""
    s_waitcnt lgkmcnt(0)
    s_barrier""")
    for c in range(2):
        for i in range(4):
            k(f'ds_read_b128 {V(64+16*c+4*i,4)}, v7 offset:{8192*i + 1024*c}')
    for i in range(4):
        k(f'v_lshlrev_b32 v{24+2*i}, 16, v{16+i}')
        k(f'v_and_b32 v{25+2*i}, s48, v{16+i}')
    k(f's_add_u32 s45, s45, {HH:#x}\ns_add_u32 s44, s43, {FH:#x}')
    for c in range(2):
        b = 64 + 16 * c
        k(f"""
        s_waitcnt lgkmcnt({4 - 4*c})
        v_pk_add_f32 {V(b,2)}, {V(b,2)}, {V(b+4,2)}
        v_pk_add_f32 {V(b+2,2)}, {V(b+2,2)}, {V(b+6,2)}
        v_pk_add_f32 {V(b+8,2)}, {V(b+8,2)}, {V(b+12,2)}
        v_pk_add_f32 {V(b+10,2)}, {V(b+10,2)}, {V(b+14,2)}
        v_pk_add_f32 {V(b,2)}, {V(b,2)}, {V(24+4*c,2)}
        v_pk_add_f32 {V(b+2,2)}, {V(b+2,2)}, {V(26+4*c,2)}
        v_pk_add_f32 {V(b,2)}, {V(b,2)}, {V(b+8,2)}
        v_pk_add_f32 {V(b+2,2)}, {V(b+2,2)}, {V(b+10,2)}
        v_cvt_pk_bf16_f32 v{32+2*c}, v{b}, v{b+1}
        v_cvt_pk_bf16_f32 v{33+2*c}, v{b+2}, v{b+3}""")
    k(f"""
    buffer_store_dwordx4 v[32:35], v13, s[8:11], s45 offen sc1
    s_cmp_ge_u32 s22, {64 - NG}
    s_cbranch_scc1 {p}_last""")
    uload()
    k(f"""
    s_waitcnt vmcnt(32)
    s_barrier
    buffer_store_dword v15, v14, s[8:11], s44 offen sc1""")
    stamp(k, cfg, 2)
    k(f's_add_u32 s22, s22, {NG}\ns_branch {p}_loop')
    k.label(f'{p}_last')
    k(f"""
    s_waitcnt vmcnt(0)
    s_barrier
    buffer_store_dword v15, v14, s[8:11], s44 offen sc1""")
    stamp(k, cfg, 2)
    k(f's_branch {end}')

def mega_epilogue(k, name, cfg):
    k.label(name + '_fail')
    k(f"""
    v_mov_b32 v4, 16
    s_lshl_b32 s28, s25, 8
    s_add_u32 s28, s28, s22
    s_add_u32 s28, s28, 0x10000
    v_mov_b32 v5, s28
    buffer_store_dword v5, v4, s[88:91], 0 offen
    s_endpgm""")
    k.label(name + '_end')
    if cfg.get('stamp') is not None:
        l = k.newlabel('L_nost')
        k(f"""
        s_cmp_ge_u32 s2, 256
        s_cbranch_scc1 {l}
        s_cmp_lg_u32 s21, 0
        s_cbranch_scc1 {l}
        s_memrealtime s[72:73]
        s_memtime s[78:79]
        s_waitcnt lgkmcnt(0)
        s_sub_u32 s78, s78, s76
        s_lshl_b32 s28, s25, 2
        s_add_u32 s28, s28, {STAMPS + 0x4000:#x}
        v_mov_b32 v4, 0
        v_mov_b32 v8, s78
        v_mov_b32 v9, s58
        buffer_store_dword v8, v4, s[8:11], s28 offen
        buffer_store_dword v9, v4, s[8:11], s28 offen offset:1024
        s_lshl_b32 s28, s25, 5
        s_add_u32 s28, s28, {STAMPS:#x}
        v_mov_b32 v4, 0
        v_mov_b32 v8, s60
        v_mov_b32 v9, s62
        v_mov_b32 v10, s64
        v_mov_b32 v11, s66
        v_mov_b32 v12, s68
        v_mov_b32 v13, s70
        v_mov_b32 v14, s72
        v_mov_b32 v15, s74
        buffer_store_dwordx4 v[8:11], v4, s[8:11], s28 offen
        buffer_store_dwordx4 v[12:15], v4, s[8:11], s28 offen offset:16""")
        k.label(l)
    k('s_endpgm')

def vid(k):
    k("""
    s_add_u32 s29, s2, s23
    s_sub_u32 s29, s29, 1
    s_lshr_b32 s25, s2, 3
    s_lshl_b32 s25, s25, 2
    s_and_b32 s28, s29, 3
    s_add_u32 s25, s25, s28
    s_and_b32 s28, s29, 4
    s_lshl_b32 s28, s28, 5
    s_add_u32 s25, s25, s28""")

def rot_check(k, v):
    k(f'v_readfirstlane_b32 s28, v{v}\ns_cmp_lg_u32 s28, s23\ns_cbranch_scc1 mega_kernel_redo')

def rot_wait(k, t):
    l = k.newlabel('L_rw')
    k(f'v_mov_b32 v{t}, 140\ns_mov_b32 s39, 0')
    k.label(l)
    k(f'buffer_load_dword v{t+1}, v{t}, s[88:91], 0 offen sc1')
    tmo(k, FAIL)
    k(f's_waitcnt vmcnt(0)\nv_cmp_eq_u32 vcc, 0, v{t+1}\ns_cbranch_vccnz {l}')
    rot_check(k, t + 1)

def gen_mega_kernel(k, name, cfg):
    mega_prologue(k, name)
    dbg_srd(k)
    k(f"""
    s_getreg_b32 s23, hwreg(HW_REG_XCC_ID)
    s_sub_u32 s23, s23, s2
    s_add_u32 s23, s23, {cfg.get('rotbias', 0)}
    s_and_b32 s23, s23, 7
    s_add_u32 s23, s23, 1
    s_add_u32 s28, s2, s21
    s_cmp_lg_u32 s28, 0
    s_cbranch_scc1 {name}_disp
    v_mov_b32 v4, 140
    v_mov_b32 v5, s23
    buffer_store_dword v5, v4, s[88:91], 0 offen sc1
    s_waitcnt vmcnt(0)
    s_branch {name}_disp""")
    k.label(name + '_redo')
    k('s_mov_b32 s23, s28\ns_waitcnt vmcnt(0) lgkmcnt(0)\ns_barrier')
    k.label(name + '_disp')
    vid(k)
    if cfg.get('swap', (104, 160, 24)):
        a, b, n = cfg.get('swap', (104, 160, 24))
        k(f"""
        s_sub_u32 s28, s25, {a}
        s_sub_u32 s29, s25, {b}
        s_add_u32 s30, s28, {b}
        s_add_u32 s31, s29, {a}
        s_cmp_lt_u32 s28, {n}
        s_cselect_b32 s25, s30, s25
        s_cmp_lt_u32 s29, {n}
        s_cselect_b32 s25, s31, s25""")
    if cfg.get('stamp') is not None:
        for i in range(60, 76): k(f's_mov_b32 s{i}, 0')
        ustamp(k, cfg, 7)
        k('s_memtime s[76:77]')
    E_, F_ = name + '_end', name + '_fail'
    G3 = name + '_g3'
    k(f"""
    s_mov_b32 s22, 0
    s_mov_b32 s24, 1
    s_and_b32 s20, s25, 31
    s_cmp_lt_u32 s25, 32
    s_cbranch_scc1 {name}_h
    s_cmp_lt_u32 s25, 64
    s_cbranch_scc1 {name}_z
    s_cmp_lt_u32 s25, 80
    s_cbranch_scc1 {name}_c0
    s_sub_u32 s30, s25, 80
    s_cmp_lt_u32 s25, 128
    s_cbranch_scc1 {name}_il
    s_cmp_lt_u32 s25, 192
    s_cbranch_scc1 {name}_vu0
    s_cmp_lt_u32 s25, 224
    s_cbranch_scc1 {name}_qk
    s_sub_u32 s30, s25, 176
    s_branch {name}_il""")
    k.label(name + '_c0')
    k('s_sub_u32 s30, s25, 64')
    gen_init_x(k, name + '_ix')
    k(f's_sub_u32 s20, s25, 64\ns_branch {name}_c')
    k.label(name + '_il')
    gen_init_ln(k, name + '_il')
    k(f's_sub_u32 s20, s25, 64\ns_cmp_lt_u32 s25, 104\ns_cbranch_scc1 {name}_c')
    load_sel(k, cfg)
    k(f"""
    s_and_b32 s20, s25, 7
    s_cmp_lt_u32 s25, 112
    s_cbranch_scc1 {name}_x
    s_cmp_lt_u32 s25, 128
    s_cbranch_scc1 {name}_g10
    s_cmp_ge_u32 s25, 254
    s_cbranch_scc1 {name}_wt
    s_sub_u32 s28, s25, 224
    s_mul_i32 s22, s28, 26
    s_lshr_b32 s22, s22, 8
    s_mul_i32 s29, s22, 10
    s_sub_u32 s20, s28, s29""")
    if 'O' in cfg.get('skip', ''): k(f's_branch {E_}')
    gen_o(k, name + '_o', G3, F_, cfg)
    k.label(name + '_wt')
    k('s_and_b32 s27, s25, 1\ns_lshl_b32 s27, s27, 4\ns_mov_b32 s26, 16')
    if 'W' in cfg.get('skip', ''): k(f's_branch {E_}')
    gen_wt(k, name + '_wt', name + '_wo', cfg)
    k.label(name + '_wo')
    k('s_and_b32 s20, s25, 1')
    k.label(name + '_wol')
    gen_wo(k, name + '_wo', cfg)
    k(f's_add_u32 s20, s20, 2\ns_cmp_lt_u32 s20, 5\ns_cbranch_scc1 {name}_wol\ns_branch {G3}')
    k.label(name + '_g10')
    if cfg.get('g1wait', 1):
        k(f'v_and_b32 v16, 31, v1\nv_lshlrev_b32 v16, 7, v16\ns_mov_b32 s44, {FKM:#x}')
        poll_flag(k, name + '_wf', 16, 's44', 17, F_, sleep=8)
    k('v_lshlrev_b32 v2, 4, v1')
    k('s_and_b32 s20, s25, 3\ns_bfe_u32 s22, s25, 0x20002\ns_cmp_eq_u32 s22, 3\ns_cselect_b32 s22, 0, s22\ns_cselect_b32 s28, 0, 4\ns_cselect_b32 s24, 1, 3\ns_cselect_b32 s26, 60, 64\ns_add_u32 s20, s20, s28')
    k.label(name + '_g1e')
    if '1' in cfg.get('skip', ''): k(f's_branch {E_}')
    gen_g1p(k, name + '_g1p', E_, F_, cfg)
    k.label(name + '_x')
    if 'X' in cfg.get('skip', ''): k(f's_branch {E_}')
    gen_x(k, name + '_x', E_, F_, cfg)
    k.label(name + '_c')
    gen_c(k, name + '_c', G3, F_, cfg)
    k.label(G3)
    if cfg.get('stamp') is not None and not LST: ustamp(k, cfg, 1 if cfg.get('stamp') == 98 else 5)
    k('s_cmp_lt_u32 s25, 224\ns_cselect_b32 s28, 8, 0\ns_add_u32 s28, s28, s25\ns_sub_u32 s28, s28, 96\ns_cmp_lt_u32 s25, 128\ns_cselect_b32 s20, s25, s28')
    if 'G' in cfg.get('skip', ''): k(f's_branch {E_}')
    gen_g3p(k, name + '_g3p', E_, F_, cfg)
    k.label(name + '_z')
    gen_z(k, name + '_z', G3, F_, cfg)
    k.label(name + '_h')
    gen_h(k, name + '_h', G3, F_, cfg)
    k.label(name + '_vu0')
    k('s_bfe_u32 s24, s25, 0x10005')
    gen_pj(k, name + '_pj', name + '_g2', cfg)
    k.label(name + '_g2')
    ustamp(k, cfg, 0)
    if 'G' in cfg.get('skip', ''): k(f's_branch {E_}')
    k('s_sub_u32 s27, s25, 96\ns_mov_b32 s26, 1')
    k.label(name + '_g2a')
    gen_wt(k, name + '_wt1', name + '_g2b', cfg, single=True)
    k.label(name + '_g2b')
    k(f's_add_u32 s27, s27, 32\ns_sub_u32 s28, s27, 96\ns_cmp_lt_u32 s28, 32\ns_cbranch_scc1 {name}_g2a')
    k('s_sub_u32 s20, s25, 128')
    gen_g2p(k, name + '_g2p', E_, F_, cfg)
    k.label(name + '_qk')
    gen_vu(k, name + '_vu', name + '_vue', F_, dict(cfg, stamp=cfg.get('stamp') if cfg.get('stamp') in (0, 97) else None))
    k.label(name + '_vue')
    k(f's_cmp_lt_u32 s25, 216\ns_cbranch_scc1 {G3}\ns_and_b32 s20, s25, 3\ns_bfe_u32 s22, s25, 0x10002\ns_add_u32 s22, s22, 60\ns_mov_b32 s24, 2\ns_mov_b32 s26, 64\ns_branch {name}_g1e')
    mega_epilogue(k, name, cfg)

def mega_prologue(k, name, nwg=256):
    k.begin(name)
    k(f'''
    s_cmp_lt_u32 s2, {nwg}
    s_cbranch_scc1 {name}_in
    s_endpgm''')
    k.label(name + '_in')
    k(f'''
    s_load_dwordx4 s[4:7], s[0:1], {KA['dbg']}
    s_load_dwordx8 s[92:99], s[0:1], {KA['Wq']}
    v_and_b32 v1, 63, v0
    v_lshrrev_b32 v2, 6, v0
    s_nop 0
    v_readfirstlane_b32 s21, v2
    s_waitcnt lgkmcnt(0)''')
    k.srd(8, 6, WS_BYTES)

def far_branch(k, target):
    k(f's_branch {target}')

GC1 = -2.0 * (2.0 / 3.141592653589793) ** 0.5 * 1.4426950408889634
GC2 = GC1 * 0.044715

def gs(k, cfg, idx):
    if cfg.get('gstamp'): k(f's_memrealtime s[{60+2*idx}:{61+2*idx}]')

def gdump(k, cfg, n):
    if not cfg.get('gstamp'): return
    k(f"""
    s_waitcnt vmcnt(0)
    s_memrealtime s[74:75]
    s_waitcnt lgkmcnt(0)
    s_lshl_b32 s28, s2, 2
    s_add_u32 s28, s28, s21
    s_lshl_b32 s28, s28, 5
    s_add_u32 s28, s28, {TRACE + 0x200000 + n * 0x10000:#x}
    v_mov_b32 v4, 0""")
    for i in range(8): k(f'v_mov_b32 v{8+i}, s{60+2*i}')
    k('buffer_store_dwordx4 v[8:11], v4, s[8:11], s28 offen')
    k('buffer_store_dwordx4 v[12:15], v4, s[8:11], s28 offen offset:16')

def gen_wt(k, p, end, cfg, single=False):
    k(f's_load_dwordx2 s[28:29], s[0:1], {KA["w_sp"]}')
    k('s_waitcnt lgkmcnt(0)')
    k.srd(12, 28, 2048 * 4096)
    k(f"""
    v_lshlrev_b32 v2, 4, v1
    s_lshl_b32 s31, s21, 14
    s_lshl_b32 s30, s27, 16
    s_add_u32 s30, s30, s31
    s_lshl_b32 s28, s21, 6""")
    for r in range(4): k(f'v_xor_b32 v{4+r}, s28, v2\ns_add_u32 s28, s28, 16')
    k(f"""
    v_and_b32 v8, 15, v1
    v_lshrrev_b32 v9, 4, v1
    v_xor_b32 v9, v9, v8
    v_lshlrev_b32 v9, 4, v9
    v_lshl_add_u32 v9, v8, 12, v9
    s_lshl_b32 s28, s21, 10
    v_add_u32 v10, s28, v9
    v_xor_b32 v11, 64, v10
    v_xor_b32 v12, 128, v10
    v_xor_b32 v13, 192, v10
    s_mov_b32 s32, s27
    s_add_u32 s35, s32, s26""")
    def dma():
        for r in range(4):
            k(f's_add_u32 m0, s31, {4096*r}\ns_add_u32 s28, s30, {4096*r}')
            for i in range(4):
                k(f'buffer_load_dwordx4 v{4+r}, s[12:15], s28 offen offset:{1024*i} nt lds')
        k(f's_xor_b32 s31, s31, 65536\ns_add_u32 s30, s30, 65536\ns_and_b32 s30, s30, {2048*4096 - 1:#x}')
    dma()
    if not single: dma()
    k(f's_waitcnt vmcnt({0 if single else 16})')
    k.label(f'{p}_loop')
    k('s_barrier')
    for i in range(16): k(f'ds_read_b128 {V(16+4*i,4)}, v{10+i%4} offset:{256*(i//4)}')
    k(f"""
    s_lshr_b32 s28, s32, 1
    s_lshl_b32 s33, s28, 20
    s_and_b32 s28, s28, 15
    s_lshl_b32 s28, s28, 11
    s_add_u32 s33, s33, s28
    s_and_b32 s28, s32, 1
    s_mul_i32 s28, s28, {WST}
    s_add_u32 s33, s33, s28
    s_lshl_b32 s28, s21, 14
    s_add_u32 s33, s33, s28
    s_add_u32 s33, s33, {WSF:#x}""")
    for i in range(4): k(f'v_xor_b32 v{10+i}, 65536, v{10+i}')
    k('s_waitcnt lgkmcnt(0)')
    if not single:
        k('s_barrier')
        dma()
    for i in range(16):
        k(f'buffer_store_dwordx4 {V(16+4*i,4)}, v2, s[8:11], s33 offen offset:{1024*(i%4)} sc1')
        if i % 4 == 3: k('s_add_u32 s33, s33, 4096')
    k(f"""
    s_add_u32 s32, s32, 1
    s_cmp_lt_u32 s32, s35
    s_waitcnt vmcnt(32)
    s_cbranch_scc1 {p}_loop
    v_mov_b32 v6, {BIG:#x}
    v_lshlrev_b32 v7, 7, v0
    v_cmp_gt_u32 vcc, s26, v0
    s_lshl_b32 s28, s27, 7
    s_add_u32 s28, s28, {FWT:#x}
    v_cndmask_b32 v6, v6, v7, vcc
    v_mov_b32 v7, 1
    s_waitcnt vmcnt(0)
    s_barrier
    buffer_store_dword v7, v6, s[8:11], s28 offen sc1
    s_branch {end}""")

def gen_g1p(k, p, end, fail, cfg):
    SX = 81920; SA = SX + 512; SB = SA + 1024
    loc = {(t, kk): ('a', 4 * (3 * kk + t)) for kk in range(20) for t in range(3)}
    k(f's_load_dwordx2 s[28:29], s[0:1], {KA["w_in"]}')
    k('s_waitcnt lgkmcnt(0)')
    k.srd(12, 28, 640 * 3072)
    for i in range(3):
        k(f"""
        v_add_u32 v8, {64*i}, v1
        v_mul_u32_u24 v9, 2731, v8
        v_lshrrev_b32 v9, 16, v9
        v_mul_u32_u24 v10, 24, v9
        v_sub_u32 v10, v8, v10
        v_mul_u32_u24 v9, 3072, v9
        v_lshl_add_u32 v{144+i}, v10, 4, v9""")
    k(f"""
    v_lshrrev_b32 v11, 2, v1
    v_mul_u32_u24 v11, 384, v11
    v_and_b32 v10, 3, v1
    v_lshl_add_u32 v11, v10, 3, v11
    s_mul_i32 s28, s21, 96
    v_add_u32 v11, s28, v11
    s_mul_i32 s30, s20, 384
    s_mul_i32 s28, s21, {16*3072}
    s_add_u32 s30, s30, s28
    s_mul_i32 s32, s21, 6144""")
    k.vd = k.vc
    tick = {}
    def issue(c):
        for i in range(6):
            k(f's_add_u32 m0, s32, {(c%6)*24576 + i*1024}')
            k(f's_add_u32 s33, s30, {c*64*3072 + (i//3)*8*3072}')
            tick[c] = k.vm(f'buffer_load_dwordx4 v{144+i%3}, s[12:15], s33 offen lds')
    for c in range(6): issue(c)
    for c in range(10):
        k.wv(tick[c])
        k('s_barrier')
        k(f'v_add_u32 v13, {(c%6)*24576}, v11')
        for t in range(3):
            for k2 in range(2):
                for hf in range(2):
                    k(f'ds_read_b64_tr_b16 {R(loc[(t, 2*c+k2)], 2, 2*hf)}, v13 offset:{(32*k2+16*hf)*384 + t*32}')
        k('s_waitcnt lgkmcnt(0)')
        if c + 6 < 10 or c == 9: k('s_barrier')
        if c + 6 < 10: issue(c + 6)
    ustamp(k, cfg, 1)
    k(f"""
    v_mov_b32 v3, 9
    v_min_u32 v3, v3, v1
    v_lshlrev_b32 v3, 7, v3
    v_and_b32 v10, 15, v1
    v_lshrrev_b32 v11, 4, v1
    s_lshr_b32 s29, s21, 1
    s_mul_i32 s28, s29, 20480
    v_add_u32 v4, s28, v2
    v_lshrrev_b32 v12, 3, v10
    v_mul_u32_u24 v12, 20480, v12
    v_lshl_add_u32 v12, v11, 8, v12
    v_bfe_u32 v13, v10, 2, 1
    v_lshl_add_u32 v12, v13, 7, v12
    v_and_b32 v13, 3, v10
    v_lshl_add_u32 v12, v13, 4, v12
    s_lshl_b32 s28, s29, 6
    v_add_u32 v12, s28, v12
    s_cmp_ge_u32 s20, 4
    s_cselect_b64 vcc, -1, 0
    v_cndmask_b32 v4, v4, v12, vcc
    v_mov_b32 v5, v2
    s_mul_i32 s34, s21, 10240
    v_add_u32 v8, s34, v2
    s_and_b32 s35, s21, 1
    s_mul_i32 s35, s35, 10240
    s_add_u32 s35, s35, {HH:#x}
    v_mov_b32 v6, {BIG:#x}
    v_cmp_eq_u32 vcc, 0, v0
    v_mov_b32 v7, 1
    s_nop 0
    v_cndmask_b32_e64 v6, v6, 0, vcc
    s_lshl_b32 s28, s21, 7
    s_add_u32 s28, s28, {SX}
    v_lshlrev_b32 v9, 3, v10
    v_add_u32 v14, {SX}, v9
    v_add_u32 v9, s28, v9
    v_lshrrev_b32 v12, 2, v10
    v_cmp_eq_u32 vcc, v12, v11
    v_mov_b32 v12, {SB + 512}
    v_and_b32 v13, 1, v1
    v_cndmask_b32 v9, v12, v9, vcc
    v_cmp_ne_u32 s[48:49], 0, v13
    v_and_b32 v13, 2, v1
    v_cmp_ne_u32 s[50:51], 0, v13
    s_mov_b32 s45, {DUMMY:#x}
    v_lshlrev_b32 v15, 5, v11
    v_add_u32 v15, {SX}, v15
    s_mov_b32 s36, 0x3f803f80
    v_mov_b32 v16, s36
    v_mov_b32 v17, s36
    v_mov_b32 v18, s36
    v_mov_b32 v19, s36
    v_mov_b32 v20, {GC1!r}
    v_mov_b32 v22, {GC2!r}
    v_mov_b32 v24, 1.0
    s_mov_b32 s40, 0
    s_mov_b32 s41, 0
    s_cmp_ge_u32 s20, 4
    s_cbranch_scc1 {p}_z2""")
    CSR = 28
    acc = lambda tt, t3: 40 + 4 * (3 * tt + t3)
    def dma(seg):
        k(f's_mul_i32 s29, {seg}, 40960\ns_add_u32 s29, s29, s35\ns_add_u32 s28, s34, s40')
        for j in range(3):
            k(f's_add_u32 m0, s28, {4096*j}\ns_add_u32 s33, s29, {4096*j}')
            for i in range(4 if j < 2 else 2):
                k(f'buffer_load_dwordx4 v4, s[8:11], s33 offen offset:{1024*i} sc1 lds')
        k('s_xor_b32 s40, s40, 40960')
    def path(z2):
        q = f'{p}_{"b" if z2 else "a"}'
        mm = lambda d, w_, x_, c_: f'{MF} {d}, {x_}, {w_}, {c_}' if z2 else f'{MF} {d}, {w_}, {x_}, {c_}'
        for kk in range(20):
            for t in range(3):
                d = V(CSR + 4 * t, 4)
                k(mm(d, R(loc[(t, kk)], 4), 'v[16:19]', '0' if kk == 0 else d))
        k.label(f'{q}_loop')
        k(f's_cmp_lg_u32 s41, 0\ns_cbranch_scc1 {q}_have\ns_lshl_b32 s42, s22, 12\ns_add_u32 s42, s42, {FH:#x}')
        poll_flag(k, f'{q}_f', 3, 's42', 26, fail, sleep=1, slow=(62, cfg.get('slow', 12)))
        dma('s22')
        k('s_waitcnt vmcnt(0)')
        k.label(f'{q}_have')
        stamp(k, cfg, 2)
        k(f"""
        s_add_u32 s43, s22, s24
        s_min_u32 s42, s43, 63
        s_lshl_b32 s42, s42, 12
        s_add_u32 s42, s42, {FH:#x}
        s_waitcnt vmcnt({1 if z2 else 6})
        s_barrier
        buffer_load_dword v26, v3, s[8:11], s42 offen sc1""")
        mats = []; items = []; ev = []
        XR = [64 + 4 * i for i in range(8)]
        for kk in range(20):
            for tt in range(2):
                n_ = 2 * kk + tt; r = XR[n_ % 8]
                ev.append((max(3 * n_ - 15, 3 * (n_ - 8) + 2 if n_ >= 8 else -1), dict(id=('x', n_), kind='n', lds=True, fn=f'ds_read_b128 {V(r,4)}, v5 offset:{tt*20480 + kk*1024}')))
                for t in range(3):
                    d = V(acc(tt, t), 4)
                    mats.append((mm(d, R(loc[(t, kk)], 4), V(r, 4), '0' if kk == 0 else d), [('x', n_)]))
        smats = []
        for i in range(10):
            r = V(96 + 4 * i, 4)
            ev.append((1 + 3 * i, dict(id=('o', i), kind='n', lds=True, fn=f'ds_read_b128 {r}, v8 offset:{1024*i}')))
            smats.append((f'{MF} v[156:159], v[16:19], {r}, {"0" if i == 0 else "v[156:159]"}', [('o', i)]))
            smats.append((f'{MF} v[160:163], {r}, {r}, {"0" if i == 0 else "v[160:163]"}', []))
        SP = 42
        mats[SP:SP] = smats
        for j, (g_, it) in enumerate(ev):
            if it['id'][0] == 'x' and g_ >= SP: ev[j] = (g_ + 20, it)
        items.append(dict(id='s0', kind='v', fn='v_cndmask_b32 v160, v160, v161, s[48:49]', states=(SP + 19, 8), after=SP + 22))
        items.append(dict(id='s1', kind='v', fn='v_cndmask_b32 v162, v162, v163, s[48:49]'))
        items.append(dict(id='s2', kind='v', fn='v_cndmask_b32 v157, v160, v162, s[50:51]'))
        ev.append((SP + 26, dict(id='sw', kind='n', lds=True, fn='ds_write_b64 v9, v[156:157]', order=['s2'])))
        ev.append((SP + 31, dict(id='sv', kind='n', fn='s_waitcnt vmcnt(0)\nv_cmp_eq_u32 vcc, 0, v26')))
        ev.append((SP + 32, dict(id='sb', kind='bar', fn='s_barrier', deps=['sw'], order=['sw'])))
        kd = K(); k_save = k.L; k.L = kd.L
        k(f's_mov_b32 s41, 0\ns_cmp_ge_u32 s43, s26\ns_cbranch_scc1 {q}_nop\ns_cbranch_vccnz {q}_nop\ns_mov_b32 s41, 1')
        dma('s43')
        k.L = k_save
        if not z2: ev.append((SP + 32.5, dict(id='sf', kind='n', fn=f'buffer_store_dword v7, v6, s[8:11], s45 offen sc1')))
        ev.append((SP + 42, dict(id='sd', kind='n', fn='\n'.join(kd.L), label=f'{q}_nop')))
        RS, NB = 140, 148
        nst = 8 if z2 else 2
        if z2:
            for i in range(8):
                ev.append((SP + 33 + i, dict(id=('sr', i), kind='n', lds=True, fn=f'ds_read_b128 {V(96+4*i,4)}, v15 offset:{128*(i>>1) + 16*(i&1)}', order=['sb'])))
            src = lambda i: (96 + 16 * (i >> 2) + 2 * (i & 3), 104 + 16 * (i >> 2) + 2 * (i & 3))
            lastr = ('sr', 7)
        else:
            for i in range(4):
                ev.append((SP + 33 + i, dict(id=('sr', i), kind='n', lds=True, fn=f'ds_read_b64 {V(96+2*i,2)}, v14 offset:{128*i}', order=['sb'])))
            src = lambda i: (96 + 4 * i, 98 + 4 * i)
            lastr = ('sr', 3)
        fin = []
        for i in range(nst): fin.append(f'v_pk_add_f32 {V(src(i)[0],2)}, {V(src(i)[0],2)}, {V(src(i)[1],2)}')
        for i in range(nst): fin.append(f'v_pk_mul_f32 {V(src(i)[0],2)}, {V(src(i)[0],2)}, s[46:47]')
        for i in range(nst): fin.append(f'v_fma_f32 v{src(i)[0]+1}, -v{src(i)[0]}, v{src(i)[0]}, v{src(i)[0]+1}')
        for i in range(nst): fin.append(f'v_max_f32 v{src(i)[0]+1}, 0, v{src(i)[0]+1}')
        for i in range(nst): fin.append(f'v_add_f32 v{src(i)[0]+1}, 1e-5, v{src(i)[0]+1}')
        st = 1 if z2 else 2
        for i in range(nst): fin.append(f'v_rsq_f32 v{RS+st*i}, v{src(i)[0]+1}')
        fin.append('v_nop')
        for i in range(nst): fin.append(f'v_mul_f32_e64 v{NB+st*i}, -v{src(i)[0]}, v{RS+st*i}')
        for i, f_ in enumerate(fin):
            items.append(dict(id=('f', i), kind='v', fn=f_, deps=[lastr] if i == 0 else [], order=[lastr], after=SP + 46))
        ev.sort(key=lambda x: x[0])
        for g_, it in ev:
            it['after'] = g_; items.append(it)
        k(f's_mov_b32 s46, {1.0/640!r}\ns_mov_b32 s47, s46')
        sched(k, mats, items, [False] * 140, pre_n=3)
        stamp(k, cfg, 3)
        k('v_xor_b32 v5, 40960, v5\ns_nop 0\nv_add_u32 v8, s34, v5')
        for tt in range(2):
            for t in range(3):
                for h_ in range(2):
                    a = V(acc(tt, t) + 2 * h_, 2); c = V(CSR + 4 * t + 2 * h_, 2)
                    if z2:
                        k(f'v_pk_mul_f32 {a}, {a}, {V(RS+4*tt+2*h_,2)}')
                        k(f'v_pk_fma_f32 {a}, {c}, {V(NB+4*tt+2*h_,2)}, {a}')
                    else:
                        k(f'v_pk_mul_f32 {a}, {a}, {V(RS+2*tt,2)} op_sel_hi:[1,0]')
                        k(f'v_pk_fma_f32 {a}, {c}, {V(NB+2*tt,2)}, {a} op_sel_hi:[1,0,1]')
        for b in range(0, 24, 8):
            for i in range(0, 8, 2): k(f'v_pk_mul_f32 {V(64+i,2)}, {V(40+b+i,2)}, {V(40+b+i,2)}')
            for i in range(0, 8, 2): k(f'v_pk_fma_f32 {V(64+i,2)}, {V(64+i,2)}, v[22:23], v[20:21] op_sel_hi:[1,0,0]')
            for i in range(0, 8, 2): k(f'v_pk_mul_f32 {V(64+i,2)}, {V(64+i,2)}, {V(40+b+i,2)}')
            for i in range(8): k(f'v_exp_f32 v{64+i}, v{64+i}')
            for i in range(0, 8, 2): k(f'v_pk_add_f32 {V(64+i,2)}, {V(64+i,2)}, v[24:25] op_sel_hi:[1,0]')
            for i in range(8): k(f'v_rcp_f32 v{64+i}, v{64+i}')
            for i in range(0, 8, 2): k(f'v_pk_mul_f32 {V(40+b+i,2)}, {V(40+b+i,2)}, {V(64+i,2)}')
        if not z2:
            k(f"""
            s_mul_i32 s28, s20, 6144
            s_mul_i32 s29, s21, 1536
            s_add_u32 s28, s28, s29
            s_mul_i32 s29, s22, 49152
            s_add_u32 s28, s28, s29
            s_add_u32 s28, s28, {Z1F:#x}
            s_add_u32 s29, s28, 24576
            v_lshlrev_b32 v12, 3, v1""")
            for tt in range(2):
                for t3 in range(3):
                    a = acc(tt, t3); d = 72 + 2 * (2 * t3 + tt)
                    k(f'v_cvt_pk_bf16_f32 v{d}, v{a}, v{a+1}')
                    k(f'v_cvt_pk_bf16_f32 v{d+1}, v{a+2}, v{a+3}')
                    k(f'buffer_store_dwordx2 {V(d,2)}, v12, s[8:11], s{28+tt} offen offset:{512*t3} sc1')
        else:
            for tt in range(2):
                for r in range(4):
                    d = 96 + 8 * tt + 2 * r; a0, a1, a2 = (acc(tt, j) + r for j in range(3))
                    k(f'v_add_f32 v{d}, v{a0}, v{a1}')
                    k(f'v_mul_f32 v{d+1}, v{a0}, v{a0}')
                    k(f'v_add_f32 v{d}, v{d}, v{a2}')
                    k(f'v_fmac_f32 v{d+1}, v{a1}, v{a1}')
                    k(f'v_fmac_f32 v{d+1}, v{a2}, v{a2}')
            for sh in (8, 4, 2, 1):
                for i in range(16):
                    k(f'v_add_f32_dpp v{96+i}, v{96+i}, v{96+i} row_ror:{sh} row_mask:0xf bank_mask:0xf')
            k(f's_lshl_b32 s28, s21, 8\nv_add_u32 v13, s28, v15')
            for tt in range(2):
                k(f'ds_write_b128 v13, {V(96+8*tt,4)} offset:{SA - SX + 128*tt}')
                k(f'ds_write_b128 v13, {V(100+8*tt,4)} offset:{SA - SX + 128*tt + 16}')
            k(f"""
            s_waitcnt lgkmcnt(0)
            s_barrier
            s_cmp_lg_u32 s21, 0
            s_cbranch_scc1 {q}_w
            v_and_b32 v12, 31, v1
            v_lshlrev_b32 v12, 3, v12
            v_add_u32 v13, {SA}, v12
            ds_read_b64 v[96:97], v13
            ds_read_b64 v[98:99], v13 offset:256
            ds_read_b64 v[100:101], v13 offset:512
            ds_read_b64 v[102:103], v13 offset:768
            s_lshl_b32 s44, s22, 10
            s_add_u32 s44, s44, {ST:#x}
            s_and_b32 s28, s20, 3
            s_lshl_b32 s28, s28, 8
            s_add_u32 s28, s28, s44
            s_waitcnt lgkmcnt(0)
            v_pk_add_f32 v[96:97], v[96:97], v[98:99]
            v_pk_add_f32 v[100:101], v[100:101], v[102:103]
            v_pk_add_f32 v[96:97], v[96:97], v[100:101]
            v_min_u32 v96, -2, v96
            v_min_u32 v97, -2, v97
            buffer_store_dwordx2 v[96:97], v12, s[8:11], s28 offen sc1
            s_mov_b32 s39, 0
            s_waitcnt vmcnt(0)""")
            k.label(f'{q}_sp')
            for i in range(4):
                k(f'buffer_load_dwordx2 {V(98+2*i,2)}, v12, s[8:11], s44 offen offset:{256*i} sc1')
            tmo(k, fail)
            k('s_waitcnt vmcnt(0)')
            maxtree(k, 10, list(range(98, 106)))
            k(f"""
            v_cmp_eq_u32 vcc, -1, v10
            s_cbranch_vccnz {q}_sp
            v_pk_add_f32 v[98:99], v[98:99], v[100:101]
            v_pk_add_f32 v[102:103], v[102:103], v[104:105]
            v_pk_add_f32 v[98:99], v[98:99], v[102:103]
            v_mul_f32 v98, {1.0/768!r}, v98
            v_mul_f32 v99, {1.0/768!r}, v99
            v_fma_f32 v99, -v98, v98, v99
            v_max_f32 v99, 0, v99
            v_add_f32 v99, 1e-5, v99
            v_rsq_f32 v100, v99
            s_nop 0
            v_mul_f32_e64 v101, -v98, v100
            ds_write_b64 v13, v[100:101] offset:{SB - SA}
            s_waitcnt lgkmcnt(0)""")
            k.label(f'{q}_w')
            k('s_barrier')
            for tt in range(2):
                k(f'ds_read_b128 {V(96+8*tt,4)}, v15 offset:{SB - SX + 128*tt}')
                k(f'ds_read_b128 {V(100+8*tt,4)}, v15 offset:{SB - SX + 128*tt + 16}')
            k(f"""
            s_sub_u32 s28, s20, 4
            s_mul_i32 s28, s28, 12
            s_mul_i32 s29, s21, 3
            s_add_u32 s28, s28, s29
            s_lshl_b32 s28, s28, 10
            s_mul_i32 s29, s22, 49152
            s_add_u32 s28, s28, s29
            s_add_u32 s28, s28, {Z2F:#x}
            s_waitcnt lgkmcnt(0)""")
            for t3 in range(3):
                d = 72 + 4 * t3
                for tt in range(2):
                    a = acc(tt, t3)
                    for r in range(4):
                        k(f'v_fma_f32 v{a+r}, v{a+r}, v{96+8*tt+2*r}, v{97+8*tt+2*r}')
                    k(f'v_cvt_pk_bf16_f32 v{d+2*tt}, v{a}, v{a+1}')
                    k(f'v_cvt_pk_bf16_f32 v{d+2*tt+1}, v{a+2}, v{a+3}')
                k(f'buffer_store_dwordx4 {V(d,4)}, v2, s[8:11], s28 offen offset:{1024*t3} sc1')
        k(f"""
        s_lshl_b32 s28, s20, 6
        s_add_u32 s28, s28, s22
        s_lshl_b32 s28, s28, 7
        s_add_u32 s28, s28, {FG1:#x}""")
        if not z2:
            k(f's_mov_b32 s45, s28\ns_cmp_lt_u32 s43, s26\ns_cbranch_scc1 {q}_df')
        k(f"""
        s_waitcnt vmcnt(0)
        s_barrier
        buffer_store_dword v7, v6, s[8:11], s28 offen sc1""")
        k.label(f'{q}_df')
        stamp(k, cfg, 4)
        k(f"""
        s_mov_b32 s22, s43
        s_cmp_lt_u32 s22, s26
        s_cbranch_scc1 {q}_loop
        s_branch {end}""")
    path(False)
    k.label(f'{p}_z2')
    path(True)

def gen_g2p(k, p, end, fail, cfg):
    k(f's_load_dwordx2 s[28:29], s[0:1], {KA["b_sp"]}')
    k('s_waitcnt lgkmcnt(0)')
    k.srd(12, 28, 4096)
    acc = lambda tt, j: 64 + 4 * (6 * tt + j)
    k(f"""
    s_and_b32 s30, s20, 3
    s_lshl_b32 s30, s30, 2
    s_bfe_u32 s31, s20, 0x20002
    s_add_u32 s30, s30, s31
    s_lshr_b32 s31, s20, 4
    s_lshr_b32 s32, s21, 1
    s_and_b32 s33, s21, 1
    v_and_b32 v10, 15, v1
    v_lshlrev_b32 v10, 1, v10
    s_lshl_b32 s28, s30, 8
    s_lshl_b32 s29, s32, 7
    s_add_u32 s28, s28, s29""")
    for tt in range(4):
        k(f'buffer_load_ushort v{16+tt}, v10, s[12:15], s28 offen offset:{32*tt}')
    k(f"""
    s_add_u32 s28, s31, 4
    s_lshl_b32 s28, s28, 13
    v_lshlrev_b32 v3, 7, v1
    v_add_u32 v3, s28, v3
    s_lshl_b32 s28, s32, 13
    v_add_u32 v4, s28, v2
    s_mul_i32 s28, s33, 6144
    s_add_u32 s28, s28, 16384
    v_add_u32 v5, s28, v2
    s_lshl_b32 s36, s21, 12
    s_lshl_b32 s28, s30, 2
    s_add_u32 s28, s28, s21
    s_lshl_b32 s42, s28, 8
    s_add_u32 s42, s42, {FWT:#x}
    s_lshl_b32 s34, s28, 20
    s_and_b32 s28, s28, 15
    s_lshl_b32 s28, s28, 11
    s_add_u32 s34, s34, s28
    s_add_u32 s34, s34, {WSF:#x}
    v_add_u32 v12, {WST - 2048}, v2
    s_mul_i32 s37, s21, 6144
    s_add_u32 s37, s37, 16384
    s_mul_i32 s35, s31, 12288
    s_mul_i32 s28, s32, 49152
    s_add_u32 s35, s35, s28
    s_mul_i32 s28, s33, 6144
    s_add_u32 s35, s35, s28
    s_add_u32 s35, s35, {Z2F:#x}
    s_mov_b32 s38, {FG1:#x}
    v_mov_b32 v8, 0
    v_and_b32 v9, 1, v1
    v_lshlrev_b32 v9, 7, v9""")
    poll_flag(k, f'{p}_fw', 9, 's42', 11, fail, sleep=4)
    for tt in range(4):
        k(f'v_lshlrev_b32 v{16+tt}, 16, v{16+tt}')
        for i in range(24): k(f'v_mov_b32 v{acc(tt,0)+i}, v{16+tt}')
    k('s_mov_b32 s40, 0\ns_mov_b32 s22, -1')
    NB = 11
    FLG = 'buffer_load_dword v8, v3, s[8:11], s38 offen sc1'
    batch = ['s_and_b32 s28, s40, 3\ns_mul_i32 s28, s28, 40960', 's_add_u32 m0, s28, s36\ns_add_u32 s40, s40, 1'] + \
            [f'buffer_load_dwordx4 v{(2,2,12,12)[i]}, s[8:11], s34 offen offset:{1024*i} sc1 lds' for i in range(4)] + \
            ['s_add_u32 m0, s28, s37\ns_add_u32 s34, s34, 2048'] + \
            [f'buffer_load_dwordx4 v2, s[8:11], s35 offen offset:{1024*i} sc1 lds' for i in range(3)] + \
            ['s_add_u32 m0, m0, 3072\ns_add_u32 s35, s35, 3072'] + \
            [f'buffer_load_dwordx4 v2, s[8:11], s35 offen offset:{1024*i} sc1 lds' for i in range(3)] + \
            [FLG + f'\ns_add_u32 s35, s35, {98304 - 3072}']
    rorder = []
    for h_ in range(2): rorder += [('z', h_, 0), ('w', h_, 0)] + [('z', h_, j) for j in range(1, 6)] + [('w', h_, t) for t in range(1, 4)]
    freg = lambda st, f: 80 * st + 40 * f[1] + (4 * f[2] if f[0] == 'z' else 24 + 4 * f[2])
    def reads(st):
        return [f'ds_read_b128 {A(freg(st,f),4)}, ' + (f'v7 offset:{12288*f[1] + 1024*f[2]}' if f[0] == 'z' else f'v6 offset:{2048*f[2] + 1024*f[1]}') for f in rorder]
    addr = 's_add_u32 s29, s22, 1\ns_and_b32 s29, s29, 3\ns_mul_i32 s29, s29, 40960\nv_add_u32 v6, s29, v4\nv_add_u32 v7, s29, v5'
    def mf(st, i):
        h_, tt, j = i // 24, (i % 24) // 6, i % 6
        return f'{MF} {V(acc(tt,j),4)}, {A(freg(st,("z",h_,j)),4)}, {A(freg(st,("w",h_,tt)),4)}, {V(acc(tt,j),4)}'
    rdy = 's_lshl_b32 s46, s40, 1\ns_add_u32 s46, s46, s32\ns_nop 0\ns_lshr_b64 s[44:45], s[44:45], s46\ns_cmp_lt_u32 s40, 32\ns_cselect_b32 s44, s44, 0'.split('\n')
    def late(st):
        k.label(f'{p}_late{st}')
        k(f's_cmp_eq_u32 s22, 31\ns_cbranch_scc1 {p}_epi\ns_mov_b32 s39, 0')
        k('s_lshl_b32 s46, s40, 1\ns_lshl_b64 s[50:51], 15, s46')
        k.label(f'{p}_lp{st}')
        k('s_mov_b64 exec, s[50:51]')
        k(FLG)
        k('s_mov_b64 exec, -1')
        tmo(k, fail)
        k('s_waitcnt vmcnt(0)\nv_cmp_ne_u32 s[44:45], 0, v8\ns_nop 3')
        for s_ in rdy: k(s_)
        k(f"""
        s_bitcmp1_b32 s44, 0
        s_cbranch_scc1 {p}_lr{st}
        s_sleep 1
        s_cmp_ge_i32 s22, 30
        s_cbranch_scc1 {p}_lp{st}
        s_sleep {2 * cfg.get('slow', 12)}
        s_branch {p}_lp{st}""")
        k.label(f'{p}_lr{st}')
        for s_ in batch: k(s_)
        k(addr)
        k(f's_bitcmp1_b32 s44, 2\ns_cbranch_scc0 {p}_l0{st}')
        for s_ in batch: k(s_)
        k(f's_waitcnt vmcnt({NB})\ns_branch {p}_l1{st}')
        k.label(f'{p}_l0{st}')
        if st == 1:
            k(f's_cmp_eq_u32 s22, 30\ns_cbranch_scc1 {p}_z1')
        k('s_waitcnt vmcnt(0)')
        k.label(f'{p}_l1{st}')
        k('s_barrier')
        for s_ in reads(st): k(s_)
        k(f's_add_u32 s22, s22, 1\ns_branch {p}_it{st}')
    k(f's_mov_b32 s48, 0\ns_branch {p}_late0')
    NF = 14
    for st in range(2):
        k.label(f'{p}_it{st}')
        if cfg.get('stamp') == 99 and st == 0:
            for i_, st_ in ((1, 0), (2, 8), (3, 16), (4, 24)): stamp(k, dict(stamp=st_), i_)
        waits = {0: 15, 4: 13, 6: 12, 12: 0}
        extra = {1: 'v_cmp_ne_u32 s[44:45], 0, v8', 2: 's_add_u32 s29, s22, 1\ns_and_b32 s29, s29, 3', 4: 's_mul_i32 s29, s29, 40960\nv_add_u32 v6, s29, v4',
                 6: 's_sub_u32 s41, s40, s22\nv_add_u32 v7, s29, v5', 7: rdy[0] + '\n' + rdy[1], 8: rdy[2] + '\n' + rdy[3], 9: rdy[4] + '\n' + rdy[5],
                 10: 's_cmp_lt_u32 s41, 4\ns_cselect_b32 s46, 5, 1', 12: 's_and_b32 s44, s44, s46\ns_cmp_eq_u32 s41, 4'}
        for i in range(NF):
            if i in waits: k(f's_waitcnt lgkmcnt({waits[i]})')
            k(mf(st, i))
            if i in extra: k(extra[i])
        k(f's_cbranch_scc0 {p}_n0{st}\ns_waitcnt vmcnt({2*NB})')
        k.label(f'{p}_n1{st}')
        k(mf(st, NF))
        k(f's_barrier\ns_cmp_eq_u32 s44, 1')
        k(mf(st, NF + 1))
        k(f's_cbranch_scc0 {p}_bd{st}')
        def rest(nb):
            r = reads(1 - st); b = list(batch) * nb if nb else [FLG]
            for i in range(NF + 2, 48):
                k(mf(st, i))
                n_ = i - NF - 2
                if n_ < 10:
                    k(r.pop(0)); k(r.pop(0))
                else:
                    for _ in range(2 if nb == 2 and len(b) > 47 - i else 1):
                        if b: k(b.pop(0))
                if i == 46: k('s_add_u32 s22, s22, 1')
            assert not r and not b
            k(f's_branch {p}_it{1-st}')
        rest(1)
        k.label(f'{p}_bd{st}')
        k(f's_cmp_eq_u32 s44, 5\ns_cbranch_scc1 {p}_d{st}')
        rest(0)
        k.label(f'{p}_d{st}')
        rest(2)
        k.label(f'{p}_n0{st}')
        k(f's_cmp_eq_u32 s41, 1\ns_cbranch_scc1 {p}_c{st}\ns_cmp_eq_u32 s41, 2\ns_cbranch_scc1 {p}_n00{st}\ns_waitcnt vmcnt({NB})\ns_branch {p}_n1{st}')
        k.label(f'{p}_n00{st}')
        k(f's_waitcnt vmcnt(0)\ns_branch {p}_n1{st}')
        k.label(f'{p}_c{st}')
        for i in range(NF, 48): k(mf(st, i))
        late(1 - st)
    def z1(tag):
        k(f"""
        v_and_b32 v9, 1, v1
        v_lshlrev_b32 v9, 7, v9
        s_lshl_b32 s42, s31, 6
        s_lshl_b32 s28, s30, 2
        s_add_u32 s42, s42, s28
        s_lshl_b32 s28, s32, 1
        s_add_u32 s42, s42, s28
        s_lshl_b32 s42, s42, 7
        s_add_u32 s42, s42, {FG1:#x}""")
        poll_flag(k, f'{p}_fz{tag}', 9, 's42', 11, fail, sleep=1)
        k(f"""
        s_lshl_b32 s28, s30, 3
        s_lshl_b32 s29, s32, 2
        s_add_u32 s28, s28, s29
        s_mul_i32 s43, s28, 24576
        s_mul_i32 s28, s31, 6144
        s_add_u32 s43, s43, s28
        s_mul_i32 s28, s33, 3072
        s_add_u32 s43, s43, s28
        s_add_u32 s28, s43, {Z1F:#x}
        s_add_u32 s43, s43, {YF:#x}
        v_lshlrev_b32 v9, 3, v1
        s_mov_b32 s48, 1""")
        for tt in range(4):
            for j in range(6):
                k(f'buffer_load_dwordx2 {V(160+12*tt+2*j,2)}, v9, s[8:11], s28 offen offset:{512*j} sc1')
            k('s_add_u32 s28, s28, 24576')
    k.label(f'{p}_z1')
    z1(0)
    k(f's_branch {p}_l11')
    k.label(f'{p}_epi')
    if cfg.get('stamp') == 63: ustamp(k, cfg, 3)
    k(f's_cmp_eq_u32 s48, 1\ns_cbranch_scc1 {p}_e2')
    z1(1)
    k.label(f'{p}_e2')
    k('s_mov_b32 s46, 0xffff0000')
    for tt in range(4):
        k(f's_waitcnt vmcnt({18 - 3*tt})')
        for j in range(3):
            d = 16 + 4 * ((3 * tt + j) % 4); z = 160 + 12 * tt + 4 * j
            for i in range(4):
                k(f'v_lshlrev_b32 v{36+2*i}, 16, v{z+i}')
                k(f'v_and_b32 v{37+2*i}, s46, v{z+i}')
            for i in range(4):
                a = acc(tt, 2 * j) + 2 * i
                k(f'v_pk_mul_f32 {V(a,2)}, {V(a,2)}, {V(36+2*i,2)}')
            for i in range(4):
                a = acc(tt, 2 * j) + 2 * i
                k(f'v_cvt_pk_bf16_f32 v{d+i}, v{a}, v{a+1}')
            k(f'buffer_store_dwordx4 {V(d,4)}, v2, s[8:11], s43 offen offset:{1024*j} sc1')
        k('s_add_u32 s43, s43, 24576')
    k(f"""
    s_lshl_b32 s28, s30, 1
    s_add_u32 s28, s28, s32
    s_lshl_b32 s28, s28, 3
    s_lshl_b32 s29, s31, 1
    s_add_u32 s28, s28, s29
    s_add_u32 s28, s28, s33
    s_lshl_b32 s28, s28, 7
    s_add_u32 s28, s28, {FY:#x}
    v_mov_b32 v6, {BIG:#x}
    v_cmp_eq_u32 vcc, 0, v1
    v_mov_b32 v7, 1
    s_nop 0
    v_cndmask_b32_e64 v6, v6, 0, vcc
    s_waitcnt vmcnt(0)
    buffer_store_dword v7, v6, s[8:11], s28 offen sc1
    s_branch {end}""")

def gen_wo(k, p, cfg):
    k(f"""
    s_load_dwordx2 s[28:29], s[0:1], {KA['w_out']}
    v_lshrrev_b32 v4, 2, v1
    v_and_b32 v5, 3, v1
    v_mul_u32_u24 v6, 1280, v4
    v_lshl_add_u32 v6, v5, 4, v6
    v_lshlrev_b32 v7, 6, v4
    v_lshl_add_u32 v7, v5, 3, v7
    s_mul_i32 s32, s21, 24576
    v_add_u32 v7, s32, v7
    s_lshl_b32 s34, s20, 2
    s_add_u32 s34, s34, s21
    s_lshl_b32 s33, s34, 6
    s_mul_i32 s34, s34, 49152
    s_add_u32 s34, s34, {WOF:#x}
    s_mov_b32 s35, 2
    s_waitcnt lgkmcnt(0)""")
    k.srd(12, 28, 768 * 1280)
    k.label(f'{p}_r')
    for i in range(24):
        k(f's_add_u32 m0, s32, {1024*i}\ns_add_u32 s28, s33, {i*16*1280}')
        k('buffer_load_dwordx4 v6, s[12:15], s28 offen lds')
    k('s_waitcnt vmcnt(0)')
    for kk in range(12):
        for c in range(2):
            for hf in range(2):
                k(f'ds_read_b64_tr_b16 {V(16+8*kk+4*c+2*hf,2)}, v7 offset:{(32*kk+16*hf)*64 + 32*c}')
    k('s_waitcnt lgkmcnt(0)')
    for i in range(24):
        k(f'buffer_store_dwordx4 {V(16+4*i,4)}, v2, s[8:11], s34 offen offset:{1024*(i%4)} sc1')
        if i % 4 == 3: k('s_add_u32 s34, s34, 4096')
    k(f's_add_u32 s33, s33, {24*16*1280}\ns_sub_u32 s35, s35, 1\ns_cmp_lg_u32 s35, 0\ns_cbranch_scc1 {p}_r')
    flag_addr(k, 6)
    k(f's_mov_b32 s28, {FWO:#x}\ns_waitcnt vmcnt(0)\ns_barrier\nbuffer_store_dword v7, v6, s[8:11], s28 offen sc1')

def gen_g3p(k, p, end, fail, cfg):
    k(f"""
    s_load_dwordx2 s[28:29], s[0:1], {KA['out']}
    v_mbcnt_lo_u32_b32 v1, -1, 0
    v_mbcnt_hi_u32_b32 v1, -1, v1
    s_and_b32 s22, s20, 31
    s_lshr_b32 s20, s20, 5
    v_lshlrev_b32 v2, 4, v1
    v_mov_b32 v9, 0
    s_lshl_b32 s42, s20, 7
    s_add_u32 s42, s42, {FWO:#x}
    s_waitcnt lgkmcnt(0)""")
    k.srd(16, 28, 2048 * 1280)
    poll_flag(k, f'{p}_fw', 9, 's42', 11, fail, sleep=8)
    k(f"""
    s_lshl_b32 s33, s20, 2
    s_add_u32 s33, s33, s21
    s_mul_i32 s34, s33, 49152
    s_add_u32 s34, s34, {WOF:#x}""")
    for i in range(48):
        k(f'buffer_load_dwordx4 {A(4*i,4)}, v2, s[8:11], s34 offen offset:{1024*(i%4)} sc1')
        if i % 4 == 3: k('s_add_u32 s34, s34, 4096')
    k(f"""
    s_mul_i32 s32, s21, 24576
    v_and_b32 v8, 15, v1
    v_lshrrev_b32 v9, 4, v1
    v_mul_u32_u24 v8, 1280, v8
    v_and_b32 v10, 1, v9
    v_lshl_add_u32 v8, v10, 5, v8
    v_lshrrev_b32 v10, 1, v9
    v_lshl_add_u32 v8, v10, 4, v8
    s_mul_i32 s36, s22, 81920
    s_lshl_b32 s37, s33, 10
    s_add_u32 s37, s37, s36
    s_add_u32 s37, s37, {HH:#x}
    s_lshl_b32 s28, s33, 6
    s_add_u32 s36, s36, s28
    v_and_b32 v9, 7, v1
    v_lshlrev_b32 v9, 7, v9
    s_lshl_b32 s42, s22, 10
    s_add_u32 s42, s42, {FY:#x}
    s_mul_i32 s34, s22, 98304
    s_add_u32 s34, s34, s32
    s_add_u32 s34, s34, {YF:#x}
    v_add_u32 v10, 49152, v2
    s_waitcnt vmcnt(0)
    s_cmp_lg_u32 s21, 0
    s_cbranch_scc1 {p}_go""")
    ustamp(k, cfg, 2) if cfg.get('stamp') == 98 else None
    k(f'v_mov_b32 v12, 0\ns_mov_b32 s43, {FH + 63*4096:#x}')
    poll_flag(k, f'{p}_fe', 12, 's43', 11, fail, sleep=30)
    poll_flag(k, f'{p}_fy', 9, 's42', 11, fail, sleep=cfg.get('sl5', 1))
    k.label(f'{p}_go')
    k('s_barrier')
    ustamp(k, cfg, 3) if cfg.get('stamp') == 98 else None
    k.vd = k.vc
    acc = lambda tt, c: 32 + 8 * tt + 4 * c
    mats = []; items = []; ev = []
    NUP = cfg.get('g3up', 3)
    for j in range(6):
        g_ = -9 if j < NUP else 18 * (j - NUP) + 1
        ev.append((g_, dict(id=('m', j), kind='n', fn=f's_add_u32 m0, s32, {4096*j}\ns_add_u32 s28, s34, {4096*j}')))
        for i in range(4):
            ev.append((g_ if j < NUP else g_ + 2 + 4 * i, dict(id=('d', 4 * j + i), kind='n', vm=True, fn=f'buffer_load_dwordx4 v2, s[8:11], s28 offen offset:{1024*i} sc1 lds')))
    for tt in range(4):
        ev.append((81 + 4 * tt, dict(id=('h', tt), kind='n', vm=True, fn=f's_add_u32 s28, s37, {20480*tt}\nbuffer_load_dwordx4 {V(16+4*tt,4)}, v2, s[8:11], s28 offen sc1')))
    XR = [64 + 4 * i for i in range(12)]
    stages = {0: 1, 2: 3, 4: 7, 8: 11, 12: 15, 16: 19, 20: 23}
    for kk in range(24):
        if kk in stages:
            g_ = max(8 * kk - 12, -1)
            ev.append((g_ - 0.4, dict(id=('b', kk), kind='bar', fn='s_barrier', vdeps=[('d', stages[kk])], g=g_)))
        for tt in range(4):
            n = 4 * kk + tt; r = XR[n % 12]
            ev.append((max(2 * n - 12, -1), dict(id=('x', n), kind='n', lds=True, fn=f'ds_read_b128 {V(r,4)}, {"v2" if tt < 2 else "v10"} offset:{(tt&1)*24576 + kk*1024}')))
            for c in range(2):
                a = V(acc(tt, c), 4)
                mats.append((f'{MF} {a}, {A(8*kk+4*c,4)}, {V(r,4)}, {"0" if kk == 0 else a}', [('x', n)]))
    ev.sort(key=lambda x: x[0])
    for g_, it in ev:
        it['after'] = it.get('g', g_); items.append(it)
    sched(k, mats, items, [False] * 192, pre_n=5 * NUP + 7)
    ustamp(k, cfg, 4) if cfg.get('stamp') == 98 else None
    k('s_mov_b32 s46, 0xffff0000\ns_waitcnt vmcnt(0)')
    for tt in range(4):
        for i in range(4):
            k(f'v_lshlrev_b32 v{64+2*i}, 16, v{16+4*tt+i}')
            k(f'v_and_b32 v{65+2*i}, s46, v{16+4*tt+i}')
        for i in range(4):
            a = acc(tt, 0) + 2 * i
            k(f'v_pk_add_f32 {V(a,2)}, {V(a,2)}, {V(64+2*i,2)}')
        for i in range(4):
            a = acc(tt, 0) + 2 * i
            k(f'v_cvt_pk_bf16_f32 v{16+4*tt+i}, v{a}, v{a+1}')
        k(f's_add_u32 s28, s36, {20480*tt}\nv_permlane16_swap_b32 v{16+4*tt}, v{18+4*tt}\nv_permlane16_swap_b32 v{17+4*tt}, v{19+4*tt}')
        k(f'buffer_store_dwordx4 {V(16+4*tt,4)}, v8, s[16:19], s28 offen{cfg.get("ost", " nt")}')
    k(f's_branch {end}')

def header():
    ref = open('cdna_kernels/' + NAME + '.s.ref').read().split('\n')
    out = []
    for line in ref:
        if line.startswith('; Override') : break
        out.append(line)
    return '\n'.join(out) + '\n'

def build_all(cfg):
    global NT1, NT2, RING, RING2, LST
    LST = cfg.get('stamp') == 97
    RING = cfg.get('ring', 64); RING2 = cfg.get('ring2', 64)
    NT1 = ' nt' if cfg.get('nt1', 1) else ''
    NT2 = ' nt' if cfg.get('nt2', 1) else ''
    k = K()
    gen_mega_kernel(k, 'mega_kernel', cfg)
    body = k.text().replace('mega_kernel_', 'M_')
    kn = 'mega_kernel' if cfg.get('list', 1) else NAME + '_kernel'
    la = f'; @launch {"kernel=mega_kernel " if cfg.get("list", 1) else ""}grid=(256,1,1) block=(256,1,1) lds={LDS_BYTES}\n'
    return header() + la + '.amdgcn_target "amdgcn-amd-amdhsa--gfx950"\n.text\n' + body.replace('mega_kernel', kn) + '.section .rodata,"a"\n' + descriptor(kn, 512, 256)

if __name__ == '__main__':
    cfg = eval(sys.argv[2]) if len(sys.argv) > 2 else {}
    txt = build_all(cfg)
    open(sys.argv[1] if len(sys.argv) > 1 else 'cur.s', 'w').write(txt)
```

```python
import sys
from asmlib import *

NAME = 'sequential_preLN__memory_aug_recurrent_mem_tr__mixer_gmlp__prompt'
KA = dict(x=0, mem0=8, Wq=16, Wk=24, Wv=32, Wo=40, w_in=64, w_sp=72, b_sp=80, w_out=88, out=96, dbg=104, ws=112)
WS_BYTES = 0x10000000
WBYTES = 640 * 6144 * 2
XN   = 0x0000000
FL   = 0x0800000
FU, FQK, FKM, FPX = FL, FL + 0x40000, FL + 0xC0000, FL + 0x100000
DUMMY = 0x09C0000
STAMPS = 0x0C30000
TRACE = 0x0D00000
ST   = 0x0C00000
ZR   = 0x0A00000
QF   = 0x1000000
UF   = 0x4000000
ZM   = 0xC000000
KM   = 0xA400000
PX   = 0xAA00000
HH   = 0xB000000
Z1F  = 0xB400000
Z2F  = 0xB800000
YF   = 0xBC00000
VF   = 0x9000000
FP1  = 0x0880000
FH   = 0x0940000
FG1  = 0x0986000
FWT  = 0x09A8000
FY   = 0x09AC000
WSF  = ZM + 0xD0000
WST  = 66560
MB   = ZM + 0xC0000
WOF  = 0xA000000
FWO  = 0x09B4000
P_OFF, M_OFF = 0, 20480
LDS_BYTES = 163840
WL = 0
BIG = 0x7ff00000

def mbmap(off):
    return (off >> 13) * 16384 + (off & 8191)

def v_mbmap(k, d, t):
    k(f'v_lshrrev_b32 v{t}, 13, v{d}')
    k(f'v_lshlrev_b32 v{t}, 13, v{t}')
    k(f'v_add_u32 v{d}, v{d}, v{t}')

NINIT = 96
def dbg_srd(k):
    k.srd(88, 4, 256)

TOUCH = 0
def init_done(k, p):
    if TOUCH:
        k(f'v_and_b32 v8, 127, v0\nv_lshlrev_b32 v8, 21, v8\nv_add_u32 v8, 0xa0000, v8\nbuffer_load_dword v9, v8, s[8:11], 0 offen')
    if LST: k('s_memrealtime s[60:61]\ns_waitcnt vmcnt(0)\ns_memrealtime s[62:63]')
    k(f"""
    s_waitcnt vmcnt(0)
    s_barrier
    s_cmp_lg_u32 s21, 0
    s_cbranch_scc1 {p}_id
    s_lshl_b32 s34, s34, 16
    s_add_u32 s34, s34, 1
    v_mov_b32 v8, s34
    v_mov_b32 v9, {BIG:#x}
    v_cmp_eq_u32 vcc, 0, v1
    s_nop 1
    v_cndmask_b32_e64 v9, v9, 0, vcc
    s_cmp_ge_u32 s35, 2
    s_cbranch_scc1 {p}_na
    s_lshl_b32 s35, s35, 2
    buffer_store_dword v8, v9, s[88:91], s35 offen offset:132 sc1""")
    k.label(f'{p}_na')
    k(f"""
    buffer_atomic_add v8, v9, s[88:91], 0 offen sc0 sc1
    s_waitcnt vmcnt(0)
    v_readfirstlane_b32 s28, v8
    s_add_u32 s28, s28, s34
    s_and_b32 s29, s28, 0xffff
    s_cmp_lg_u32 s29, {NINIT}
    s_cbranch_scc1 {p}_id
    s_lshr_b32 s28, s28, 16
    s_cmp_gt_u32 s28, 32
    s_cselect_b32 s28, 2, 1
    v_mov_b32 v8, s28
    buffer_store_dword v8, v9, s[88:91], 0 offen offset:128 sc1""")
    k.label(f'{p}_id')

def gen_init_ln(k, p):
    k(f's_load_dwordx2 s[28:29], s[0:1], {KA["x"]}')
    k(f"""
    v_lshlrev_b32 v2, 4, v1
    v_and_b32 v3, 15, v1
    v_lshrrev_b32 v4, 4, v1
    v_mul_u32_u24 v5, 1280, v3
    v_lshl_add_u32 v5, v4, 4, v5
    s_min_u32 s31, s30, 63
    s_mul_i32 s31, s31, 40960
    s_lshr_b32 s32, s21, 1
    s_mul_i32 s32, s32, 20480
    s_and_b32 s33, s21, 1
    s_mul_i32 s33, s33, 640
    s_add_u32 s32, s32, s33
    s_add_u32 s32, s32, s31
    s_waitcnt lgkmcnt(0)""")
    k.srd(12, 28, 2048 * 1280)
    for i in range(10):
        k(f'buffer_load_dwordx4 {V(16+4*i,4)}, v5, s[12:15], s32 offen offset:{64*i}')
    rot_wait(k, 8)
    k(f"""
    v_lshlrev_b32 v6, 4, v0
    v_mov_b32 v8, 0
    v_mov_b32 v9, 0
    v_mov_b32 v10, 0
    v_mov_b32 v11, 0
    s_mul_i32 s28, s30, 24576
    s_add_u32 s28, s28, {FL:#x}""")
    for j in range(6):
        k('buffer_store_dwordx4 v[8:11], v6, s[8:11], s28 offen sc1\ns_add_u32 s28, s28, 4096')
    k(f"""
    v_mov_b32 v60, -1
    v_mov_b32 v61, -1
    v_mov_b32 v62, -1
    v_mov_b32 v63, -1
    s_lshr_b32 s28, s30, 1
    s_mul_i32 s28, s28, 24576
    s_min_u32 s28, s28, {0xD0000 - 24576:#x}
    s_and_b32 s29, s30, 1
    s_lshl_b32 s29, s29, 20
    s_add_u32 s28, s28, s29
    s_add_u32 s28, s28, {ZM:#x}""")
    for j in range(6):
        k('buffer_store_dwordx4 v[60:63], v6, s[8:11], s28 offen sc1\ns_add_u32 s28, s28, 4096')
    k(f"""
    s_cmp_ge_u32 s30, 64
    s_cbranch_scc1 {p}_nl
    s_mov_b32 s34, 0x3f803f80
    s_mov_b32 s35, 0xffff0000
    s_lshl_b32 s28, s21, 7
    v_lshlrev_b32 v7, 3, v3
    v_add_u32 v7, s28, v7
    v_xor_b32 v6, 128, v7
    s_waitcnt vmcnt(12)""")
    for i in range(0, 40, 2):
        c = (lambda r: '0') if i == 0 else (lambda r: f'v{r}')
        k(f'v_dot2_f32_bf16 v12, v{16+i}, s34, {c(12)}')
        k(f'v_dot2_f32_bf16 v13, v{16+i}, v{16+i}, {c(13)}')
        k(f'v_dot2_f32_bf16 v14, v{17+i}, s34, {c(14)}')
        k(f'v_dot2_f32_bf16 v15, v{17+i}, v{17+i}, {c(15)}')
    k.nop(3)
    k('v_pk_add_f32 v[12:13], v[12:13], v[14:15]')
    for sw in ('v_permlane32_swap_b32', 'v_permlane16_swap_b32'):
        k(f'v_mov_b32 v14, v12\nv_mov_b32 v15, v13\ns_nop 1\n{sw} v12, v14\n{sw} v13, v15\nv_pk_add_f32 v[12:13], v[12:13], v[14:15]')
    k(f"""
    ds_write_b64 v7, v[12:13]
    s_waitcnt lgkmcnt(0)
    s_barrier
    ds_read_b64 v[14:15], v6
    s_mul_i32 s28, s21, 10240
    s_add_u32 s31, s31, s28
    s_waitcnt lgkmcnt(0)
    v_pk_add_f32 v[12:13], v[12:13], v[14:15]
    v_mul_f32 v12, {1.0/640!r}, v12
    v_mul_f32 v13, {1.0/640!r}, v13
    v_fma_f32 v13, -v12, v12, v13
    v_max_f32 v13, 0, v13
    v_add_f32 v13, 1e-5, v13
    v_rsq_f32 v14, v13
    s_nop 0
    v_mul_f32_e64 v12, -v12, v14""")
    for i in range(10):
        for j in range(4):
            r = 16 + 4 * i + j; tp = 56 + 2 * (j & 1)
            k(f'v_lshlrev_b32 v{tp}, 16, v{r}')
            k(f'v_and_b32 v{tp+1}, s35, v{r}')
            k(f'v_pk_fma_f32 {V(tp,2)}, {V(tp,2)}, v[14:15], v[12:13] op_sel_hi:[1,0,0]')
            k(f'v_cvt_pk_bf16_f32 v{r}, v{tp}, v{tp+1}')
        k(f'buffer_store_dwordx4 {V(16+4*i,4)}, v2, s[8:11], s31 offen offset:{1024*(i%4)} sc1')
        if i % 4 == 3: k('s_add_u32 s31, s31, 4096')
    k.label(f'{p}_nl')
    k('s_mov_b32 s34, 0\ns_mov_b32 s35, s30')
    init_done(k, p)

def gen_init_x(k, p):
    k(f"""
    s_load_dwordx2 s[28:29], s[0:1], {KA["mem0"]}
    v_lshlrev_b32 v5, 4, v0
    s_lshl_b32 s31, s30, 12
    v_add_u32 v8, s31, v5
    v_lshrrev_b32 v9, 8, v8
    v_bfe_u32 v10, v8, 5, 1
    v_lshl_add_u32 v9, v9, 1, v10
    v_bfe_u32 v10, v8, 6, 2
    v_bfe_u32 v11, v8, 4, 1
    v_lshl_add_u32 v10, v10, 1, v11
    v_mul_u32_u24 v10, 1280, v10
    v_lshl_add_u32 v10, v9, 4, v10
    v_mov_b32 v11, {BIG:#x}
    v_cmp_gt_u32 vcc, 10240, v8
    v_add_u32 v8, {M_OFF}, v8""")
    v_mbmap(k, 8, 9)
    k(f"""
    v_cndmask_b32 v10, v11, v10, vcc
    v_cndmask_b32 v8, v11, v8, vcc
    v_lshlrev_b32 v6, 2, v1
    s_mov_b32 s36, -1
    s_mov_b32 s37, -1
    s_lshl_b32 s38, s30, 14
    s_lshl_b32 s33, s21, 11
    s_add_u32 s38, s38, s33
    s_add_u32 s38, s38, {ZR + 0xB0000:#x}
    s_waitcnt lgkmcnt(0)""")
    k.srd(12, 28, 8 * 1280)
    k('buffer_load_dwordx4 v[16:19], v10, s[12:15], 0 offen\nbuffer_store_dword v6, v6, s[8:11], s38 offen sc1\ns_waitcnt vmcnt(0)')
    for rep in range(5):
        for hf in ((0, 1), (1, 0))[rep & 1]:
            k(f"""
            s_add_u32 s33, s38, {hf*8192 + rep*256 + 512}
            s_memtime s[40:41]
            s_waitcnt lgkmcnt(0)
            buffer_store_dword v6, v6, s[8:11], s33 offen sc1
            s_waitcnt vmcnt(0)
            s_memtime s[42:43]
            s_waitcnt lgkmcnt(0)
            s_sub_u32 s42, s42, s40
            s_min_u32 s{36+hf}, s{36+hf}, s42""")
    rot_wait(k, 12)
    k(f"""
    v_mov_b32 v12, -1
    v_mov_b32 v13, -1
    v_mov_b32 v14, -1
    v_mov_b32 v15, -1
    s_add_u32 s29, s31, {ST:#x}
    buffer_store_dwordx4 v[12:15], v5, s[8:11], s29 offen sc1
    s_and_b32 s28, s31, 0x7000
    s_add_u32 s29, s28, {ZR + 0xA0000:#x}
    s_add_u32 s28, s28, {ST + 0x10000:#x}
    s_cmp_lt_u32 s30, 8
    s_cselect_b32 s29, s29, s28
    buffer_store_dwordx4 v[12:15], v5, s[8:11], s29 offen sc1
    s_mov_b32 s28, {MB - 0x100000:#x}
    s_mov_b32 s29, {MB - 0x100000 + 8192:#x}
    v_min_u32 v16, -2, v16
    v_min_u32 v17, -2, v17
    v_min_u32 v18, -2, v18
    v_min_u32 v19, -2, v19
    buffer_store_dwordx4 v[16:19], v8, s[8:11], s28 offen sc1
    buffer_store_dwordx4 v[16:19], v8, s[8:11], s29 offen sc1
    s_cmp_lt_u32 s37, s36
    s_cselect_b32 s34, 1, 0
    s_lshl_b32 s28, s21, 2
    v_mov_b32 v4, s28
    v_mov_b32 v7, s34
    ds_write_b32 v4, v7
    v_mov_b32 v4, 0
    s_waitcnt lgkmcnt(0)
    s_barrier
    ds_read_b128 v[20:23], v4
    s_waitcnt lgkmcnt(0)
    v_add3_u32 v20, v20, v21, v22
    v_add_u32 v20, v20, v23
    s_nop 0
    v_readfirstlane_b32 s34, v20
    s_mov_b32 s35, 2""")
    init_done(k, p)

class Wmap:
    def __init__(self, keys, size, ldskeys):
        self.size = size; self.loc = {}; self.tmp = {}; self.slot = {}
        a = 0; v = 128; t = 32
        for key in keys:
            if key in ldskeys:
                self.tmp[key] = ('v', t); self.slot[key] = (t - 32) // 4; t += size
            elif a < 256:
                self.loc[key] = ('a', a); a += size
            else:
                self.loc[key] = ('v', v); v += size
        assert a == 256 and v == 256 and t == 128, (a, v, t)
    def ld(self, key):
        return self.loc.get(key) or self.tmp[key]

NT1 = ''
NT2 = ''
LST = False
def lstamp(k, c):
    if LST and c in (0, 3, 6, 9): k(f's_memrealtime s[{60+2*(c//3)}:{61+2*(c//3)}]')

def gen_loader(k, kind, sparse, wm, early=lambda: None):
    k.c('---- weight loader')
    for i in range(3):
        k(f'v_add_u32 v8, {64*i}, v1')
        k(f'v_mul_u32_u24 v9, 2731, v8')
        k(f'v_lshrrev_b32 v9, 16, v9')
        k(f'v_mul_u32_u24 v10, 24, v9')
        k(f'v_sub_u32 v10, v8, v10')
        k(f'v_mul_u32_u24 v9, 12288, v9')
        k(f'v_lshl_add_u32 v{4+i}, v10, 4, v9')
    k('''
    v_lshrrev_b32 v8, 3, v1
    v_mul_u32_u24 v8, 1280, v8
    v_and_b32 v9, 7, v1
    v_lshl_add_u32 v7, v9, 4, v8
    v_lshrrev_b32 v8, 4, v1
    v_bfe_u32 v9, v1, 2, 2
    v_and_b32 v10, 3, v1''')
    if sparse:
        k('''
        v_lshrrev_b32 v11, 1, v8
        v_lshlrev_b32 v11, 4, v11
        v_and_b32 v12, 1, v8
        v_lshl_add_u32 v11, v12, 2, v11
        v_and_b32 v12, 1, v9
        v_add_u32 v11, v11, v12
        v_lshrrev_b32 v12, 1, v9
        v_lshl_add_u32 v11, v12, 3, v11''')
    else:
        k('v_lshl_add_u32 v11, v8, 3, v9')
    k('v_mul_u32_u24 v11, 384, v11')
    k('v_lshl_add_u32 v11, v10, 3, v11')
    if kind == 'QK':
        k('''
        s_lshr_b32 s28, s21, 1
        s_mul_i32 s28, s28, 24576
        s_and_b32 s29, s21, 1
        s_mul_i32 s29, s29, 192
        s_add_u32 s28, s28, s29''')
    else:
        k('s_mul_i32 s28, s21, 96')
    k('v_add_u32 v11, s28, v11')
    if kind == 'VO':
        if sparse:
            k('v_and_b32 v12, 1, v9')
            k('v_lshrrev_b32 v13, 1, v9')
            k('v_lshl_add_u32 v12, v12, 1, v13')
            k('v_lshl_add_u32 v12, v8, 3, v12')
        else:      k('v_lshl_add_u32 v12, v8, 2, v9')
        k('v_lshlrev_b32 v12, 7, v12')
        k('v_lshl_add_u32 v12, v10, 3, v12')
        k('s_lshl_b32 s28, s21, 5')
        k('s_add_u32 s28, s28, 24576')
        k('v_add_u32 v12, s28, v12')
    k('''
    s_mul_i32 s30, s20, 384
    s_mul_i32 s28, s21, 196608
    s_add_u32 s30, s30, s28
    s_mul_i32 s31, s20, 245760
    s_mul_i32 s28, s21, 61440
    s_add_u32 s31, s31, s28
    s_mul_i32 s32, s21, 6144''')
    tick = {}
    CO = CORD
    def issue(n):
        c = CO[n]
        slot = ((n + 2) % 3) * 49152
        for m in range(2):
            for i in range(6):
                k(f's_add_u32 m0, s32, {slot + m*24576 + i*1024}')
                if m == 0 or kind == 'QK':
                    k(f's_add_u32 s33, s30, {c*786432 + (i//3)*98304}')
                    tick[n] = k.vm(f'buffer_load_dwordx4 v{4+i%3}, {S(12+4*m,4)}, s33 offen{NT1} lds')
                else:
                    k(f's_add_u32 s33, s31, {i*10240 + c*128}')
                    tick[n] = k.vm(f'buffer_load_dwordx4 v7, s[16:19], s33 offen{NT1} lds')
    for n in range(3): issue(n)
    for n in range(10):
        c = CO[n]
        slot = ((n + 2) % 3) * 49152
        k.wv(tick[n])
        k('s_barrier')
        lstamp(k, n)
        k(f'v_add_u32 v13, {slot}, v11')
        if kind == 'VO': k(f'v_add_u32 v14, {slot}, v12')
        nt = 6 if kind == 'QK' else 3
        for t in range(nt):
            for pi in range(4):
                fr, tq = pi >> 1, pi & 1
                if sparse:
                    key = (t, c) if kind == 'QK' else ('v', t, c)
                    dst = R(wm.ld(key), 2, 2 * pi); row = 32 * fr + 2 * tq
                else:
                    key = (t, 2 * c + fr) if kind == 'QK' else ('v', t, 2 * c + fr)
                    dst = R(wm.ld(key), 2, 2 * tq); row = 32 * fr + 4 * tq
                k.lds(f'ds_read_b64_tr_b16 {dst}, v13 offset:{row*384 + t*32}')
        if kind == 'VO':
            for kk in range(6):
                for hf in range(2):
                    if sparse:
                        dst = R(wm.ld(('o', c, kk >> 1)), 2, 4 * (kk & 1) + 2 * hf); row = 32 * kk + 4 * hf
                    else:
                        dst = R(wm.ld(('o', c, kk)), 2, 2 * hf); row = 32 * kk + 16 * hf
                    k.lds(f'ds_read_b64_tr_b16 {dst}, v14 offset:{row*128}')
        k.wl_all()
        k('s_barrier')
        if n == 6:
            k('v_mov_b32 v16, 128')
            tick[8] = k.vm('buffer_load_dwordx4 v[20:23], v16, s[88:91], 0 offen sc1')
        if n + 3 < 10: issue(n + 3)
        if n == 8:
            k(f'v_lshlrev_b32 v2, 4, v1\ns_mul_i32 s28, s21, 24576\nv_add_u32 v3, s28, v2')
            for i in range(24):
                k.lds(f'ds_write_b128 v3, {V(32+4*i,4)} offset:{WL + 1024*i}')
            k.wl_all()
            early()

def stream(k, ops, loads, rings, dist, preissued=None, maxper=2, tail=(), group=1, minpos=None):
    first = {}; last = {}
    for i, (_, keys, _) in enumerate(ops):
        for key in keys:
            first.setdefault(key, i); last[key] = i
    for key, i in tail:
        first[key] = i; last[key] = i
    order = sorted(first, key=lambda x: first[x])
    reg = {}; tk = {}; pos = {}
    nxt = {n: 0 for n in rings}; occ = {}
    if preissued:
        for key, (r, t) in preissued.items():
            reg[key] = r; tk[key] = t
            ring = loads[key][0]
            if r in rings[ring]:
                occ[(ring, r)] = key
                nxt[ring] = (rings[ring].index(r) + 1) % len(rings[ring])
    for key in order:
        if key in reg: continue
        ring = loads[key][0]
        r = rings[ring][nxt[ring]]; nxt[ring] = (nxt[ring] + 1) % len(rings[ring])
        p = first[key] - dist
        if (ring, r) in occ: p = max(p, last[occ[(ring, r)]] + 1)
        if minpos and key in minpos: p = max(p, minpos[key])
        occ[(ring, r)] = key
        p = max(p, 0)
        assert p <= first[key] - first[key] % group, (key, p, first[key])
        reg[key] = r; pos[key] = p
    pend = sorted(pos, key=lambda x: (first[x]))
    tailkeys = set(key for key, _ in tail); tout = []
    def issue(key):
        for f in loads[key][1]:
            tk[key] = k.lds(f(reg[key]))
        pend.remove(key)
        if key in tailkeys: tout.append((key, reg[key]))
    for i, (fn, keys, post) in enumerate(ops):
        n = 0
        for key in list(pend):
            if pos[key] <= i and (n < maxper or first[key] <= i + group or i == 0):
                issue(key); n += 1
        if i % group == 0:
            need = [tk[key] for j in range(i, min(i + group, len(ops))) for key in ops[j][1]]
            if need: k.wl(max(need))
        k(fn(reg))
        for p in post:
            if callable(p): p()
            else: k(p)
    for key in list(pend): issue(key)
    return tout

def role_common(k, mats):
    w = dict(Wq=92, Wk=94, Wv=96, Wo=98)
    k.srd(12, w[mats[0]], WBYTES)
    k.srd(16, w[mats[1]], WBYTES)

FW = 32
def flag_addr(k, d, src='v0', line='s20'):
    if line: k(f's_lshl_b32 s28, {line}, 7')
    k(f'''
    v_mov_b32 v{d}, {BIG:#x}
    v_lshl_add_u32 v{d+1}, {src}, 2, {'s28' if line else '0'}
    v_cmp_gt_u32 vcc, {FW}, {src}
    s_nop 1
    v_cndmask_b32 v{d}, v{d}, v{d+1}, vcc
    v_mov_b32 v{d+1}, 1''')

MF = 'v_mfma_f32_16x16x32_bf16'
SM = 'v_smfmac_f32_16x16x64_bf16'

def regmap(keys, v0):
    loc = {}; a = 0; v = v0
    for key in keys:
        if a < 256: loc[key] = ('a', a); a += 4
        else: loc[key] = ('v', v); v += 4
    assert v == 256, v
    return loc

def gen_loader2(k, kind, loc, p, cfg, setup, start, after):
    k.c('---- weight loader')
    NS = 3; SB0 = 61440
    if kind == 'PJ':
        for i in range(3):
            k(f"""
            v_add_u32 v100, {64*i}, v1
            v_mul_u32_u24 v101, 2731, v100
            v_lshrrev_b32 v101, 16, v101
            v_mul_u32_u24 v102, 24, v101
            v_sub_u32 v102, v100, v102
            v_mul_u32_u24 v101, 12288, v101
            v_lshl_add_u32 v{96+i}, v102, 4, v101""")
    k("""
    v_lshrrev_b32 v100, 3, v1
    v_and_b32 v101, 7, v1
    v_lshlrev_b32 v101, 4, v101
    v_mul_u32_u24 v99, 12288, v100
    v_add_u32 v99, v99, v101""")
    if kind == 'VU':
        k('v_mul_u32_u24 v96, 1280, v100\nv_add_u32 v96, v96, v101')
    k("""
    v_lshrrev_b32 v100, 4, v1
    v_bfe_u32 v101, v1, 2, 2
    v_and_b32 v102, 3, v1
    v_lshl_add_u32 v103, v100, 3, v101
    v_lshlrev_b32 v104, 7, v103
    v_lshl_add_u32 v104, v102, 3, v104
    v_add_u32 v104, 24576, v104""")
    if kind == 'PJ':
        k("""
        v_mul_u32_u24 v103, 384, v103
        v_lshl_add_u32 v103, v102, 3, v103
        s_lshl_b32 s28, s21, 7
        v_add_u32 v103, s28, v103
        s_mul_i32 s80, s20, 384
        s_mul_i32 s28, s21, 196608
        s_add_u32 s80, s80, s28
        s_add_u32 s81, s80, s33""")
    else:
        k("""
        v_and_b32 v103, 1, v101
        v_lshlrev_b32 v103, 4, v103
        v_lshrrev_b32 v105, 1, v101
        v_add_u32 v103, v103, v105
        v_lshl_add_u32 v103, v100, 2, v103
        v_lshlrev_b32 v103, 7, v103
        v_lshl_add_u32 v103, v102, 3, v103
        s_lshl_b32 s28, s21, 5
        v_add_u32 v103, s28, v103
        s_lshr_b32 s28, s21, 1
        s_lshl_b32 s28, s28, 6
        v_add_u32 v104, s28, v104
        s_mul_i32 s80, s20, 245760
        s_mul_i32 s28, s21, 61440
        s_add_u32 s80, s80, s28
        s_mul_i32 s81, s20, 384
        s_mul_i32 s28, s21, 196608
        s_add_u32 s81, s81, s28
        s_add_u32 s81, s81, 256""")
    k('s_mul_i32 s82, s21, 6144\ns_lshl_b32 s84, s21, 11')
    tick = {}
    def issue(c):
        slot = SB0 + (c % NS) * 32768
        if 3 <= c: tick[c - 1] = k.vm('buffer_load_dwordx4 v[92:95], v100, s[88:91], 0 offen sc1')
        for i in range(6):
            k(f's_add_u32 m0, s82, {slot + i*1024}')
            if kind == 'PJ':
                k(f's_add_u32 s85, s80, {c*786432 + (i//3)*98304}')
                k.vm(f'buffer_load_dwordx4 v{96+i%3}, s[12:15], s85 offen{NT2} lds')
            else:
                k(f's_add_u32 s85, s80, {i*10240 + c*128}')
                k.vm(f'buffer_load_dwordx4 v96, s[12:15], s85 offen{NT2} lds')
        for i in range(2):
            k(f's_add_u32 m0, s84, {slot + 24576 + i*1024}')
            k(f's_add_u32 s85, s81, {c*786432 + i*98304}')
            tick[c] = k.vm(f'buffer_load_dwordx4 v99, s[16:19], s85 offen{NT2} lds')
    k('v_mov_b32 v100, 128\nv_mov_b32 v92, 0\nv_mov_b32 v93, 0\nv_mov_b32 v94, 0\nv_mov_b32 v95, 0\ns_mov_b32 s86, 0\nv_lshlrev_b32 v2, 4, v1')
    for c in range(NS): issue(c)
    setup()
    for c in range(10):
        slot = SB0 + (c % NS) * 32768
        k.wv(tick[c])
        k('s_barrier')
        lstamp(k, c)
        k(f'v_add_u32 v105, {slot}, v103')
        k(f'v_add_u32 v106, {slot}, v104')
        def areads(nt, areg, rs, keyf):
            for t in range(nt):
                for pi in range(4):
                    fr, tq = pi >> 1, pi & 1
                    k(f'ds_read_b64_tr_b16 {R(loc[keyf(t, 2*c+fr)], 2, 2*tq)}, v{areg} offset:{(32*fr+4*tq)*rs + t*32}')
        if kind == 'PJ':
            k(f's_cmp_eq_u32 s21, 3\ns_cbranch_scc1 {p}_l{c}v')
            areads(4, 105, 384, lambda t, kk: (t, kk))
            k(f's_branch {p}_l{c}e')
            k.label(f'{p}_l{c}v')
            areads(4, 106, 128, lambda t, kk: (t, kk))
            k.label(f'{p}_l{c}e')
        else:
            areads(2, 106, 128, lambda t, kk: ('v', t, kk))
            for kk in range(6):
                for hf in range(2):
                    k(f'ds_read_b64_tr_b16 {R(loc[("o", c, kk)], 2, 2*hf)}, v105 offset:{(32*kk+2*hf)*128}')
        k('s_waitcnt lgkmcnt(0)')
        if c + NS < 10 or c == 9: k('s_barrier')
        if c == 2:
            k(f'v_cmp_eq_u32 vcc, 0, v95\ns_cbranch_vccnz {p}_r0')
            rot_check(k, 95)
            k(f's_branch {p}_r1')
            k.label(f'{p}_r0')
            rot_wait(k, 101)
            k.label(f'{p}_r1')
        if 2 <= c <= 5:
            k(f's_cmp_lg_u32 s86, 0\ns_cbranch_scc1 {p}_g{c}\nv_min_u32 v101, v93, v94\nv_cmp_ne_u32 vcc, 0, v101')
            if c < 5: k(f's_cbranch_vccz {p}_g{c}')
            else:
                k(f's_cbranch_vccnz {p}_gs')
                load_sel(k, cfg, 101, 107)
                k.label(f'{p}_gs')
            start()
            k('s_mov_b32 s86, 1')
            k.label(f'{p}_g{c}')
        if c == 8:
            k(f'v_cmp_ne_u32 vcc, 0, v92\ns_cbranch_vccz {p}_gw')
            sel_from(k, cfg, 92)
            k(f's_branch {p}_gx')
            k.label(f'{p}_gw')
            load_sel(k, cfg, 101, 107)
            k.label(f'{p}_gx')
        if c + NS < 10: issue(c + NS)
        after(c)

def gen_pj(k, p, end, cfg={}):
    loc = regmap([(t, kk) for kk in range(20) for t in range(4)], 192)
    k(f"""
    s_cmp_eq_u32 s24, 0
    s_cselect_b64 s[28:29], s[94:95], s[92:93]
    s_lshl_b32 s33, s24, 7""")
    k.srd(12, 28, WBYTES)
    k.srd(16, 96, WBYTES)
    XB = 0
    def dma_list(slot):
        return [f's_add_u32 m0, s34, {slot}\ns_add_u32 s29, s35, 4096\nbuffer_load_dwordx4 v2, s[8:11], s35 offen sc1 lds'] + \
               [f'buffer_load_dwordx4 v2, s[8:11], s35 offen offset:{1024*i} sc1 lds' for i in (1, 2, 3)] + \
               [f's_add_u32 m0, m0, 4096\ns_add_u32 s35, s35, 20480\nbuffer_load_dwordx4 v2, s[8:11], s29 offen sc1 lds']
    def setup():
        flag_addr(k, 6)
        k(f"""
        s_mul_i32 s35, s21, 5120
        s_add_u32 s34, s35, {XB}
        s_lshl_b32 s38, s21, 11
        s_mul_i32 s28, s24, 12288
        s_sub_u32 s38, s38, s28
        s_add_u32 s38, s38, {QF + 12288:#x}
        s_lshl_b32 s28, s24, 11
        s_add_u32 s28, s28, {VF:#x}
        s_mov_b32 s44, 6144
        s_cmp_eq_u32 s21, 3
        s_cselect_b32 s38, s28, s38
        s_cselect_b32 s44, 4096, s44
        s_cselect_b32 s45, 1, 3
        s_lshl_b32 s28, s45, 13
        s_mul_i32 s28, s20, s28
        s_add_u32 s38, s38, s28
        s_lshl_b32 s45, s45, 18
        s_mov_b32 s36, {DUMMY + 4096:#x}
        s_mov_b32 s37, {DUMMY:#x}
        s_mul_i32 s43, s24, {FP1 - FQK:#x}
        s_add_u32 s43, s43, {FQK:#x}
        s_mov_b32 s40, 40960
        s_mov_b32 s41, 0
        s_mov_b32 s42, 20480
        v_add_u32 v4, {XB + 40960}, v2
        v_add_u32 v5, {XB}, v2""")
        for i in range(3):
            d = 24 + i
            k(f"""
            s_mul_i32 s28, s21, 12
            s_add_u32 s28, s28, {4*i}
            v_lshrrev_b32 v8, 4, v1
            v_add_u32 v8, s28, v8
            v_and_b32 v9, 15, v1
            v_lshlrev_b32 v9, 4, v9
            s_lshl_b32 s28, s20, 8
            v_lshl_add_u32 v{d}, v8, 14, v9
            v_add_u32 v{d}, s28, v{d}
            v_subrev_u32 v10, 40, v8
            v_lshl_add_u32 v10, v10, 8, v9
            s_mul_i32 s28, s20, 640
            v_add_u32 v11, s28, v10
            s_mul_i32 s28, s20, 384
            s_add_u32 s28, s28, {M_OFF - 640}
            v_add_u32 v12, s28, v10
            v_cmp_gt_u32 vcc, 640, v10
            s_nop 1
            v_cndmask_b32 v11, v12, v11, vcc""")
            v_mbmap(k, 11, 12)
            k(f"""
            v_add_u32 v11, {MB - ZM:#x}, v11
            v_mov_b32 v12, {BIG:#x}
            v_cmp_gt_u32 vcc, 1024, v10
            s_nop 1
            v_cndmask_b32 v11, v12, v11, vcc
            v_cmp_gt_u32 vcc, 40, v8
            s_nop 1
            v_cndmask_b32 v{d}, v11, v{d}, vcc""")
        k('s_cmp_eq_u32 s24, 0\ns_cselect_b64 vcc, -1, 0')
        for i in range(3): k(f'v_cndmask_b32 v{24+i}, v12, v{24+i}, vcc')
        k(f'v_mov_b32 v28, -1\nv_mov_b32 v29, -1\nv_mov_b32 v30, -1\nv_mov_b32 v31, -1\ns_mov_b32 s46, {ZM + 0x200000:#x}')
    def start():
        for slot in (0, 20480, 40960):
            for s_ in dma_list(slot): k(s_)
    def after(c):
        if c < 8: return
        ops = []; loads = {}
        for kk in (range(18) if c == 8 else range(18, 20)):
            for tt in range(2):
                loads[(kk, tt)] = ('x', [lambda r, kk=kk, tt=tt: f'ds_read_b128 {V(r,4)}, v2 offset:{XB + tt*20480 + kk*1024}'])
                for t in range(4):
                    acc = V((8, 76)[tt] + 4 * t, 4); c_ = '0' if kk == 0 else acc
                    ops.append((lambda rg, key=(t, kk), acc=acc, c_=c_, xk=(kk, tt): f'{MF} {acc}, {R(loc[key],4)}, {V(rg[xk],4)}, {c_}', [(kk, tt)], []))
        stream(k, ops, loads, dict(x=[32, 36, 40, 44, 48]), 12, maxper=1, group=4)
    gen_loader2(k, 'PJ', loc, p, cfg, setup, start, after)
    ustamp(k, cfg, 5)
    k('s_add_u32 s28, s38, s44')
    k.nop(4)
    for tt in range(2):
        a = (8, 76)[tt]
        for j in range(2):
            d = 52 + 8 * tt + 4 * j
            for i in range(4): k(f'v_cvt_pk_bf16_f32 v{d+i}, v{a+8*j+i}, v{a+8*j+4+i}')
            k(f'buffer_store_dwordx4 {V(d,4)}, v2, s[8:11], {"s38" if tt == 0 else "s28"} offen offset:{1024*j} sc1')
    k(f"""
    s_add_u32 s38, s38, s45
    s_mov_b32 s22, 1
    s_waitcnt vmcnt(0)
    s_barrier
    buffer_store_dword v7, v6, s[8:11], s43 offen sc1
    s_add_u32 s43, s43, 4096""")
    for s_ in dma_list('s41'): k(s_)
    ACC = (8, 76)
    XR = [96 + 4 * i for i in range(8)]
    NPF = 4
    for n in range(NPF): k.lds(f'ds_read_b128 {V(XR[n],4)}, v4 offset:{n*1024}')
    k.label(f'{p}_loop')
    k.lc += NPF; k.ld = k.lc - NPF
    pre = {('x', n): k.ld + 1 + n for n in range(NPF)}
    stamp(k, cfg, 0)
    mats = []; items = []; ev = []
    for n in range(NPF, 40 + NPF):
        u, kk = (n // 20) % 2, n % 20
        ev.append((4 * (n - NPF) + (0 if n & 1 else 4) - 3, dict(id=('x', n), kind='n', lds=True, fn=f'ds_read_b128 {V(XR[n%8],4)}, v{4+u} offset:{kk*1024}',
                   order=[('bar', n // 20 - 1)] if n >= 20 else [])))
    for u in range(2):
        a0 = ACC[u]; pa = ACC[1 - u]; b = 80 * u
        for kk in range(20):
            n = 20 * u + kk
            for t in range(4):
                acc = V(a0 + 4 * t, 4)
                need = [('x', n), ('x', n | 1)] if t == 0 and not (n & 1) else []
                mats.append((f'{MF} {acc}, {R(loc[(t,kk)],4)}, {V(XR[n%8],4)}, {"0" if kk == 0 else acc}', need))
        E = lambda g_, fn, **kw: ev.append((b + g_, dict(id=('e', u, len(ev)), kind='n', fn=fn, **kw)))
        for j in range(2):
            for i in range(4):
                it = dict(id=('c', u, j, i), kind='v', fn=f'v_cvt_pk_bf16_f32 v{64+4*j+i}, v{pa+8*j+i}, v{pa+8*j+4+i}', after=b + 3)
                if j == 0 and i == 0: it['states'] = (max(b - 1, 0), 8)
                items.append(it)
            E(6 + 4 * j, f'buffer_store_dwordx4 {V(64+4*j,4)}, v2, s[8:11], s36 offen offset:{1024*j} sc1', order=[('c', u, j, 3)])
        E(0, f's_add_u32 s28, s41, {XB}'); E(0, f'v_add_u32 v{5-u}, s28, v2')
        if u == 0:
            E(12, 's_mov_b32 s36, s38'); E(12, 's_add_u32 s38, s38, s45')
            if RING2 < 64:
                E(13, f's_and_b32 s87, s22, {RING2 - 1}'); E(13, f's_cmp_eq_u32 s87, {RING2 - 1}'); E(14, f's_cselect_b32 s87, {RING2}, 0'); E(14, 's_mul_i32 s87, s87, s45'); E(16, 's_sub_u32 s38, s38, s87')
            for i, s_ in enumerate(['s_lshr_b32 s47, s46, 21', 's_xor_b32 s47, s47, s53', 's_and_b32 s47, s47, 1', 's_xor_b32 s47, s47, 1', 's_lshl_b32 s47, s47, 13', 's_add_u32 s47, s47, s46', 's_add_u32 s46, s46, 0x100000',
                                     's_cmp_eq_u32 s22, 63', 's_cselect_b32 s47, 0xe00000, s47']):
                E(18 + i // 2, s_)
        else:
            E(12, 's_add_u32 s36, s36, s44'); E(12, 's_add_u32 s22, s22, 1')
        if u == 0:
            E(40, f's_cmp_lt_u32 s22, {cfg.get("pje", 6)}'); E(40, f's_cselect_b32 s49, s37, {DUMMY:#x}')
            E(57, f's_cbranch_scc0 {p}_ne\ns_waitcnt vmcnt(0)', label=f'{p}_ne')
            E(69, 'buffer_store_dword v7, v6, s[8:11], s49 offen sc1')
        E(58, f's_waitcnt vmcnt({6 if u else 2})')
        ev.append((b + 58, dict(id=('bar', u), kind='bar', fn='s_barrier')))
        E(59, 's_add_u32 m0, s34, s42'); E(59, 's_add_u32 s29, s35, 4096')
        for i in range(4): E(60 + 2 * i, f'buffer_load_dwordx4 v2, s[8:11], s35 offen offset:{1024*i} sc1 lds')
        E(67, 's_add_u32 m0, m0, 4096'); E(67, 's_add_u32 s35, s35, 20480')
        E(68, 'buffer_load_dwordx4 v2, s[8:11], s29 offen sc1 lds')
        if u == 0:
            for i in range(3): E(70 + 2 * i, f'buffer_store_dwordx4 v[28:31], v{24+i}, s[8:11], s47 offen sc1')
        else:
            E(70, 'buffer_store_dword v7, v6, s[8:11], s37 offen sc1')
            E(72, 's_mov_b32 s37, s43'); E(72, 's_add_u32 s43, s43, 4096')
        E(75, 's_mov_b32 s28, s40'); E(75, 's_mov_b32 s40, s41'); E(76, 's_mov_b32 s41, s42'); E(76, 's_mov_b32 s42, s28')
        if u == 1: E(78, 's_cmp_lt_u32 s22, 64')
    ev.sort(key=lambda x: x[0])
    for g_, it in ev:
        it['after'] = g_; items.append(it)
    sched(k, mats, items, [False] * 160, pre=pre)
    k(f's_cbranch_scc1 {p}_loop')
    k.wl_all(True)
    k.nop(4)
    for i in range(8):
        k(f'v_cvt_pk_bf16_f32 v{64+i}, v{76+8*(i//4)+i%4}, v{80+8*(i//4)+i%4}')
    for j in range(2):
        k(f'buffer_store_dwordx4 {V(64+4*j,4)}, v2, s[8:11], s36 offen offset:{1024*j} sc1')
    k(f"""
    s_waitcnt vmcnt(0)
    s_barrier
    buffer_store_dword v7, v6, s[8:11], s37 offen sc1
    s_branch {end}""")

def xn_ready(k, p, cfg):
    pass

def gen_vu(k, p, end, fail, cfg={}):
    loc = regmap([('v', t, kk) for kk in range(20) for t in range(2)] + [('o', ci, kk) for ci in range(10) for kk in range(6)], 112)
    role_common(k, ('Wo', 'Wv'))
    XB = 0; VX = 98304; NP = cfg.get('np', 6)
    def xdma():
        out = []
        for j in range(3):
            for i in range(4 if j < 2 else 2):
                pre_ = f's_add_u32 m0, s34, {4096*j}\ns_add_u32 s29, s35, {4096*j}\n' if i == 0 else ''
                out.append(pre_ + f'buffer_load_dwordx4 v2, s[8:11], s29 offen offset:{1024*i} sc1 lds')
        out[-1] += '\ns_add_u32 s35, s35, 40960'
        return out
    vdma = ['s_mov_b32 m0, s46\ns_xor_b32 s46, s46, 16384\nbuffer_load_dwordx4 v2, s[8:11], s45 offen sc1 lds',
            'buffer_load_dwordx4 v2, s[8:11], s45 offen offset:1024 sc1 lds\ns_add_u32 s45, s45, 262144']
    def setup():
        flag_addr(k, 6)
        k(f"""
        s_and_b32 s28, s21, 1
        s_mul_i32 s29, s28, 20480
        v_add_u32 v4, s29, v2
        v_add_u32 v5, {VX}, v2
        s_mul_i32 s28, s28, 6144
        s_lshr_b32 s29, s21, 1
        s_lshl_b32 s29, s29, 10
        s_add_u32 s28, s28, s29
        s_add_u32 s28, s28, 4096
        v_add_u32 v3, s28, v5
        v_and_b32 v108, 1, v1
        v_mul_u32_u24 v108, {FP1 - FQK:#x}, v108
        s_lshl_b32 s28, s20, 7
        v_add_u32 v108, s28, v108
        s_mul_i32 s35, s21, 10240
        s_add_u32 s34, s35, {XB}
        s_lshl_b32 s36, s21, 15
        s_lshl_b32 s28, s20, 10
        s_add_u32 s36, s36, s28
        s_add_u32 s36, s36, {UF:#x}
        s_mov_b32 s37, {DUMMY:#x}
        s_mov_b32 s43, {FU:#x}
        s_mov_b32 s44, {FQK:#x}
        s_mov_b32 s47, 1
        s_lshr_b32 s28, s21, 1
        s_mul_i32 s45, s28, 6144
        s_and_b32 s28, s21, 1
        s_lshl_b32 s28, s28, 11
        s_add_u32 s45, s45, s28
        s_add_u32 s46, s45, {VX}
        s_lshl_b32 s45, s21, 11
        s_lshl_b32 s28, s20, 13
        s_add_u32 s45, s45, s28
        s_add_u32 s45, s45, {VF:#x}""")
    def start():
        for s_ in xdma(): k(s_)
    gen_loader2(k, 'VU', loc, p, cfg, setup, start, lambda c: None)
    ustamp(k, cfg, 5)
    for j in range(3):
        k(f's_add_u32 m0, s34, {40960 + 4096*j}\ns_add_u32 s29, s35, {NP*40960 + 4096*j}')
        for i in range(4 if j < 2 else 2): k(f'buffer_load_dwordx4 v2, s[8:11], s29 offen offset:{1024*i} sc1 lds')
    k.label(f'{p}_loop')
    stamp(k, cfg, 0)
    k('s_barrier')
    stamp(k, cfg, 1)
    ops = []; loads = {}
    for kk in range(20):
        loads[('x', kk)] = ('x', [lambda r, kk=kk: f'ds_read_b128 {V(r,4)}, v4 offset:{kk*1024}'])
        for t in range(2):
            acc = V(8 + 4 * t, 4); c = '0' if kk == 0 else acc
            ops.append((lambda rg, key=('v', t, kk), acc=acc, c=c, kk=kk: f'{MF} {acc}, {R(loc[key],4)}, {V(rg[("x",kk)],4)}, {c}', [('x', kk)], []))
    stream(k, ops, loads, dict(x=[48 + 4 * i for i in range(8)]), 12, group=2)
    k(f's_cmp_eq_u32 s47, 0\ns_cbranch_scc1 {p}_nf')
    poll_flag(k, f'{p}_f0', 108, 's44', 109, fail, sleep=1)
    for s_ in vdma: k(s_)
    k.label(f'{p}_nf')
    k.nop(6)
    for i in range(4): k(f'v_cvt_pk_bf16_f32 v{32+i}, v{8+i}, v{12+i}')
    k.lds('ds_write_b128 v3, v[32:35]')
    k(f's_add_u32 s44, s44, 4096\ns_min_u32 s44, s44, {FQK + 63*4096:#x}')
    k.wl_all()
    stamp(k, cfg, 2)
    k('s_waitcnt vmcnt(0)')
    k('s_barrier')
    stamp(k, cfg, 3)
    pre = {}
    for kk in range(6):
        for tt in range(2):
            r = 48 + 4 * (2 * kk + tt)
            pre[('V', kk, tt)] = (r, k.lds(f'ds_read_b128 {V(r,4)}, v5 offset:{tt*6144 + kk*1024}'))
    k(f's_cmp_eq_u32 s22, {NP}\ns_cbranch_scc1 {p}_pl')
    k(f"""
    buffer_store_dword v7, v6, s[8:11], s37 offen sc1
    buffer_load_dword v109, v108, s[8:11], s44 offen sc1
    s_mov_b32 s37, s43
    s_add_u32 s43, s43, 4096
    s_mov_b32 s38, s36
    s_add_u32 s36, s36, 1310720
    v_xor_b32 v5, 16384, v5
    v_xor_b32 v3, 16384, v3""")
    ops = []; loads = {key: ('none', []) for key in pre}
    def epi(ci):
        a = 8 + 8 * (ci % 3); d = 32 + 4 * (ci % 3)
        return [f'v_cvt_pk_bf16_f32 v{d+i}, v{a+2*i}, v{a+2*i+1}' for i in range(4)] + \
               [f'buffer_store_dwordx4 {V(d,4)}, v2, s[8:11], s38 offen sc1\ns_add_u32 s38, s38, 131072']
    posts = {}
    xd = xdma()
    for i, s_ in enumerate(xd): posts.setdefault(12 * (i // 2) + 2 + 3 * (i % 2), []).append(s_)
    posts.setdefault(72, []).append('s_waitcnt vmcnt(15)\nv_cmp_eq_u32 vcc, 0, v109')
    def chk():
        k(f's_mov_b32 s47, 1\ns_cbranch_vccnz {p}_late\ns_mov_b32 s47, 0')
        for s_ in vdma: k(s_)
        k.label(f'{p}_late')
    posts.setdefault(74, []).append(chk)
    for ci in range(10):
        e = epi(ci - 1) if ci > 0 else []
        for n in range(12):
            kk, tt = n >> 1, n & 1
            acc = V(8 + 8 * (ci % 3) + 4 * tt, 4); c = '0' if kk == 0 else acc; vk = ('V', kk, tt)
            post = ([e[n - 7]] if 7 <= n < 7 + len(e) else []) + posts.get(12 * ci + n, [])
            ops.append((lambda rg, key=('o', ci, kk), acc=acc, c=c, vk=vk: f'{MF} {acc}, {V(rg[vk],4)}, {R(loc[key],4)}, {c}', [vk], post))
    stream(k, ops, loads, dict(none=[]), 12, preissued=pre)
    k.nop(8)
    for s_ in epi(9): k(s_)
    stamp(k, cfg, 4)
    k(f"""
    s_add_u32 s22, s22, 1
    s_cmp_gt_u32 s22, {cfg.get('nimm', 2)}
    s_waitcnt vmcnt(7)
    s_cbranch_scc1 {p}_loop
    s_waitcnt vmcnt(0)
    s_barrier
    buffer_store_dword v7, v6, s[8:11], s37 offen sc1
    s_mov_b32 s37, {DUMMY:#x}
    s_branch {p}_loop""")
    k.label(f'{p}_pl')
    k(f"""
    buffer_store_dword v7, v6, s[8:11], s37 offen sc1
    s_mov_b32 s37, {DUMMY:#x}
    v_xor_b32 v5, 16384, v5
    v_xor_b32 v3, 16384, v3
    v_xor_b32 v4, 40960, v4
    s_mov_b32 s38, {DUMMY + 4096:#x}
    s_mov_b32 s48, 0
    s_add_u32 s35, s35, 40960""")
    k.label(f'{p}_pll')
    k.lc += 12; k.ld = k.lc - 12
    k.vd = k.vc
    pre = {('V', n): k.ld + 1 + n for n in range(12)}
    mats = []; items = []; ev = []; endt = {}
    uacc = lambda ci, tt: 8 + 8 * (ci & 1) + 4 * tt
    def utile(ci):
        for n in range(12):
            kk, tt = n >> 1, n & 1
            a = V(uacc(ci, tt), 4)
            mats.append((f'{MF} {a}, {V(48+4*n,4)}, {R(loc[("o",ci,kk)],4)}, {"0" if kk == 0 else a}', [('V', n)] if ci == 0 else []))
        endt[ci] = len(mats) - 1
    for ci in range(5): utile(ci)
    XR = [44, 96, 100, 104]
    for kk in range(20):
        ev.append((max(60 + 2 * kk - 7, 60 + 2 * (kk - 4) + 1), dict(id=('x', kk), kind='n', lds=True, fn=f'ds_read_b128 {V(XR[kk%4],4)}, v4 offset:{kk*1024}')))
        for t in range(2):
            a = V(24 + 4 * t, 4)
            mats.append((f'{MF} {a}, {R(loc[("v",t,kk)],4)}, {V(XR[kk%4],4)}, {"0" if kk == 0 else a}', [('x', kk)]))
    for ci in range(5, 10): utile(ci)
    def uepi(ci, e_):
        a = uacc(ci, 0); d = 32 + 4 * (ci & 1)
        for i in range(4):
            it = dict(id=('u', ci, i), kind='v', fn=f'v_cvt_pk_bf16_f32 v{d+i}, v{a+2*i}, v{a+2*i+1}', after=e_ + 3)
            if i == 0: it['states'] = (max(e_, 0), 8)
            items.append(it)
        ev.append((e_ + 7, dict(id=('us', ci), kind='n', vm=True, fn=f'buffer_store_dwordx4 {V(d,4)}, v2, s[8:11], s38 offen sc1', order=[('u', ci, 3)])))
        ev.append((e_ + 7, dict(id=('ua', ci), kind='n', fn='s_mov_b32 s38, s36' if ci == 9 else 's_add_u32 s38, s38, 131072')))
    uepi(9, -1)
    for ci in range(5): uepi(ci, endt[ci])
    for i in range(4):
        it = dict(id=('w', i), kind='v', fn=f'v_cvt_pk_bf16_f32 v{40+i}, v{24+i}, v{28+i}', after=102)
        if i == 0: it['states'] = (99, 8)
        items.append(it)
    ev.append((106, dict(id='ww', kind='n', lds=True, fn='ds_write_b128 v3, v[40:43]', order=[('w', 3)])))
    for ci in range(5, 9): uepi(ci, endt[ci])
    ev.append((1, dict(id='fl', kind='n', vm=True, fn='buffer_load_dword v109, v108, s[8:11], s44 offen sc1')))
    ev.append((12, dict(id='s0', kind='n', fn='s_add_u32 s49, s34, s48')))
    ev.append((13, dict(id='s1', kind='n', fn='s_add_u32 s36, s36, 1310720')))
    for i_, t_ in enumerate(wrap('s36', UF, 1310720).split('\n')): ev.append((16 + i_ // 2, dict(id=('wr', i_), kind='n', fn=t_)))
    ev.append((13, dict(id='s2', kind='n', fn='s_xor_b32 s48, s48, 40960')))
    g_ = 20
    for j in range(3):
        ev.append((g_, dict(id=('m', j), kind='n', fn=f's_add_u32 m0, s49, {4096*j}')))
        ev.append((g_, dict(id=('m2', j), kind='n', fn=f's_add_u32 s29, s35, {4096*j}')))
        g_ += 1
        for i in range(4 if j < 2 else 2):
            ev.append((g_, dict(id=('xd', j, i), kind='n', vm=True, fn=f'buffer_load_dwordx4 v2, s[8:11], s29 offen offset:{1024*i} sc1 lds'))); g_ += 2
    ev.append((g_, dict(id='s3', kind='n', fn='s_add_u32 s35, s35, 40960')))
    ev.append((68, dict(id='fc', kind='n', vdeps=['fl'], fn='v_cmp_eq_u32 vcc, 0, v109')))
    ev.append((70, dict(id='fb', kind='n', fn=f's_cbranch_vccnz {p}_plate', label=f'{p}_pon')))
    ev.append((70, dict(id='v0', kind='n', fn='s_mov_b32 m0, s46')))
    ev.append((72, dict(id='v1', kind='n', vm=True, fn='buffer_load_dwordx4 v2, s[8:11], s45 offen sc1 lds')))
    ev.append((74, dict(id='v2', kind='n', vm=True, fn='buffer_load_dwordx4 v2, s[8:11], s45 offen offset:1024 sc1 lds')))
    ev.append((108, dict(id='v3', kind='n', fn='s_xor_b32 s46, s46, 16384')))
    ev.append((108, dict(id='v4', kind='n', fn='s_add_u32 s45, s45, 262144')))
    for i_, t_ in enumerate(wrap('s45', VF, 262144, RING2).split('\n')): ev.append((116 + i_ // 2, dict(id=('wr2', i_), kind='n', fn=t_)))
    ev.append((109, dict(id='v5', kind='n', fn='s_add_u32 s44, s44, 4096')))
    ev.append((109, dict(id='v6', kind='n', fn=f's_min_u32 s44, s44, {FQK + 63*4096:#x}')))
    ev.append((140, dict(id='bar', kind='bar', deps=['ww'], vdeps=['v2'], fn='s_barrier')))
    ev.append((56, dict(id='bar0', kind='bar', vdeps=[('us', 9)], fn='s_barrier')))
    ev.append((58, dict(id='fs', kind='n', vm=True, fn='buffer_store_dword v7, v6, s[8:11], s37 offen sc1')))
    ev.append((144, dict(id='t0', kind='n', fn='s_mov_b32 s37, s43')))
    ev.append((144, dict(id='t1', kind='n', fn='s_add_u32 s43, s43, 4096')))
    ev.append((145, dict(id='t2', kind='n', fn='s_add_u32 s22, s22, 1')))
    ev.append((145, dict(id='t3', kind='n', fn='v_xor_b32 v4, 40960, v4')))
    ev.append((146, dict(id='t4', kind='n', fn='v_xor_b32 v3, 16384, v3')))
    for n in range(12):
        ev.append((148 + n - 0.1, dict(id=('R', n), kind='n', lds=True, fn=f'ds_read_b128 {V(48+4*n,4)}, v5 offset:{(n&1)*6144 + (n>>1)*1024}', g=148 + n)))
    ev.sort(key=lambda x: x[0])
    for g_, it in ev:
        it['after'] = it.get('g', g_); items.append(it)
    sched(k, mats, items, [False] * 160, pre=pre)
    k(f"""
    v_xor_b32 v5, 16384, v5
    s_cmp_lt_u32 s22, 64
    s_cbranch_scc1 {p}_pll""")
    k.wl_all(True)
    k.nop(4)
    for i in range(4): k(f'v_cvt_pk_bf16_f32 v{36+i}, v{16+2*i}, v{17+2*i}')
    k(f"""
    buffer_store_dwordx4 v[36:39], v2, s[8:11], s38 offen sc1
    s_waitcnt vmcnt(0)
    s_barrier
    buffer_store_dword v7, v6, s[8:11], s37 offen sc1
    s_branch {end}""")
    k.label(f'{p}_plate')
    poll_flag(k, f'{p}_f1', 108, 's44', 109, fail, sleep=2)
    k(f's_branch {p}_pon')

TMO = 400000
FAIL = 'mega_kernel_fail'
PL = 8
CS = 1600
SCL = (192 ** -0.5) * 1.4426950408889634

def region(k, d, sreg):
    k(f"""
    s_lshr_b32 s28, {sreg}, 1
    s_xor_b32 s28, s28, s53
    s_and_b32 s28, s28, 1
    s_xor_b32 s28, s28, 1
    s_lshl_b32 s28, s28, 13
    s_lshl_b32 s{d}, {sreg}, 20
    s_add_u32 s{d}, s{d}, s28
    s_add_u32 s{d}, s{d}, {MB:#x}""")

def sel_from(k, cfg, v):
    if LST: k('s_memrealtime s[68:69]')
    k(f'v_readfirstlane_b32 s53, v{v}')
    k('s_sub_u32 s53, s53, 1')
    if cfg.get('sel') is not None: k(f's_mov_b32 s53, {cfg["sel"]}')
    k(f"""
    s_and_b32 s53, s53, 1
    s_lshl_b32 s52, s53, 13
    s_add_u32 s52, s52, {ZR:#x}
    s_xor_b32 s56, s53, {cfg.get('fsh', 1)}
    s_lshl_b32 s56, s56, 13
    s_lshr_b32 s55, s25, 2
    s_and_b32 s55, s55, {cfg.get('nl', 16) - 1}
    s_mul_i32 s55, s55, {cfg.get('lstride', 256)}
    s_mov_b32 s58, 0""")

def load_sel(k, cfg, t=16, t2=18):
    l = k.newlabel('L_go')
    k(f'v_mov_b32 v{t}, 128\ns_mov_b32 s39, 0')
    k.label(l)
    k(f'buffer_load_dword v{t+1}, v{t}, s[88:91], 0 offen sc1')
    k(f'buffer_load_dword v{t2}, v{t}, s[88:91], 0 offen offset:12 sc1')
    tmo(k, FAIL)
    k(f's_waitcnt vmcnt(0)\nv_cmp_eq_u32 vcc, 0, v{t2}\ns_cbranch_vccnz {l}')
    rot_check(k, t2)
    k(f'v_cmp_ne_u32 vcc, 0, v{t+1}\ns_cbranch_vccnz {l}k\ns_sleep 3\ns_branch {l}')
    k.label(l + 'k')
    sel_from(k, cfg, t + 1)

def zregion(k, d, base):
    k(f"""
    s_lshr_b32 s28, s22, 1
    s_xor_b32 s28, s28, s53
    s_and_b32 s28, s28, 1
    s_xor_b32 s28, s28, 1
    s_lshl_b32 s28, s28, 13
    s_lshl_b32 s{d}, s22, 20
    s_add_u32 s{d}, s{d}, s28
    s_add_u32 s{d}, s{d}, s{base}""")

RING = 64
def wrap(reg, base, stride, n=None):
    n = n or RING
    if n >= 64: return 's_nop 0'
    return f's_cmp_ge_u32 {reg}, {base + n*stride:#x}\ns_cselect_b32 s87, {n*stride:#x}, 0\ns_sub_u32 {reg}, {reg}, s87'

def maxtree(k, d, regs):
    k(f'v_max3_u32 v{d}, v{regs[0]}, v{regs[1]}, v{regs[2]}')
    i = 3
    while i + 1 < len(regs):
        k(f'v_max3_u32 v{d}, v{d}, v{regs[i]}, v{regs[i+1]}'); i += 2
    if i < len(regs): k(f'v_max_u32 v{d}, v{d}, v{regs[i]}')

def tmo(k, fail):
    k(f's_add_u32 s39, s39, 1')
    k(f's_cmp_gt_u32 s39, {TMO}')
    k(f's_cbranch_scc1 {fail}')

def memaddr_setup(k, MEMB):
    k(f"""
    s_lshl_b32 s28, s21, 10
    v_add_u32 v7, s28, v2
    v_add_u32 v4, {M_OFF}, v7
    v_add_u32 v5, {M_OFF + 4096}, v7
    v_add_u32 v7, {MEMB}, v7
    v_and_b32 v8, 0x1ff, v2
    s_lshl_b32 s28, s21, 9
    v_add_u32 v8, s28, v8
    v_add_u32 v6, {M_OFF + 8192}, v8
    v_add_u32 v8, {MEMB + 8192}, v8
    v_add_u32 v9, {MEMB}, v2""")
    for d in (4, 5, 6): v_mbmap(k, d, 11)
    k("""
    v_and_b32 v11, 2, v1
    v_mov_b32 v10, 0x4444
    v_mov_b32 v12, 0xeeee
    v_cmp_ne_u32 vcc, 0, v11
    s_nop 1
    v_cndmask_b32 v10, v10, v12, vcc""")

def poll_mem(k, p, fail, D=0):
    twait(k, D)
    k('s_mov_b32 s39, 0')
    k.label(f'{p}_poll')
    for i in range(3):
        k(f'buffer_load_dwordx4 {V(16+4*i,4)}, v{4+i}, s[8:11], s40 offen sc1')
    tmo(k, fail)
    k('s_waitcnt vmcnt(0)')
    k('ds_write_b128 v7, v[16:19]')
    k('ds_write_b128 v7, v[20:23] offset:4096')
    k('ds_write_b128 v8, v[24:27]')
    maxtree(k, 11, list(range(16, 28)))
    k('v_cmp_eq_u32 vcc, -1, v11')
    k(f's_cbranch_vccnz {p}_poll')
    k('s_waitcnt lgkmcnt(0)')
    k('s_barrier')
    tref(k, D)
    k('s_add_u32 s58, s58, s39')

def tref(k, D):
    if D: k('s_memtime s[54:55]')

def twait(k, D):
    if not D: return
    l = k.newlabel('L_tw')
    k.label(l)
    k(f"""
    s_memtime s[56:57]
    s_waitcnt lgkmcnt(0)
    s_sub_u32 s56, s56, s54
    s_cmp_lt_u32 s56, {D}
    s_cbranch_scc1 {l}""")

def wload8(wm, key):
    return [lambda r, key=key: f'ds_read_b128 {V(r,4)}, v3 offset:{WL + wm.slot[key]*1024}',
            lambda r, key=key: f'ds_read_b128 {V(r+4,4)}, v3 offset:{WL + wm.slot[key]*1024 + 1024}']

def pairpost(a, b, d):
    return [f'v_permlane32_swap_b32 v{a+i}, v{b+i}' for i in range(4)] + \
           [f'v_add_f32 v{a+i}, v{a+i}, v{b+i}' for i in range(4)] + \
           [f'v_cvt_pk_bf16_f32 v{d}, v{a}, v{a+1}', f'v_cvt_pk_bf16_f32 v{d+1}, v{a+2}, v{a+3}']

def xlane(k, op, m, t):
    k(f"""
    v_mov_b32 v{t}, v{m}
    s_nop 1
    v_permlane32_swap_b32 v{m}, v{t}
    {op} v{m}, v{m}, v{t}
    v_mov_b32 v{t}, v{m}
    s_nop 1
    v_permlane16_swap_b32 v{m}, v{t}
    {op} v{m}, v{m}, v{t}""")

def stamp(k, cfg, idx):
    if cfg.get('cprof'): return
    if cfg.get('hprof'):
        if idx == 0 or (idx == 2 and len(cfg['hprof']) < 4): k(f's_memtime s[{60+2*(4 if idx else 0)}:{61+2*(4 if idx else 0)}]')
        return
    if cfg.get('trace'):
        k(f's_memrealtime s[{60+2*idx}:{61+2*idx}]'); return
    if cfg.get('stamp') is None: return
    l = k.newlabel('L_st')
    k(f's_cmp_lg_u32 s22, {cfg["stamp"]}')
    k(f's_cbranch_scc1 {l}')
    k(f'{"s_memtime" if cfg.get("cyc") else "s_memrealtime"} s[{60+2*idx}:{61+2*idx}]')
    k.label(l)

def trace_out(k, cfg, t0):
    if not cfg.get('trace'): return
    k(f"""
    s_waitcnt lgkmcnt(0)
    s_lshl_b32 s28, s25, 2
    s_add_u32 s28, s28, s21
    s_lshl_b32 s28, s28, 6
    s_add_u32 s28, s28, s22
    s_lshl_b32 s28, s28, 5
    s_add_u32 s28, s28, {TRACE:#x}
    v_mov_b32 v{t0}, s60
    v_mov_b32 v{t0+1}, s62
    v_mov_b32 v{t0+2}, s64
    v_mov_b32 v{t0+3}, s66
    v_mov_b32 v{t0+4}, s68
    v_mov_b32 v{t0+5}, s59
    v_mov_b32 v{t0+8}, 0
    buffer_store_dwordx4 {V(t0,4)}, v{t0+8}, s[8:11], s28 offen
    buffer_store_dwordx2 {V(t0+4,2)}, v{t0+8}, s[8:11], s28 offen offset:16
    s_nop 1""")

def ustamp(k, cfg, idx):
    if cfg.get('stamp') is None or (LST and idx < 5): return
    k(f's_memrealtime s[{60+2*idx}:{61+2*idx}]')

HU1, HU2 = 0xA0000, 0xA4000

def delay(k, n):
    if n >= 64: k(f's_sleep {n // 64}')
    r = (n % 64) // 4
    if r: k.nop(r)

def hu_wait(k, p, base, starget, t0, fail, cfg, line=0):
    depth = cfg.get('depth', 3)
    nref = cfg.get('nref', 1)
    k(f's_add_u32 s28, s55, {base:#x}\nv_mov_b32 v{t0}, s28')
    k('s_mov_b32 s39, 0')
    k('s_waitcnt vmcnt(0)')
    for i in range(depth):
        k(f'buffer_load_dword v{t0+1+i}, v{t0}, s[8:11], s52 offen sc1')
        if i + 1 < depth: k.nop(cfg.get('spr', 16))
    k.label(f'{p}_hu')
    for i in range(depth):
        k(f's_waitcnt vmcnt({depth-1})')
        k(f'v_cmp_gt_i32 vcc, {starget}, v{t0+1+i}')
        k(f's_cbranch_vccz {p}_hud')
        k(f'buffer_load_dword v{t0+1+i}, v{t0}, s[8:11], s52 offen sc1')
    tmo(k, fail)
    k(f's_branch {p}_hu')
    k.label(f'{p}_hud')

class Gaps:
    def __init__(self, k): self.k = k

def pf_setup(k, sreg, mul, add, cfg):
    k(f"""
    s_lshr_b32 s28, s20, 2
    s_and_b32 s54, s28, 3
    s_add_u32 s54, s54, {cfg.get('pfs', 4)}
    s_mul_i32 s28, s28, {mul}
    s_add_u32 s28, s28, {add}
    s_lshr_b32 s29, s28, 2
    s_lshl_b32 s29, s29, 17
    s_and_b32 s28, s28, 3
    s_lshl_b32 s28, s28, 13
    s_add_u32 s{sreg}, s28, s29
    s_and_b32 s28, s20, 3
    s_lshl_b32 s28, s28, 15
    s_add_u32 s{sreg}, s{sreg}, s28
    s_add_u32 s{sreg}, s{sreg}, {UF + cfg.get('pfa', 1) * 1310720:#x}""")

def mem_front(k, p, w, fail, cfg, own_ops, zero_regs, behind=None, nb=0):
    o0, o1 = 16 + 4 * w, 32 + 4 * w
    def ld():
        k(f'buffer_load_dwordx4 {V(o0,4)}, v4, s[8:11], s40 offen sc1')
        k(f'buffer_load_dwordx4 {V(o1,4)}, v5, s[8:11], s40 offen sc1')
        k(f'buffer_load_dwordx4 v[48:51], v6, s[8:11], s40 offen sc1')
    def take(x):
        k(f's_waitcnt vmcnt({2+x})')
        k(f'ds_write_b128 v7, {V(o0,4)}')
        k(f'v_max3_u32 v11, v{o0}, v{o0+1}, v{o0+2}')
        k(f's_waitcnt vmcnt({1+x})')
        k(f'ds_write_b128 v7, {V(o1,4)} offset:4096')
        k(f'v_max3_u32 v11, v11, v{o0+3}, v{o1}')
        k(f'v_max3_u32 v11, v11, v{o1+1}, v{o1+2}')
        k(f's_waitcnt vmcnt({x})')
        if cfg.get('cyc'): stamp(k, cfg, 3)
        k(f'ds_write_b128 v8, v[48:51]')
        k(f'v_max3_u32 v11, v11, v{o1+3}, v48')
        k(f'v_max3_u32 v11, v11, v49, v50')
        k(f'v_max_u32 v11, v11, v51')
        k('v_cmp_eq_u32 vcc, -1, v11')
    own = list(own_ops)
    plan = cfg.get('fplan', (4, 2, 3)) if len(own) == 12 else cfg.get('zplan', (2, 1, 3))
    k(f'buffer_load_dwordx4 {V(o0,4)}, v4, s[8:11], s40 offen sc1')
    if cfg.get('mbar', 1): k('s_barrier')
    k(f'buffer_load_dwordx4 {V(o1,4)}, v5, s[8:11], s40 offen sc1')
    if cfg.get('mbar', 1): k('s_barrier')
    k(f'buffer_load_dwordx4 v[48:51], v6, s[8:11], s40 offen sc1')
    k('s_mov_b32 s39, 1')
    stage = [(f's_waitcnt vmcnt(2)\nds_write_b128 v7, {V(o0,4)}', [f'v_max3_u32 v11, v{o0}, v{o0+1}, v{o0+2}', f'v_max_u32 v11, v11, v{o0+3}']),
             (f's_waitcnt vmcnt(1)\nds_write_b128 v7, {V(o1,4)} offset:4096', [f'v_max3_u32 v11, v11, v{o1}, v{o1+1}', f'v_max3_u32 v11, v11, v{o1+2}, v{o1+3}']),
             (f's_waitcnt vmcnt(0)\nds_write_b128 v8, v[48:51]', ['v_max3_u32 v11, v11, v48, v49', 'v_max3_u32 v11, v11, v50, v51\nv_cmp_eq_u32 vcc, -1, v11'])]
    done = []
    for (head, chk), n in zip(stage, plan):
        k(head)
        chk = list(chk)
        if n < 2 or (chk[1].endswith('v11') and n < 4): k(chk.pop(0))
        for i in range(n):
            done.append(own.pop(0)); k(done[-1])
            if chk: k(chk.pop(0))
        for c_ in chk: k(c_)
    k(f's_cbranch_vccnz {p}_slow')
    k.label(f'{p}_go2')
    k('s_waitcnt lgkmcnt(0)')
    k('s_barrier')
    if cfg.get('stamp') is not None: k('s_add_u32 s58, s58, s39')
    if cfg.get('trace'): k('s_mov_b32 s59, s39')
    def slow():
        k.label(f'{p}_slow')
        k('s_mov_b64 exec, vcc')
        ld()
        k('s_mov_b64 exec, -1')
        k.nop(3)
        for r in zero_regs: k(f'v_mov_b32 v{r}, 0')
        tmo(k, fail)
        take(0)
        k(f's_cbranch_vccnz {p}_slow')
        for s_ in done: k(s_)
        k(f's_branch {p}_go2')
    return own, slow

def sched(k, mats, items, sm, pre_n=0, pre=None):
    tk = dict(pre or {}); vt = {}
    nq = [it for it in items if it['kind'] in ('n', 'bar')]
    vq = [it for it in items if it['kind'] in ('v', 'v2')]
    done = set(); pos = 0; matpos = {}
    def ready(it, i):
        if it.get('after', -1) > i: return False
        if any(d not in done for d in it.get('order', [])): return False
        st = it.get('states')
        if st is not None and (st[0] not in matpos or pos - matpos[st[0]] < st[1]): return False
        return True
    def emit(it):
        nonlocal pos
        n0 = len(k.L)
        for d in it.get('deps', []): k.wl(tk[d])
        for d in it.get('vdeps', []): k.wv(vt[d])
        if it.get('lds'): tk[it['id']] = k.lds(it['fn'])
        elif it.get('vm'): vt[it['id']] = k.vm(it['fn'])
        else: k(it['fn'])
        if it.get('label'):
            k.label(it['label']); n0 += 1
        done.add(it['id']); it['pos'] = pos + len(k.L) - n0
        matpos[it['id']] = it['pos']
        used = len(k.L) - n0 + (1 if it['kind'] == 'v2' else 0)
        pos += len(k.L) - n0
        return used
    def waitneed(i):
        return i < len(mats) and any(d in tk and tk[d] > k.ld for d in mats[i][1])
    for _ in range(pre_n): emit(nq.pop(0))
    for i, (fn, need) in enumerate(mats):
        for d in need:
            while d not in tk:
                it = nq.pop(0); assert ready(it, i), (it, i); emit(it)
        n0 = len(k.L)
        if need: k.wl(max(tk[d] for d in need))
        k(fn); pos += len(k.L) - n0; matpos[i] = pos
        slots = 2
        wantv = bool(vq) and ready(vq[0], i)
        nmax = 1 if wantv else 2
        if waitneed(i + 1) and all(d in tk for d in mats[i + 1][1]):
            look = [tk[d] for j in range(i + 1, min(i + 4, len(mats))) for d in mats[j][1] if d in tk and tk[d] <= k.lc - 2 or (j == i + 1)]
            k.wl(max(look)); pos += 1; slots -= 1; nmax -= 1
        while nmax > 0 and slots > 0 and nq and ready(nq[0], i):
            it_ = nq.pop(0); u = emit(it_); slots -= u; nmax -= u
            for _ in range(it_.get('glue', 0)): slots -= emit(nq.pop(0))
        nv = 0
        while slots > 0 and vq and ready(vq[0], i) and (nv == 0 or not sm[i]):
            it_ = vq.pop(0); slots -= emit(it_); nv += 1
            for x in list(nq):
                if x.get('now') == it_['id']:
                    nq.remove(x); slots -= emit(x)
        if nv == 0 and slots > 0 and vq and vq[0].get('states') and vq[0]['states'][0] in matpos and vq[0].get('after', -1) <= i + 3:
            k.nop(slots); pos += slots
    while nq or vq:
        cand = [q for q in (vq, nq) if q and ready(q[0], len(mats))]
        if cand: emit(cand[0].pop(0))
        else: k.nop(1); pos += 1
    return tk, pos, matpos

def gen_h(k, p, end, fail, cfg):
    keys = [(t, ks) for pr in range(3) for ks in range(10) for t in (2 * pr, 2 * pr + 1)]
    ldsk = [(t, ks) for pr in range(3) for ks in (8, 9) for t in (2 * pr, 2 * pr + 1)]
    wm = Wmap(keys, 8, set(ldsk))
    role_common(k, ('Wq', 'Wk'))
    def early():
        k(f's_lshl_b32 s28, s20, 7\nv_mov_b32 v122, s28\ns_mov_b32 s43, {FQK:#x}')
        k.vm('buffer_load_dword v24, v122, s[8:11], s43 offen sc1')
    gen_loader(k, 'QK', True, wm, early)
    ustamp(k, cfg, 5)
    k(f's_waitcnt vmcnt(0)\nv_min_u32 v24, v24, v20\nv_cmp_ne_u32 vcc, 0, v20\ns_cbranch_vccz {p}_sl')
    rot_check(k, 23)
    sel_from(k, cfg, 20)
    k(f's_branch {p}_sk')
    k.label(f'{p}_sl')
    load_sel(k, cfg)
    k.label(f'{p}_sk')
    MEMB = 98304; QKT = MEMB + 10240; ZER = QKT + 4 * CS + 128; KXB = 131072
    RING = [80, 88, 96, 104, 112]
    hu = cfg.get('hu', 1)
    memaddr_setup(k, MEMB)
    k(f"""
    v_and_b32 v11, 15, v1
    v_lshrrev_b32 v12, 2, v11
    v_mul_u32_u24 v12, 272, v12
    v_lshrrev_b32 v13, 4, v1
    v_lshl_add_u32 v121, v13, 4, v2
    v_add_u32 v121, {QKT}, v121
    v_lshl_add_u32 v12, v13, 5, v12
    v_and_b32 v13, 3, v1
    v_lshl_add_u32 v12, v13, 2, v12
    s_lshr_b32 s28, s21, 1
    s_lshl_b32 s28, s28, 7
    s_and_b32 s29, s21, 1
    s_mul_i32 s29, s29, 3264
    s_add_u32 s28, s28, s29
    s_add_u32 s28, s28, {QKT}
    v_add_u32 v120, s28, v12
    v_add_u32 v126, 1088, v120
    v_add_u32 v127, 2176, v120
    v_add_u32 v0, {KXB}, v2
    s_mul_i32 s48, s21, 3072
    s_add_u32 s47, s48, {KXB}
    s_mul_i32 s28, s20, 24576
    s_add_u32 s48, s48, s28
    s_add_u32 s48, s48, {QF + 12288:#x}
    s_lshl_b32 s28, s20, 7
    v_mov_b32 v122, s28
    s_mov_b32 s43, {FQK:#x}""")
    def kxdma():
        k('s_mov_b32 m0, s49')
        k('s_xor_b32 s47, s47, 16384')
        for i in range(3):
            k(f'buffer_load_dwordx4 v2, s[8:11], s48 offen offset:{1024*i} sc1 lds')
        k('s_mov_b32 s49, s47')
        k('s_add_u32 s48, s48, 786432')
        k(wrap('s48', QF, 786432, RING2))
    k(f'v_cmp_ne_u32 vcc, 0, v24\ns_cbranch_vccnz {p}_pk')
    poll_flag(k, f'{p}_pz', 122, 's43', 17, fail, sleep=1)
    k.label(f'{p}_pk')
    k('s_mov_b32 s49, s47')
    kxdma()
    k(f's_sub_u32 s49, s47, {KXB + 16384 - 116736}')
    k(f"""
    v_lshrrev_b32 v13, 4, v1
    s_waitcnt lgkmcnt(0)
    s_mov_b32 s22, 0
    s_cmp_eq_u32 s21, 0
    s_cbranch_scc1 {p}_w0
    s_cmp_eq_u32 s21, 1
    s_cbranch_scc1 {p}_w1
    s_cmp_eq_u32 s21, 2
    s_cbranch_scc1 {p}_w2
    s_branch {p}_w3""")
    slows = []
    def main(pp, w):
        pr_ = [f'v_mov_b32 v{56+i}, 0' for i in range(24)] + [f(RING[i]) for i, key in enumerate(ldsk[:5]) for f in wload8(wm, key)]
        h1n = cfg.get('h1n', 3)
        if w == 3 and h1n >= 0: pr_.insert(h1n, 'buffer_store_dword v15, v123, s[8:11], s52 offen sc1\nv_mov_b32 v15, s22')
        if w == 3 and h1n < 0: pr_.append('v_mov_b32 v15, s22')
        for s_ in pr_: (k.lds if s_.startswith('ds_') else k)(s_)
        k('s_sub_u32 s46, s22, 1')
        region(k, 40, 's46')
        if w == 0: region(k, 41, 's22')
        if w >= 2: k(f's_cmp_lt_u32 s22, s54\ns_cselect_b32 s51, {XN:#x}, s50')
        k.wl_all()
        k('s_waitcnt vmcnt(0)')
        if cfg.get('trace'): stamp(k, cfg, 3)
        if hu and cfg.get('nref2', 1) > 1: k('s_barrier')
        if hu and w < cfg.get('nref2', 1):
            k('s_sub_u32 s46, s22, 1')
            hu_wait(k, pp, HU2, 's46', 52 - 4 * (w == 0) * 8, fail, cfg, w)
            delay(k, cfg.get('d2', 0))
        k('s_barrier')
        if cfg.get('trace'): stamp(k, cfg, 4)
        wreg = {key: R(wm.loc[key], 8) for key in wm.loc}
        for i, key in enumerate(ldsk): wreg[key] = V(RING[i % 5], 8)
        smt = lambda t, ks: f'{SM} {V(56+4*t,4)}, {V(16+4*ks,4)}, {wreg[(t,ks)]}, v10'
        own, slow = mem_front(k, pp, w, fail, cfg, [smt(t, ks) for ks in (w, w + 4) for t in range(6)], list(range(56, 80)), *((kxdma, 3) if not cfg.get('kxlate', 1) else ()))
        slows.append(slow)
        if w == 0 or cfg.get('trace'): stamp(k, cfg, 0)
        rest = [ks for ks in range(8) if ks not in (w, w + 4)]
        order = [rest[:3] + [8] + rest[3:] + [9], rest[:2] + [8] + rest[2:5] + [9] + rest[5:], [8] + rest[:1] + [9] + rest[1:]]
        mats = []; items = []; idx = {}
        for n_, ks in enumerate(order[0]):
            it = dict(id=('A', ks), kind='n', lds=True, fn=f'ds_read_b128 {V(16+4*ks,4)}, v9 offset:{1024*ks}')
            items.append(it)
        for s_ in own: mats.append((s_, []))
        for pr in range(3):
            sq = [(t, ks) for ks in order[pr] for t in (2 * pr, 2 * pr + 1)]
            if pr == 2: sq = sq[:-6] + sq[-6::2] + sq[-5::2]
            for (t, ks) in sq:
                need = [('A', ks)] if pr == 0 else []
                if (t, ks) in ldsk[5:]: need = need + [('W', t, ks, 1)]
                idx[(t, ks)] = len(mats)
                mats.append((smt(t, ks), need))
        nsm = len(mats)
        endp = [idx[(2 * pr + 1, order[pr][-1])] for pr in range(3)]
        ev = []
        for i, key in enumerate(ldsk[5:]):
            for h_, f in enumerate(wload8(wm, key)):
                ev.append((max(idx[ldsk[i]], idx[key] - 16), dict(id=('W',) + key + (h_,), kind='n', lds=True, fn=f(RING[i % 5]), after=idx[ldsk[i]])))
        for pr in range(3):
            a = 56 + 8 * pr
            e0 = idx[(2 * pr, order[pr][-1])]
            if pr == 2 and w != 0:
                items.append(dict(id=('p', pr, 0), kind='v', fn=f'v_pk_add_f32 {V(a,2)}, {V(a,2)}, {V(a+2,2)}', states=(e0, 8), after=endp[pr]))
                items.append(dict(id=('p', pr, 1), kind='v', fn=f'v_pk_add_f32 {V(a+4,2)}, {V(a+4,2)}, {V(a+6,2)}', states=(endp[pr], 8)))
            else:
                items.append(dict(id=('p', pr, 0), kind='v', fn=f'v_add_f32 v{a}, v{a}, v{a+2}', states=(e0, 8), after=e0 + 1))
                items.append(dict(id=('p', pr, 5), kind='v', fn=f'v_add_f32 v{a+1}, v{a+1}, v{a+3}'))
                items.append(dict(id=('p', pr, 1), kind='v', fn=f'v_add_f32 v{a+4}, v{a+4}, v{a+6}', states=(endp[pr], 8)))
                items.append(dict(id=('p', pr, 6), kind='v', fn=f'v_add_f32 v{a+5}, v{a+5}, v{a+7}'))
            items.append(dict(id=('p', pr, 2), kind='v', fn=f'v_cvt_pk_bf16_f32 v124, v{a}, v{a+4}'))
            items.append(dict(id=('p', pr, 3), kind='v', fn=f'v_cvt_pk_bf16_f32 v125, v{a+1}, v{a+5}'))
            wgap = endp[pr] + (8 if pr < 2 else 4)
            ev.append((wgap, dict(id=('pw', pr), kind='n', lds=True, fn=f'ds_write2_b32 v{(120,126,127)[pr]}, v124, v125 offset0:0 offset1:4', order=[('p', pr, 3)], now=('p', pr, 3) if pr == 2 else None)))
        if cfg.get('kxlate', 1):
            kd = K(); sv = k.L; k.L = kd.L; kxdma(); k.L = sv
            for i_, t_ in enumerate(kd.L): ev.append((3 + (0, 0, 1, 2, 3, 4, 4, 6, 6, 7)[i_], dict(id=('kx', i_), kind='n', fn=t_.strip())))
        if cfg.get('tb', 0) and w == 1:
            ev.append((10, dict(id='tb0', kind='n', fn=f's_add_u32 s28, s40, {0x300000 - 0x20000:#x}')))
            ev.append((10, dict(id='tb1', kind='n', fn=f's_min_u32 s28, s28, {WS_BYTES - 0x60000:#x}')))
            ev.append((11, dict(id='tb2', kind='n', fn='buffer_load_dword v12, v13, s[8:11], s28 offen')))
        if cfg.get('pf', 1) and w >= 2:
            ev.append((10, dict(id='pf', kind='n', fn='buffer_load_dword v12, v13, s[8:11], s51 offen sc1')))
            ev.append((10, dict(id='pf2', kind='n', fn='s_add_u32 s50, s50, 1310720')))
            for i_, t_ in enumerate(wrap('s50', UF, 1310720).split('\n')): ev.append((11 + i_ // 2, dict(id=('pfw', i_), kind='n', fn=t_)))
        bx = endp[1] + cfg.get('bx', 14)
        bw = endp[0] + 15
        ev.append((bw, dict(id='barW', kind='bar', fn='s_barrier', deps=[('pw', 0)], after=bw, order=[('pw', 0)])))
        ev.append((bx, dict(id='barX', kind='bar', fn='s_barrier', deps=[('pw', 1)], after=bx, order=[('pw', 1)])))
        sm = [True] * nsm
        if w == 0:
            kko = [0, 3, 1, 4, 2, 5]
            kxo = [6 * kt + kk for kk in kko for kt in range(2)]
            kxr = [(16 + 4 * w, endp[0] + 1, None), (32 + 4 * w, endp[0] + 2, None), (56, endp[0] + 10, ('p', 0, 3)), (60, endp[0] + 11, ('p', 0, 3))] + \
                  [(16 + 4 * ks, idx[(5, ks)], None) for ks in order[2]]
            kxreg = {}
            for i, (r, g_, o_) in zip(kxo, kxr):
                kxreg[i] = r
                ev.append((g_, dict(id=('K', i), kind='n', lds=True, fn=f'ds_read_b128 {V(r,4)}, v0 offset:{1024*i}', after=g_, order=[o_] if o_ else [])))
            seq = []
            for kk in kko[:4]: seq += [('x0', kk), ('x1', kk), ('m', kk)]
            seq += [('m', 2), ('m', 5), ('x1', 2), ('x1', 5), ('x0', 2), ('x0', 5)]
            by = nsm + cfg.get('by', 8)
            FR = {0: 96, 3: 100, 1: 80, 4: 84, 2: 88, 5: 92}
            for kk in kko:
                bar, g_ = {0: ('barW', endp[1] + 9), 1: ('barX', bx), 2: ('barY', by)}[kk % 3]
                ev.append((g_ + 0.5, dict(id=('F', kk), kind='n', lds=True, order=[bar], fn=f'ds_read_b128 {V(FR[kk],4)}, v121 offset:{1088*kk}')))
            ev.append((by, dict(id='barY', kind='bar', fn='s_barrier', deps=[('pw', 2)], after=by, order=[('pw', 2)], glue=2)))
            started = set()
            for j_, (ty, kk) in enumerate(seq):
                F = V(FR[kk], 4); d_ = {'x0': 'v[64:67]', 'x1': 'v[68:71]', 'm': 'v[116:119]'}[ty]
                c_ = d_ if ty in started else ('v[12:15]' if ty == 'm' else '0'); started.add(ty)
                i_ = kk + (6 if ty == 'x1' else 0)
                need = [('F', kk)] + ([] if ty == 'm' else [('K', i_)])
                if j_ == 0: need = [('F', 0), ('F', 3), ('K', 0), ('K', 6), ('K', 3), ('K', 9)]
                if j_ == 6: need = [('F', 1), ('F', 4), ('K', 1), ('K', 7), ('K', 4), ('K', 10)]
                mats.append((f'{MF} {d_}, {F if ty == "m" else V(kxreg[i_],4)}, {F}, {c_}', need))
                sm.append(False)
            lm = nsm + 13
            UP = 'row_ror:8 row_mask:0xf bank_mask:0xc'
            items.append(dict(id='c0', kind='v', fn='v_max3_f32 v72, v116, v117, v118', states=(lm, 8), after=lm))
            items.append(dict(id='c1', kind='v', fn='v_max_f32 v72, v72, v119'))
            items.append(dict(id='c2', kind='v', fn=f'v_mov_b32_dpp v116, v118 {UP}'))
            items.append(dict(id='c3', kind='v', fn=f'v_mov_b32_dpp v117, v119 {UP}'))
            items.append(dict(id='c4', kind='v', fn='v_max3_f32 v72, v72, v68, v69', states=(nsm + 15, 8)))
            items.append(dict(id='c5', kind='v', fn='v_max3_f32 v72, v72, v70, v71'))
            items.append(dict(id='c6', kind='v', fn='v_max3_f32 v72, v72, v64, v65', states=(nsm + 17, 8)))
        else:
            ev.append((nsm + 99, dict(id='barY', kind='bar', fn='s_barrier', deps=[('pw', 2)], order=[('pw', 2)])))
            if w == 3 and h1n < 0:
                g_ = {-1: nsm + 100, -2: nsm + 98}.get(h1n, nsm + 2 + h1n)
                ev.append((g_, dict(id='hu1', kind='n', fn='buffer_store_dword v15, v123, s[8:11], s52 offen sc1')))
        for i_, g_ in enumerate(cfg.get('hprof', ())):
            if g_ < len(mats): ev.append((g_ - 0.01, dict(id=('hp', i_), kind='n', fn=f's_memtime s[{62+2*i_}:{63+2*i_}]', after=g_)))
        ev.sort(key=lambda x: x[0])
        for g_, it in ev:
            it['after'] = max(it.get('after', -1), min(int(g_), len(mats)) if g_ < len(mats) else len(mats))
            items.append(it)
        sched(k, mats, items, sm, pre_n=4)
        if w == 0 or cfg.get('trace'): stamp(k, cfg, 1)
    def loop_end(pp):
        if not pp.endswith('w3'): trace_out(k, cfg, 56)
        k(f"""
        s_add_u32 s22, s22, 1
        s_cmp_lt_u32 s22, 64
        s_cbranch_scc1 {pp}_loop
        s_branch {end}""")
    k.label(f'{p}_w0')
    k(f"""
    s_mul_i32 s28, s20, 640
    v_and_b32 v12, 7, v1
    v_lshlrev_b32 v12, 4, v12
    v_lshl_add_u32 v122, v13, 7, v12
    v_lshrrev_b32 v14, 3, v11
    v_lshl_add_u32 v122, v14, 3, v122
    v_add_u32 v122, s28, v122
    v_lshl_add_u32 v123, v14, 2, v12
    v_and_b32 v14, 1, v13
    v_lshl_add_u32 v123, v14, 3, v123
    s_add_u32 s28, s28, 512
    v_add_u32 v123, s28, v123""")
    v_mbmap(k, 122, 12); v_mbmap(k, 123, 12)
    k(f"""
    v_cmp_lt_u32 s[44:45], 1, v13
    v_mov_b32 v12, {BIG:#x}
    v_cmp_lt_u32 vcc, 1, v13
    v_mov_b32 v1, {SCL!r}
    s_nop 0
    v_cndmask_b32 v123, v12, v123, vcc
    v_mov_b32 v12, 0xff800000
    v_cndmask_b32_e64 v12, v12, 0, vcc
    v_mov_b32 v13, v12
    v_mov_b32 v14, v12
    v_mov_b32 v15, v12
    s_mov_b32 s42, {SCL!r}
    s_mov_b32 s43, {SCL!r}""")
    k.label(f'{p}_w0_loop')
    main(f'{p}_w0', 0)
    UP = 'row_ror:8 row_mask:0xf bank_mask:0xc'
    HUS = 'buffer_store_dword v11, v1, s[8:11], s52 offen sc1'
    NEG = 'op_sel_hi:[1,1,0] neg_lo:[0,0,1] neg_hi:[0,0,1]'
    k(f"""
    v_max3_f32 v72, v72, v66, v67
    v_mov_b32 v73, v72
    v_mov_b32_dpp v64, v68 {UP}
    v_mov_b32_dpp v65, v69 {UP}
    v_permlane32_swap_b32 v72, v73
    v_max_f32 v72, v72, v73
    v_mov_b32 v73, v72
    v_mov_b32_dpp v66, v70 {UP}
    v_mov_b32_dpp v67, v71 {UP}
    v_permlane16_swap_b32 v72, v73
    v_max_f32 v72, v72, v73
    v_mul_f32 v74, v72, v1
    v_xor_b32 v0, 16384, v0
    v_mul_f32_dpp v74, v72, v1 {UP}
    v_pk_fma_f32 v[64:65], v[64:65], s[42:43], v[74:75] {NEG}
    v_pk_fma_f32 v[66:67], v[66:67], s[42:43], v[74:75] {NEG}
    v_pk_fma_f32 v[116:117], v[116:117], s[42:43], v[74:75] {NEG}
    v_exp_f32 v64, v64
    v_exp_f32 v65, v65
    v_exp_f32 v66, v66
    v_exp_f32 v67, v67
    v_exp_f32 v116, v116
    v_exp_f32 v117, v117
    v_pk_add_f32 v[72:73], v[64:65], v[66:67]
    v_pk_add_f32 v[72:73], v[72:73], v[116:117]
    v_add_f32 v72, v72, v73
    s_nop 0
    s_nop 0
    v_add_f32_dpp v72, v72, v72 row_ror:8 row_mask:0xf bank_mask:0xf""")
    xlane(k, 'v_add_f32', 72, 73)
    k(f"""
    v_rcp_f32 v72, v72
    s_nop 0
    v_pk_mul_f32 v[64:65], v[64:65], v[72:73] op_sel_hi:[1,0]
    v_pk_mul_f32 v[66:67], v[66:67], v[72:73] op_sel_hi:[1,0]
    v_cvt_pk_bf16_f32 v74, v64, v65
    v_cvt_pk_bf16_f32 v75, v66, v67
    buffer_store_dwordx2 v[74:75], v122, s[8:11], s41 offen sc1
    v_pk_mul_f32 v[116:117], v[116:117], v[72:73] op_sel_hi:[1,0]
    v_cvt_pk_bf16_f32 v76, v116, v117
    buffer_store_dword v76, v123, s[8:11], s41 offen sc1""")
    stamp(k, cfg, 2)
    loop_end(f'{p}_w0')
    k.label(f'{p}_w1')
    k(f"""
    v_mov_b32 v123, v122
    v_lshlrev_b32 v12, 4, v11
    v_lshl_add_u32 v122, v13, 7, v12
    v_subrev_u32 v122, 128, v122
    v_mov_b32 v12, {BIG:#x}
    v_cmp_lt_u32 vcc, 7, v11
    s_nop 1
    v_cndmask_b32 v122, v12, v122, vcc
    v_cmp_gt_u32 vcc, {FW}, v1
    v_lshl_add_u32 v123, v1, 2, v123
    s_nop 0
    v_cndmask_b32 v123, v12, v123, vcc
    v_mov_b32 v14, 1
    v_mov_b32 v13, 0
    s_mul_i32 s42, s20, 3072
    s_add_u32 s42, s42, {KM:#x}
    s_add_u32 s43, s56, {FKM:#x}""")
    k.label(f'{p}_w1_loop')
    main(f'{p}_w1', 1)
    delay(k, cfg.get('kmdelay', 0))
    tk = []
    for kk in range(6):
        tk.append(k.lds(f'ds_read_b128 {V(88+4*kk,4)}, v121 offset:{1088*kk}'))
    for kk in range(6):
        k.wl(tk[kk])
        k(f'buffer_store_dwordx4 {V(88+4*kk,4)}, v122, s[8:11], s42 offen offset:{512*kk} sc1')
    k(f"""
    s_waitcnt vmcnt(0)
    buffer_store_dword v14, v123, s[8:11], s43 offen sc1
    s_add_u32 s42, s42, 98304
    s_add_u32 s43, s43, 4096""")
    loop_end(f'{p}_w1')
    k.label(f'{p}_w2')
    pf_setup(k, 50, 2, 0, cfg)
    k('v_lshlrev_b32 v13, 7, v1')
    k.label(f'{p}_w2_loop')
    k(f's_add_u32 s43, s43, 4096')
    k(f's_min_u32 s43, s43, {FQK + 63*4096:#x}')
    k(f's_cmp_eq_u32 s22, 0\ns_cbranch_scc1 {p}_w2_go\ns_cmp_lg_u32 s22, 1\ns_cbranch_scc1 {p}_w2_n1\ns_sub_u32 s44, s43, 4096')
    poll_flag(k, f'{p}_w2_f1', 122, 's44', 16, fail, sleep=2)
    k(f's_mul_i32 s28, s20, 24576\ns_add_u32 s28, s28, {QF + 12288 + 786432:#x}')
    for j in range(3):
        k(f's_mov_b32 m0, {KXB + 16384 + 4096*j}\ns_add_u32 s29, s28, {4096*j}')
        for i in range(4): k(f'buffer_load_dwordx4 v2, s[8:11], s29 offen offset:{1024*i} sc1 lds')
    k.label(f'{p}_w2_n1')
    poll_flag(k, f'{p}_w2_fl', 122, 's43', 16, fail, sleep=2)
    k.label(f'{p}_w2_go')
    main(f'{p}_w2', 2)
    loop_end(f'{p}_w2')
    k.label(f'{p}_w3')
    k(f"""
    s_cmp_eq_u32 s20, {cfg.get('ref1', 0)}
    s_cselect_b32 s28, {cfg.get('nl', 16)}, 0
    v_cmp_gt_u32 vcc, s28, v1
    v_mul_u32_u24 v14, {cfg.get('lstride', 256)}, v1
    v_add_u32 v14, {HU1:#x}, v14
    v_mov_b32 v12, {BIG:#x}
    v_cndmask_b32 v123, v12, v14, vcc
    v_mov_b32 v15, -1
    v_lshlrev_b32 v13, 7, v1""")
    pf_setup(k, 50, 2, 1, cfg)
    k.label(f'{p}_w3_loop')
    main(f'{p}_w3', 3)
    loop_end(f'{p}_w3')
    for f in slows: f()

def gen_z(k, p, end, fail, cfg):
    keys = [('v', t, ks) for ks in range(10) for t in range(3)] + [('o', ci, ks) for ci in range(10) for ks in range(3)]
    l1 = [('v', 0, 8), ('v', 0, 9), ('v', 1, 8), ('v', 2, 8), ('v', 1, 9)]
    l2 = [('o', 1, 2), ('o', 3, 0), ('o', 4, 1), ('o', 5, 2), ('o', 7, 0), ('o', 8, 1), ('o', 9, 2)]
    wm = Wmap(keys, 8, set(l1 + l2))
    role_common(k, ('Wv', 'Wo'))
    gen_loader(k, 'VO', True, wm)
    ustamp(k, cfg, 5)
    k(f'v_cmp_ne_u32 vcc, 0, v20\ns_cbranch_vccz {p}_sl')
    rot_check(k, 23)
    sel_from(k, cfg, 20)
    k(f's_branch {p}_sk')
    k.label(f'{p}_sl')
    load_sel(k, cfg)
    k.label(f'{p}_sk')
    MEMB = 98304; VT = MEMB + 10240
    RING = [108, 116]
    hu = cfg.get('hu', 1)
    memaddr_setup(k, MEMB)
    def plane(d, c, t):
        k(f"""
        v_mul_u32_u24 v{d}, 768, v{c}
        v_and_b32 v{t}, 1, v{c}
        v_lshl_add_u32 v{d}, v{t}, 5, v{d}
        v_lshrrev_b32 v{t}, 1, v{c}
        v_lshl_add_u32 v{d}, v{t}, 7, v{d}""")
    k('v_and_b32 v11, 15, v1\nv_lshrrev_b32 v16, 4, v1\nv_and_b32 v17, 3, v1')
    plane(12, 16, 18); plane(14, 17, 18)
    k(f"""
    v_lshl_add_u32 v12, v11, 2, v12
    s_mul_i32 s28, s21, 192
    s_add_u32 s28, s28, {VT}
    v_add_u32 v12, s28, v12
    v_lshl_add_u32 v14, v16, 6, v14
    v_bfe_u32 v18, v1, 2, 2
    v_lshl_add_u32 v14, v18, 3, v14
    v_add_u32 v14, {VT}, v14
    v_lshlrev_b32 v15, 4, v11
    v_lshrrev_b32 v18, 1, v16
    v_lshl_add_u32 v15, v18, 3, v15
    v_and_b32 v18, 1, v16
    v_lshl_add_u32 v15, v18, 16, v15
    s_lshl_b32 s28, s20, 8
    s_lshl_b32 s42, s21, 14
    s_add_u32 s42, s42, s28
    s_add_u32 s42, s42, {ZM:#x}
    v_lshlrev_b32 v13, 7, v1
    s_add_u32 s30, s21, 15""")
    pf_setup(k, 44, 3, 's30', cfg)
    k(f"""
    s_mov_b32 s22, 0
    s_cmp_eq_u32 s21, 0
    s_cbranch_scc1 {p}_w0_loop
    s_cmp_eq_u32 s21, 1
    s_cbranch_scc1 {p}_w1_loop
    s_cmp_eq_u32 s21, 2
    s_cbranch_scc1 {p}_w2_loop
    s_branch {p}_w3_loop""")
    slows = []
    for w in range(4):
        pp = f'{p}_w{w}'
        k.label(f'{pp}_loop')
        for i in range(52): k(f'v_mov_b32 v{56+i}, 0')
        for i, key in enumerate(l1[:2]):
            for f in wload8(wm, key): k.lds(f(RING[i]))
        k('s_sub_u32 s46, s22, 1')
        region(k, 40, 's46')
        zregion(k, 43, 42)
        k(f's_cmp_lt_u32 s22, s54\ns_cselect_b32 s45, {XN:#x}, s44')
        for pr in range(1, 5): k(f's_add_u32 s{47+pr}, s43, {131072*pr}')
        k.wl_all()
        if hu and w < cfg.get('nref2', 1):
            k('s_sub_u32 s46, s22, 1')
            delay(k, cfg.get('zpre', 0))
            hu_wait(k, pp, HU2, 's46', 52 - 4 * (w == 0) * 8, fail, cfg, w)
            delay(k, cfg.get('d2', 0))
        k('s_barrier')
        if cfg.get('trace'): stamp(k, cfg, 4); k('s_memtime s[66:67]')
        wreg = {key: R(wm.loc[key], 8) for key in wm.loc}
        for i, key in enumerate(l1): wreg[key] = V(RING[i % 2], 8)
        smt = lambda t, ks: f'{SM} {V(56+4*t,4)}, {V(16+4*ks,4)}, {wreg[("v",t,ks)]}, v10'
        own, slow = mem_front(k, pp, w, fail, cfg, [smt(t, ks) for ks in (w, w + 4) for t in range(3)], list(range(56, 68)))
        slows.append(slow)
        stamp(k, cfg, 0)
        rest = [ks for ks in range(8) if ks not in (w, w + 4)]
        o0 = rest[:1] + [8] + rest[1:3] + [9] + rest[3:]
        o1 = rest[:2] + [8] + rest[2:5] + [9] + rest[5:]
        mats = []; items = []; idx = {}; ev = []
        for ks in o0:
            items.append(dict(id=('A', ks), kind='n', lds=True, fn=f'ds_read_b128 {V(16+4*ks,4)}, v9 offset:{1024*ks}'))
        for s_ in own: mats.append((s_, []))
        for ks in o0:
            idx[('v', 0, ks)] = len(mats); mats.append((smt(0, ks), [('A', ks)]))
        sq = [(t, ks) for ks in o1 for t in (1, 2)]
        sq = sq[:-6] + sq[-6::2] + sq[-5::2]
        for (t, ks) in sq:
            key = ('v', t, ks)
            idx[key] = len(mats); mats.append((smt(t, ks), [('W',) + key + (1,)] if key in l1[2:] else []))
        n1 = len(mats)
        for i, key in enumerate(l1[2:]):
            for h_, f in enumerate(wload8(wm, key)):
                ev.append((idx[l1[i]], dict(id=('W',) + key + (h_,), kind='n', lds=True, fn=f(RING[i % 2]))))
        ends = [idx[('v', 0, o0[-1])], n1 - 4, n1 - 1]
        items.append(dict(id=('p', 0, 0), kind='v', fn='v_add_f32 v56, v56, v58', states=(ends[0], 8), after=ends[0]))
        items.append(dict(id=('p', 0, 5), kind='v', fn='v_add_f32 v57, v57, v59'))
        items.append(dict(id=('p', 0, 1), kind='v', fn='v_cvt_pk_bf16_f32 v124, v56, v57'))
        ev.append((ends[0] + 7, dict(id=('pw', 0), kind='n', lds=True, fn='ds_write_b32 v12, v124', order=[('p', 0, 1)])))
        items.append(dict(id=('p', 1, 0), kind='v', fn='v_pk_add_f32 v[60:61], v[60:61], v[62:63]', states=(ends[1], 8), after=n1))
        items.append(dict(id=('p', 1, 1), kind='v', fn='v_cvt_pk_bf16_f32 v125, v60, v61'))
        items.append(dict(id=('p', 2, 0), kind='v', fn='v_pk_add_f32 v[64:65], v[64:65], v[66:67]', states=(ends[2], 8)))
        items.append(dict(id=('p', 2, 1), kind='v', fn='v_cvt_pk_bf16_f32 v126, v64, v65'))
        done = {w, w + 4}; freed = []
        for ks in o1:
            done.add(ks)
            for j in range(5):
                if j not in [x[0] for x in freed] and 2 * j in done and 2 * j + 1 in done: freed.append((j, idx[('v', 2, ks)]))
        dst = sorted([(g_, 16 + 8 * j) for j, g_ in freed] + [(idx[l1[4]], RING[0]), (idx[l1[3]], RING[1])])
        for key, (g_, r) in zip(l2, dst):
            wreg[key] = V(r, 8)
            for h_, f in enumerate(wload8(wm, key)):
                ev.append((g_, dict(id=('W',) + key + (h_,), kind='n', lds=True, fn=f(r))))
        if cfg.get('tb', 0) and w == 0:
            ev.append((7, dict(id='tb0', kind='n', fn=f's_add_u32 s28, s40, {0x300000 - 0x20000:#x}')))
            ev.append((8, dict(id='tb1', kind='n', fn=f's_min_u32 s28, s28, {WS_BYTES - 0x60000:#x}')))
            ev.append((9, dict(id='tb2', kind='n', fn='buffer_load_dword v127, off, s[8:11], s28')))
        if cfg.get('pf', 1) and w >= 1:
            ev.append((8, dict(id='pf', kind='n', fn='buffer_load_dword v127, v13, s[8:11], s45 offen sc1')))
            ev.append((9, dict(id='pf2', kind='n', fn='s_add_u32 s44, s44, 1310720')))
            for i_, t_ in enumerate(wrap('s44', UF, 1310720).split('\n')): ev.append((9 + i_ // 2, dict(id=('pfw', i_), kind='n', fn=t_)))
        ev.append((n1 + 50, dict(id=('pw', 1), kind='n', lds=True, fn='ds_write2_b32 v12, v125, v126 offset0:16 offset1:32', order=[('p', 2, 1)])))
        ev.sort(key=lambda x: x[0])
        for g_, it in ev:
            it['after'] = min(g_, n1); items.append(it)
        sched(k, mats, items, [True] * n1, pre_n=4)
        k.wl_all()
        k('s_barrier')
        stamp(k, cfg, 1)
        mats = []; items = []
        for ks in range(3):
            for u in range(2):
                items.append(dict(id=('AV', ks, u), kind='n', lds=True, fn=f'ds_read_b64_tr_b16 {V(56+4*ks+2*u,2)}, v14 offset:{(64*ks+8*u)*4}'))
        for it in items: it['t'] = k.lds(it['fn'])
        tks = {ks: items[2 * ks + 1]['t'] for ks in range(3)}
        items = []
        for pr in range(5):
            for ci in (2 * pr, 2 * pr + 1):
                for ks in range(3):
                    pre_ = f's_waitcnt lgkmcnt({4 - 2*ks})\n' if pr == 0 and ci == 0 else ''
                    mats.append((pre_ + f'{SM} {V(68+4*ci,4)}, {V(56+4*ks,4)}, {wreg[("o",ci,ks)]}, v10', []))
            a = 68 + 8 * pr; e_ = 6 * pr + 5
            if pr >= cfg.get('zpk', 4):
                items.append(dict(id=('q', pr, 0), kind='v', fn=f'v_pk_add_f32 {V(a,2)}, {V(a,2)}, {V(a+2,2)}', states=(e_ - 3, 8), after=e_ - 2))
                items.append(dict(id=('q', pr, 2), kind='v', fn=f'v_cvt_pk_bf16_f32 v{a+2}, v{a}, v{a+1}'))
                items.append(dict(id=('q', pr, 1), kind='v', fn=f'v_pk_add_f32 {V(a+4,2)}, {V(a+4,2)}, {V(a+6,2)}', states=(e_, 8)))
            else:
                items.append(dict(id=('q', pr, 0), kind='v', fn=f'v_add_f32 v{a}, v{a}, v{a+2}', states=(e_ - 3, 8), after=e_ - 2))
                items.append(dict(id=('q', pr, 6), kind='v', fn=f'v_add_f32 v{a+1}, v{a+1}, v{a+3}'))
                items.append(dict(id=('q', pr, 2), kind='v', fn=f'v_cvt_pk_bf16_f32 v{a+2}, v{a}, v{a+1}'))
                items.append(dict(id=('q', pr, 1), kind='v', fn=f'v_add_f32 v{a+4}, v{a+4}, v{a+6}', states=(e_, 8)))
                items.append(dict(id=('q', pr, 7), kind='v', fn=f'v_add_f32 v{a+5}, v{a+5}, v{a+7}'))
            items.append(dict(id=('q', pr, 3), kind='v', fn=f'v_cvt_pk_bf16_f32 v{a+3}, v{a+4}, v{a+5}'))
            items.append(dict(id=('q', pr, 4), kind='v2', fn=f'v_permlane16_swap_b32 v{a+2}, v{a+3}', states=(('q', pr, 3), 2)))
            items.append(dict(id=('q', pr, 5), kind='n', fn=f'buffer_store_dwordx2 {V(a+2,2)}, v15, s[8:11], {"s43" if pr == 0 else "s%d" % (47+pr)} offen sc1', order=[('q', pr, 4)]))
        for pr in range(4):
            i_ = [j for j, it in enumerate(items) if it['id'] == ('q', pr, 4)][0]
            j_ = [j for j, it in enumerate(items) if it['id'] == ('q', pr + 1, 0)][0]
            items.insert(j_, items.pop(i_))
        k.ld = k.lc
        sched(k, mats, items, [True] * 30)
        stamp(k, cfg, 2)
        trace_out(k, cfg, 56)
        k(f"""
        s_add_u32 s22, s22, 1
        s_cmp_lt_u32 s22, 64
        s_cbranch_scc1 {pp}_loop
        s_branch {end}""")
    for f in slows: f()

def gen_c(k, p, end, fail, cfg):
    load_sel(k, cfg)
    RED = 0
    k(f"""
    v_lshlrev_b32 v2, 4, v1
    v_and_b32 v4, 7, v1
    v_bfe_u32 v5, v1, 3, 1
    v_lshrrev_b32 v6, 4, v1
    s_mul_i32 s28, s21, 5120
    v_mul_u32_u24 v7, 640, v5
    v_lshl_add_u32 v7, v6, 7, v7
    v_lshl_add_u32 v7, v4, 4, v7
    v_add_u32 v7, s28, v7""")
    for t in range(4):
        k(f'v_add_u32 v{16+t}, {1280*t}, v7')
    k(f"""
    v_lshl_add_u32 v7, v5, 2, v6
    v_mul_u32_u24 v7, 640, v7
    v_lshl_add_u32 v7, v4, 4, v7
    s_add_u32 s28, s28, 512
    v_add_u32 v20, s28, v7""")
    for t in range(5): v_mbmap(k, 16 + t, 7)
    k(f"""
    s_lshl_b32 s28, s21, 10
    v_lshlrev_b32 v21, 7, v4
    v_add_u32 v21, s28, v21
    v_lshlrev_b32 v28, 5, v6
    v_bfe_u32 v7, v1, 2, 1
    v_lshl_add_u32 v28, v7, 4, v28
    v_lshl_add_u32 v28, v5, 9, v28
    v_bfe_u32 v7, v1, 1, 1
    v_lshl_add_u32 v28, v7, 8, v28
    v_and_b32 v7, 1, v1
    v_lshl_add_u32 v28, v7, 3, v28
    v_lshlrev_b32 v22, 2, v1
    s_lshl_b32 s28, s20, 8
    s_add_u32 s28, s28, {M_OFF}
    v_add_u32 v22, s28, v22""")
    v_mbmap(k, 22, 7)
    k(f"""
    v_mov_b32 v7, {BIG:#x}
    v_cmp_ne_u32 s[44:45], 0, v5
    s_nop 1
    s_lshl_b32 s28, s21, 10
    v_add_u32 v23, s28, v2
    s_lshl_b32 s42, s20, 15
    s_lshl_b32 s28, s21, 13
    s_add_u32 s42, s42, s28
    s_add_u32 s42, s42, {UF:#x}
    s_lshl_b32 s48, s20, 14
    s_lshl_b32 s28, s21, 11
    s_add_u32 s48, s48, s28
    s_add_u32 s48, s48, {ZM:#x}
    v_mul_u32_u24 v26, {cfg.get('lstride', 256)}, v1
    v_add_u32 v26, {HU2:#x}, v26
    s_cmp_eq_u32 s20, {cfg.get('ref2', 0)}
    s_cselect_b32 s28, {cfg.get('nl', 16)}, 0
    s_cmp_eq_u32 s21, {cfg.get('huwave', 1)}
    s_cselect_b32 s28, s28, 0
    v_cmp_gt_u32 vcc, s28, v1
    s_nop 1
    v_cndmask_b32 v26, v7, v26, vcc
    s_mov_b32 s46, {FU:#x}
    s_mov_b32 s22, 0""")
    hupos = cfg.get('hupos', 9)
    hu = cfg.get('hu', 0 if cfg.get('hu') == 0 else 1)
    reg = lambda j: 64 + 4 * j
    def ld(j):
        if j < 2: k(f'buffer_load_dwordx4 {V(reg(j),4)}, v2, s[8:11], s43 offen offset:{1024*j} sc1')
        else:     k(f'buffer_load_dwordx4 {V(reg(j),4)}, v{14+j}, s[8:11], s40 offen sc1')
    UB = 8192
    k(f"""
    v_and_b32 v21, 31, v1
    v_lshlrev_b32 v21, 7, v21
    v_mov_b32 v25, 0
    s_lshl_b32 s28, s21, 13
    s_sub_u32 s42, s42, s28
    s_add_u32 s28, s28, {UB}
    v_add_u32 v3, s28, v2
    s_mul_i32 s50, s21, 11264
    s_min_u32 s50, s50, {21*1024}
    s_add_u32 s42, s42, s50
    s_add_u32 s50, s50, {UB}""")
    k.label(f'{p}_loop')
    zregion(k, 43, 48)
    region(k, 40, 's22')
    k(f'v_mov_b32 v27, s22\ns_cmp_eq_u32 s21, 3\ns_cbranch_scc1 {p}_w3\n' + ('' if cfg.get('ctrig', 1) else 's_waitcnt vmcnt(0)\n') + 's_barrier')
    for j in range(3):
        k(f's_add_u32 m0, s50, {4096*j}\ns_add_u32 s28, s42, {4096*j}')
        for i in range(4 if j < 2 else 3):
            k(f'buffer_load_dwordx4 v2, s[8:11], s28 offen offset:{1024*i} sc1 lds')
    k('s_add_u32 s42, s42, 1310720')
    k(wrap('s42', UF, 1310720))
    k('s_waitcnt vmcnt(0)')
    if cfg.get('trace'): stamp(k, cfg, 0)
    k(f's_branch {p}_go')
    k.label(f'{p}_w3')
    k('s_sub_u32 s47, s22, 1')
    if cfg.get('ctrig', 1): hu_wait(k, p + '_g', HU2, 's47', 108, fail, dict(cfg, depth=cfg.get('tdepth', 2)))
    k(f'v_cmp_eq_u32 vcc, 0, v25\ns_cbranch_vccz {p}_fk')
    poll_flag(k, f'{p}_fl', 21, 's46', 24, fail, sleep=2)
    k(f's_branch {p}_tg')
    k.label(f'{p}_fk')
    for i in range(cfg.get('textra', 1)):
        k('buffer_load_dword v109, v108, s[8:11], s52 offen sc1\ns_waitcnt vmcnt(0)')
    k.label(f'{p}_tg')
    k(f"""
    s_barrier
    s_add_u32 s46, s46, 4096
    buffer_load_dword v25, v21, s[8:11], s46 offen sc1
    s_add_u32 s28, s40, {0x100000 - 0x20000:#x}
    {'buffer_load_dword v29, off, s[8:11], s28' if cfg.get('tb', 0) else ''}
    s_cmp_lg_u32 s22, 0
    s_cbranch_scc1 {p}_n0
    s_add_u32 s47, s56, {FKM:#x}""")
    poll_flag(k, f'{p}_f0', 21, 's47', 24, fail, sleep=2)
    k.label(f'{p}_n0')
    hu_wait(k, p, HU1, 's22', 108, fail, cfg)
    k.label(f'{p}_go')
    k('s_barrier')
    stamp(k, cfg, 4)
    def cp(pos):
        if pos in cfg.get('cprof', ()):
            i_ = cfg['cprof'].index(pos); k(f's_memtime s[{62+2*i_}:{63+2*i_}]')
    if cfg.get('cprof'): k('s_memtime s[60:61]')
    k('s_mov_b32 s39, 1')
    def rnd(first):
        for j in range(7):
            ld(j)
            if first and j in cfg.get('cbar', (1, 2, 3, 4, 5)): k('s_barrier')
        if not first:
            k('s_mov_b64 exec, -1')
            tmo(k, fail)
        extra = 0
        def huf(pos):
            nonlocal extra
            if first and hu and pos == hupos:
                k('buffer_store_dword v27, v26, s[8:11], s52 offen sc1'); extra += 1
            if first and hu and pos + 20 == hupos:
                k('s_barrier')
                k('buffer_store_dword v27, v26, s[8:11], s52 offen sc1'); extra += 1
        huf(-1)
        if first:
            for i in range(8): k(f'ds_read_b128 {V(32+4*i,4)}, v3 offset:{1024*i}')
        k(f's_waitcnt vmcnt({5+extra}) lgkmcnt(0)')
        huf(0)
        if first: cp(0)
        maxtree(k, 24, list(range(64, 72)))
        for t in range(5):
            k(f's_waitcnt vmcnt({4-t+extra})')
            huf(t + 1)
            if first: cp(t + 1)
            b = 72 + 4 * t
            a0, a1 = (32 + 8 * t, 36 + 8 * t) if t < 4 else (64, 68)
            k(f'{MF} v[8:11], {V(a0,4)}, {V(b,4)}, {"0" if t == 0 else "v[8:11]"}')
            k(f'v_max3_u32 v24, v24, v{b}, v{b+1}')
            k(f'{MF} v[12:15], {V(a1,4)}, {V(b,4)}, {"0" if t == 0 else "v[12:15]"}')
            k(f'v_max3_u32 v24, v24, v{b+2}, v{b+3}')
        k('v_cmp_eq_u32 vcc, -1, v24')
    def fold():
        k.nop(6)
        for i in range(4):
            k(f'v_add_f32_dpp v{8+i}, v{12+i}, v{8+i} row_ror:8 row_mask:0xf bank_mask:0xf')
        k(f'ds_write_b128 v23, v[8:11] offset:{RED}')
    rnd(True)
    fold()
    cp(6)
    k(f's_cbranch_vccnz {p}_retry')
    k.label(f'{p}_ok')
    stamp(k, cfg, 1)
    if hu and hupos == 7: k('buffer_store_dword v27, v26, s[8:11], s52 offen sc1')
    if hu and hupos == 9: k('s_barrier\nbuffer_store_dword v27, v26, s[8:11], s52 offen sc1')
    k(f"""
    s_cmp_lg_u32 s21, 0
    s_waitcnt lgkmcnt(0)
    s_barrier""")
    cp(7)
    k(f"""
    s_cbranch_scc1 {p}_nx
    ds_read_b64 v[96:97], v28 offset:{RED}
    ds_read_b64 v[98:99], v28 offset:{RED + 1024}
    ds_read_b64 v[100:101], v28 offset:{RED + 2048}
    ds_read_b64 v[102:103], v28 offset:{RED + 3072}
    s_waitcnt lgkmcnt(2)
    v_pk_add_f32 v[96:97], v[96:97], v[98:99]
    s_waitcnt lgkmcnt(0)
    v_pk_add_f32 v[100:101], v[100:101], v[102:103]
    v_pk_add_f32 v[96:97], v[96:97], v[100:101]
    v_cvt_pk_bf16_f32 v8, v96, v97
    buffer_store_dword v8, v22, s[8:11], s40 offen sc1""")
    cp(8)
    stamp(k, cfg, 2)
    k.label(f'{p}_nx')
    if hu and hupos == 8: k('buffer_store_dword v27, v26, s[8:11], s52 offen sc1')
    if cfg.get('stamp') is not None: k('s_add_u32 s58, s58, s39')
    if cfg.get('trace'): k('s_mov_b32 s59, s39')
    trace_out(k, cfg, 116)
    k(f"""
    s_add_u32 s22, s22, 1
    s_cmp_lt_u32 s22, 63
    s_cbranch_scc1 {p}_loop""")
    k(f's_branch {end}')
    k.label(f'{p}_retry')
    k('s_mov_b64 exec, vcc')
    rnd(False)
    k(f's_cbranch_vccnz {p}_retry')
    fold()
    k(f's_branch {p}_ok')

def poll_flag(k, lab, vaddr, sreg, tmp, fail, sleep=0, slow=None):
    k('s_mov_b32 s39, 0')
    k.label(lab)
    k(f'buffer_load_dword v{tmp}, v{vaddr}, s[8:11], {sreg} offen sc1')
    tmo(k, fail)
    k(f's_waitcnt vmcnt(0)')
    k(f'v_cmp_eq_u32 vcc, 0, v{tmp}')
    if sleep:
        k(f's_cbranch_vccz {lab}_ok')
        k(f's_sleep {sleep}')
        if slow: k(f's_cmp_ge_i32 s22, {slow[0]}\ns_cbranch_scc1 {lab}\ns_sleep {slow[1]}')
        k(f's_branch {lab}')
        k.label(lab + '_ok')
    else:
        k(f's_cbranch_vccnz {lab}')

def softmax_regs(k, regs, t0):
    n = len(regs)
    k(f'v_max3_f32 v{t0}, v{regs[0]}, v{regs[1]}, v{regs[2]}')
    i = 3
    while i + 1 < n:
        k(f'v_max3_f32 v{t0}, v{t0}, v{regs[i]}, v{regs[i+1]}'); i += 2
    if i < n: k(f'v_max_f32 v{t0}, v{t0}, v{regs[i]}')
    xlane(k, 'v_max_f32', t0, t0 + 1)
    k(f'v_mul_f32 v{t0}, s42, v{t0}')
    for r in regs: k(f'v_fma_f32 v{r}, v{r}, s42, -v{t0}')
    for r in regs: k(f'v_exp_f32 v{r}, v{r}')
    k(f'v_pk_add_f32 {V(t0,2)}, {V(regs[0],2)}, {V(regs[2],2)}')
    for i in range(4, n, 2): k(f'v_pk_add_f32 {V(t0,2)}, {V(t0,2)}, {V(regs[i],2)}')
    k(f'v_add_f32 v{t0}, v{t0}, v{t0+1}')
    xlane(k, 'v_add_f32', t0, t0 + 1)
    k(f'v_rcp_f32 v{t0}, v{t0}')
    k('s_nop 0')
    for i in range(0, n, 2):
        k(f'v_pk_mul_f32 {V(regs[i],2)}, {V(regs[i],2)}, {V(t0,2)} op_sel_hi:[1,0]')

def gen_x(k, p, end, fail, cfg):
    k(f"""
    s_and_b32 s31, s20, 4
    s_add_u32 s31, s31, s21
    s_and_b32 s32, s20, 3
    s_lshl_b32 s30, s31, 2
    s_add_u32 s30, s30, s32
    v_lshlrev_b32 v2, 4, v1
    v_and_b32 v4, 15, v1
    v_lshrrev_b32 v5, 4, v1
    s_lshl_b32 s28, s30, 7
    v_mov_b32 v6, s28
    v_mov_b32 v7, {BIG:#x}
    v_cmp_gt_u32 vcc, {FW}, v1
    v_lshl_add_u32 v8, v1, 2, v6
    s_nop 0
    v_cndmask_b32 v8, v7, v8, vcc
    v_mov_b32 v9, 1
    v_and_b32 v10, 7, v1
    v_lshlrev_b32 v10, 4, v10
    v_lshl_add_u32 v10, v5, 7, v10
    v_lshlrev_b32 v11, 4, v4
    v_lshl_add_u32 v11, v5, 3, v11
    v_cmp_gt_u32 vcc, 2, v5
    s_nop 1
    v_cndmask_b32 v11, v7, v11, vcc
    v_mov_b32 v7, 0xff800000
    v_cndmask_b32_e64 v16, v7, 0, vcc
    v_mov_b32 v17, v16
    v_mov_b32 v18, v16
    v_mov_b32 v19, v16
    v_lshlrev_b32 v3, 2, v5""")
    for r in range(4):
        k(f"""
        v_add_u32 v20, {r}, v3
        v_cmp_le_u32 vcc, v20, v4
        s_nop 1
        v_cndmask_b32_e64 v{12+r}, v7, 0, vcc""")
    k(f"""
    v_and_b32 v23, 1, v1
    v_mul_u32_u24 v23, {FP1 - FQK:#x}, v23
    v_add_u32 v23, v23, v6
    v_add_u32 v22, 4096, v23
    v_add_u32 v21, {FKM - FQK:#x}, v6
    v_add_u32 v21, s56, v21
    v_cmp_gt_u32 vcc, 32, v1
    s_mul_i32 s45, s30, 3072
    s_add_u32 s45, s45, {KM:#x}
    v_cndmask_b32 v22, v21, v22, vcc
    v_mov_b32 v62, v21
    s_mul_i32 s33, s30, 24576
    s_add_u32 s33, s33, {QF:#x}
    s_lshl_b32 s47, s30, 11
    s_add_u32 s47, s47, {PX:#x}
    s_lshl_b32 s46, s31, 11
    s_lshl_b32 s28, s32, 8
    s_add_u32 s46, s46, s28
    s_add_u32 s46, s46, {PX + 65536:#x}
    s_lshl_b32 s44, s22, 12
    s_add_u32 s44, s44, {FQK:#x}
    s_mul_i32 s28, s22, 98304
    s_add_u32 s45, s45, s28
    s_and_b32 s28, s22, {RING2 - 1}
    s_mul_i32 s28, s28, 786432
    s_add_u32 s33, s33, s28
    s_mul_i32 s28, s22, 81920
    s_add_u32 s46, s46, s28
    s_add_u32 s47, s47, s28
    s_sub_u32 s27, s26, 1
    s_cmp_eq_u32 s22, s27
    s_cselect_b64 vcc, -1, 0
    v_cndmask_b32 v22, v22, v62, vcc
    s_mov_b32 s42, {SCL!r}
    v_mov_b32 v50, 0
    v_mov_b32 v51, 0""")
    RG = lambda st, i: V(64 + i, 4) if st == 0 else A(i, 4)
    def qkload(st):
        for j in range(6):
            k(f's_add_u32 s28, s33, {4096*j}')
            for i in range(4):
                k(f'buffer_load_dwordx4 {RG(st, 16*j+4*i)}, v2, s[8:11], s28 offen offset:{1024*i} sc1')
        k('s_add_u32 s33, s33, 786432')
        k(wrap('s33', QF, 786432, RING2))
    poll_flag(k, f'{p}_f1', 23, 's44', 20, fail, sleep=4)
    qkload(0)
    k('v_mov_b32 v63, 0\ns_waitcnt vmcnt(0)')
    for st in range(2):
        Q = lambda qt, kk: RG(st, 4 * (6 * qt + kk))
        Kf = lambda kt, kk: RG(st, 48 + 4 * (6 * kt + kk))
        k.label(f'{p}_loop{st}')
        stamp(k, cfg, 0)
        k('v_cmp_eq_u32 vcc, 0, v63')
        for kk in range(6):
            k(f'{MF} v[24:27], {Kf(0,kk)}, {Q(0,kk)}, {"v[12:15]" if kk == 0 else "v[24:27]"}')
            k(f'{MF} v[32:35], {Kf(0,kk)}, {Q(1,kk)}, {"0" if kk == 0 else "v[32:35]"}')
            k(f'{MF} v[36:39], {Kf(1,kk)}, {Q(1,kk)}, {"v[12:15]" if kk == 0 else "v[36:39]"}')
        k(f's_cbranch_vccz {p}_go{st}')
        poll_flag(k, f'{p}_f2{st}', 22, 's44', 20, fail, sleep=1, slow=(58, cfg.get('slowx', 3)))
        k.label(f'{p}_go{st}')
        stamp(k, cfg, 1)
        for kk in range(6):
            k(f'buffer_load_dwordx4 {V(160+4*kk,4)}, v10, s[8:11], s45 offen offset:{512*kk} sc1')
        def mm(x):
            for kk in range(6):
                k(f's_waitcnt vmcnt({5-kk+x})')
                k(f'{MF} v[40:43], {V(160+4*kk,4)}, {Q(1,kk)}, {"v[16:19]" if kk == 0 else "v[40:43]"}')
                k(f'{MF} v[28:31], {V(160+4*kk,4)}, {Q(0,kk)}, {"v[16:19]" if kk == 0 else "v[28:31]"}')
        if st == 0:
            k(f's_cmp_lg_u32 s22, s27\ns_cbranch_scc1 {p}_nq')
            mm(0)
            k(f's_branch {p}_nq2')
            k.label(f'{p}_nq')
        qkload(1 - st)
        mm(24)
        if st == 0: k.label(f'{p}_nq2')
        k.nop(7)
        softmax_regs(k, list(range(32, 44)), 20)
        for i in range(6): k(f'v_cvt_pk_bf16_f32 v{56+i}, v{32+2*i}, v{33+2*i}')
        k('buffer_store_dwordx4 v[56:59], v2, s[8:11], s47 offen offset:1024 sc1\nbuffer_store_dwordx2 v[60:61], v11, s[8:11], s46 offen offset:1024 sc1')
        softmax_regs(k, list(range(24, 32)), 44)
        k(f"""
        v_cvt_pk_bf16_f32 v48, v24, v25
        v_cvt_pk_bf16_f32 v49, v26, v27
        v_cvt_pk_bf16_f32 v52, v28, v29
        v_cvt_pk_bf16_f32 v53, v30, v31
        buffer_store_dwordx4 v[48:51], v2, s[8:11], s47 offen sc1
        buffer_store_dwordx2 v[52:53], v11, s[8:11], s46 offen sc1
        s_add_u32 s28, s44, {FPX - FQK:#x}
        s_add_u32 s28, s28, s56
        s_add_u32 s44, s44, 4096
        buffer_load_dword v63, v22, s[8:11], s44 offen sc1
        s_add_u32 s45, s45, 98304
        s_add_u32 s46, s46, 81920
        s_add_u32 s47, s47, 81920
        s_waitcnt vmcnt(1)
        buffer_store_dword v9, v8, s[8:11], s28 offen sc1""")
        stamp(k, cfg, 2)
        k('s_add_u32 s22, s22, 1\ns_waitcnt vmcnt(1)')
        if st == 0: k(f's_cmp_ge_u32 s22, s26\ns_cbranch_scc1 {end}')
    k(f's_branch {p}_loop0')

def gen_o(k, p, end, fail, cfg):
    k(f's_load_dwordx2 s[28:29], s[0:1], {KA["x"]}')
    k('s_waitcnt lgkmcnt(0)')
    k.srd(12, 28, 2048 * 1280)
    k(f"""
    v_lshlrev_b32 v2, 4, v1
    v_and_b32 v4, 7, v1
    v_lshlrev_b32 v4, 7, v4
    s_lshl_b32 s28, s21, 10
    v_add_u32 v4, s28, v4
    v_and_b32 v5, 15, v1
    v_lshrrev_b32 v6, 4, v1
    v_mul_u32_u24 v5, 1280, v5
    v_lshl_add_u32 v5, v6, 3, v5
    s_and_b32 s30, s21, 1
    s_mul_i32 s30, s30, 20480
    s_lshr_b32 s29, s21, 1
    s_lshl_b32 s28, s20, 1
    s_add_u32 s29, s29, s28
    s_lshl_b32 s28, s29, 6
    s_add_u32 s28, s28, s30
    v_add_u32 v5, s28, v5
    s_lshl_b32 s28, s29, 10
    s_add_u32 s28, s28, s30
    v_add_u32 v13, s28, v2
    s_lshl_b32 s28, s21, 13
    v_add_u32 v6, s28, v2
    s_lshl_b32 s28, s21, 11
    v_add_u32 v7, s28, v2
    s_lshl_b32 s50, s20, 16
    s_add_u32 s50, s50, s28
    s_add_u32 s50, s50, {ZM:#x}
    s_mov_b32 s48, 0xffff0000""")
    flag_addr(k, 14)
    NG = 3
    k(f"""
    v_add_u32 v8, 0x200000, v4
    v_add_u32 v3, {0x200000 + FU - FPX + NG*4096:#x}, v4
    v_subrev_u32 v3, s56, v3
    v_cmp_gt_u32 vcc, 32, v1
    s_mul_i32 s51, s22, 1310720
    s_lshl_b32 s29, s20, 17
    v_cndmask_b32 v3, v3, v8, vcc
    s_add_u32 s51, s51, s29
    s_lshl_b32 s29, s21, 13
    s_add_u32 s51, s51, s29
    s_add_u32 s51, s51, {UF:#x}
    s_lshl_b32 s43, s22, 12
    s_add_u32 s44, s43, {FU:#x}""")
    def uload():
        for ct in range(4):
            for j in range(2):
                k(f's_add_u32 s29, s51, {32768*ct + 4096*j}')
                for i in range(4):
                    k(f'buffer_load_dwordx4 {A(32*ct+16*j+4*i,4)}, v2, s[8:11], s29 offen offset:{1024*i} sc1')
        k(f's_add_u32 s51, s51, {NG*1310720}')
        k(wrap('s51', UF, 1310720))
    poll_flag(k, f'{p}_f1', 4, 's44', 20, fail, sleep=cfg.get('sl1', 8))
    uload()
    k.label(f'{p}_loop')
    stamp(k, cfg, 0)
    k('s_lshl_b32 s43, s22, 12\ns_add_u32 s43, s43, s56')
    k('s_mul_i32 s45, s22, 40960')
    k('buffer_load_dwordx2 v[16:17], v5, s[12:15], s45 offen')
    k('buffer_load_dwordx2 v[18:19], v5, s[12:15], s45 offen offset:32')
    k(f's_add_u32 s44, s43, {FKM:#x}')
    poll_flag(k, f'{p}_f3', 4, 's44', 20, fail, sleep=3, slow=(58, cfg.get('slowo', 6)))
    zregion(k, 47, 50)
    k('s_mov_b32 s39, 0')
    k.label(f'{p}_z')
    for ct in range(4):
        k(f's_add_u32 s49, s47, {16384*ct}')
        for b in range(2):
            k(f'buffer_load_dwordx4 {V(208+8*ct+4*b,4)}, v2, s[8:11], s49 offen offset:{1024*b} sc1')
    tmo(k, fail)
    k('s_waitcnt vmcnt(0)')
    maxtree(k, 20, list(range(208, 240)))
    k('v_cmp_eq_u32 vcc, -1, v20')
    k(f's_cbranch_vccnz {p}_z')
    k(f"""
    s_add_u32 s44, s43, {FPX - 0x200000:#x}
    s_cmp_lt_u32 s22, {64 - NG}
    s_cselect_b64 vcc, -1, 0
    v_cndmask_b32 v3, v8, v3, vcc
    s_mul_i32 s47, s22, 81920
    s_add_u32 s47, s47, {PX:#x}
    s_lshl_b32 s29, s21, 12
    s_add_u32 s46, s47, s29
    s_add_u32 s46, s46, 65536
    s_lshl_b32 s29, s21, 14
    s_add_u32 s47, s47, s29""")
    poll_flag(k, f'{p}_f2', 3, 's44', 20, fail, sleep=1, slow=(58, cfg.get('slowo', 6)))
    stamp(k, cfg, 1)
    def pxl(n):
        k(f'buffer_load_dwordx4 {V(128+4*n,4)}, v2, s[8:11], {"s47" if n < 16 else "s46"} offen offset:{1024*(n%4)} sc1')
        if n % 4 == 3 and n < 12: k('s_add_u32 s47, s47, 4096')
    UPF = cfg.get('oup', 10)
    for n in range(UPF): pxl(n)
    acc = lambda ct, qt: V(24 + 4 * (4 * (ct >> 1) + 2 * qt + (ct & 1)), 4)
    for n in range(20):
        k(f's_waitcnt vmcnt({min(UPF - 1, 19 - n)})')
        h, qt = n >> 1, n & 1
        for ct in range(4):
            a_ = A(32 * ct + 4 * h, 4) if h < 8 else V(208 + 8 * ct + 4 * (h - 8), 4)
            k(f'{MF} {acc(ct,qt)}, {a_}, {V(128+4*n,4)}, {"0" if h == 0 else acc(ct,qt)}')
            if ct == 0 and n + UPF < 20: pxl(n + UPF)
    k.nop(4)
    for t in (0, 1, 4, 5, 2, 3, 6, 7):
        k(f'ds_write_b128 v6, {V(24+4*t,4)} offset:{1024*t}')
    k("""
    s_waitcnt lgkmcnt(0)
    s_barrier""")
    for c in range(2):
        for i in range(4):
            k(f'ds_read_b128 {V(64+16*c+4*i,4)}, v7 offset:{8192*i + 1024*c}')
    for i in range(4):
        k(f'v_lshlrev_b32 v{24+2*i}, 16, v{16+i}')
        k(f'v_and_b32 v{25+2*i}, s48, v{16+i}')
    k(f's_add_u32 s45, s45, {HH:#x}\ns_add_u32 s44, s43, {FH:#x}')
    for c in range(2):
        b = 64 + 16 * c
        k(f"""
        s_waitcnt lgkmcnt({4 - 4*c})
        v_pk_add_f32 {V(b,2)}, {V(b,2)}, {V(b+4,2)}
        v_pk_add_f32 {V(b+2,2)}, {V(b+2,2)}, {V(b+6,2)}
        v_pk_add_f32 {V(b+8,2)}, {V(b+8,2)}, {V(b+12,2)}
        v_pk_add_f32 {V(b+10,2)}, {V(b+10,2)}, {V(b+14,2)}
        v_pk_add_f32 {V(b,2)}, {V(b,2)}, {V(24+4*c,2)}
        v_pk_add_f32 {V(b+2,2)}, {V(b+2,2)}, {V(26+4*c,2)}
        v_pk_add_f32 {V(b,2)}, {V(b,2)}, {V(b+8,2)}
        v_pk_add_f32 {V(b+2,2)}, {V(b+2,2)}, {V(b+10,2)}
        v_cvt_pk_bf16_f32 v{32+2*c}, v{b}, v{b+1}
        v_cvt_pk_bf16_f32 v{33+2*c}, v{b+2}, v{b+3}""")
    k(f"""
    buffer_store_dwordx4 v[32:35], v13, s[8:11], s45 offen sc1
    s_cmp_ge_u32 s22, {64 - NG}
    s_cbranch_scc1 {p}_last""")
    uload()
    k(f"""
    s_waitcnt vmcnt(32)
    s_barrier
    buffer_store_dword v15, v14, s[8:11], s44 offen sc1""")
    stamp(k, cfg, 2)
    k(f's_add_u32 s22, s22, {NG}\ns_branch {p}_loop')
    k.label(f'{p}_last')
    k(f"""
    s_waitcnt vmcnt(0)
    s_barrier
    buffer_store_dword v15, v14, s[8:11], s44 offen sc1""")
    stamp(k, cfg, 2)
    k(f's_branch {end}')

def mega_epilogue(k, name, cfg):
    k.label(name + '_fail')
    k(f"""
    v_mov_b32 v4, 16
    s_lshl_b32 s28, s25, 8
    s_add_u32 s28, s28, s22
    s_add_u32 s28, s28, 0x10000
    v_mov_b32 v5, s28
    buffer_store_dword v5, v4, s[88:91], 0 offen
    s_endpgm""")
    k.label(name + '_end')
    if cfg.get('stamp') is not None:
        l = k.newlabel('L_nost')
        k(f"""
        s_cmp_ge_u32 s2, 256
        s_cbranch_scc1 {l}
        s_cmp_lg_u32 s21, 0
        s_cbranch_scc1 {l}
        s_memrealtime s[72:73]
        s_memtime s[78:79]
        s_waitcnt lgkmcnt(0)
        s_sub_u32 s78, s78, s76
        s_lshl_b32 s28, s25, 2
        s_add_u32 s28, s28, {STAMPS + 0x4000:#x}
        v_mov_b32 v4, 0
        v_mov_b32 v8, s78
        v_mov_b32 v9, s58
        buffer_store_dword v8, v4, s[8:11], s28 offen
        buffer_store_dword v9, v4, s[8:11], s28 offen offset:1024
        s_lshl_b32 s28, s25, 5
        s_add_u32 s28, s28, {STAMPS:#x}
        v_mov_b32 v4, 0
        v_mov_b32 v8, s60
        v_mov_b32 v9, s62
        v_mov_b32 v10, s64
        v_mov_b32 v11, s66
        v_mov_b32 v12, s68
        v_mov_b32 v13, s70
        v_mov_b32 v14, s72
        v_mov_b32 v15, s74
        buffer_store_dwordx4 v[8:11], v4, s[8:11], s28 offen
        buffer_store_dwordx4 v[12:15], v4, s[8:11], s28 offen offset:16""")
        k.label(l)
    k('s_endpgm')

def vid(k):
    k("""
    s_add_u32 s29, s2, s23
    s_sub_u32 s29, s29, 1
    s_lshr_b32 s25, s2, 3
    s_lshl_b32 s25, s25, 2
    s_and_b32 s28, s29, 3
    s_add_u32 s25, s25, s28
    s_and_b32 s28, s29, 4
    s_lshl_b32 s28, s28, 5
    s_add_u32 s25, s25, s28""")

def rot_check(k, v):
    k(f'v_readfirstlane_b32 s28, v{v}\ns_cmp_lg_u32 s28, s23\ns_cbranch_scc1 mega_kernel_redo')

def rot_wait(k, t):
    l = k.newlabel('L_rw')
    k(f'v_mov_b32 v{t}, 140\ns_mov_b32 s39, 0')
    k.label(l)
    k(f'buffer_load_dword v{t+1}, v{t}, s[88:91], 0 offen sc1')
    tmo(k, FAIL)
    k(f's_waitcnt vmcnt(0)\nv_cmp_eq_u32 vcc, 0, v{t+1}\ns_cbranch_vccnz {l}')
    rot_check(k, t + 1)

def gen_mega_kernel(k, name, cfg):
    mega_prologue(k, name)
    dbg_srd(k)
    k(f"""
    s_getreg_b32 s23, hwreg(HW_REG_XCC_ID)
    s_sub_u32 s23, s23, s2
    s_add_u32 s23, s23, {cfg.get('rotbias', 0)}
    s_and_b32 s23, s23, 7
    s_add_u32 s23, s23, 1
    s_add_u32 s28, s2, s21
    s_cmp_lg_u32 s28, 0
    s_cbranch_scc1 {name}_disp
    v_mov_b32 v4, 140
    v_mov_b32 v5, s23
    buffer_store_dword v5, v4, s[88:91], 0 offen sc1
    s_waitcnt vmcnt(0)
    s_branch {name}_disp""")
    k.label(name + '_redo')
    k('s_mov_b32 s23, s28\ns_waitcnt vmcnt(0) lgkmcnt(0)\ns_barrier')
    k.label(name + '_disp')
    vid(k)
    if cfg.get('swap', (104, 160, 24)):
        a, b, n = cfg.get('swap', (104, 160, 24))
        k(f"""
        s_sub_u32 s28, s25, {a}
        s_sub_u32 s29, s25, {b}
        s_add_u32 s30, s28, {b}
        s_add_u32 s31, s29, {a}
        s_cmp_lt_u32 s28, {n}
        s_cselect_b32 s25, s30, s25
        s_cmp_lt_u32 s29, {n}
        s_cselect_b32 s25, s31, s25""")
    if cfg.get('stamp') is not None:
        for i in range(60, 76): k(f's_mov_b32 s{i}, 0')
        ustamp(k, cfg, 7)
        k('s_memtime s[76:77]')
    E_, F_ = name + '_end', name + '_fail'
    G3 = name + '_g3'
    k(f"""
    s_mov_b32 s22, 0
    s_mov_b32 s24, 1
    s_and_b32 s20, s25, 31
    s_cmp_lt_u32 s25, 32
    s_cbranch_scc1 {name}_h
    s_cmp_lt_u32 s25, 64
    s_cbranch_scc1 {name}_z
    s_cmp_lt_u32 s25, 80
    s_cbranch_scc1 {name}_c0
    s_sub_u32 s30, s25, 80
    s_cmp_lt_u32 s25, 128
    s_cbranch_scc1 {name}_il
    s_cmp_lt_u32 s25, 192
    s_cbranch_scc1 {name}_vu0
    s_cmp_lt_u32 s25, 224
    s_cbranch_scc1 {name}_qk
    s_sub_u32 s30, s25, 176
    s_branch {name}_il""")
    k.label(name + '_c0')
    k('s_sub_u32 s30, s25, 64')
    gen_init_x(k, name + '_ix')
    k(f's_sub_u32 s20, s25, 64\ns_branch {name}_c')
    k.label(name + '_il')
    gen_init_ln(k, name + '_il')
    k(f's_sub_u32 s20, s25, 64\ns_cmp_lt_u32 s25, 104\ns_cbranch_scc1 {name}_c')
    load_sel(k, cfg)
    k(f"""
    s_and_b32 s20, s25, 7
    s_cmp_lt_u32 s25, 112
    s_cbranch_scc1 {name}_x
    s_cmp_lt_u32 s25, 128
    s_cbranch_scc1 {name}_g10
    s_cmp_ge_u32 s25, 254
    s_cbranch_scc1 {name}_wt
    s_sub_u32 s28, s25, 224
    s_mul_i32 s22, s28, 26
    s_lshr_b32 s22, s22, 8
    s_mul_i32 s29, s22, 10
    s_sub_u32 s20, s28, s29""")
    if 'O' in cfg.get('skip', ''): k(f's_branch {E_}')
    gen_o(k, name + '_o', G3, F_, cfg)
    k.label(name + '_wt')
    k('s_and_b32 s27, s25, 1\ns_lshl_b32 s27, s27, 4\ns_mov_b32 s26, 16')
    if 'W' in cfg.get('skip', ''): k(f's_branch {E_}')
    gen_wt(k, name + '_wt', name + '_wo', cfg)
    k.label(name + '_wo')
    k('s_and_b32 s20, s25, 1')
    k.label(name + '_wol')
    gen_wo(k, name + '_wo', cfg)
    k(f's_add_u32 s20, s20, 2\ns_cmp_lt_u32 s20, 5\ns_cbranch_scc1 {name}_wol\ns_branch {G3}')
    k.label(name + '_g10')
    if cfg.get('g1wait', 1):
        k(f'v_and_b32 v16, 31, v1\nv_lshlrev_b32 v16, 7, v16\ns_add_u32 s44, s56, {FKM:#x}')
        poll_flag(k, name + '_wf', 16, 's44', 17, F_, sleep=8)
    k('v_lshlrev_b32 v2, 4, v1')
    k('s_and_b32 s20, s25, 3\ns_bfe_u32 s22, s25, 0x20002\ns_cmp_eq_u32 s22, 3\ns_cselect_b32 s22, 0, s22\ns_cselect_b32 s28, 0, 4\ns_cselect_b32 s24, 1, 3\ns_cselect_b32 s26, 52, 64\ns_add_u32 s20, s20, s28')
    k.label(name + '_g1e')
    if '1' in cfg.get('skip', ''): k(f's_branch {E_}')
    gen_g1p(k, name + '_g1p', E_, F_, cfg)
    k.label(name + '_x')
    if 'X' in cfg.get('skip', ''): k(f's_branch {E_}')
    k('s_mov_b32 s26, 63')
    k.label(name + '_xe')
    gen_x(k, name + '_x', name + '_xd', F_, cfg)
    k.label(name + '_xd')
    k(f's_cmp_eq_u32 s26, 64\ns_cbranch_scc1 {G3}\ns_branch {E_}')
    k.label(name + '_c')
    gen_c(k, name + '_c', G3, F_, cfg)
    k.label(G3)
    if cfg.get('stamp') is not None and not LST: ustamp(k, cfg, 1 if cfg.get('stamp') == 98 else 5)
    k('s_cmp_lt_u32 s25, 224\ns_cselect_b32 s28, 8, 0\ns_add_u32 s28, s28, s25\ns_sub_u32 s28, s28, 96\ns_cmp_lt_u32 s25, 128\ns_cselect_b32 s20, s25, s28')
    if 'G' in cfg.get('skip', ''): k(f's_branch {E_}')
    gen_g3p(k, name + '_g3p', E_, F_, cfg)
    k.label(name + '_z')
    gen_z(k, name + '_z', G3, F_, cfg)
    k.label(name + '_h')
    gen_h(k, name + '_h', G3, F_, cfg)
    k.label(name + '_vu0')
    k('s_bfe_u32 s24, s25, 0x10005')
    gen_pj(k, name + '_pj', name + '_g2', cfg)
    k.label(name + '_g2')
    ustamp(k, cfg, 0)
    if 'G' in cfg.get('skip', ''): k(f's_branch {E_}')
    k('s_sub_u32 s27, s25, 96\ns_mov_b32 s26, 1')
    k.label(name + '_g2a')
    gen_wt(k, name + '_wt1', name + '_g2b', cfg, single=True)
    k.label(name + '_g2b')
    k(f's_add_u32 s27, s27, 32\ns_sub_u32 s28, s27, 96\ns_cmp_lt_u32 s28, 32\ns_cbranch_scc1 {name}_g2a')
    k('s_sub_u32 s20, s25, 128')
    gen_g2p(k, name + '_g2p', E_, F_, cfg)
    k.label(name + '_qk')
    gen_vu(k, name + '_vu', name + '_vue', F_, dict(cfg, stamp=cfg.get('stamp') if cfg.get('stamp') in (0, 97) else None))
    k.label(name + '_vue')
    k(f's_cmp_lt_u32 s25, 208\ns_cbranch_scc1 {G3}\ns_cmp_ge_u32 s25, 216\ns_cbranch_scc1 {name}_vug')
    k(f'v_mov_b32 v16, 0\ns_add_u32 s44, s56, {FKM + 61*4096:#x}')
    poll_flag(k, name + '_xw', 16, 's44', 17, F_, sleep=12)
    k(f's_and_b32 s20, s25, 7\ns_mov_b32 s22, 63\ns_mov_b32 s26, 64\ns_branch {name}_xe')
    k.label(name + '_vug')
    k(f's_and_b32 s20, s25, 3\ns_bfe_u32 s22, s25, 0x10002\ns_add_u32 s22, s22, 52\ns_mov_b32 s24, 2\ns_mov_b32 s26, 64\ns_branch {name}_g1e')
    mega_epilogue(k, name, cfg)

def mega_prologue(k, name, nwg=256):
    k.begin(name)
    k(f'''
    s_cmp_lt_u32 s2, {nwg}
    s_cbranch_scc1 {name}_in
    s_endpgm''')
    k.label(name + '_in')
    k(f'''
    s_load_dwordx4 s[4:7], s[0:1], {KA['dbg']}
    s_load_dwordx8 s[92:99], s[0:1], {KA['Wq']}
    v_and_b32 v1, 63, v0
    v_lshrrev_b32 v2, 6, v0
    s_nop 0
    v_readfirstlane_b32 s21, v2
    s_waitcnt lgkmcnt(0)''')
    k.srd(8, 6, WS_BYTES)

def far_branch(k, target):
    k(f's_branch {target}')

GC1 = -2.0 * (2.0 / 3.141592653589793) ** 0.5 * 1.4426950408889634
GC2 = GC1 * 0.044715

def gs(k, cfg, idx):
    if cfg.get('gstamp'): k(f's_memrealtime s[{60+2*idx}:{61+2*idx}]')

def gdump(k, cfg, n):
    if not cfg.get('gstamp'): return
    k(f"""
    s_waitcnt vmcnt(0)
    s_memrealtime s[74:75]
    s_waitcnt lgkmcnt(0)
    s_lshl_b32 s28, s2, 2
    s_add_u32 s28, s28, s21
    s_lshl_b32 s28, s28, 5
    s_add_u32 s28, s28, {TRACE + 0x200000 + n * 0x10000:#x}
    v_mov_b32 v4, 0""")
    for i in range(8): k(f'v_mov_b32 v{8+i}, s{60+2*i}')
    k('buffer_store_dwordx4 v[8:11], v4, s[8:11], s28 offen')
    k('buffer_store_dwordx4 v[12:15], v4, s[8:11], s28 offen offset:16')

def gen_wt(k, p, end, cfg, single=False):
    k(f's_load_dwordx2 s[28:29], s[0:1], {KA["w_sp"]}')
    k('s_waitcnt lgkmcnt(0)')
    k.srd(12, 28, 2048 * 4096)
    k(f"""
    v_lshlrev_b32 v2, 4, v1
    s_lshl_b32 s31, s21, 14
    s_lshl_b32 s30, s27, 16
    s_add_u32 s30, s30, s31
    s_lshl_b32 s28, s21, 6""")
    for r in range(4): k(f'v_xor_b32 v{4+r}, s28, v2\ns_add_u32 s28, s28, 16')
    k(f"""
    v_and_b32 v8, 15, v1
    v_lshrrev_b32 v9, 4, v1
    v_xor_b32 v9, v9, v8
    v_lshlrev_b32 v9, 4, v9
    v_lshl_add_u32 v9, v8, 12, v9
    s_lshl_b32 s28, s21, 10
    v_add_u32 v10, s28, v9
    v_xor_b32 v11, 64, v10
    v_xor_b32 v12, 128, v10
    v_xor_b32 v13, 192, v10
    s_mov_b32 s32, s27
    s_add_u32 s35, s32, s26""")
    def dma():
        for r in range(4):
            k(f's_add_u32 m0, s31, {4096*r}\ns_add_u32 s28, s30, {4096*r}')
            for i in range(4):
                k(f'buffer_load_dwordx4 v{4+r}, s[12:15], s28 offen offset:{1024*i} nt lds')
        k(f's_xor_b32 s31, s31, 65536\ns_add_u32 s30, s30, 65536\ns_and_b32 s30, s30, {2048*4096 - 1:#x}')
    dma()
    if not single: dma()
    k(f's_waitcnt vmcnt({0 if single else 16})')
    k.label(f'{p}_loop')
    k('s_barrier')
    for i in range(16): k(f'ds_read_b128 {V(16+4*i,4)}, v{10+i%4} offset:{256*(i//4)}')
    k(f"""
    s_lshr_b32 s28, s32, 1
    s_lshl_b32 s33, s28, 20
    s_and_b32 s28, s28, 15
    s_lshl_b32 s28, s28, 11
    s_add_u32 s33, s33, s28
    s_and_b32 s28, s32, 1
    s_mul_i32 s28, s28, {WST}
    s_add_u32 s33, s33, s28
    s_lshl_b32 s28, s21, 14
    s_add_u32 s33, s33, s28
    s_add_u32 s33, s33, {WSF:#x}""")
    for i in range(4): k(f'v_xor_b32 v{10+i}, 65536, v{10+i}')
    k('s_waitcnt lgkmcnt(0)')
    if not single:
        k('s_barrier')
        dma()
    for i in range(16):
        k(f'buffer_store_dwordx4 {V(16+4*i,4)}, v2, s[8:11], s33 offen offset:{1024*(i%4)} sc1')
        if i % 4 == 3: k('s_add_u32 s33, s33, 4096')
    k(f"""
    s_add_u32 s32, s32, 1
    s_cmp_lt_u32 s32, s35
    s_waitcnt vmcnt(32)
    s_cbranch_scc1 {p}_loop
    v_mov_b32 v6, {BIG:#x}
    v_lshlrev_b32 v7, 7, v0
    v_cmp_gt_u32 vcc, s26, v0
    s_lshl_b32 s28, s27, 7
    s_add_u32 s28, s28, {FWT:#x}
    v_cndmask_b32 v6, v6, v7, vcc
    v_mov_b32 v7, 1
    s_waitcnt vmcnt(0)
    s_barrier
    buffer_store_dword v7, v6, s[8:11], s28 offen sc1
    s_branch {end}""")

def gen_g1p(k, p, end, fail, cfg):
    SX = 81920; SA = SX + 512; SB = SA + 1024
    loc = {(t, kk): ('a', 4 * (3 * kk + t)) for kk in range(20) for t in range(3)}
    k(f's_load_dwordx2 s[28:29], s[0:1], {KA["w_in"]}')
    k('s_waitcnt lgkmcnt(0)')
    k.srd(12, 28, 640 * 3072)
    for i in range(3):
        k(f"""
        v_add_u32 v8, {64*i}, v1
        v_mul_u32_u24 v9, 2731, v8
        v_lshrrev_b32 v9, 16, v9
        v_mul_u32_u24 v10, 24, v9
        v_sub_u32 v10, v8, v10
        v_mul_u32_u24 v9, 3072, v9
        v_lshl_add_u32 v{144+i}, v10, 4, v9""")
    k(f"""
    v_lshrrev_b32 v11, 2, v1
    v_mul_u32_u24 v11, 384, v11
    v_and_b32 v10, 3, v1
    v_lshl_add_u32 v11, v10, 3, v11
    s_mul_i32 s28, s21, 96
    v_add_u32 v11, s28, v11
    s_mul_i32 s30, s20, 384
    s_mul_i32 s28, s21, {16*3072}
    s_add_u32 s30, s30, s28
    s_mul_i32 s32, s21, 6144""")
    k.vd = k.vc
    tick = {}
    def issue(c):
        for i in range(6):
            k(f's_add_u32 m0, s32, {(c%6)*24576 + i*1024}')
            k(f's_add_u32 s33, s30, {c*64*3072 + (i//3)*8*3072}')
            tick[c] = k.vm(f'buffer_load_dwordx4 v{144+i%3}, s[12:15], s33 offen lds')
    for c in range(6): issue(c)
    for c in range(10):
        k.wv(tick[c])
        k('s_barrier')
        k(f'v_add_u32 v13, {(c%6)*24576}, v11')
        for t in range(3):
            for k2 in range(2):
                for hf in range(2):
                    k(f'ds_read_b64_tr_b16 {R(loc[(t, 2*c+k2)], 2, 2*hf)}, v13 offset:{(32*k2+16*hf)*384 + t*32}')
        k('s_waitcnt lgkmcnt(0)')
        if c + 6 < 10 or c == 9: k('s_barrier')
        if c + 6 < 10: issue(c + 6)
    ustamp(k, cfg, 1)
    k(f"""
    v_mov_b32 v3, 9
    v_min_u32 v3, v3, v1
    v_lshlrev_b32 v3, 7, v3
    v_and_b32 v10, 15, v1
    v_lshrrev_b32 v11, 4, v1
    s_lshr_b32 s29, s21, 1
    s_mul_i32 s28, s29, 20480
    v_add_u32 v4, s28, v2
    v_lshrrev_b32 v12, 3, v10
    v_mul_u32_u24 v12, 20480, v12
    v_lshl_add_u32 v12, v11, 8, v12
    v_bfe_u32 v13, v10, 2, 1
    v_lshl_add_u32 v12, v13, 7, v12
    v_and_b32 v13, 3, v10
    v_lshl_add_u32 v12, v13, 4, v12
    s_lshl_b32 s28, s29, 6
    v_add_u32 v12, s28, v12
    s_cmp_ge_u32 s20, 4
    s_cselect_b64 vcc, -1, 0
    v_cndmask_b32 v4, v4, v12, vcc
    v_mov_b32 v5, v2
    s_mul_i32 s34, s21, 10240
    v_add_u32 v8, s34, v2
    s_and_b32 s35, s21, 1
    s_mul_i32 s35, s35, 10240
    s_add_u32 s35, s35, {HH:#x}
    v_mov_b32 v6, {BIG:#x}
    v_cmp_gt_u32 vcc, {FW}, v0
    v_lshlrev_b32 v7, 2, v0
    s_nop 0
    v_cndmask_b32 v6, v6, v7, vcc
    v_mov_b32 v7, 1
    s_lshl_b32 s28, s21, 7
    s_add_u32 s28, s28, {SX}
    v_lshlrev_b32 v9, 3, v10
    v_add_u32 v14, {SX}, v9
    v_add_u32 v9, s28, v9
    v_lshrrev_b32 v12, 2, v10
    v_cmp_eq_u32 vcc, v12, v11
    v_mov_b32 v12, {SB + 512}
    v_and_b32 v13, 1, v1
    v_cndmask_b32 v9, v12, v9, vcc
    v_cmp_ne_u32 s[48:49], 0, v13
    v_and_b32 v13, 2, v1
    v_cmp_ne_u32 s[50:51], 0, v13
    s_mov_b32 s45, {DUMMY:#x}
    v_lshlrev_b32 v15, 5, v11
    v_add_u32 v15, {SX}, v15
    s_mov_b32 s36, 0x3f803f80
    v_mov_b32 v16, s36
    v_mov_b32 v17, s36
    v_mov_b32 v18, s36
    v_mov_b32 v19, s36
    v_mov_b32 v20, {GC1!r}
    v_mov_b32 v22, {GC2!r}
    v_mov_b32 v24, 1.0
    s_mov_b32 s40, 0
    s_mov_b32 s41, 0
    s_cmp_ge_u32 s20, 4
    s_cbranch_scc1 {p}_z2""")
    CSR = 28
    acc = lambda tt, t3: 40 + 4 * (3 * tt + t3)
    def dma(seg):
        k(f's_mul_i32 s29, {seg}, 40960\ns_add_u32 s29, s29, s35\ns_add_u32 s28, s34, s40')
        for j in range(3):
            k(f's_add_u32 m0, s28, {4096*j}\ns_add_u32 s33, s29, {4096*j}')
            for i in range(4 if j < 2 else 2):
                k(f'buffer_load_dwordx4 v4, s[8:11], s33 offen offset:{1024*i} sc1 lds')
        k('s_xor_b32 s40, s40, 40960')
    def path(z2):
        q = f'{p}_{"b" if z2 else "a"}'
        mm = lambda d, w_, x_, c_: f'{MF} {d}, {x_}, {w_}, {c_}' if z2 else f'{MF} {d}, {w_}, {x_}, {c_}'
        for kk in range(20):
            for t in range(3):
                d = V(CSR + 4 * t, 4)
                k(mm(d, R(loc[(t, kk)], 4), 'v[16:19]', '0' if kk == 0 else d))
        k.label(f'{q}_loop')
        k(f's_cmp_lg_u32 s41, 0\ns_cbranch_scc1 {q}_have\ns_lshl_b32 s42, s22, 12\ns_add_u32 s42, s42, {FH:#x}\ns_add_u32 s42, s42, s56')
        poll_flag(k, f'{q}_f', 3, 's42', 26, fail, sleep=1, slow=(58, cfg.get('slow', 12)))
        dma('s22')
        k('s_waitcnt vmcnt(0)')
        k.label(f'{q}_have')
        stamp(k, cfg, 2)
        k(f"""
        s_add_u32 s43, s22, s24
        s_min_u32 s42, s43, 63
        s_lshl_b32 s42, s42, 12
        s_add_u32 s42, s42, {FH:#x}
        s_add_u32 s42, s42, s56
        s_waitcnt vmcnt({1 if z2 else 6})
        s_barrier
        buffer_load_dword v26, v3, s[8:11], s42 offen sc1""")
        mats = []; items = []; ev = []
        XR = [64 + 4 * i for i in range(8)]
        for kk in range(20):
            for tt in range(2):
                n_ = 2 * kk + tt; r = XR[n_ % 8]
                ev.append((max(3 * n_ - 15, 3 * (n_ - 8) + 2 if n_ >= 8 else -1), dict(id=('x', n_), kind='n', lds=True, fn=f'ds_read_b128 {V(r,4)}, v5 offset:{tt*20480 + kk*1024}')))
                for t in range(3):
                    d = V(acc(tt, t), 4)
                    mats.append((mm(d, R(loc[(t, kk)], 4), V(r, 4), '0' if kk == 0 else d), [('x', n_)]))
        smats = []
        for i in range(10):
            r = V(96 + 4 * i, 4)
            ev.append((1 + 3 * i, dict(id=('o', i), kind='n', lds=True, fn=f'ds_read_b128 {r}, v8 offset:{1024*i}')))
            smats.append((f'{MF} v[156:159], v[16:19], {r}, {"0" if i == 0 else "v[156:159]"}', [('o', i)]))
            smats.append((f'{MF} v[160:163], {r}, {r}, {"0" if i == 0 else "v[160:163]"}', []))
        SP = 42
        mats[SP:SP] = smats
        for j, (g_, it) in enumerate(ev):
            if it['id'][0] == 'x' and g_ >= SP: ev[j] = (g_ + 20, it)
        items.append(dict(id='s0', kind='v', fn='v_cndmask_b32 v160, v160, v161, s[48:49]', states=(SP + 19, 8), after=SP + 22))
        items.append(dict(id='s1', kind='v', fn='v_cndmask_b32 v162, v162, v163, s[48:49]'))
        items.append(dict(id='s2', kind='v', fn='v_cndmask_b32 v157, v160, v162, s[50:51]'))
        ev.append((SP + 26, dict(id='sw', kind='n', lds=True, fn='ds_write_b64 v9, v[156:157]', order=['s2'])))
        ev.append((SP + 31, dict(id='sv', kind='n', fn='s_waitcnt vmcnt(0)\nv_cmp_eq_u32 vcc, 0, v26')))
        ev.append((SP + 32, dict(id='sb', kind='bar', fn='s_barrier', deps=['sw'], order=['sw'])))
        kd = K(); k_save = k.L; k.L = kd.L
        k(f's_mov_b32 s41, 0\ns_cmp_ge_u32 s43, s26\ns_cbranch_scc1 {q}_nop\ns_cbranch_vccnz {q}_nop\ns_mov_b32 s41, 1')
        dma('s43')
        k.L = k_save
        if not z2: ev.append((SP + 32.5, dict(id='sf', kind='n', fn=f'buffer_store_dword v7, v6, s[8:11], s45 offen sc1')))
        ev.append((SP + 42, dict(id='sd', kind='n', fn='\n'.join(kd.L), label=f'{q}_nop')))
        RS, NB = 140, 148
        nst = 8 if z2 else 2
        if z2:
            for i in range(8):
                ev.append((SP + 33 + i, dict(id=('sr', i), kind='n', lds=True, fn=f'ds_read_b128 {V(96+4*i,4)}, v15 offset:{128*(i>>1) + 16*(i&1)}', order=['sb'])))
            src = lambda i: (96 + 16 * (i >> 2) + 2 * (i & 3), 104 + 16 * (i >> 2) + 2 * (i & 3))
            lastr = ('sr', 7)
        else:
            for i in range(4):
                ev.append((SP + 33 + i, dict(id=('sr', i), kind='n', lds=True, fn=f'ds_read_b64 {V(96+2*i,2)}, v14 offset:{128*i}', order=['sb'])))
            src = lambda i: (96 + 4 * i, 98 + 4 * i)
            lastr = ('sr', 3)
        fin = []
        for i in range(nst): fin.append(f'v_pk_add_f32 {V(src(i)[0],2)}, {V(src(i)[0],2)}, {V(src(i)[1],2)}')
        for i in range(nst): fin.append(f'v_pk_mul_f32 {V(src(i)[0],2)}, {V(src(i)[0],2)}, s[46:47]')
        for i in range(nst): fin.append(f'v_fma_f32 v{src(i)[0]+1}, -v{src(i)[0]}, v{src(i)[0]}, v{src(i)[0]+1}')
        for i in range(nst): fin.append(f'v_max_f32 v{src(i)[0]+1}, 0, v{src(i)[0]+1}')
        for i in range(nst): fin.append(f'v_add_f32 v{src(i)[0]+1}, 1e-5, v{src(i)[0]+1}')
        st = 1 if z2 else 2
        for i in range(nst): fin.append(f'v_rsq_f32 v{RS+st*i}, v{src(i)[0]+1}')
        fin.append('v_nop')
        for i in range(nst): fin.append(f'v_mul_f32_e64 v{NB+st*i}, -v{src(i)[0]}, v{RS+st*i}')
        for i, f_ in enumerate(fin):
            items.append(dict(id=('f', i), kind='v', fn=f_, deps=[lastr] if i == 0 else [], order=[lastr], after=SP + 46))
        ev.sort(key=lambda x: x[0])
        for g_, it in ev:
            it['after'] = g_; items.append(it)
        k(f's_mov_b32 s46, {1.0/640!r}\ns_mov_b32 s47, s46')
        sched(k, mats, items, [False] * 140, pre_n=3)
        stamp(k, cfg, 3)
        k('v_xor_b32 v5, 40960, v5\ns_nop 0\nv_add_u32 v8, s34, v5')
        for tt in range(2):
            for t in range(3):
                for h_ in range(2):
                    a = V(acc(tt, t) + 2 * h_, 2); c = V(CSR + 4 * t + 2 * h_, 2)
                    if z2:
                        k(f'v_pk_mul_f32 {a}, {a}, {V(RS+4*tt+2*h_,2)}')
                        k(f'v_pk_fma_f32 {a}, {c}, {V(NB+4*tt+2*h_,2)}, {a}')
                    else:
                        k(f'v_pk_mul_f32 {a}, {a}, {V(RS+2*tt,2)} op_sel_hi:[1,0]')
                        k(f'v_pk_fma_f32 {a}, {c}, {V(NB+2*tt,2)}, {a} op_sel_hi:[1,0,1]')
        for b in range(0, 24, 8):
            for i in range(0, 8, 2): k(f'v_pk_mul_f32 {V(64+i,2)}, {V(40+b+i,2)}, {V(40+b+i,2)}')
            for i in range(0, 8, 2): k(f'v_pk_fma_f32 {V(64+i,2)}, {V(64+i,2)}, v[22:23], v[20:21] op_sel_hi:[1,0,0]')
            for i in range(0, 8, 2): k(f'v_pk_mul_f32 {V(64+i,2)}, {V(64+i,2)}, {V(40+b+i,2)}')
            for i in range(8): k(f'v_exp_f32 v{64+i}, v{64+i}')
            for i in range(0, 8, 2): k(f'v_pk_add_f32 {V(64+i,2)}, {V(64+i,2)}, v[24:25] op_sel_hi:[1,0]')
            for i in range(8): k(f'v_rcp_f32 v{64+i}, v{64+i}')
            for i in range(0, 8, 2): k(f'v_pk_mul_f32 {V(40+b+i,2)}, {V(40+b+i,2)}, {V(64+i,2)}')
        if not z2:
            k(f"""
            s_mul_i32 s28, s20, 6144
            s_mul_i32 s29, s21, 1536
            s_add_u32 s28, s28, s29
            s_mul_i32 s29, s22, 49152
            s_add_u32 s28, s28, s29
            s_add_u32 s28, s28, {Z1F:#x}
            s_add_u32 s29, s28, 24576
            v_lshlrev_b32 v12, 3, v1""")
            for tt in range(2):
                for t3 in range(3):
                    a = acc(tt, t3); d = 72 + 2 * (2 * t3 + tt)
                    k(f'v_cvt_pk_bf16_f32 v{d}, v{a}, v{a+1}')
                    k(f'v_cvt_pk_bf16_f32 v{d+1}, v{a+2}, v{a+3}')
                    k(f'buffer_store_dwordx2 {V(d,2)}, v12, s[8:11], s{28+tt} offen offset:{512*t3} sc1')
        else:
            for tt in range(2):
                for r in range(4):
                    d = 96 + 8 * tt + 2 * r; a0, a1, a2 = (acc(tt, j) + r for j in range(3))
                    k(f'v_add_f32 v{d}, v{a0}, v{a1}')
                    k(f'v_mul_f32 v{d+1}, v{a0}, v{a0}')
                    k(f'v_add_f32 v{d}, v{d}, v{a2}')
                    k(f'v_fmac_f32 v{d+1}, v{a1}, v{a1}')
                    k(f'v_fmac_f32 v{d+1}, v{a2}, v{a2}')
            for sh in (8, 4, 2, 1):
                for i in range(16):
                    k(f'v_add_f32_dpp v{96+i}, v{96+i}, v{96+i} row_ror:{sh} row_mask:0xf bank_mask:0xf')
            k(f's_lshl_b32 s28, s21, 8\nv_add_u32 v13, s28, v15')
            for tt in range(2):
                k(f'ds_write_b128 v13, {V(96+8*tt,4)} offset:{SA - SX + 128*tt}')
                k(f'ds_write_b128 v13, {V(100+8*tt,4)} offset:{SA - SX + 128*tt + 16}')
            k(f"""
            s_waitcnt lgkmcnt(0)
            s_barrier
            s_cmp_lg_u32 s21, 0
            s_cbranch_scc1 {q}_w
            v_and_b32 v12, 31, v1
            v_lshlrev_b32 v12, 3, v12
            v_add_u32 v13, {SA}, v12
            ds_read_b64 v[96:97], v13
            ds_read_b64 v[98:99], v13 offset:256
            ds_read_b64 v[100:101], v13 offset:512
            ds_read_b64 v[102:103], v13 offset:768
            s_lshl_b32 s44, s22, 10
            s_add_u32 s44, s44, {ST:#x}
            s_add_u32 s44, s44, s56
            s_and_b32 s28, s20, 3
            s_lshl_b32 s28, s28, 8
            s_add_u32 s28, s28, s44
            s_waitcnt lgkmcnt(0)
            v_pk_add_f32 v[96:97], v[96:97], v[98:99]
            v_pk_add_f32 v[100:101], v[100:101], v[102:103]
            v_pk_add_f32 v[96:97], v[96:97], v[100:101]
            v_min_u32 v96, -2, v96
            v_min_u32 v97, -2, v97
            buffer_store_dwordx2 v[96:97], v12, s[8:11], s28 offen sc1
            s_mov_b32 s39, 0
            s_waitcnt vmcnt(0)""")
            k.label(f'{q}_sp')
            for i in range(4):
                k(f'buffer_load_dwordx2 {V(98+2*i,2)}, v12, s[8:11], s44 offen offset:{256*i} sc1')
            tmo(k, fail)
            k('s_waitcnt vmcnt(0)')
            maxtree(k, 10, list(range(98, 106)))
            k(f"""
            v_cmp_eq_u32 vcc, -1, v10
            s_cbranch_vccnz {q}_sp
            v_pk_add_f32 v[98:99], v[98:99], v[100:101]
            v_pk_add_f32 v[102:103], v[102:103], v[104:105]
            v_pk_add_f32 v[98:99], v[98:99], v[102:103]
            v_mul_f32 v98, {1.0/768!r}, v98
            v_mul_f32 v99, {1.0/768!r}, v99
            v_fma_f32 v99, -v98, v98, v99
            v_max_f32 v99, 0, v99
            v_add_f32 v99, 1e-5, v99
            v_rsq_f32 v100, v99
            s_nop 0
            v_mul_f32_e64 v101, -v98, v100
            ds_write_b64 v13, v[100:101] offset:{SB - SA}
            s_waitcnt lgkmcnt(0)""")
            k.label(f'{q}_w')
            k('s_barrier')
            for tt in range(2):
                k(f'ds_read_b128 {V(96+8*tt,4)}, v15 offset:{SB - SX + 128*tt}')
                k(f'ds_read_b128 {V(100+8*tt,4)}, v15 offset:{SB - SX + 128*tt + 16}')
            k(f"""
            s_sub_u32 s28, s20, 4
            s_mul_i32 s28, s28, 12
            s_mul_i32 s29, s21, 3
            s_add_u32 s28, s28, s29
            s_lshl_b32 s28, s28, 10
            s_mul_i32 s29, s22, 49152
            s_add_u32 s28, s28, s29
            s_add_u32 s28, s28, {Z2F:#x}
            s_waitcnt lgkmcnt(0)""")
            for t3 in range(3):
                d = 72 + 4 * t3
                for tt in range(2):
                    a = acc(tt, t3)
                    for r in range(4):
                        k(f'v_fma_f32 v{a+r}, v{a+r}, v{96+8*tt+2*r}, v{97+8*tt+2*r}')
                    k(f'v_cvt_pk_bf16_f32 v{d+2*tt}, v{a}, v{a+1}')
                    k(f'v_cvt_pk_bf16_f32 v{d+2*tt+1}, v{a+2}, v{a+3}')
                k(f'buffer_store_dwordx4 {V(d,4)}, v2, s[8:11], s28 offen offset:{1024*t3} sc1')
        k(f"""
        s_lshl_b32 s28, s20, 7
        s_add_u32 s28, s28, s22
        s_lshl_b32 s28, s28, 7
        s_add_u32 s28, s28, s56
        s_add_u32 s28, s28, {FG1:#x}""")
        if not z2:
            k(f's_mov_b32 s45, s28\ns_cmp_lt_u32 s43, s26\ns_cbranch_scc1 {q}_df')
        k(f"""
        s_waitcnt vmcnt(0)
        s_barrier
        buffer_store_dword v7, v6, s[8:11], s28 offen sc1""")
        k.label(f'{q}_df')
        stamp(k, cfg, 4)
        k(f"""
        s_mov_b32 s22, s43
        s_cmp_lt_u32 s22, s26
        s_cbranch_scc1 {q}_loop
        s_branch {end}""")
    path(False)
    k.label(f'{p}_z2')
    path(True)

def gen_g2p(k, p, end, fail, cfg):
    k(f's_load_dwordx2 s[28:29], s[0:1], {KA["b_sp"]}')
    k('s_waitcnt lgkmcnt(0)')
    k.srd(12, 28, 4096)
    acc = lambda tt, j: 64 + 4 * (6 * tt + j)
    k(f"""
    s_and_b32 s30, s20, 3
    s_lshl_b32 s30, s30, 2
    s_bfe_u32 s31, s20, 0x20002
    s_add_u32 s30, s30, s31
    s_lshr_b32 s31, s20, 4
    s_lshr_b32 s32, s21, 1
    s_and_b32 s33, s21, 1
    v_and_b32 v10, 15, v1
    v_lshlrev_b32 v10, 1, v10
    s_lshl_b32 s28, s30, 8
    s_lshl_b32 s29, s32, 7
    s_add_u32 s28, s28, s29""")
    for tt in range(4):
        k(f'buffer_load_ushort v{16+tt}, v10, s[12:15], s28 offen offset:{32*tt}')
    k(f"""
    s_add_u32 s28, s31, 4
    s_lshl_b32 s28, s28, 14
    s_add_u32 s28, s28, s56
    v_lshlrev_b32 v3, 7, v1
    v_add_u32 v3, s28, v3
    s_add_u32 s49, s28, {FG1 + 62*128:#x}
    v_mov_b32 v9, {BIG:#x}
    v_cmp_gt_u32 vcc, 62, v1
    s_lshl_b32 s28, s32, 13
    v_add_u32 v4, s28, v2
    v_cndmask_b32 v3, v9, v3, vcc
    s_mul_i32 s28, s33, 6144
    s_add_u32 s28, s28, 16384
    v_add_u32 v5, s28, v2
    s_lshl_b32 s36, s21, 12
    s_lshl_b32 s28, s30, 2
    s_add_u32 s28, s28, s21
    s_lshl_b32 s42, s28, 8
    s_add_u32 s42, s42, {FWT:#x}
    s_lshl_b32 s34, s28, 20
    s_and_b32 s28, s28, 15
    s_lshl_b32 s28, s28, 11
    s_add_u32 s34, s34, s28
    s_add_u32 s34, s34, {WSF:#x}
    v_add_u32 v12, {WST - 2048}, v2
    s_mul_i32 s37, s21, 6144
    s_add_u32 s37, s37, 16384
    s_mul_i32 s35, s31, 12288
    s_mul_i32 s28, s32, 49152
    s_add_u32 s35, s35, s28
    s_mul_i32 s28, s33, 6144
    s_add_u32 s35, s35, s28
    s_add_u32 s35, s35, {Z2F:#x}
    s_mov_b32 s38, {FG1:#x}
    v_mov_b32 v8, 0
    v_and_b32 v9, 1, v1
    v_lshlrev_b32 v9, 7, v9""")
    poll_flag(k, f'{p}_fw', 9, 's42', 11, fail, sleep=4)
    for tt in range(4):
        k(f'v_lshlrev_b32 v{16+tt}, 16, v{16+tt}')
        for i in range(24): k(f'v_mov_b32 v{acc(tt,0)+i}, v{16+tt}')
    k('s_mov_b32 s40, 0\ns_mov_b32 s22, -1\ns_barrier')
    k(f"""
    s_lshl_b32 s28, s30, 2
    s_lshl_b32 s29, s32, 1
    s_add_u32 s28, s28, s29
    s_lshl_b32 s42, s31, 7
    s_add_u32 s42, s42, s28
    s_lshl_b32 s42, s42, 7
    s_add_u32 s42, s42, {FG1:#x}
    s_add_u32 s42, s42, s56
    s_mul_i32 s43, s28, 49152
    s_lshl_b32 s29, s28, 20
    s_and_b32 s28, s28, 15
    s_lshl_b32 s28, s28, 11
    s_add_u32 s29, s29, s28
    s_add_u32 s29, s29, {WSF + 62*1024:#x}
    s_mul_i32 s28, s31, 6144
    s_add_u32 s43, s43, s28
    s_mul_i32 s28, s33, 3072
    s_add_u32 s43, s43, s28
    s_add_u32 s57, s43, {Z1F:#x}
    s_add_u32 s43, s43, {YF:#x}
    v_lshlrev_b32 v10, 3, v1
    s_mov_b32 s54, 0xffff0000""")
    for tt in range(4):
        k(f's_add_u32 s28, s29, {(tt>>1)*(0x100000 + 2048) + (tt&1)*WST}')
        for h_ in range(2): k(f'buffer_load_dwordx4 {A(160+8*tt+4*h_,4)}, v2, s[8:11], s28 offen offset:{1024*h_} sc1')
    def unpack(lo, hi):
        for i in range(lo, hi):
            k(f'v_lshlrev_b32 v{160+2*i}, 16, v{16+i}')
            k(f'v_and_b32 v{161+2*i}, s54, v{16+i}')
    def z1load(t0, t1):
        for tt in range(t0, t1):
            k(f's_add_u32 s28, s57, {24576*tt}')
            for j in range(6):
                k(f'buffer_load_dwordx2 {V(16+12*tt+2*j,2)}, v10, s[8:11], s28 offen offset:{512*j} sc1')
    NB = 11
    FLG = 'buffer_load_dword v8, v3, s[8:11], s38 offen sc1'
    batch = ['s_and_b32 s28, s40, 3\ns_mul_i32 s28, s28, 40960', 's_add_u32 m0, s28, s36\ns_add_u32 s40, s40, 1'] + \
            [f'buffer_load_dwordx4 v{(2,2,12,12)[i]}, s[8:11], s34 offen offset:{1024*i} sc1 lds' for i in range(4)] + \
            ['s_add_u32 m0, s28, s37\ns_add_u32 s34, s34, 2048'] + \
            [f'buffer_load_dwordx4 v2, s[8:11], s35 offen offset:{1024*i} sc1 lds' for i in range(3)] + \
            ['s_add_u32 m0, m0, 3072\ns_add_u32 s35, s35, 3072'] + \
            [f'buffer_load_dwordx4 v2, s[8:11], s35 offen offset:{1024*i} sc1 lds' for i in range(3)] + \
            [FLG + f'\ns_add_u32 s35, s35, {98304 - 3072}']
    rorder = []
    for h_ in range(2): rorder += [('z', h_, 0), ('w', h_, 0)] + [('z', h_, j) for j in range(1, 6)] + [('w', h_, t) for t in range(1, 4)]
    freg = lambda st, f: 80 * st + 40 * f[1] + (4 * f[2] if f[0] == 'z' else 24 + 4 * f[2])
    def reads(st):
        return [f'ds_read_b128 {A(freg(st,f),4)}, ' + (f'v7 offset:{12288*f[1] + 1024*f[2]}' if f[0] == 'z' else f'v6 offset:{2048*f[2] + 1024*f[1]}') for f in rorder]
    addr = 's_add_u32 s29, s22, 1\ns_and_b32 s29, s29, 3\ns_mul_i32 s29, s29, 40960\nv_add_u32 v6, s29, v4\nv_add_u32 v7, s29, v5'
    def mf(st, i):
        h_, tt, j = i // 24, (i % 24) // 6, i % 6
        return f'{MF} {V(acc(tt,j),4)}, {A(freg(st,("z",h_,j)),4)}, {A(freg(st,("w",h_,tt)),4)}, {V(acc(tt,j),4)}'
    rdy = 's_lshl_b32 s46, s40, 1\ns_add_u32 s46, s46, s32\ns_nop 0\ns_lshr_b64 s[44:45], s[44:45], s46\ns_nop 0\ns_nop 0'.split('\n')
    def late(st):
        k.label(f'{p}_late{st}')
        k(f's_cmp_eq_u32 s22, 30\ns_cbranch_scc1 {p}_fin\ns_mov_b32 s39, 0')
        k('s_lshl_b32 s46, s40, 1\ns_lshl_b64 s[50:51], 15, s46')
        k.label(f'{p}_lp{st}')
        k('s_mov_b64 exec, s[50:51]')
        k(FLG)
        k('s_mov_b64 exec, -1')
        tmo(k, fail)
        k('s_waitcnt vmcnt(0)\nv_cmp_ne_u32 s[44:45], 0, v8\ns_nop 3')
        for s_ in rdy: k(s_)
        k(f"""
        s_bitcmp1_b32 s44, 0
        s_cbranch_scc1 {p}_lr{st}
        s_mov_b32 s47, {st}
        s_cmp_eq_u32 s48, 0
        s_cbranch_scc1 {p}_tz""")
        k.label(f'{p}_tzr{st}')
        k(f"""
        s_sleep 1
        s_cmp_ge_i32 s22, 29
        s_cbranch_scc1 {p}_lp{st}
        s_sleep {2 * cfg.get('slow', 12)}
        s_branch {p}_lp{st}""")
        k.label(f'{p}_lr{st}')
        for s_ in batch: k(s_)
        k(addr)
        k(f's_bitcmp1_b32 s44, 2\ns_cbranch_scc0 {p}_l0{st}')
        for s_ in batch: k(s_)
        k(f's_waitcnt vmcnt({NB})\ns_branch {p}_l1{st}')
        k.label(f'{p}_l0{st}')
        k('s_waitcnt vmcnt(0)')
        k.label(f'{p}_l1{st}')
        k('s_barrier')
        for s_ in reads(st): k(s_)
        k(f's_add_u32 s22, s22, 1\ns_branch {p}_it{st}')
    k(f's_mov_b32 s48, 0\ns_branch {p}_late0')
    NF = 14
    for st in range(2):
        k.label(f'{p}_it{st}')
        if cfg.get('stamp') == 99 and st == 0:
            for i_, st_ in ((1, 0), (2, 8), (3, 16), (4, 24)): stamp(k, dict(stamp=st_), i_)
        waits = {0: 15, 4: 13, 6: 12, 12: 0}
        extra = {1: 'v_cmp_ne_u32 s[44:45], 0, v8', 2: 's_add_u32 s29, s22, 1\ns_and_b32 s29, s29, 3', 4: 's_mul_i32 s29, s29, 40960\nv_add_u32 v6, s29, v4',
                 6: 's_sub_u32 s41, s40, s22\nv_add_u32 v7, s29, v5', 7: rdy[0] + '\n' + rdy[1], 8: rdy[2] + '\n' + rdy[3], 9: rdy[4] + '\n' + rdy[5],
                 10: 's_cmp_lt_u32 s41, 4\ns_cselect_b32 s46, 5, 1', 12: 's_and_b32 s44, s44, s46\ns_cmp_eq_u32 s41, 4'}
        for i in range(NF):
            if i in waits: k(f's_waitcnt lgkmcnt({waits[i]})')
            k(mf(st, i))
            if i in extra: k(extra[i])
        k(f's_cbranch_scc0 {p}_n0{st}\ns_waitcnt vmcnt({2*NB})')
        k.label(f'{p}_n1{st}')
        k(mf(st, NF))
        k(f's_barrier\ns_cmp_eq_u32 s44, 1')
        k(mf(st, NF + 1))
        k(f's_cbranch_scc0 {p}_bd{st}')
        def rest(nb):
            r = reads(1 - st); b = list(batch) * nb if nb else [FLG]
            for i in range(NF + 2, 48):
                k(mf(st, i))
                n_ = i - NF - 2
                if n_ < 10:
                    k(r.pop(0)); k(r.pop(0))
                else:
                    for _ in range(2 if nb == 2 and len(b) > 47 - i else 1):
                        if b: k(b.pop(0))
                if i == 46: k('s_add_u32 s22, s22, 1')
            assert not r and not b
            k(f's_branch {p}_it{1-st}')
        rest(1)
        k.label(f'{p}_bd{st}')
        k(f's_cmp_eq_u32 s44, 5\ns_cbranch_scc1 {p}_d{st}')
        rest(0)
        k.label(f'{p}_d{st}')
        rest(2)
        k.label(f'{p}_n0{st}')
        k(f's_cmp_eq_u32 s41, 1\ns_cbranch_scc1 {p}_c{st}\ns_cmp_eq_u32 s41, 2\ns_cbranch_scc1 {p}_n00{st}\ns_waitcnt vmcnt({NB})\ns_branch {p}_n1{st}')
        k.label(f'{p}_n00{st}')
        k(f's_waitcnt vmcnt(0)\ns_branch {p}_n1{st}')
        k.label(f'{p}_c{st}')
        for i in range(NF, 48): k(mf(st, i))
        late(1 - st)
    k.label(f'{p}_tz')
    k(f'buffer_load_dword v11, v9, s[8:11], s42 offen sc1\ns_waitcnt vmcnt(0)\nv_cmp_eq_u32 vcc, 0, v11\ns_cbranch_vccnz {p}_tzn')
    z1load(0, 4)
    k('s_mov_b32 s48, 1\ns_waitcnt vmcnt(0)')
    unpack(0, 48)
    k.label(f'{p}_tzn')
    k(f's_cmp_eq_u32 s47, 0\ns_cbranch_scc1 {p}_tzr0\ns_branch {p}_tzr1')
    k.label(f'{p}_fin')
    k(f"""
    s_mul_i32 s35, s31, 12288
    s_mul_i32 s28, s33, 6144
    s_add_u32 s35, s35, s28
    s_add_u32 s35, s35, {Z2F + 62*49152:#x}
    v_mov_b32 v9, 0""")
    def last(h_, unp):
        q = f'{p}_{h_}{int(unp)}'
        if unp:
            poll_flag(k, f'{q}_fz', 9, 's42', 11, fail, sleep=1)
            z1load(2 * h_, 2 * h_ + 2)
        poll_flag(k, f'{q}_fl', 9, 's49', 11, fail, sleep=1)
        if h_ and cfg.get('stamp') == 63: ustamp(k, cfg, 2)
        k('s_add_u32 s28, s35, 3072')
        for j in range(6): k(f'buffer_load_dwordx4 {A(32+4*j,4)}, v2, s[8:11], {"s35" if j < 3 else "s28"} offen offset:{1024*(j%3)} sc1')
        if unp: unpack(24 * h_, 24 * h_ + 24)
        for j in range(6):
            k(f's_waitcnt vmcnt({5-j})')
            for tt in range(4): k(f'{MF} {V(acc(tt,j),4)}, {A(32+4*j,4)}, {A(160+8*tt+4*h_,4)}, {V(acc(tt,j),4)}')
        if h_ == 0: k('s_add_u32 s35, s35, 49152\ns_add_u32 s49, s49, 128\ns_add_u32 s42, s42, 128')
    k(f's_cmp_eq_u32 s48, 0\ns_cbranch_scc1 {p}_fin2')
    last(0, False); last(1, False)
    k(f's_branch {p}_epi')
    k.label(f'{p}_fin2')
    last(0, True); last(1, True)
    k.label(f'{p}_epi')
    if cfg.get('stamp') == 63: ustamp(k, cfg, 3)
    for j in range(3):
        for tt in range(4):
            d = 16 + 4 * (4 * j + tt); a = acc(tt, 2 * j)
            for i in range(4): k(f'v_pk_mul_f32 {V(a+2*i,2)}, {V(a+2*i,2)}, {V(96+a+2*i,2)}')
            k(f's_add_u32 s28, s43, {24576*tt}')
            for i in range(4): k(f'v_cvt_pk_bf16_f32 v{d+i}, v{a+2*i}, v{a+2*i+1}')
            k(f'buffer_store_dwordx4 {V(d,4)}, v2, s[8:11], s28 offen offset:{1024*j} sc1')
    k(f"""
    s_lshl_b32 s28, s30, 1
    s_add_u32 s28, s28, s32
    s_lshl_b32 s28, s28, 3
    s_lshl_b32 s29, s31, 1
    s_add_u32 s28, s28, s29
    s_add_u32 s28, s28, s33
    s_lshl_b32 s28, s28, 7
    s_add_u32 s28, s28, {FY:#x}
    v_mov_b32 v6, {BIG:#x}
    v_cmp_gt_u32 vcc, {FW}, v1
    v_lshlrev_b32 v7, 2, v1
    s_nop 0
    v_cndmask_b32 v6, v6, v7, vcc
    v_mov_b32 v7, 1
    s_waitcnt vmcnt(0)
    buffer_store_dword v7, v6, s[8:11], s28 offen sc1
    s_branch {end}""")

def gen_wo(k, p, cfg):
    k(f"""
    s_load_dwordx2 s[28:29], s[0:1], {KA['w_out']}
    v_lshrrev_b32 v4, 2, v1
    v_and_b32 v5, 3, v1
    v_mul_u32_u24 v6, 1280, v4
    v_lshl_add_u32 v6, v5, 4, v6
    v_lshlrev_b32 v7, 6, v4
    v_lshl_add_u32 v7, v5, 3, v7
    s_mul_i32 s32, s21, 24576
    v_add_u32 v7, s32, v7
    s_lshl_b32 s34, s20, 2
    s_add_u32 s34, s34, s21
    s_lshl_b32 s33, s34, 6
    s_mul_i32 s34, s34, 49152
    s_add_u32 s34, s34, {WOF:#x}
    s_mov_b32 s35, 2
    s_waitcnt lgkmcnt(0)""")
    k.srd(12, 28, 768 * 1280)
    k.label(f'{p}_r')
    for i in range(24):
        k(f's_add_u32 m0, s32, {1024*i}\ns_add_u32 s28, s33, {i*16*1280}')
        k('buffer_load_dwordx4 v6, s[12:15], s28 offen lds')
    k('s_waitcnt vmcnt(0)')
    for kk in range(12):
        for c in range(2):
            for hf in range(2):
                k(f'ds_read_b64_tr_b16 {V(16+8*kk+4*c+2*hf,2)}, v7 offset:{(32*kk+16*hf)*64 + 32*c}')
    k('s_waitcnt lgkmcnt(0)')
    for i in range(24):
        k(f'buffer_store_dwordx4 {V(16+4*i,4)}, v2, s[8:11], s34 offen offset:{1024*(i%4)} sc1')
        if i % 4 == 3: k('s_add_u32 s34, s34, 4096')
    k(f's_add_u32 s33, s33, {24*16*1280}\ns_sub_u32 s35, s35, 1\ns_cmp_lg_u32 s35, 0\ns_cbranch_scc1 {p}_r')
    flag_addr(k, 6)
    k(f's_mov_b32 s28, {FWO:#x}\ns_waitcnt vmcnt(0)\ns_barrier\nbuffer_store_dword v7, v6, s[8:11], s28 offen sc1')

def gen_g3p(k, p, end, fail, cfg):
    k(f"""
    s_load_dwordx2 s[28:29], s[0:1], {KA['out']}
    v_mbcnt_lo_u32_b32 v1, -1, 0
    v_mbcnt_hi_u32_b32 v1, -1, v1
    s_and_b32 s22, s20, 31
    s_lshr_b32 s20, s20, 5
    v_lshlrev_b32 v2, 4, v1
    v_mov_b32 v9, 0
    s_lshl_b32 s42, s20, 7
    s_add_u32 s42, s42, {FWO:#x}
    s_waitcnt vmcnt(0) lgkmcnt(0)
    s_barrier""")
    k.srd(16, 28, 2048 * 1280)
    poll_flag(k, f'{p}_fw', 9, 's42', 11, fail, sleep=8)
    k(f"""
    s_lshl_b32 s33, s20, 2
    s_add_u32 s33, s33, s21
    s_mul_i32 s34, s33, 49152
    s_add_u32 s34, s34, {WOF:#x}""")
    for i in range(48):
        k(f'buffer_load_dwordx4 {A(4*i,4)}, v2, s[8:11], s34 offen offset:{1024*(i%4)} sc1')
        if i % 4 == 3: k('s_add_u32 s34, s34, 4096')
    k(f"""
    s_mul_i32 s32, s21, 24576
    v_and_b32 v8, 15, v1
    v_lshrrev_b32 v9, 4, v1
    v_mul_u32_u24 v8, 1280, v8
    v_and_b32 v10, 1, v9
    v_lshl_add_u32 v8, v10, 5, v8
    v_lshrrev_b32 v10, 1, v9
    v_lshl_add_u32 v8, v10, 4, v8
    s_mul_i32 s36, s22, 81920
    s_lshl_b32 s37, s33, 10
    s_add_u32 s37, s37, s36
    s_add_u32 s37, s37, {HH:#x}
    s_lshl_b32 s28, s33, 6
    s_add_u32 s36, s36, s28
    v_and_b32 v9, 7, v1
    v_lshlrev_b32 v9, 7, v9
    s_lshl_b32 s42, s22, 10
    s_add_u32 s42, s42, {FY:#x}
    s_mul_i32 s34, s22, 98304
    s_add_u32 s34, s34, s32
    s_add_u32 s34, s34, {YF:#x}
    v_add_u32 v10, 49152, v2
    s_waitcnt vmcnt(0)
    s_cmp_lg_u32 s21, 0
    s_cbranch_scc1 {p}_go""")
    ustamp(k, cfg, 2) if cfg.get('stamp') == 98 else None
    k(f'v_mov_b32 v12, 0\ns_add_u32 s43, s56, {(FH + 63*4096, FG1 + 62*128, FG1 + 4*16384 + 62*128)[cfg.get("g3c", 2)]:#x}')
    poll_flag(k, f'{p}_fe', 12, 's43', 11, fail, sleep=cfg.get('g3s', 16))
    if cfg.get('g3one', 0):
        k('s_lshl_b32 s43, s20, 7\ns_add_u32 s43, s43, s42')
        poll_flag(k, f'{p}_fo', 12, 's43', 11, fail, sleep=cfg.get('sl5', 2))
    poll_flag(k, f'{p}_fy', 9, 's42', 11, fail, sleep=cfg.get('sl5', 2))
    k.label(f'{p}_go')
    k('s_barrier')
    ustamp(k, cfg, 3) if cfg.get('stamp') == 98 else None
    k.vd = k.vc
    acc = lambda tt, c: 32 + 8 * tt + 4 * c
    mats = []; items = []; ev = []
    NUP = cfg.get('g3up', 3)
    for j in range(6):
        g_ = -9 if j < NUP else 18 * (j - NUP) + 1
        ev.append((g_, dict(id=('m', j), kind='n', fn=f's_add_u32 m0, s32, {4096*j}\ns_add_u32 s28, s34, {4096*j}')))
        for i in range(4):
            ev.append((g_ if j < NUP else g_ + 2 + 4 * i, dict(id=('d', 4 * j + i), kind='n', vm=True, fn=f'buffer_load_dwordx4 v2, s[8:11], s28 offen offset:{1024*i} sc1 lds')))
    for tt in range(4):
        ev.append((81 + 4 * tt, dict(id=('h', tt), kind='n', vm=True, fn=f's_add_u32 s28, s37, {20480*tt}\nbuffer_load_dwordx4 {V(16+4*tt,4)}, v2, s[8:11], s28 offen sc1')))
    XR = [64 + 4 * i for i in range(12)]
    stages = {0: 1, 2: 3, 4: 7, 8: 11, 12: 15, 16: 19, 20: 23}
    for kk in range(24):
        if kk in stages:
            g_ = max(8 * kk - 12, -1)
            ev.append((g_ - 0.4, dict(id=('b', kk), kind='bar', fn='s_barrier', vdeps=[('d', stages[kk])], g=g_)))
        for tt in range(4):
            n = 4 * kk + tt; r = XR[n % 12]
            ev.append((max(2 * n - 12, -1), dict(id=('x', n), kind='n', lds=True, fn=f'ds_read_b128 {V(r,4)}, {"v2" if tt < 2 else "v10"} offset:{(tt&1)*24576 + kk*1024}')))
            for c in range(2):
                a = V(acc(tt, c), 4)
                mats.append((f'{MF} {a}, {A(8*kk+4*c,4)}, {V(r,4)}, {"0" if kk == 0 else a}', [('x', n)]))
    ev.sort(key=lambda x: x[0])
    for g_, it in ev:
        it['after'] = it.get('g', g_); items.append(it)
    sched(k, mats, items, [False] * 192, pre_n=5 * NUP + 7)
    ustamp(k, cfg, 4) if cfg.get('stamp') == 98 else None
    k('s_mov_b32 s46, 0xffff0000\ns_waitcnt vmcnt(0)')
    for tt in range(4):
        for i in range(4):
            k(f'v_lshlrev_b32 v{64+2*i}, 16, v{16+4*tt+i}')
            k(f'v_and_b32 v{65+2*i}, s46, v{16+4*tt+i}')
        for i in range(4):
            a = acc(tt, 0) + 2 * i
            k(f'v_pk_add_f32 {V(a,2)}, {V(a,2)}, {V(64+2*i,2)}')
        for i in range(4):
            a = acc(tt, 0) + 2 * i
            k(f'v_cvt_pk_bf16_f32 v{16+4*tt+i}, v{a}, v{a+1}')
        k(f's_add_u32 s28, s36, {20480*tt}\nv_permlane16_swap_b32 v{16+4*tt}, v{18+4*tt}\nv_permlane16_swap_b32 v{17+4*tt}, v{19+4*tt}')
        k(f'buffer_store_dwordx4 {V(16+4*tt,4)}, v8, s[16:19], s28 offen{cfg.get("ost", " sc1")}')
    k(f's_branch {end}')

def header():
    ref = open('cdna_kernels/' + NAME + '.s.ref').read().split('\n')
    out = []
    for line in ref:
        if line.startswith('; Override') : break
        out.append(line)
    return '\n'.join(out) + '\n'

def build_all(cfg):
    global NT1, NT2, RING, RING2, LST, TOUCH, FW, CORD
    CORD = cfg.get('cord', [0, 1, 2, 3, 4, 5, 7, 8, 9, 6])
    FW = cfg.get('fw', 32)
    TOUCH = cfg.get('touch', 0)
    LST = cfg.get('stamp') == 97
    RING = cfg.get('ring', 64); RING2 = cfg.get('ring2', 64)
    NT1 = ' nt' if cfg.get('nt1', 1) else ''
    NT2 = ' nt' if cfg.get('nt2', 1) else ''
    k = K()
    gen_mega_kernel(k, 'mega_kernel', cfg)
    body = k.text().replace('mega_kernel_', 'M_')
    kn = 'mega_kernel' if cfg.get('list', 1) else NAME + '_kernel'
    la = f'; @launch {"kernel=mega_kernel " if cfg.get("list", 1) else ""}grid=(256,1,1) block=(256,1,1) lds={LDS_BYTES}\n'
    return header() + la + '.amdgcn_target "amdgcn-amd-amdhsa--gfx950"\n.text\n' + body.replace('mega_kernel', kn) + '.section .rodata,"a"\n' + descriptor(kn, 512, 256)

if __name__ == '__main__':
    cfg = eval(sys.argv[2]) if len(sys.argv) > 2 else {}
    txt = build_all(cfg)
    open(sys.argv[1] if len(sys.argv) > 1 else 'cur.s', 'w').write(txt)
```

```python
import sys
from asmlib import *

NAME = 'sequential_preLN__memory_aug_recurrent_mem_tr__mixer_gmlp__prompt'
KA = dict(x=0, mem0=8, Wq=16, Wk=24, Wv=32, Wo=40, w_in=64, w_sp=72, b_sp=80, w_out=88, out=96, dbg=104, ws=112)
WS_BYTES = 0x10000000
WBYTES = 640 * 6144 * 2
XN   = 0x0000000
FL   = 0x0800000
FU, FQK, FKM, FPX = FL, FL + 0x40000, FL + 0xC0000, FL + 0x100000
DUMMY = 0x09C0000
STAMPS = 0x0C30000
TRACE = 0x0D00000
ST   = 0x0C00000
ZR   = 0x0A00000
QF   = 0x1000000
UF   = 0x4000000
ZM   = 0xC000000
KM   = 0xA400000
PX   = 0xAA00000
HH   = 0xB000000
Z1F  = 0xB400000
Z2F  = 0xB800000
YF   = 0xBC00000
VF   = 0x9000000
FP1  = 0x0880000
FH   = 0x0940000
FG1  = 0x0986000
FWT  = 0x09A8000
FY   = 0x09AC000
WSF  = ZM + 0xD0000
WST  = 66560
MB   = ZM + 0xC0000
WOF  = 0xA000000
FWO  = 0x09B4000
P_OFF, M_OFF = 0, 20480
LDS_BYTES = 163840
WL = 0
BIG = 0x7ff00000

def mbmap(off):
    return (off >> 13) * 16384 + (off & 8191)

def v_mbmap(k, d, t):
    k(f'v_lshrrev_b32 v{t}, 13, v{d}')
    k(f'v_lshlrev_b32 v{t}, 13, v{t}')
    k(f'v_add_u32 v{d}, v{d}, v{t}')

NINIT = 96
def dbg_srd(k):
    k.srd(88, 4, 256)

TOUCH = 0
def init_done(k, p):
    if TOUCH:
        k(f'v_and_b32 v8, 127, v0\nv_lshlrev_b32 v8, 21, v8\nv_add_u32 v8, 0xa0000, v8\nbuffer_load_dword v9, v8, s[8:11], 0 offen')
    if LST: k('s_memrealtime s[60:61]\ns_waitcnt vmcnt(0)\ns_memrealtime s[62:63]')
    k(f"""
    s_waitcnt vmcnt(0)
    s_barrier
    s_cmp_lg_u32 s21, 0
    s_cbranch_scc1 {p}_id
    s_lshl_b32 s34, s34, 16
    s_add_u32 s34, s34, 1
    v_mov_b32 v8, s34
    v_mov_b32 v9, {BIG:#x}
    v_cmp_eq_u32 vcc, 0, v1
    s_nop 1
    v_cndmask_b32_e64 v9, v9, 0, vcc
    s_cmp_ge_u32 s35, 2
    s_cbranch_scc1 {p}_na
    s_lshl_b32 s35, s35, 2
    buffer_store_dword v8, v9, s[88:91], s35 offen offset:132 sc1""")
    k.label(f'{p}_na')
    k(f"""
    buffer_atomic_add v8, v9, s[88:91], 0 offen sc0 sc1
    s_waitcnt vmcnt(0)
    v_readfirstlane_b32 s28, v8
    s_add_u32 s28, s28, s34
    s_and_b32 s29, s28, 0xffff
    s_cmp_lg_u32 s29, {NINIT}
    s_cbranch_scc1 {p}_id
    s_lshr_b32 s28, s28, 16
    s_cmp_gt_u32 s28, 32
    s_cselect_b32 s28, 2, 1
    v_mov_b32 v8, s28
    buffer_store_dword v8, v9, s[88:91], 0 offen offset:128 sc1""")
    k.label(f'{p}_id')

def gen_init_ln(k, p):
    k(f's_load_dwordx2 s[28:29], s[0:1], {KA["x"]}')
    k(f"""
    v_lshlrev_b32 v2, 4, v1
    v_and_b32 v3, 15, v1
    v_lshrrev_b32 v4, 4, v1
    v_mul_u32_u24 v5, 1280, v3
    v_lshl_add_u32 v5, v4, 4, v5
    s_min_u32 s31, s30, 63
    s_mul_i32 s31, s31, 40960
    s_lshr_b32 s32, s21, 1
    s_mul_i32 s32, s32, 20480
    s_and_b32 s33, s21, 1
    s_mul_i32 s33, s33, 640
    s_add_u32 s32, s32, s33
    s_add_u32 s32, s32, s31
    s_waitcnt lgkmcnt(0)""")
    k.srd(12, 28, 2048 * 1280)
    for i in range(10):
        k(f'buffer_load_dwordx4 {V(16+4*i,4)}, v5, s[12:15], s32 offen offset:{64*i}')
    rot_wait(k, 8)
    k(f"""
    v_lshlrev_b32 v6, 4, v0
    v_mov_b32 v8, 0
    v_mov_b32 v9, 0
    v_mov_b32 v10, 0
    v_mov_b32 v11, 0
    s_mul_i32 s28, s30, 24576
    s_add_u32 s28, s28, {FL:#x}""")
    for j in range(6):
        k('buffer_store_dwordx4 v[8:11], v6, s[8:11], s28 offen sc1\ns_add_u32 s28, s28, 4096')
    k(f"""
    v_mov_b32 v60, -1
    v_mov_b32 v61, -1
    v_mov_b32 v62, -1
    v_mov_b32 v63, -1
    s_lshr_b32 s28, s30, 1
    s_mul_i32 s28, s28, 24576
    s_min_u32 s28, s28, {0xD0000 - 24576:#x}
    s_and_b32 s29, s30, 1
    s_lshl_b32 s29, s29, 20
    s_add_u32 s28, s28, s29
    s_add_u32 s28, s28, {ZM:#x}""")
    for j in range(6):
        k('buffer_store_dwordx4 v[60:63], v6, s[8:11], s28 offen sc1\ns_add_u32 s28, s28, 4096')
    k(f"""
    s_cmp_ge_u32 s30, 64
    s_cbranch_scc1 {p}_nl
    s_mov_b32 s34, 0x3f803f80
    s_mov_b32 s35, 0xffff0000
    s_lshl_b32 s28, s21, 7
    v_lshlrev_b32 v7, 3, v3
    v_add_u32 v7, s28, v7
    v_xor_b32 v6, 128, v7
    s_waitcnt vmcnt(12)""")
    for i in range(0, 40, 2):
        c = (lambda r: '0') if i == 0 else (lambda r: f'v{r}')
        k(f'v_dot2_f32_bf16 v12, v{16+i}, s34, {c(12)}')
        k(f'v_dot2_f32_bf16 v13, v{16+i}, v{16+i}, {c(13)}')
        k(f'v_dot2_f32_bf16 v14, v{17+i}, s34, {c(14)}')
        k(f'v_dot2_f32_bf16 v15, v{17+i}, v{17+i}, {c(15)}')
    k.nop(3)
    k('v_pk_add_f32 v[12:13], v[12:13], v[14:15]')
    for sw in ('v_permlane32_swap_b32', 'v_permlane16_swap_b32'):
        k(f'v_mov_b32 v14, v12\nv_mov_b32 v15, v13\ns_nop 1\n{sw} v12, v14\n{sw} v13, v15\nv_pk_add_f32 v[12:13], v[12:13], v[14:15]')
    k(f"""
    ds_write_b64 v7, v[12:13]
    s_waitcnt lgkmcnt(0)
    s_barrier
    ds_read_b64 v[14:15], v6
    s_mul_i32 s28, s21, 10240
    s_add_u32 s31, s31, s28
    s_waitcnt lgkmcnt(0)
    v_pk_add_f32 v[12:13], v[12:13], v[14:15]
    v_mul_f32 v12, {1.0/640!r}, v12
    v_mul_f32 v13, {1.0/640!r}, v13
    v_fma_f32 v13, -v12, v12, v13
    v_max_f32 v13, 0, v13
    v_add_f32 v13, 1e-5, v13
    v_rsq_f32 v14, v13
    s_nop 0
    v_mul_f32_e64 v12, -v12, v14""")
    for i in range(10):
        for j in range(4):
            r = 16 + 4 * i + j; tp = 56 + 2 * (j & 1)
            k(f'v_lshlrev_b32 v{tp}, 16, v{r}')
            k(f'v_and_b32 v{tp+1}, s35, v{r}')
            k(f'v_pk_fma_f32 {V(tp,2)}, {V(tp,2)}, v[14:15], v[12:13] op_sel_hi:[1,0,0]')
            k(f'v_cvt_pk_bf16_f32 v{r}, v{tp}, v{tp+1}')
        k(f'buffer_store_dwordx4 {V(16+4*i,4)}, v2, s[8:11], s31 offen offset:{1024*(i%4)} sc1')
        if i % 4 == 3: k('s_add_u32 s31, s31, 4096')
    k.label(f'{p}_nl')
    k('s_mov_b32 s34, 0\ns_mov_b32 s35, s30')
    init_done(k, p)

def gen_init_x(k, p):
    k(f"""
    s_load_dwordx2 s[28:29], s[0:1], {KA["mem0"]}
    v_lshlrev_b32 v5, 4, v0
    s_lshl_b32 s31, s30, 12
    v_add_u32 v8, s31, v5
    v_lshrrev_b32 v9, 8, v8
    v_bfe_u32 v10, v8, 5, 1
    v_lshl_add_u32 v9, v9, 1, v10
    v_bfe_u32 v10, v8, 6, 2
    v_bfe_u32 v11, v8, 4, 1
    v_lshl_add_u32 v10, v10, 1, v11
    v_mul_u32_u24 v10, 1280, v10
    v_lshl_add_u32 v10, v9, 4, v10
    v_mov_b32 v11, {BIG:#x}
    v_cmp_gt_u32 vcc, 10240, v8
    v_add_u32 v8, {M_OFF}, v8""")
    v_mbmap(k, 8, 9)
    k(f"""
    v_cndmask_b32 v10, v11, v10, vcc
    v_cndmask_b32 v8, v11, v8, vcc
    v_lshlrev_b32 v6, 2, v1
    s_mov_b32 s36, -1
    s_mov_b32 s37, -1
    s_lshl_b32 s38, s30, 14
    s_lshl_b32 s33, s21, 11
    s_add_u32 s38, s38, s33
    s_add_u32 s38, s38, {ZR + 0xB0000:#x}
    s_waitcnt lgkmcnt(0)""")
    k.srd(12, 28, 8 * 1280)
    k('buffer_load_dwordx4 v[16:19], v10, s[12:15], 0 offen\nbuffer_store_dword v6, v6, s[8:11], s38 offen sc1\ns_waitcnt vmcnt(0)')
    for rep in range(5):
        for hf in ((0, 1), (1, 0))[rep & 1]:
            k(f"""
            s_add_u32 s33, s38, {hf*8192 + rep*256 + 512}
            s_memtime s[40:41]
            s_waitcnt lgkmcnt(0)
            buffer_store_dword v6, v6, s[8:11], s33 offen sc1
            s_waitcnt vmcnt(0)
            s_memtime s[42:43]
            s_waitcnt lgkmcnt(0)
            s_sub_u32 s42, s42, s40
            s_min_u32 s{36+hf}, s{36+hf}, s42""")
    rot_wait(k, 12)
    k(f"""
    v_mov_b32 v12, -1
    v_mov_b32 v13, -1
    v_mov_b32 v14, -1
    v_mov_b32 v15, -1
    s_add_u32 s29, s31, {ST:#x}
    buffer_store_dwordx4 v[12:15], v5, s[8:11], s29 offen sc1
    s_and_b32 s28, s31, 0x7000
    s_add_u32 s29, s28, {ZR + 0xA0000:#x}
    s_add_u32 s28, s28, {ST + 0x10000:#x}
    s_cmp_lt_u32 s30, 8
    s_cselect_b32 s29, s29, s28
    buffer_store_dwordx4 v[12:15], v5, s[8:11], s29 offen sc1
    s_mov_b32 s28, {MB - 0x100000:#x}
    s_mov_b32 s29, {MB - 0x100000 + 8192:#x}
    v_min_u32 v16, -2, v16
    v_min_u32 v17, -2, v17
    v_min_u32 v18, -2, v18
    v_min_u32 v19, -2, v19
    buffer_store_dwordx4 v[16:19], v8, s[8:11], s28 offen sc1
    buffer_store_dwordx4 v[16:19], v8, s[8:11], s29 offen sc1
    s_cmp_lt_u32 s37, s36
    s_cselect_b32 s34, 1, 0
    s_lshl_b32 s28, s21, 2
    v_mov_b32 v4, s28
    v_mov_b32 v7, s34
    ds_write_b32 v4, v7
    v_mov_b32 v4, 0
    s_waitcnt lgkmcnt(0)
    s_barrier
    ds_read_b128 v[20:23], v4
    s_waitcnt lgkmcnt(0)
    v_add3_u32 v20, v20, v21, v22
    v_add_u32 v20, v20, v23
    s_nop 0
    v_readfirstlane_b32 s34, v20
    s_mov_b32 s35, 2""")
    init_done(k, p)

class Wmap:
    def __init__(self, keys, size, ldskeys):
        self.size = size; self.loc = {}; self.tmp = {}; self.slot = {}
        a = 0; v = 128; t = 32
        for key in keys:
            if key in ldskeys:
                self.tmp[key] = ('v', t); self.slot[key] = (t - 32) // 4; t += size
            elif a < 256:
                self.loc[key] = ('a', a); a += size
            else:
                self.loc[key] = ('v', v); v += size
        assert a == 256 and v == 256 and t == 128, (a, v, t)
    def ld(self, key):
        return self.loc.get(key) or self.tmp[key]

NT1 = ''
NT2 = ''
LST = False
def lstamp(k, c):
    if LST and c in (0, 3, 6, 9): k(f's_memrealtime s[{60+2*(c//3)}:{61+2*(c//3)}]')

def gen_loader(k, kind, sparse, wm, early=lambda: None):
    k.c('---- weight loader')
    for i in range(3):
        k(f'v_add_u32 v8, {64*i}, v1')
        k(f'v_mul_u32_u24 v9, 2731, v8')
        k(f'v_lshrrev_b32 v9, 16, v9')
        k(f'v_mul_u32_u24 v10, 24, v9')
        k(f'v_sub_u32 v10, v8, v10')
        k(f'v_mul_u32_u24 v9, 12288, v9')
        k(f'v_lshl_add_u32 v{4+i}, v10, 4, v9')
    k('''
    v_lshrrev_b32 v8, 3, v1
    v_mul_u32_u24 v8, 1280, v8
    v_and_b32 v9, 7, v1
    v_lshl_add_u32 v7, v9, 4, v8
    v_lshrrev_b32 v8, 4, v1
    v_bfe_u32 v9, v1, 2, 2
    v_and_b32 v10, 3, v1''')
    if sparse:
        k('''
        v_lshrrev_b32 v11, 1, v8
        v_lshlrev_b32 v11, 4, v11
        v_and_b32 v12, 1, v8
        v_lshl_add_u32 v11, v12, 2, v11
        v_and_b32 v12, 1, v9
        v_add_u32 v11, v11, v12
        v_lshrrev_b32 v12, 1, v9
        v_lshl_add_u32 v11, v12, 3, v11''')
    else:
        k('v_lshl_add_u32 v11, v8, 3, v9')
    k('v_mul_u32_u24 v11, 384, v11')
    k('v_lshl_add_u32 v11, v10, 3, v11')
    if kind == 'QK':
        k('''
        s_lshr_b32 s28, s21, 1
        s_mul_i32 s28, s28, 24576
        s_and_b32 s29, s21, 1
        s_mul_i32 s29, s29, 192
        s_add_u32 s28, s28, s29''')
    else:
        k('s_mul_i32 s28, s21, 96')
    k('v_add_u32 v11, s28, v11')
    if kind == 'VO':
        if sparse:
            k('v_and_b32 v12, 1, v9')
            k('v_lshrrev_b32 v13, 1, v9')
            k('v_lshl_add_u32 v12, v12, 1, v13')
            k('v_lshl_add_u32 v12, v8, 3, v12')
        else:      k('v_lshl_add_u32 v12, v8, 2, v9')
        k('v_lshlrev_b32 v12, 7, v12')
        k('v_lshl_add_u32 v12, v10, 3, v12')
        k('s_lshl_b32 s28, s21, 5')
        k('s_add_u32 s28, s28, 24576')
        k('v_add_u32 v12, s28, v12')
    k('''
    s_mul_i32 s30, s20, 384
    s_mul_i32 s28, s21, 196608
    s_add_u32 s30, s30, s28
    s_mul_i32 s31, s20, 245760
    s_mul_i32 s28, s21, 61440
    s_add_u32 s31, s31, s28
    s_mul_i32 s32, s21, 6144''')
    tick = {}
    CO = CORD
    def issue(n):
        c = CO[n]
        slot = ((n + 2) % 3) * 49152
        for m in range(2):
            for i in range(6):
                k(f's_add_u32 m0, s32, {slot + m*24576 + i*1024}')
                if m == 0 or kind == 'QK':
                    k(f's_add_u32 s33, s30, {c*786432 + (i//3)*98304}')
                    tick[n] = k.vm(f'buffer_load_dwordx4 v{4+i%3}, {S(12+4*m,4)}, s33 offen{NT1} lds')
                else:
                    k(f's_add_u32 s33, s31, {i*10240 + c*128}')
                    tick[n] = k.vm(f'buffer_load_dwordx4 v7, s[16:19], s33 offen{NT1} lds')
    for n in range(3): issue(n)
    for n in range(10):
        c = CO[n]
        slot = ((n + 2) % 3) * 49152
        k.wv(tick[n])
        k('s_barrier')
        lstamp(k, n)
        k(f'v_add_u32 v13, {slot}, v11')
        if kind == 'VO': k(f'v_add_u32 v14, {slot}, v12')
        nt = 6 if kind == 'QK' else 3
        for t in range(nt):
            for pi in range(4):
                fr, tq = pi >> 1, pi & 1
                if sparse:
                    key = (t, c) if kind == 'QK' else ('v', t, c)
                    dst = R(wm.ld(key), 2, 2 * pi); row = 32 * fr + 2 * tq
                else:
                    key = (t, 2 * c + fr) if kind == 'QK' else ('v', t, 2 * c + fr)
                    dst = R(wm.ld(key), 2, 2 * tq); row = 32 * fr + 4 * tq
                k.lds(f'ds_read_b64_tr_b16 {dst}, v13 offset:{row*384 + t*32}')
        if kind == 'VO':
            for kk in range(6):
                for hf in range(2):
                    if sparse:
                        dst = R(wm.ld(('o', c, kk >> 1)), 2, 4 * (kk & 1) + 2 * hf); row = 32 * kk + 4 * hf
                    else:
                        dst = R(wm.ld(('o', c, kk)), 2, 2 * hf); row = 32 * kk + 16 * hf
                    k.lds(f'ds_read_b64_tr_b16 {dst}, v14 offset:{row*128}')
        k.wl_all()
        k('s_barrier')
        if n == 6:
            k('v_mov_b32 v16, 128')
            tick[8] = k.vm('buffer_load_dwordx4 v[20:23], v16, s[88:91], 0 offen sc1')
        if n + 3 < 10: issue(n + 3)
        if n == 8:
            k(f'v_lshlrev_b32 v2, 4, v1\ns_mul_i32 s28, s21, 24576\nv_add_u32 v3, s28, v2')
            for i in range(24):
                k.lds(f'ds_write_b128 v3, {V(32+4*i,4)} offset:{WL + 1024*i}')
            k.wl_all()
            early()

def stream(k, ops, loads, rings, dist, preissued=None, maxper=2, tail=(), group=1, minpos=None):
    first = {}; last = {}
    for i, (_, keys, _) in enumerate(ops):
        for key in keys:
            first.setdefault(key, i); last[key] = i
    for key, i in tail:
        first[key] = i; last[key] = i
    order = sorted(first, key=lambda x: first[x])
    reg = {}; tk = {}; pos = {}
    nxt = {n: 0 for n in rings}; occ = {}
    if preissued:
        for key, (r, t) in preissued.items():
            reg[key] = r; tk[key] = t
            ring = loads[key][0]
            if r in rings[ring]:
                occ[(ring, r)] = key
                nxt[ring] = (rings[ring].index(r) + 1) % len(rings[ring])
    for key in order:
        if key in reg: continue
        ring = loads[key][0]
        r = rings[ring][nxt[ring]]; nxt[ring] = (nxt[ring] + 1) % len(rings[ring])
        p = first[key] - dist
        if (ring, r) in occ: p = max(p, last[occ[(ring, r)]] + 1)
        if minpos and key in minpos: p = max(p, minpos[key])
        occ[(ring, r)] = key
        p = max(p, 0)
        assert p <= first[key] - first[key] % group, (key, p, first[key])
        reg[key] = r; pos[key] = p
    pend = sorted(pos, key=lambda x: (first[x]))
    tailkeys = set(key for key, _ in tail); tout = []
    def issue(key):
        for f in loads[key][1]:
            tk[key] = k.lds(f(reg[key]))
        pend.remove(key)
        if key in tailkeys: tout.append((key, reg[key]))
    for i, (fn, keys, post) in enumerate(ops):
        n = 0
        for key in list(pend):
            if pos[key] <= i and (n < maxper or first[key] <= i + group or i == 0):
                issue(key); n += 1
        if i % group == 0:
            need = [tk[key] for j in range(i, min(i + group, len(ops))) for key in ops[j][1]]
            if need: k.wl(max(need))
        k(fn(reg))
        for p in post:
            if callable(p): p()
            else: k(p)
    for key in list(pend): issue(key)
    return tout

def role_common(k, mats):
    w = dict(Wq=92, Wk=94, Wv=96, Wo=98)
    k.srd(12, w[mats[0]], WBYTES)
    k.srd(16, w[mats[1]], WBYTES)

FW = 32
def flag_addr(k, d, src='v0', line='s20'):
    if line: k(f's_lshl_b32 s28, {line}, 7')
    k(f'''
    v_mov_b32 v{d}, {BIG:#x}
    v_lshl_add_u32 v{d+1}, {src}, 2, {'s28' if line else '0'}
    v_cmp_gt_u32 vcc, {FW}, {src}
    s_nop 1
    v_cndmask_b32 v{d}, v{d}, v{d+1}, vcc
    v_mov_b32 v{d+1}, 1''')

MF = 'v_mfma_f32_16x16x32_bf16'
SM = 'v_smfmac_f32_16x16x64_bf16'

def regmap(keys, v0):
    loc = {}; a = 0; v = v0
    for key in keys:
        if a < 256: loc[key] = ('a', a); a += 4
        else: loc[key] = ('v', v); v += 4
    assert v == 256, v
    return loc

def gen_loader2(k, kind, loc, p, cfg, setup, start, after):
    k.c('---- weight loader')
    NS = 3; SB0 = 61440
    if kind == 'PJ':
        for i in range(3):
            k(f"""
            v_add_u32 v100, {64*i}, v1
            v_mul_u32_u24 v101, 2731, v100
            v_lshrrev_b32 v101, 16, v101
            v_mul_u32_u24 v102, 24, v101
            v_sub_u32 v102, v100, v102
            v_mul_u32_u24 v101, 12288, v101
            v_lshl_add_u32 v{96+i}, v102, 4, v101""")
    k("""
    v_lshrrev_b32 v100, 3, v1
    v_and_b32 v101, 7, v1
    v_lshlrev_b32 v101, 4, v101
    v_mul_u32_u24 v99, 12288, v100
    v_add_u32 v99, v99, v101""")
    if kind == 'VU':
        k('v_mul_u32_u24 v96, 1280, v100\nv_add_u32 v96, v96, v101')
    k("""
    v_lshrrev_b32 v100, 4, v1
    v_bfe_u32 v101, v1, 2, 2
    v_and_b32 v102, 3, v1
    v_lshl_add_u32 v103, v100, 3, v101
    v_lshlrev_b32 v104, 7, v103
    v_lshl_add_u32 v104, v102, 3, v104
    v_add_u32 v104, 24576, v104""")
    if kind == 'PJ':
        k("""
        v_mul_u32_u24 v103, 384, v103
        v_lshl_add_u32 v103, v102, 3, v103
        s_lshl_b32 s28, s21, 7
        v_add_u32 v103, s28, v103
        s_mul_i32 s80, s20, 384
        s_mul_i32 s28, s21, 196608
        s_add_u32 s80, s80, s28
        s_add_u32 s81, s80, s33""")
    else:
        k("""
        v_and_b32 v103, 1, v101
        v_lshlrev_b32 v103, 4, v103
        v_lshrrev_b32 v105, 1, v101
        v_add_u32 v103, v103, v105
        v_lshl_add_u32 v103, v100, 2, v103
        v_lshlrev_b32 v103, 7, v103
        v_lshl_add_u32 v103, v102, 3, v103
        s_lshl_b32 s28, s21, 5
        v_add_u32 v103, s28, v103
        s_lshr_b32 s28, s21, 1
        s_lshl_b32 s28, s28, 6
        v_add_u32 v104, s28, v104
        s_mul_i32 s80, s20, 245760
        s_mul_i32 s28, s21, 61440
        s_add_u32 s80, s80, s28
        s_mul_i32 s81, s20, 384
        s_mul_i32 s28, s21, 196608
        s_add_u32 s81, s81, s28
        s_add_u32 s81, s81, 256""")
    k('s_mul_i32 s82, s21, 6144\ns_lshl_b32 s84, s21, 11')
    tick = {}
    def issue(c):
        slot = SB0 + (c % NS) * 32768
        if 3 <= c: tick[c - 1] = k.vm('buffer_load_dwordx4 v[92:95], v100, s[88:91], 0 offen sc1')
        for i in range(6):
            k(f's_add_u32 m0, s82, {slot + i*1024}')
            if kind == 'PJ':
                k(f's_add_u32 s85, s80, {c*786432 + (i//3)*98304}')
                k.vm(f'buffer_load_dwordx4 v{96+i%3}, s[12:15], s85 offen{NT2} lds')
            else:
                k(f's_add_u32 s85, s80, {i*10240 + c*128}')
                k.vm(f'buffer_load_dwordx4 v96, s[12:15], s85 offen{NT2} lds')
        for i in range(2):
            k(f's_add_u32 m0, s84, {slot + 24576 + i*1024}')
            k(f's_add_u32 s85, s81, {c*786432 + i*98304}')
            tick[c] = k.vm(f'buffer_load_dwordx4 v99, s[16:19], s85 offen{NT2} lds')
    k('v_mov_b32 v100, 128\nv_mov_b32 v92, 0\nv_mov_b32 v93, 0\nv_mov_b32 v94, 0\nv_mov_b32 v95, 0\ns_mov_b32 s86, 0\nv_lshlrev_b32 v2, 4, v1')
    for c in range(NS): issue(c)
    setup()
    for c in range(10):
        slot = SB0 + (c % NS) * 32768
        k.wv(tick[c])
        k('s_barrier')
        lstamp(k, c)
        k(f'v_add_u32 v105, {slot}, v103')
        k(f'v_add_u32 v106, {slot}, v104')
        def areads(nt, areg, rs, keyf):
            for t in range(nt):
                for pi in range(4):
                    fr, tq = pi >> 1, pi & 1
                    k(f'ds_read_b64_tr_b16 {R(loc[keyf(t, 2*c+fr)], 2, 2*tq)}, v{areg} offset:{(32*fr+4*tq)*rs + t*32}')
        if kind == 'PJ':
            k(f's_cmp_eq_u32 s21, 3\ns_cbranch_scc1 {p}_l{c}v')
            areads(4, 105, 384, lambda t, kk: (t, kk))
            k(f's_branch {p}_l{c}e')
            k.label(f'{p}_l{c}v')
            areads(4, 106, 128, lambda t, kk: (t, kk))
            k.label(f'{p}_l{c}e')
        else:
            areads(2, 106, 128, lambda t, kk: ('v', t, kk))
            for kk in range(6):
                for hf in range(2):
                    k(f'ds_read_b64_tr_b16 {R(loc[("o", c, kk)], 2, 2*hf)}, v105 offset:{(32*kk+2*hf)*128}')
        k('s_waitcnt lgkmcnt(0)')
        if c + NS < 10 or c == 9: k('s_barrier')
        if c == 2:
            k(f'v_cmp_eq_u32 vcc, 0, v95\ns_cbranch_vccnz {p}_r0')
            rot_check(k, 95)
            k(f's_branch {p}_r1')
            k.label(f'{p}_r0')
            rot_wait(k, 101)
            k.label(f'{p}_r1')
        if 2 <= c <= 5:
            k(f's_cmp_lg_u32 s86, 0\ns_cbranch_scc1 {p}_g{c}\nv_min_u32 v101, v93, v94\nv_cmp_ne_u32 vcc, 0, v101')
            if c < 5: k(f's_cbranch_vccz {p}_g{c}')
            else:
                k(f's_cbranch_vccnz {p}_gs')
                load_sel(k, cfg, 101, 107)
                k.label(f'{p}_gs')
            start()
            k('s_mov_b32 s86, 1')
            k.label(f'{p}_g{c}')
        if c == 8:
            k(f'v_cmp_ne_u32 vcc, 0, v92\ns_cbranch_vccz {p}_gw')
            sel_from(k, cfg, 92)
            k(f's_branch {p}_gx')
            k.label(f'{p}_gw')
            load_sel(k, cfg, 101, 107)
            k.label(f'{p}_gx')
        if c + NS < 10: issue(c + NS)
        after(c)

def gen_pj(k, p, end, cfg={}):
    loc = regmap([(t, kk) for kk in range(20) for t in range(4)], 192)
    k(f"""
    s_cmp_eq_u32 s24, 0
    s_cselect_b64 s[28:29], s[94:95], s[92:93]
    s_lshl_b32 s33, s24, 7""")
    k.srd(12, 28, WBYTES)
    k.srd(16, 96, WBYTES)
    XB = 0
    def dma_list(slot):
        return [f's_add_u32 m0, s34, {slot}\ns_add_u32 s29, s35, 4096\nbuffer_load_dwordx4 v2, s[8:11], s35 offen sc1 lds'] + \
               [f'buffer_load_dwordx4 v2, s[8:11], s35 offen offset:{1024*i} sc1 lds' for i in (1, 2, 3)] + \
               [f's_add_u32 m0, m0, 4096\ns_add_u32 s35, s35, 20480\nbuffer_load_dwordx4 v2, s[8:11], s29 offen sc1 lds']
    def setup():
        flag_addr(k, 6)
        k(f"""
        s_mul_i32 s35, s21, 5120
        s_add_u32 s34, s35, {XB}
        s_lshl_b32 s38, s21, 11
        s_mul_i32 s28, s24, 12288
        s_sub_u32 s38, s38, s28
        s_add_u32 s38, s38, {QF + 12288:#x}
        s_lshl_b32 s28, s24, 11
        s_add_u32 s28, s28, {VF:#x}
        s_mov_b32 s44, 6144
        s_cmp_eq_u32 s21, 3
        s_cselect_b32 s38, s28, s38
        s_cselect_b32 s44, 4096, s44
        s_cselect_b32 s45, 1, 3
        s_lshl_b32 s28, s45, 13
        s_mul_i32 s28, s20, s28
        s_add_u32 s38, s38, s28
        s_lshl_b32 s45, s45, 18
        s_mov_b32 s36, {DUMMY + 4096:#x}
        s_mov_b32 s37, {DUMMY:#x}
        s_mul_i32 s43, s24, {FP1 - FQK:#x}
        s_add_u32 s43, s43, {FQK:#x}
        s_mov_b32 s40, 40960
        s_mov_b32 s41, 0
        s_mov_b32 s42, 20480
        v_add_u32 v4, {XB + 40960}, v2
        v_add_u32 v5, {XB}, v2""")
        for i in range(3):
            d = 24 + i
            k(f"""
            s_mul_i32 s28, s21, 12
            s_add_u32 s28, s28, {4*i}
            v_lshrrev_b32 v8, 4, v1
            v_add_u32 v8, s28, v8
            v_and_b32 v9, 15, v1
            v_lshlrev_b32 v9, 4, v9
            s_lshl_b32 s28, s20, 8
            v_lshl_add_u32 v{d}, v8, 14, v9
            v_add_u32 v{d}, s28, v{d}
            v_subrev_u32 v10, 40, v8
            v_lshl_add_u32 v10, v10, 8, v9
            s_mul_i32 s28, s20, 640
            v_add_u32 v11, s28, v10
            s_mul_i32 s28, s20, 384
            s_add_u32 s28, s28, {M_OFF - 640}
            v_add_u32 v12, s28, v10
            v_cmp_gt_u32 vcc, 640, v10
            s_nop 1
            v_cndmask_b32 v11, v12, v11, vcc""")
            v_mbmap(k, 11, 12)
            k(f"""
            v_add_u32 v11, {MB - ZM:#x}, v11
            v_mov_b32 v12, {BIG:#x}
            v_cmp_gt_u32 vcc, 1024, v10
            s_nop 1
            v_cndmask_b32 v11, v12, v11, vcc
            v_cmp_gt_u32 vcc, 40, v8
            s_nop 1
            v_cndmask_b32 v{d}, v11, v{d}, vcc""")
        k('s_cmp_eq_u32 s24, 0\ns_cselect_b64 vcc, -1, 0')
        for i in range(3): k(f'v_cndmask_b32 v{24+i}, v12, v{24+i}, vcc')
        k(f'v_mov_b32 v28, -1\nv_mov_b32 v29, -1\nv_mov_b32 v30, -1\nv_mov_b32 v31, -1\ns_mov_b32 s46, {ZM + 0x200000:#x}')
    def start():
        for slot in (0, 20480, 40960):
            for s_ in dma_list(slot): k(s_)
    def after(c):
        if c < 8: return
        ops = []; loads = {}
        for kk in (range(18) if c == 8 else range(18, 20)):
            for tt in range(2):
                loads[(kk, tt)] = ('x', [lambda r, kk=kk, tt=tt: f'ds_read_b128 {V(r,4)}, v2 offset:{XB + tt*20480 + kk*1024}'])
                for t in range(4):
                    acc = V((8, 76)[tt] + 4 * t, 4); c_ = '0' if kk == 0 else acc
                    ops.append((lambda rg, key=(t, kk), acc=acc, c_=c_, xk=(kk, tt): f'{MF} {acc}, {R(loc[key],4)}, {V(rg[xk],4)}, {c_}', [(kk, tt)], []))
        stream(k, ops, loads, dict(x=[32, 36, 40, 44, 48]), 12, maxper=1, group=4)
    gen_loader2(k, 'PJ', loc, p, cfg, setup, start, after)
    ustamp(k, cfg, 5)
    k('s_add_u32 s28, s38, s44')
    k.nop(4)
    for tt in range(2):
        a = (8, 76)[tt]
        for j in range(2):
            d = 52 + 8 * tt + 4 * j
            for i in range(4): k(f'v_cvt_pk_bf16_f32 v{d+i}, v{a+8*j+i}, v{a+8*j+4+i}')
            k(f'buffer_store_dwordx4 {V(d,4)}, v2, s[8:11], {"s38" if tt == 0 else "s28"} offen offset:{1024*j} sc1')
    k(f"""
    s_add_u32 s38, s38, s45
    s_mov_b32 s22, 1
    s_waitcnt vmcnt(0)
    s_barrier
    buffer_store_dword v7, v6, s[8:11], s43 offen sc1
    s_add_u32 s43, s43, 4096""")
    for s_ in dma_list('s41'): k(s_)
    ACC = (8, 76)
    XR = [96 + 4 * i for i in range(8)]
    NPF = 4
    for n in range(NPF): k.lds(f'ds_read_b128 {V(XR[n],4)}, v4 offset:{n*1024}')
    k.label(f'{p}_loop')
    k.lc += NPF; k.ld = k.lc - NPF
    pre = {('x', n): k.ld + 1 + n for n in range(NPF)}
    stamp(k, cfg, 0)
    mats = []; items = []; ev = []
    for n in range(NPF, 40 + NPF):
        u, kk = (n // 20) % 2, n % 20
        ev.append((4 * (n - NPF) + (0 if n & 1 else 4) - 3, dict(id=('x', n), kind='n', lds=True, fn=f'ds_read_b128 {V(XR[n%8],4)}, v{4+u} offset:{kk*1024}',
                   order=[('bar', n // 20 - 1)] if n >= 20 else [])))
    for u in range(2):
        a0 = ACC[u]; pa = ACC[1 - u]; b = 80 * u
        for kk in range(20):
            n = 20 * u + kk
            for t in range(4):
                acc = V(a0 + 4 * t, 4)
                need = [('x', n), ('x', n | 1)] if t == 0 and not (n & 1) else []
                mats.append((f'{MF} {acc}, {R(loc[(t,kk)],4)}, {V(XR[n%8],4)}, {"0" if kk == 0 else acc}', need))
        E = lambda g_, fn, **kw: ev.append((b + g_, dict(id=('e', u, len(ev)), kind='n', fn=fn, **kw)))
        for j in range(2):
            for i in range(4):
                it = dict(id=('c', u, j, i), kind='v', fn=f'v_cvt_pk_bf16_f32 v{64+4*j+i}, v{pa+8*j+i}, v{pa+8*j+4+i}', after=b + 3)
                if j == 0 and i == 0: it['states'] = (max(b - 1, 0), 8)
                items.append(it)
            E(6 + 4 * j, f'buffer_store_dwordx4 {V(64+4*j,4)}, v2, s[8:11], s36 offen offset:{1024*j} sc1', order=[('c', u, j, 3)])
        E(0, f's_add_u32 s28, s41, {XB}'); E(0, f'v_add_u32 v{5-u}, s28, v2')
        if u == 0:
            E(12, 's_mov_b32 s36, s38'); E(12, 's_add_u32 s38, s38, s45')
            if RING2 < 64:
                E(13, f's_and_b32 s87, s22, {RING2 - 1}'); E(13, f's_cmp_eq_u32 s87, {RING2 - 1}'); E(14, f's_cselect_b32 s87, {RING2}, 0'); E(14, 's_mul_i32 s87, s87, s45'); E(16, 's_sub_u32 s38, s38, s87')
            for i, s_ in enumerate(['s_lshr_b32 s47, s46, 21', 's_xor_b32 s47, s47, s53', 's_and_b32 s47, s47, 1', 's_xor_b32 s47, s47, 1', 's_lshl_b32 s47, s47, 13', 's_add_u32 s47, s47, s46', 's_add_u32 s46, s46, 0x100000',
                                     's_cmp_eq_u32 s22, 63', 's_cselect_b32 s47, 0xe00000, s47']):
                E(18 + i // 2, s_)
        else:
            E(12, 's_add_u32 s36, s36, s44'); E(12, 's_add_u32 s22, s22, 1')
        if u == 0:
            E(40, f's_cmp_lt_u32 s22, {cfg.get("pje", 6)}'); E(40, f's_cselect_b32 s49, s37, {DUMMY:#x}')
            E(57, f's_cbranch_scc0 {p}_ne\ns_waitcnt vmcnt(0)', label=f'{p}_ne')
            E(69, 'buffer_store_dword v7, v6, s[8:11], s49 offen sc1')
        E(58, f's_waitcnt vmcnt({6 if u else 2})')
        ev.append((b + 58, dict(id=('bar', u), kind='bar', fn='s_barrier')))
        E(59, 's_add_u32 m0, s34, s42'); E(59, 's_add_u32 s29, s35, 4096')
        for i in range(4): E(60 + 2 * i, f'buffer_load_dwordx4 v2, s[8:11], s35 offen offset:{1024*i} sc1 lds')
        E(67, 's_add_u32 m0, m0, 4096'); E(67, 's_add_u32 s35, s35, 20480')
        E(68, 'buffer_load_dwordx4 v2, s[8:11], s29 offen sc1 lds')
        if u == 0:
            for i in range(3): E(70 + 2 * i, f'buffer_store_dwordx4 v[28:31], v{24+i}, s[8:11], s47 offen sc1')
        else:
            E(70, 'buffer_store_dword v7, v6, s[8:11], s37 offen sc1')
            E(72, 's_mov_b32 s37, s43'); E(72, 's_add_u32 s43, s43, 4096')
        E(75, 's_mov_b32 s28, s40'); E(75, 's_mov_b32 s40, s41'); E(76, 's_mov_b32 s41, s42'); E(76, 's_mov_b32 s42, s28')
        if u == 1: E(78, 's_cmp_lt_u32 s22, 64')
    ev.sort(key=lambda x: x[0])
    for g_, it in ev:
        it['after'] = g_; items.append(it)
    sched(k, mats, items, [False] * 160, pre=pre)
    k(f's_cbranch_scc1 {p}_loop')
    k.wl_all(True)
    k.nop(4)
    for i in range(8):
        k(f'v_cvt_pk_bf16_f32 v{64+i}, v{76+8*(i//4)+i%4}, v{80+8*(i//4)+i%4}')
    for j in range(2):
        k(f'buffer_store_dwordx4 {V(64+4*j,4)}, v2, s[8:11], s36 offen offset:{1024*j} sc1')
    k(f"""
    s_waitcnt vmcnt(0)
    s_barrier
    buffer_store_dword v7, v6, s[8:11], s37 offen sc1
    s_branch {end}""")

def xn_ready(k, p, cfg):
    pass

def gen_vu(k, p, end, fail, cfg={}):
    loc = regmap([('v', t, kk) for kk in range(20) for t in range(2)] + [('o', ci, kk) for ci in range(10) for kk in range(6)], 112)
    role_common(k, ('Wo', 'Wv'))
    XB = 0; VX = 98304; NP = cfg.get('np', 6)
    def xdma():
        out = []
        for j in range(3):
            for i in range(4 if j < 2 else 2):
                pre_ = f's_add_u32 m0, s34, {4096*j}\ns_add_u32 s29, s35, {4096*j}\n' if i == 0 else ''
                out.append(pre_ + f'buffer_load_dwordx4 v2, s[8:11], s29 offen offset:{1024*i} sc1 lds')
        out[-1] += '\ns_add_u32 s35, s35, 40960'
        return out
    vdma = ['s_mov_b32 m0, s46\ns_xor_b32 s46, s46, 16384\nbuffer_load_dwordx4 v2, s[8:11], s45 offen sc1 lds',
            'buffer_load_dwordx4 v2, s[8:11], s45 offen offset:1024 sc1 lds\ns_add_u32 s45, s45, 262144']
    def setup():
        flag_addr(k, 6)
        k(f"""
        s_and_b32 s28, s21, 1
        s_mul_i32 s29, s28, 20480
        v_add_u32 v4, s29, v2
        v_add_u32 v5, {VX}, v2
        s_mul_i32 s28, s28, 6144
        s_lshr_b32 s29, s21, 1
        s_lshl_b32 s29, s29, 10
        s_add_u32 s28, s28, s29
        s_add_u32 s28, s28, 4096
        v_add_u32 v3, s28, v5
        v_and_b32 v108, 1, v1
        v_mul_u32_u24 v108, {FP1 - FQK:#x}, v108
        s_lshl_b32 s28, s20, 7
        v_add_u32 v108, s28, v108
        s_mul_i32 s35, s21, 10240
        s_add_u32 s34, s35, {XB}
        s_lshl_b32 s36, s21, 15
        s_lshl_b32 s28, s20, 10
        s_add_u32 s36, s36, s28
        s_add_u32 s36, s36, {UF:#x}
        s_mov_b32 s37, {DUMMY:#x}
        s_mov_b32 s43, {FU:#x}
        s_mov_b32 s44, {FQK:#x}
        s_mov_b32 s47, 1
        s_lshr_b32 s28, s21, 1
        s_mul_i32 s45, s28, 6144
        s_and_b32 s28, s21, 1
        s_lshl_b32 s28, s28, 11
        s_add_u32 s45, s45, s28
        s_add_u32 s46, s45, {VX}
        s_lshl_b32 s45, s21, 11
        s_lshl_b32 s28, s20, 13
        s_add_u32 s45, s45, s28
        s_add_u32 s45, s45, {VF:#x}""")
    def start():
        for s_ in xdma(): k(s_)
    gen_loader2(k, 'VU', loc, p, cfg, setup, start, lambda c: None)
    ustamp(k, cfg, 5)
    for j in range(3):
        k(f's_add_u32 m0, s34, {40960 + 4096*j}\ns_add_u32 s29, s35, {NP*40960 + 4096*j}')
        for i in range(4 if j < 2 else 2): k(f'buffer_load_dwordx4 v2, s[8:11], s29 offen offset:{1024*i} sc1 lds')
    k.label(f'{p}_loop')
    stamp(k, cfg, 0)
    k('s_barrier')
    stamp(k, cfg, 1)
    ops = []; loads = {}
    for kk in range(20):
        loads[('x', kk)] = ('x', [lambda r, kk=kk: f'ds_read_b128 {V(r,4)}, v4 offset:{kk*1024}'])
        for t in range(2):
            acc = V(8 + 4 * t, 4); c = '0' if kk == 0 else acc
            ops.append((lambda rg, key=('v', t, kk), acc=acc, c=c, kk=kk: f'{MF} {acc}, {R(loc[key],4)}, {V(rg[("x",kk)],4)}, {c}', [('x', kk)], []))
    stream(k, ops, loads, dict(x=[48 + 4 * i for i in range(8)]), 12, group=2)
    k(f's_cmp_eq_u32 s47, 0\ns_cbranch_scc1 {p}_nf')
    poll_flag(k, f'{p}_f0', 108, 's44', 109, fail, sleep=1)
    for s_ in vdma: k(s_)
    k.label(f'{p}_nf')
    k.nop(6)
    for i in range(4): k(f'v_cvt_pk_bf16_f32 v{32+i}, v{8+i}, v{12+i}')
    k.lds('ds_write_b128 v3, v[32:35]')
    k(f's_add_u32 s44, s44, 4096\ns_min_u32 s44, s44, {FQK + 63*4096:#x}')
    k.wl_all()
    stamp(k, cfg, 2)
    k('s_waitcnt vmcnt(0)')
    k('s_barrier')
    stamp(k, cfg, 3)
    pre = {}
    for kk in range(6):
        for tt in range(2):
            r = 48 + 4 * (2 * kk + tt)
            pre[('V', kk, tt)] = (r, k.lds(f'ds_read_b128 {V(r,4)}, v5 offset:{tt*6144 + kk*1024}'))
    k(f's_cmp_eq_u32 s22, {NP}\ns_cbranch_scc1 {p}_pl')
    k(f"""
    buffer_store_dword v7, v6, s[8:11], s37 offen sc1
    buffer_load_dword v109, v108, s[8:11], s44 offen sc1
    s_mov_b32 s37, s43
    s_add_u32 s43, s43, 4096
    s_mov_b32 s38, s36
    s_add_u32 s36, s36, 1310720
    v_xor_b32 v5, 16384, v5
    v_xor_b32 v3, 16384, v3""")
    ops = []; loads = {key: ('none', []) for key in pre}
    def epi(ci):
        a = 8 + 8 * (ci % 3); d = 32 + 4 * (ci % 3)
        return [f'v_cvt_pk_bf16_f32 v{d+i}, v{a+2*i}, v{a+2*i+1}' for i in range(4)] + \
               [f'buffer_store_dwordx4 {V(d,4)}, v2, s[8:11], s38 offen sc1\ns_add_u32 s38, s38, 131072']
    posts = {}
    xd = xdma()
    for i, s_ in enumerate(xd): posts.setdefault(12 * (i // 2) + 2 + 3 * (i % 2), []).append(s_)
    posts.setdefault(72, []).append('s_waitcnt vmcnt(15)\nv_cmp_eq_u32 vcc, 0, v109')
    def chk():
        k(f's_mov_b32 s47, 1\ns_cbranch_vccnz {p}_late\ns_mov_b32 s47, 0')
        for s_ in vdma: k(s_)
        k.label(f'{p}_late')
    posts.setdefault(74, []).append(chk)
    for ci in range(10):
        e = epi(ci - 1) if ci > 0 else []
        for n in range(12):
            kk, tt = n >> 1, n & 1
            acc = V(8 + 8 * (ci % 3) + 4 * tt, 4); c = '0' if kk == 0 else acc; vk = ('V', kk, tt)
            post = ([e[n - 7]] if 7 <= n < 7 + len(e) else []) + posts.get(12 * ci + n, [])
            ops.append((lambda rg, key=('o', ci, kk), acc=acc, c=c, vk=vk: f'{MF} {acc}, {V(rg[vk],4)}, {R(loc[key],4)}, {c}', [vk], post))
    stream(k, ops, loads, dict(none=[]), 12, preissued=pre)
    k.nop(8)
    for s_ in epi(9): k(s_)
    stamp(k, cfg, 4)
    k(f"""
    s_add_u32 s22, s22, 1
    s_cmp_gt_u32 s22, {cfg.get('nimm', 2)}
    s_waitcnt vmcnt(7)
    s_cbranch_scc1 {p}_loop
    s_waitcnt vmcnt(0)
    s_barrier
    buffer_store_dword v7, v6, s[8:11], s37 offen sc1
    s_mov_b32 s37, {DUMMY:#x}
    s_branch {p}_loop""")
    k.label(f'{p}_pl')
    k(f"""
    buffer_store_dword v7, v6, s[8:11], s37 offen sc1
    s_mov_b32 s37, {DUMMY:#x}
    v_xor_b32 v5, 16384, v5
    v_xor_b32 v3, 16384, v3
    v_xor_b32 v4, 40960, v4
    s_mov_b32 s38, {DUMMY + 4096:#x}
    s_mov_b32 s48, 0
    s_add_u32 s35, s35, 40960""")
    k.label(f'{p}_pll')
    k.lc += 12; k.ld = k.lc - 12
    k.vd = k.vc
    pre = {('V', n): k.ld + 1 + n for n in range(12)}
    mats = []; items = []; ev = []; endt = {}
    uacc = lambda ci, tt: 8 + 8 * (ci & 1) + 4 * tt
    def utile(ci):
        for n in range(12):
            kk, tt = n >> 1, n & 1
            a = V(uacc(ci, tt), 4)
            mats.append((f'{MF} {a}, {V(48+4*n,4)}, {R(loc[("o",ci,kk)],4)}, {"0" if kk == 0 else a}', [('V', n)] if ci == 0 else []))
        endt[ci] = len(mats) - 1
    for ci in range(5): utile(ci)
    XR = [44, 96, 100, 104]
    for kk in range(20):
        ev.append((max(60 + 2 * kk - 7, 60 + 2 * (kk - 4) + 1), dict(id=('x', kk), kind='n', lds=True, fn=f'ds_read_b128 {V(XR[kk%4],4)}, v4 offset:{kk*1024}')))
        for t in range(2):
            a = V(24 + 4 * t, 4)
            mats.append((f'{MF} {a}, {R(loc[("v",t,kk)],4)}, {V(XR[kk%4],4)}, {"0" if kk == 0 else a}', [('x', kk)]))
    for ci in range(5, 10): utile(ci)
    def uepi(ci, e_):
        a = uacc(ci, 0); d = 32 + 4 * (ci & 1)
        for i in range(4):
            it = dict(id=('u', ci, i), kind='v', fn=f'v_cvt_pk_bf16_f32 v{d+i}, v{a+2*i}, v{a+2*i+1}', after=e_ + 3)
            if i == 0: it['states'] = (max(e_, 0), 8)
            items.append(it)
        ev.append((e_ + 7, dict(id=('us', ci), kind='n', vm=True, fn=f'buffer_store_dwordx4 {V(d,4)}, v2, s[8:11], s38 offen sc1', order=[('u', ci, 3)])))
        ev.append((e_ + 7, dict(id=('ua', ci), kind='n', fn='s_mov_b32 s38, s36' if ci == 9 else 's_add_u32 s38, s38, 131072')))
    uepi(9, -1)
    for ci in range(5): uepi(ci, endt[ci])
    for i in range(4):
        it = dict(id=('w', i), kind='v', fn=f'v_cvt_pk_bf16_f32 v{40+i}, v{24+i}, v{28+i}', after=102)
        if i == 0: it['states'] = (99, 8)
        items.append(it)
    ev.append((106, dict(id='ww', kind='n', lds=True, fn='ds_write_b128 v3, v[40:43]', order=[('w', 3)])))
    for ci in range(5, 9): uepi(ci, endt[ci])
    ev.append((1, dict(id='fl', kind='n', vm=True, fn='buffer_load_dword v109, v108, s[8:11], s44 offen sc1')))
    ev.append((12, dict(id='s0', kind='n', fn='s_add_u32 s49, s34, s48')))
    ev.append((13, dict(id='s1', kind='n', fn='s_add_u32 s36, s36, 1310720')))
    for i_, t_ in enumerate(wrap('s36', UF, 1310720).split('\n')): ev.append((16 + i_ // 2, dict(id=('wr', i_), kind='n', fn=t_)))
    ev.append((13, dict(id='s2', kind='n', fn='s_xor_b32 s48, s48, 40960')))
    g_ = 20
    for j in range(3):
        ev.append((g_, dict(id=('m', j), kind='n', fn=f's_add_u32 m0, s49, {4096*j}')))
        ev.append((g_, dict(id=('m2', j), kind='n', fn=f's_add_u32 s29, s35, {4096*j}')))
        g_ += 1
        for i in range(4 if j < 2 else 2):
            ev.append((g_, dict(id=('xd', j, i), kind='n', vm=True, fn=f'buffer_load_dwordx4 v2, s[8:11], s29 offen offset:{1024*i} sc1 lds'))); g_ += 2
    ev.append((g_, dict(id='s3', kind='n', fn='s_add_u32 s35, s35, 40960')))
    ev.append((68, dict(id='fc', kind='n', vdeps=['fl'], fn='v_cmp_eq_u32 vcc, 0, v109')))
    ev.append((70, dict(id='fb', kind='n', fn=f's_cbranch_vccnz {p}_plate', label=f'{p}_pon')))
    ev.append((70, dict(id='v0', kind='n', fn='s_mov_b32 m0, s46')))
    ev.append((72, dict(id='v1', kind='n', vm=True, fn='buffer_load_dwordx4 v2, s[8:11], s45 offen sc1 lds')))
    ev.append((74, dict(id='v2', kind='n', vm=True, fn='buffer_load_dwordx4 v2, s[8:11], s45 offen offset:1024 sc1 lds')))
    ev.append((108, dict(id='v3', kind='n', fn='s_xor_b32 s46, s46, 16384')))
    ev.append((108, dict(id='v4', kind='n', fn='s_add_u32 s45, s45, 262144')))
    for i_, t_ in enumerate(wrap('s45', VF, 262144, RING2).split('\n')): ev.append((116 + i_ // 2, dict(id=('wr2', i_), kind='n', fn=t_)))
    ev.append((109, dict(id='v5', kind='n', fn='s_add_u32 s44, s44, 4096')))
    ev.append((109, dict(id='v6', kind='n', fn=f's_min_u32 s44, s44, {FQK + 63*4096:#x}')))
    ev.append((140, dict(id='bar', kind='bar', deps=['ww'], vdeps=['v2'], fn='s_barrier')))
    ev.append((56, dict(id='bar0', kind='bar', vdeps=[('us', 9)], fn='s_barrier')))
    ev.append((58, dict(id='fs', kind='n', vm=True, fn='buffer_store_dword v7, v6, s[8:11], s37 offen sc1')))
    ev.append((144, dict(id='t0', kind='n', fn='s_mov_b32 s37, s43')))
    ev.append((144, dict(id='t1', kind='n', fn='s_add_u32 s43, s43, 4096')))
    ev.append((145, dict(id='t2', kind='n', fn='s_add_u32 s22, s22, 1')))
    ev.append((145, dict(id='t3', kind='n', fn='v_xor_b32 v4, 40960, v4')))
    ev.append((146, dict(id='t4', kind='n', fn='v_xor_b32 v3, 16384, v3')))
    for n in range(12):
        ev.append((148 + n - 0.1, dict(id=('R', n), kind='n', lds=True, fn=f'ds_read_b128 {V(48+4*n,4)}, v5 offset:{(n&1)*6144 + (n>>1)*1024}', g=148 + n)))
    ev.sort(key=lambda x: x[0])
    for g_, it in ev:
        it['after'] = it.get('g', g_); items.append(it)
    sched(k, mats, items, [False] * 160, pre=pre)
    k(f"""
    v_xor_b32 v5, 16384, v5
    s_cmp_lt_u32 s22, 64
    s_cbranch_scc1 {p}_pll""")
    k.wl_all(True)
    k.nop(4)
    for i in range(4): k(f'v_cvt_pk_bf16_f32 v{36+i}, v{16+2*i}, v{17+2*i}')
    k(f"""
    buffer_store_dwordx4 v[36:39], v2, s[8:11], s38 offen sc1
    s_waitcnt vmcnt(0)
    s_barrier
    buffer_store_dword v7, v6, s[8:11], s37 offen sc1
    s_branch {end}""")
    k.label(f'{p}_plate')
    poll_flag(k, f'{p}_f1', 108, 's44', 109, fail, sleep=2)
    k(f's_branch {p}_pon')

TMO = 400000
FAIL = 'mega_kernel_fail'
PL = 8
CS = 1600
SCL = (192 ** -0.5) * 1.4426950408889634

def region(k, d, sreg):
    k(f"""
    s_lshr_b32 s28, {sreg}, 1
    s_xor_b32 s28, s28, s53
    s_and_b32 s28, s28, 1
    s_xor_b32 s28, s28, 1
    s_lshl_b32 s28, s28, 13
    s_lshl_b32 s{d}, {sreg}, 20
    s_add_u32 s{d}, s{d}, s28
    s_add_u32 s{d}, s{d}, {MB:#x}""")

def sel_from(k, cfg, v):
    if LST: k('s_memrealtime s[68:69]')
    k(f'v_readfirstlane_b32 s53, v{v}')
    k('s_sub_u32 s53, s53, 1')
    if cfg.get('sel') is not None: k(f's_mov_b32 s53, {cfg["sel"]}')
    k(f"""
    s_and_b32 s53, s53, 1
    s_lshl_b32 s52, s53, 13
    s_add_u32 s52, s52, {ZR:#x}
    s_xor_b32 s56, s53, {cfg.get('fsh', 1)}
    s_lshl_b32 s56, s56, 13
    s_lshr_b32 s55, s25, 2
    s_and_b32 s55, s55, {cfg.get('nl', 16) - 1}
    s_mul_i32 s55, s55, {cfg.get('lstride', 256)}
    s_mov_b32 s58, 0""")

def load_sel(k, cfg, t=16, t2=18):
    l = k.newlabel('L_go')
    k(f'v_mov_b32 v{t}, 128\ns_mov_b32 s39, 0')
    k.label(l)
    k(f'buffer_load_dword v{t+1}, v{t}, s[88:91], 0 offen sc1')
    k(f'buffer_load_dword v{t2}, v{t}, s[88:91], 0 offen offset:12 sc1')
    tmo(k, FAIL)
    k(f's_waitcnt vmcnt(0)\nv_cmp_eq_u32 vcc, 0, v{t2}\ns_cbranch_vccnz {l}')
    rot_check(k, t2)
    k(f'v_cmp_ne_u32 vcc, 0, v{t+1}\ns_cbranch_vccnz {l}k\ns_sleep 3\ns_branch {l}')
    k.label(l + 'k')
    sel_from(k, cfg, t + 1)

def zregion(k, d, base):
    k(f"""
    s_lshr_b32 s28, s22, 1
    s_xor_b32 s28, s28, s53
    s_and_b32 s28, s28, 1
    s_xor_b32 s28, s28, 1
    s_lshl_b32 s28, s28, 13
    s_lshl_b32 s{d}, s22, 20
    s_add_u32 s{d}, s{d}, s28
    s_add_u32 s{d}, s{d}, s{base}""")

RING = 64
def wrap(reg, base, stride, n=None):
    n = n or RING
    if n >= 64: return 's_nop 0'
    return f's_cmp_ge_u32 {reg}, {base + n*stride:#x}\ns_cselect_b32 s87, {n*stride:#x}, 0\ns_sub_u32 {reg}, {reg}, s87'

def maxtree(k, d, regs):
    k(f'v_max3_u32 v{d}, v{regs[0]}, v{regs[1]}, v{regs[2]}')
    i = 3
    while i + 1 < len(regs):
        k(f'v_max3_u32 v{d}, v{d}, v{regs[i]}, v{regs[i+1]}'); i += 2
    if i < len(regs): k(f'v_max_u32 v{d}, v{d}, v{regs[i]}')

def tmo(k, fail):
    k(f's_add_u32 s39, s39, 1')
    k(f's_cmp_gt_u32 s39, {TMO}')
    k(f's_cbranch_scc1 {fail}')

def memaddr_setup(k, MEMB):
    k(f"""
    s_lshl_b32 s28, s21, 10
    v_add_u32 v7, s28, v2
    v_add_u32 v4, {M_OFF}, v7
    v_add_u32 v5, {M_OFF + 4096}, v7
    v_add_u32 v7, {MEMB}, v7
    v_and_b32 v8, 0x1ff, v2
    s_lshl_b32 s28, s21, 9
    v_add_u32 v8, s28, v8
    v_add_u32 v6, {M_OFF + 8192}, v8
    v_add_u32 v8, {MEMB + 8192}, v8
    v_add_u32 v9, {MEMB}, v2""")
    for d in (4, 5, 6): v_mbmap(k, d, 11)
    k("""
    v_and_b32 v11, 2, v1
    v_mov_b32 v10, 0x4444
    v_mov_b32 v12, 0xeeee
    v_cmp_ne_u32 vcc, 0, v11
    s_nop 1
    v_cndmask_b32 v10, v10, v12, vcc""")

def poll_mem(k, p, fail, D=0):
    twait(k, D)
    k('s_mov_b32 s39, 0')
    k.label(f'{p}_poll')
    for i in range(3):
        k(f'buffer_load_dwordx4 {V(16+4*i,4)}, v{4+i}, s[8:11], s40 offen sc1')
    tmo(k, fail)
    k('s_waitcnt vmcnt(0)')
    k('ds_write_b128 v7, v[16:19]')
    k('ds_write_b128 v7, v[20:23] offset:4096')
    k('ds_write_b128 v8, v[24:27]')
    maxtree(k, 11, list(range(16, 28)))
    k('v_cmp_eq_u32 vcc, -1, v11')
    k(f's_cbranch_vccnz {p}_poll')
    k('s_waitcnt lgkmcnt(0)')
    k('s_barrier')
    tref(k, D)
    k('s_add_u32 s58, s58, s39')

def tref(k, D):
    if D: k('s_memtime s[54:55]')

def twait(k, D):
    if not D: return
    l = k.newlabel('L_tw')
    k.label(l)
    k(f"""
    s_memtime s[56:57]
    s_waitcnt lgkmcnt(0)
    s_sub_u32 s56, s56, s54
    s_cmp_lt_u32 s56, {D}
    s_cbranch_scc1 {l}""")

def wload8(wm, key):
    return [lambda r, key=key: f'ds_read_b128 {V(r,4)}, v3 offset:{WL + wm.slot[key]*1024}',
            lambda r, key=key: f'ds_read_b128 {V(r+4,4)}, v3 offset:{WL + wm.slot[key]*1024 + 1024}']

def pairpost(a, b, d):
    return [f'v_permlane32_swap_b32 v{a+i}, v{b+i}' for i in range(4)] + \
           [f'v_add_f32 v{a+i}, v{a+i}, v{b+i}' for i in range(4)] + \
           [f'v_cvt_pk_bf16_f32 v{d}, v{a}, v{a+1}', f'v_cvt_pk_bf16_f32 v{d+1}, v{a+2}, v{a+3}']

def xlane(k, op, m, t):
    k(f"""
    v_mov_b32 v{t}, v{m}
    s_nop 1
    v_permlane32_swap_b32 v{m}, v{t}
    {op} v{m}, v{m}, v{t}
    v_mov_b32 v{t}, v{m}
    s_nop 1
    v_permlane16_swap_b32 v{m}, v{t}
    {op} v{m}, v{m}, v{t}""")

def stamp(k, cfg, idx):
    if cfg.get('cprof'): return
    if cfg.get('hprof'):
        if idx == 0 or (idx == 2 and len(cfg['hprof']) < 4): k(f's_memtime s[{60+2*(4 if idx else 0)}:{61+2*(4 if idx else 0)}]')
        return
    if cfg.get('trace'):
        k(f's_memrealtime s[{60+2*idx}:{61+2*idx}]'); return
    if cfg.get('stamp') is None: return
    l = k.newlabel('L_st')
    k(f's_cmp_lg_u32 s22, {cfg["stamp"]}')
    k(f's_cbranch_scc1 {l}')
    k(f'{"s_memtime" if cfg.get("cyc") else "s_memrealtime"} s[{60+2*idx}:{61+2*idx}]')
    k.label(l)

def trace_out(k, cfg, t0):
    if not cfg.get('trace'): return
    k(f"""
    s_waitcnt lgkmcnt(0)
    s_lshl_b32 s28, s25, 2
    s_add_u32 s28, s28, s21
    s_lshl_b32 s28, s28, 6
    s_add_u32 s28, s28, s22
    s_lshl_b32 s28, s28, 5
    s_add_u32 s28, s28, {TRACE:#x}
    v_mov_b32 v{t0}, s60
    v_mov_b32 v{t0+1}, s62
    v_mov_b32 v{t0+2}, s64
    v_mov_b32 v{t0+3}, s66
    v_mov_b32 v{t0+4}, s68
    v_mov_b32 v{t0+5}, s59
    v_mov_b32 v{t0+8}, 0
    buffer_store_dwordx4 {V(t0,4)}, v{t0+8}, s[8:11], s28 offen
    buffer_store_dwordx2 {V(t0+4,2)}, v{t0+8}, s[8:11], s28 offen offset:16
    s_nop 1""")

def ustamp(k, cfg, idx):
    if cfg.get('stamp') is None or (LST and idx < 5): return
    k(f's_memrealtime s[{60+2*idx}:{61+2*idx}]')

HU1, HU2 = 0xA0000, 0xA4000

def delay(k, n):
    if n >= 64: k(f's_sleep {n // 64}')
    r = (n % 64) // 4
    if r: k.nop(r)

def hu_wait(k, p, base, starget, t0, fail, cfg, line=0):
    depth = cfg.get('depth', 3)
    nref = cfg.get('nref', 1)
    k(f's_add_u32 s28, s55, {base:#x}\nv_mov_b32 v{t0}, s28')
    k('s_mov_b32 s39, 0')
    k('s_waitcnt vmcnt(0)')
    for i in range(depth):
        k(f'buffer_load_dword v{t0+1+i}, v{t0}, s[8:11], s52 offen sc1')
        if i + 1 < depth: k.nop(cfg.get('spr', 16))
    k.label(f'{p}_hu')
    for i in range(depth):
        k(f's_waitcnt vmcnt({depth-1})')
        k(f'v_cmp_gt_i32 vcc, {starget}, v{t0+1+i}')
        k(f's_cbranch_vccz {p}_hud')
        k(f'buffer_load_dword v{t0+1+i}, v{t0}, s[8:11], s52 offen sc1')
    tmo(k, fail)
    k(f's_branch {p}_hu')
    k.label(f'{p}_hud')

class Gaps:
    def __init__(self, k): self.k = k

def pf_setup(k, sreg, mul, add, cfg):
    k(f"""
    s_lshr_b32 s28, s20, 2
    s_and_b32 s54, s28, 3
    s_add_u32 s54, s54, {cfg.get('pfs', 4)}
    s_mul_i32 s28, s28, {mul}
    s_add_u32 s28, s28, {add}
    s_lshr_b32 s29, s28, 2
    s_lshl_b32 s29, s29, 17
    s_and_b32 s28, s28, 3
    s_lshl_b32 s28, s28, 13
    s_add_u32 s{sreg}, s28, s29
    s_and_b32 s28, s20, 3
    s_lshl_b32 s28, s28, 15
    s_add_u32 s{sreg}, s{sreg}, s28
    s_add_u32 s{sreg}, s{sreg}, {UF + cfg.get('pfa', 1) * 1310720:#x}""")

def mem_front(k, p, w, fail, cfg, own_ops, zero_regs, behind=None, nb=0):
    o0, o1 = 16 + 4 * w, 32 + 4 * w
    def ld():
        k(f'buffer_load_dwordx4 {V(o0,4)}, v4, s[8:11], s40 offen sc1')
        k(f'buffer_load_dwordx4 {V(o1,4)}, v5, s[8:11], s40 offen sc1')
        k(f'buffer_load_dwordx4 v[48:51], v6, s[8:11], s40 offen sc1')
    def take(x):
        k(f's_waitcnt vmcnt({2+x})')
        k(f'ds_write_b128 v7, {V(o0,4)}')
        k(f'v_max3_u32 v11, v{o0}, v{o0+1}, v{o0+2}')
        k(f's_waitcnt vmcnt({1+x})')
        k(f'ds_write_b128 v7, {V(o1,4)} offset:4096')
        k(f'v_max3_u32 v11, v11, v{o0+3}, v{o1}')
        k(f'v_max3_u32 v11, v11, v{o1+1}, v{o1+2}')
        k(f's_waitcnt vmcnt({x})')
        if cfg.get('cyc'): stamp(k, cfg, 3)
        k(f'ds_write_b128 v8, v[48:51]')
        k(f'v_max3_u32 v11, v11, v{o1+3}, v48')
        k(f'v_max3_u32 v11, v11, v49, v50')
        k(f'v_max_u32 v11, v11, v51')
        k('v_cmp_eq_u32 vcc, -1, v11')
    own = list(own_ops)
    plan = cfg.get('fplan', (4, 2, 3)) if len(own) == 12 else cfg.get('zplan', (2, 1, 3))
    k(f'buffer_load_dwordx4 {V(o0,4)}, v4, s[8:11], s40 offen sc1')
    if cfg.get('mbar', 1): k('s_barrier')
    k(f'buffer_load_dwordx4 {V(o1,4)}, v5, s[8:11], s40 offen sc1')
    if cfg.get('mbar', 1): k('s_barrier')
    k(f'buffer_load_dwordx4 v[48:51], v6, s[8:11], s40 offen sc1')
    k('s_mov_b32 s39, 1')
    stage = [(f's_waitcnt vmcnt(2)\nds_write_b128 v7, {V(o0,4)}', [f'v_max3_u32 v11, v{o0}, v{o0+1}, v{o0+2}', f'v_max_u32 v11, v11, v{o0+3}']),
             (f's_waitcnt vmcnt(1)\nds_write_b128 v7, {V(o1,4)} offset:4096', [f'v_max3_u32 v11, v11, v{o1}, v{o1+1}', f'v_max3_u32 v11, v11, v{o1+2}, v{o1+3}']),
             (f's_waitcnt vmcnt(0)\nds_write_b128 v8, v[48:51]', ['v_max3_u32 v11, v11, v48, v49', 'v_max3_u32 v11, v11, v50, v51\nv_cmp_eq_u32 vcc, -1, v11'])]
    done = []
    for (head, chk), n in zip(stage, plan):
        k(head)
        chk = list(chk)
        if n < 2 or (chk[1].endswith('v11') and n < 4): k(chk.pop(0))
        for i in range(n):
            done.append(own.pop(0)); k(done[-1])
            if chk: k(chk.pop(0))
        for c_ in chk: k(c_)
    k(f's_cbranch_vccnz {p}_slow')
    k.label(f'{p}_go2')
    k('s_waitcnt lgkmcnt(0)')
    k('s_barrier')
    if cfg.get('stamp') is not None: k('s_add_u32 s58, s58, s39')
    if cfg.get('trace'): k('s_mov_b32 s59, s39')
    def slow():
        k.label(f'{p}_slow')
        k('s_mov_b64 exec, vcc')
        ld()
        k('s_mov_b64 exec, -1')
        k.nop(3)
        for r in zero_regs: k(f'v_mov_b32 v{r}, 0')
        tmo(k, fail)
        take(0)
        k(f's_cbranch_vccnz {p}_slow')
        for s_ in done: k(s_)
        k(f's_branch {p}_go2')
    return own, slow

def sched(k, mats, items, sm, pre_n=0, pre=None):
    tk = dict(pre or {}); vt = {}
    nq = [it for it in items if it['kind'] in ('n', 'bar')]
    vq = [it for it in items if it['kind'] in ('v', 'v2')]
    done = set(); pos = 0; matpos = {}
    def ready(it, i):
        if it.get('after', -1) > i: return False
        if any(d not in done for d in it.get('order', [])): return False
        st = it.get('states')
        if st is not None and (st[0] not in matpos or pos - matpos[st[0]] < st[1]): return False
        return True
    def emit(it):
        nonlocal pos
        n0 = len(k.L)
        for d in it.get('deps', []): k.wl(tk[d])
        for d in it.get('vdeps', []): k.wv(vt[d])
        if it.get('lds'): tk[it['id']] = k.lds(it['fn'])
        elif it.get('vm'): vt[it['id']] = k.vm(it['fn'])
        else: k(it['fn'])
        if it.get('label'):
            k.label(it['label']); n0 += 1
        done.add(it['id']); it['pos'] = pos + len(k.L) - n0
        matpos[it['id']] = it['pos']
        used = len(k.L) - n0 + (1 if it['kind'] == 'v2' else 0)
        pos += len(k.L) - n0
        return used
    def waitneed(i):
        return i < len(mats) and any(d in tk and tk[d] > k.ld for d in mats[i][1])
    for _ in range(pre_n): emit(nq.pop(0))
    for i, (fn, need) in enumerate(mats):
        for d in need:
            while d not in tk:
                it = nq.pop(0); assert ready(it, i), (it, i); emit(it)
        n0 = len(k.L)
        if need: k.wl(max(tk[d] for d in need))
        k(fn); pos += len(k.L) - n0; matpos[i] = pos
        slots = 2
        wantv = bool(vq) and ready(vq[0], i)
        nmax = 1 if wantv else 2
        if waitneed(i + 1) and all(d in tk for d in mats[i + 1][1]):
            look = [tk[d] for j in range(i + 1, min(i + 4, len(mats))) for d in mats[j][1] if d in tk and tk[d] <= k.lc - 2 or (j == i + 1)]
            k.wl(max(look)); pos += 1; slots -= 1; nmax -= 1
        while nmax > 0 and slots > 0 and nq and ready(nq[0], i):
            it_ = nq.pop(0); u = emit(it_); slots -= u; nmax -= u
            for _ in range(it_.get('glue', 0)): slots -= emit(nq.pop(0))
        nv = 0
        while slots > 0 and vq and ready(vq[0], i) and (nv == 0 or not sm[i]):
            it_ = vq.pop(0); slots -= emit(it_); nv += 1
            for x in list(nq):
                if x.get('now') == it_['id']:
                    nq.remove(x); slots -= emit(x)
        if nv == 0 and slots > 0 and vq and vq[0].get('states') and vq[0]['states'][0] in matpos and vq[0].get('after', -1) <= i + 3:
            k.nop(slots); pos += slots
    while nq or vq:
        cand = [q for q in (vq, nq) if q and ready(q[0], len(mats))]
        if cand: emit(cand[0].pop(0))
        else: k.nop(1); pos += 1
    return tk, pos, matpos

def gen_h(k, p, end, fail, cfg):
    keys = [(t, ks) for pr in range(3) for ks in range(10) for t in (2 * pr, 2 * pr + 1)]
    ldsk = [(t, ks) for pr in range(3) for ks in (8, 9) for t in (2 * pr, 2 * pr + 1)]
    wm = Wmap(keys, 8, set(ldsk))
    role_common(k, ('Wq', 'Wk'))
    def early():
        k(f's_lshl_b32 s28, s20, 7\nv_mov_b32 v122, s28\ns_mov_b32 s43, {FQK:#x}')
        k.vm('buffer_load_dword v24, v122, s[8:11], s43 offen sc1')
    gen_loader(k, 'QK', True, wm, early)
    ustamp(k, cfg, 5)
    k(f's_waitcnt vmcnt(0)\nv_min_u32 v24, v24, v20\nv_cmp_ne_u32 vcc, 0, v20\ns_cbranch_vccz {p}_sl')
    rot_check(k, 23)
    sel_from(k, cfg, 20)
    k(f's_branch {p}_sk')
    k.label(f'{p}_sl')
    load_sel(k, cfg)
    k.label(f'{p}_sk')
    MEMB = 98304; QKT = MEMB + 10240; ZER = QKT + 4 * CS + 128; KXB = 131072
    RING = [80, 88, 96, 104, 112]
    hu = cfg.get('hu', 1)
    memaddr_setup(k, MEMB)
    k(f"""
    v_and_b32 v11, 15, v1
    v_lshrrev_b32 v12, 2, v11
    v_mul_u32_u24 v12, 272, v12
    v_lshrrev_b32 v13, 4, v1
    v_lshl_add_u32 v121, v13, 4, v2
    v_add_u32 v121, {QKT}, v121
    v_lshl_add_u32 v12, v13, 5, v12
    v_and_b32 v13, 3, v1
    v_lshl_add_u32 v12, v13, 2, v12
    s_lshr_b32 s28, s21, 1
    s_lshl_b32 s28, s28, 7
    s_and_b32 s29, s21, 1
    s_mul_i32 s29, s29, 3264
    s_add_u32 s28, s28, s29
    s_add_u32 s28, s28, {QKT}
    v_add_u32 v120, s28, v12
    v_add_u32 v126, 1088, v120
    v_add_u32 v127, 2176, v120
    v_add_u32 v0, {KXB}, v2
    s_mul_i32 s48, s21, 3072
    s_add_u32 s47, s48, {KXB}
    s_mul_i32 s28, s20, 24576
    s_add_u32 s48, s48, s28
    s_add_u32 s48, s48, {QF + 12288:#x}
    s_lshl_b32 s28, s20, 7
    v_mov_b32 v122, s28
    s_mov_b32 s43, {FQK:#x}""")
    def kxdma():
        k('s_mov_b32 m0, s49')
        k('s_xor_b32 s47, s47, 16384')
        for i in range(3):
            k(f'buffer_load_dwordx4 v2, s[8:11], s48 offen offset:{1024*i} sc1 lds')
        k('s_mov_b32 s49, s47')
        k('s_add_u32 s48, s48, 786432')
        k(wrap('s48', QF, 786432, RING2))
    k(f'v_cmp_ne_u32 vcc, 0, v24\ns_cbranch_vccnz {p}_pk')
    poll_flag(k, f'{p}_pz', 122, 's43', 17, fail, sleep=1)
    k.label(f'{p}_pk')
    k('s_mov_b32 s49, s47')
    kxdma()
    k(f's_sub_u32 s49, s47, {KXB + 16384 - 116736}')
    k(f"""
    v_lshrrev_b32 v13, 4, v1
    s_waitcnt lgkmcnt(0)
    s_mov_b32 s22, 0
    s_cmp_eq_u32 s21, 0
    s_cbranch_scc1 {p}_w0
    s_cmp_eq_u32 s21, 1
    s_cbranch_scc1 {p}_w1
    s_cmp_eq_u32 s21, 2
    s_cbranch_scc1 {p}_w2
    s_branch {p}_w3""")
    slows = []
    def main(pp, w):
        pr_ = [f'v_mov_b32 v{56+i}, 0' for i in range(24)] + [f(RING[i]) for i, key in enumerate(ldsk[:5]) for f in wload8(wm, key)]
        h1n = cfg.get('h1n', 3)
        if w == 3 and h1n >= 0: pr_.insert(h1n, 'buffer_store_dword v15, v123, s[8:11], s52 offen sc1\nv_mov_b32 v15, s22')
        if w == 3 and h1n < 0: pr_.append('v_mov_b32 v15, s22')
        for s_ in pr_: (k.lds if s_.startswith('ds_') else k)(s_)
        k('s_sub_u32 s46, s22, 1')
        region(k, 40, 's46')
        if w == 0: region(k, 41, 's22')
        if w >= 2: k(f's_cmp_lt_u32 s22, s54\ns_cselect_b32 s51, {XN:#x}, s50')
        k.wl_all()
        k('s_waitcnt vmcnt(0)')
        if cfg.get('trace'): stamp(k, cfg, 3)
        if hu and cfg.get('nref2', 1) > 1: k('s_barrier')
        if hu and w < cfg.get('nref2', 1):
            k('s_sub_u32 s46, s22, 1')
            hu_wait(k, pp, HU2, 's46', 52 - 4 * (w == 0) * 8, fail, cfg, w)
            delay(k, cfg.get('d2', 0))
        k('s_barrier')
        if cfg.get('trace'): stamp(k, cfg, 4)
        wreg = {key: R(wm.loc[key], 8) for key in wm.loc}
        for i, key in enumerate(ldsk): wreg[key] = V(RING[i % 5], 8)
        smt = lambda t, ks: f'{SM} {V(56+4*t,4)}, {V(16+4*ks,4)}, {wreg[(t,ks)]}, v10'
        own, slow = mem_front(k, pp, w, fail, cfg, [smt(t, ks) for ks in (w, w + 4) for t in range(6)], list(range(56, 80)), *((kxdma, 3) if not cfg.get('kxlate', 1) else ()))
        slows.append(slow)
        if w == 0 or cfg.get('trace'): stamp(k, cfg, 0)
        rest = [ks for ks in range(8) if ks not in (w, w + 4)]
        order = [rest[:3] + [8] + rest[3:] + [9], rest[:2] + [8] + rest[2:5] + [9] + rest[5:], [8] + rest[:1] + [9] + rest[1:]]
        mats = []; items = []; idx = {}
        for n_, ks in enumerate(order[0]):
            it = dict(id=('A', ks), kind='n', lds=True, fn=f'ds_read_b128 {V(16+4*ks,4)}, v9 offset:{1024*ks}')
            items.append(it)
        for s_ in own: mats.append((s_, []))
        for pr in range(3):
            sq = [(t, ks) for ks in order[pr] for t in (2 * pr, 2 * pr + 1)]
            if pr == 2: sq = sq[:-6] + sq[-6::2] + sq[-5::2]
            for (t, ks) in sq:
                need = [('A', ks)] if pr == 0 else []
                if (t, ks) in ldsk[5:]: need = need + [('W', t, ks, 1)]
                idx[(t, ks)] = len(mats)
                mats.append((smt(t, ks), need))
        nsm = len(mats)
        endp = [idx[(2 * pr + 1, order[pr][-1])] for pr in range(3)]
        ev = []
        for i, key in enumerate(ldsk[5:]):
            for h_, f in enumerate(wload8(wm, key)):
                ev.append((max(idx[ldsk[i]], idx[key] - 16), dict(id=('W',) + key + (h_,), kind='n', lds=True, fn=f(RING[i % 5]), after=idx[ldsk[i]])))
        for pr in range(3):
            a = 56 + 8 * pr
            e0 = idx[(2 * pr, order[pr][-1])]
            if pr == 2 and w != 0:
                items.append(dict(id=('p', pr, 0), kind='v', fn=f'v_pk_add_f32 {V(a,2)}, {V(a,2)}, {V(a+2,2)}', states=(e0, 8), after=endp[pr]))
                items.append(dict(id=('p', pr, 1), kind='v', fn=f'v_pk_add_f32 {V(a+4,2)}, {V(a+4,2)}, {V(a+6,2)}', states=(endp[pr], 8)))
            else:
                items.append(dict(id=('p', pr, 0), kind='v', fn=f'v_add_f32 v{a}, v{a}, v{a+2}', states=(e0, 8), after=e0 + 1))
                items.append(dict(id=('p', pr, 5), kind='v', fn=f'v_add_f32 v{a+1}, v{a+1}, v{a+3}'))
                items.append(dict(id=('p', pr, 1), kind='v', fn=f'v_add_f32 v{a+4}, v{a+4}, v{a+6}', states=(endp[pr], 8)))
                items.append(dict(id=('p', pr, 6), kind='v', fn=f'v_add_f32 v{a+5}, v{a+5}, v{a+7}'))
            items.append(dict(id=('p', pr, 2), kind='v', fn=f'v_cvt_pk_bf16_f32 v124, v{a}, v{a+4}'))
            items.append(dict(id=('p', pr, 3), kind='v', fn=f'v_cvt_pk_bf16_f32 v125, v{a+1}, v{a+5}'))
            wgap = endp[pr] + (8 if pr < 2 else 4)
            ev.append((wgap, dict(id=('pw', pr), kind='n', lds=True, fn=f'ds_write2_b32 v{(120,126,127)[pr]}, v124, v125 offset0:0 offset1:4', order=[('p', pr, 3)], now=('p', pr, 3) if pr == 2 else None)))
        if cfg.get('kxlate', 1):
            kd = K(); sv = k.L; k.L = kd.L; kxdma(); k.L = sv
            for i_, t_ in enumerate(kd.L): ev.append((3 + (0, 0, 1, 2, 3, 4, 4, 6, 6, 7)[i_], dict(id=('kx', i_), kind='n', fn=t_.strip())))
        if cfg.get('tb', 0) and w == 1:
            ev.append((10, dict(id='tb0', kind='n', fn=f's_add_u32 s28, s40, {0x300000 - 0x20000:#x}')))
            ev.append((10, dict(id='tb1', kind='n', fn=f's_min_u32 s28, s28, {WS_BYTES - 0x60000:#x}')))
            ev.append((11, dict(id='tb2', kind='n', fn='buffer_load_dword v12, v13, s[8:11], s28 offen')))
        if cfg.get('pf', 1) and w >= 2:
            ev.append((10, dict(id='pf', kind='n', fn='buffer_load_dword v12, v13, s[8:11], s51 offen sc1')))
            ev.append((10, dict(id='pf2', kind='n', fn='s_add_u32 s50, s50, 1310720')))
            for i_, t_ in enumerate(wrap('s50', UF, 1310720).split('\n')): ev.append((11 + i_ // 2, dict(id=('pfw', i_), kind='n', fn=t_)))
        bx = endp[1] + cfg.get('bx', 14)
        bw = endp[0] + 15
        ev.append((bw, dict(id='barW', kind='bar', fn='s_barrier', deps=[('pw', 0)], after=bw, order=[('pw', 0)])))
        ev.append((bx, dict(id='barX', kind='bar', fn='s_barrier', deps=[('pw', 1)], after=bx, order=[('pw', 1)])))
        sm = [True] * nsm
        if w == 0:
            kko = [0, 3, 1, 4, 2, 5]
            kxo = [6 * kt + kk for kk in kko for kt in range(2)]
            kxr = [(16 + 4 * w, endp[0] + 1, None), (32 + 4 * w, endp[0] + 2, None), (56, endp[0] + 10, ('p', 0, 3)), (60, endp[0] + 11, ('p', 0, 3))] + \
                  [(16 + 4 * ks, idx[(5, ks)], None) for ks in order[2]]
            kxreg = {}
            for i, (r, g_, o_) in zip(kxo, kxr):
                kxreg[i] = r
                ev.append((g_, dict(id=('K', i), kind='n', lds=True, fn=f'ds_read_b128 {V(r,4)}, v0 offset:{1024*i}', after=g_, order=[o_] if o_ else [])))
            seq = []
            for kk in kko[:4]: seq += [('x0', kk), ('x1', kk), ('m', kk)]
            seq += [('m', 2), ('m', 5), ('x1', 2), ('x1', 5), ('x0', 2), ('x0', 5)]
            by = nsm + cfg.get('by', 8)
            FR = {0: 96, 3: 100, 1: 80, 4: 84, 2: 88, 5: 92}
            for kk in kko:
                bar, g_ = {0: ('barW', endp[1] + 9), 1: ('barX', bx), 2: ('barY', by)}[kk % 3]
                ev.append((g_ + 0.5, dict(id=('F', kk), kind='n', lds=True, order=[bar], fn=f'ds_read_b128 {V(FR[kk],4)}, v121 offset:{1088*kk}')))
            ev.append((by, dict(id='barY', kind='bar', fn='s_barrier', deps=[('pw', 2)], after=by, order=[('pw', 2)], glue=2)))
            started = set()
            for j_, (ty, kk) in enumerate(seq):
                F = V(FR[kk], 4); d_ = {'x0': 'v[64:67]', 'x1': 'v[68:71]', 'm': 'v[116:119]'}[ty]
                c_ = d_ if ty in started else ('v[12:15]' if ty == 'm' else '0'); started.add(ty)
                i_ = kk + (6 if ty == 'x1' else 0)
                need = [('F', kk)] + ([] if ty == 'm' else [('K', i_)])
                if j_ == 0: need = [('F', 0), ('F', 3), ('K', 0), ('K', 6), ('K', 3), ('K', 9)]
                if j_ == 6: need = [('F', 1), ('F', 4), ('K', 1), ('K', 7), ('K', 4), ('K', 10)]
                mats.append((f'{MF} {d_}, {F if ty == "m" else V(kxreg[i_],4)}, {F}, {c_}', need))
                sm.append(False)
            lm = nsm + 13
            UP = 'row_ror:8 row_mask:0xf bank_mask:0xc'
            items.append(dict(id='c0', kind='v', fn='v_max3_f32 v72, v116, v117, v118', states=(lm, 8), after=lm))
            items.append(dict(id='c1', kind='v', fn='v_max_f32 v72, v72, v119'))
            items.append(dict(id='c2', kind='v', fn=f'v_mov_b32_dpp v116, v118 {UP}'))
            items.append(dict(id='c3', kind='v', fn=f'v_mov_b32_dpp v117, v119 {UP}'))
            items.append(dict(id='c4', kind='v', fn='v_max3_f32 v72, v72, v68, v69', states=(nsm + 15, 8)))
            items.append(dict(id='c5', kind='v', fn='v_max3_f32 v72, v72, v70, v71'))
            items.append(dict(id='c6', kind='v', fn='v_max3_f32 v72, v72, v64, v65', states=(nsm + 17, 8)))
        else:
            ev.append((nsm + 99, dict(id='barY', kind='bar', fn='s_barrier', deps=[('pw', 2)], order=[('pw', 2)])))
            if w == 3 and h1n < 0:
                g_ = {-1: nsm + 100, -2: nsm + 98}.get(h1n, nsm + 2 + h1n)
                ev.append((g_, dict(id='hu1', kind='n', fn='buffer_store_dword v15, v123, s[8:11], s52 offen sc1')))
        for i_, g_ in enumerate(cfg.get('hprof', ())):
            if g_ < len(mats): ev.append((g_ - 0.01, dict(id=('hp', i_), kind='n', fn=f's_memtime s[{62+2*i_}:{63+2*i_}]', after=g_)))
        ev.sort(key=lambda x: x[0])
        for g_, it in ev:
            it['after'] = max(it.get('after', -1), min(int(g_), len(mats)) if g_ < len(mats) else len(mats))
            items.append(it)
        sched(k, mats, items, sm, pre_n=4)
        if w == 0 or cfg.get('trace'): stamp(k, cfg, 1)
    def loop_end(pp):
        if not pp.endswith('w3'): trace_out(k, cfg, 56)
        k(f"""
        s_add_u32 s22, s22, 1
        s_cmp_lt_u32 s22, 64
        s_cbranch_scc1 {pp}_loop
        s_branch {end}""")
    k.label(f'{p}_w0')
    k(f"""
    s_mul_i32 s28, s20, 640
    v_and_b32 v12, 7, v1
    v_lshlrev_b32 v12, 4, v12
    v_lshl_add_u32 v122, v13, 7, v12
    v_lshrrev_b32 v14, 3, v11
    v_lshl_add_u32 v122, v14, 3, v122
    v_add_u32 v122, s28, v122
    v_lshl_add_u32 v123, v14, 2, v12
    v_and_b32 v14, 1, v13
    v_lshl_add_u32 v123, v14, 3, v123
    s_add_u32 s28, s28, 512
    v_add_u32 v123, s28, v123""")
    v_mbmap(k, 122, 12); v_mbmap(k, 123, 12)
    k(f"""
    v_cmp_lt_u32 s[44:45], 1, v13
    v_mov_b32 v12, {BIG:#x}
    v_cmp_lt_u32 vcc, 1, v13
    v_mov_b32 v1, {SCL!r}
    s_nop 0
    v_cndmask_b32 v123, v12, v123, vcc
    v_mov_b32 v12, 0xff800000
    v_cndmask_b32_e64 v12, v12, 0, vcc
    v_mov_b32 v13, v12
    v_mov_b32 v14, v12
    v_mov_b32 v15, v12
    s_mov_b32 s42, {SCL!r}
    s_mov_b32 s43, {SCL!r}""")
    k.label(f'{p}_w0_loop')
    main(f'{p}_w0', 0)
    UP = 'row_ror:8 row_mask:0xf bank_mask:0xc'
    HUS = 'buffer_store_dword v11, v1, s[8:11], s52 offen sc1'
    NEG = 'op_sel_hi:[1,1,0] neg_lo:[0,0,1] neg_hi:[0,0,1]'
    k(f"""
    v_max3_f32 v72, v72, v66, v67
    v_mov_b32 v73, v72
    v_mov_b32_dpp v64, v68 {UP}
    v_mov_b32_dpp v65, v69 {UP}
    v_permlane32_swap_b32 v72, v73
    v_max_f32 v72, v72, v73
    v_mov_b32 v73, v72
    v_mov_b32_dpp v66, v70 {UP}
    v_mov_b32_dpp v67, v71 {UP}
    v_permlane16_swap_b32 v72, v73
    v_max_f32 v72, v72, v73
    v_mul_f32 v74, v72, v1
    v_xor_b32 v0, 16384, v0
    v_mul_f32_dpp v74, v72, v1 {UP}
    v_pk_fma_f32 v[64:65], v[64:65], s[42:43], v[74:75] {NEG}
    v_pk_fma_f32 v[66:67], v[66:67], s[42:43], v[74:75] {NEG}
    v_pk_fma_f32 v[116:117], v[116:117], s[42:43], v[74:75] {NEG}
    v_exp_f32 v64, v64
    v_exp_f32 v65, v65
    v_exp_f32 v66, v66
    v_exp_f32 v67, v67
    v_exp_f32 v116, v116
    v_exp_f32 v117, v117
    v_pk_add_f32 v[72:73], v[64:65], v[66:67]
    v_pk_add_f32 v[72:73], v[72:73], v[116:117]
    v_add_f32 v72, v72, v73
    s_nop 0
    s_nop 0
    v_add_f32_dpp v72, v72, v72 row_ror:8 row_mask:0xf bank_mask:0xf""")
    xlane(k, 'v_add_f32', 72, 73)
    k(f"""
    v_rcp_f32 v72, v72
    s_nop 0
    v_pk_mul_f32 v[64:65], v[64:65], v[72:73] op_sel_hi:[1,0]
    v_pk_mul_f32 v[66:67], v[66:67], v[72:73] op_sel_hi:[1,0]
    v_cvt_pk_bf16_f32 v74, v64, v65
    v_cvt_pk_bf16_f32 v75, v66, v67
    buffer_store_dwordx2 v[74:75], v122, s[8:11], s41 offen sc1
    v_pk_mul_f32 v[116:117], v[116:117], v[72:73] op_sel_hi:[1,0]
    v_cvt_pk_bf16_f32 v76, v116, v117
    buffer_store_dword v76, v123, s[8:11], s41 offen sc1""")
    stamp(k, cfg, 2)
    loop_end(f'{p}_w0')
    k.label(f'{p}_w1')
    k(f"""
    v_mov_b32 v123, v122
    v_lshlrev_b32 v12, 4, v11
    v_lshl_add_u32 v122, v13, 7, v12
    v_subrev_u32 v122, 128, v122
    v_mov_b32 v12, {BIG:#x}
    v_cmp_lt_u32 vcc, 7, v11
    s_nop 1
    v_cndmask_b32 v122, v12, v122, vcc
    v_cmp_gt_u32 vcc, {FW}, v1
    v_lshl_add_u32 v123, v1, 2, v123
    s_nop 0
    v_cndmask_b32 v123, v12, v123, vcc
    v_mov_b32 v14, 1
    v_mov_b32 v13, 0
    s_mul_i32 s42, s20, 3072
    s_add_u32 s42, s42, {KM:#x}
    s_add_u32 s43, s56, {FKM:#x}""")
    k.label(f'{p}_w1_loop')
    main(f'{p}_w1', 1)
    delay(k, cfg.get('kmdelay', 0))
    tk = []
    for kk in range(6):
        tk.append(k.lds(f'ds_read_b128 {V(88+4*kk,4)}, v121 offset:{1088*kk}'))
    for kk in range(6):
        k.wl(tk[kk])
        k(f'buffer_store_dwordx4 {V(88+4*kk,4)}, v122, s[8:11], s42 offen offset:{512*kk} sc1')
    k(f"""
    s_waitcnt vmcnt(0)
    buffer_store_dword v14, v123, s[8:11], s43 offen sc1
    s_add_u32 s42, s42, 98304
    s_add_u32 s43, s43, 4096""")
    loop_end(f'{p}_w1')
    k.label(f'{p}_w2')
    pf_setup(k, 50, 2, 0, cfg)
    k('v_lshlrev_b32 v13, 7, v1')
    k.label(f'{p}_w2_loop')
    k(f's_add_u32 s43, s43, 4096')
    k(f's_min_u32 s43, s43, {FQK + 63*4096:#x}')
    k(f's_cmp_eq_u32 s22, 0\ns_cbranch_scc1 {p}_w2_go\ns_cmp_lg_u32 s22, 1\ns_cbranch_scc1 {p}_w2_n1\ns_sub_u32 s44, s43, 4096')
    poll_flag(k, f'{p}_w2_f1', 122, 's44', 16, fail, sleep=2)
    k(f's_mul_i32 s28, s20, 24576\ns_add_u32 s28, s28, {QF + 12288 + 786432:#x}')
    for j in range(3):
        k(f's_mov_b32 m0, {KXB + 16384 + 4096*j}\ns_add_u32 s29, s28, {4096*j}')
        for i in range(4): k(f'buffer_load_dwordx4 v2, s[8:11], s29 offen offset:{1024*i} sc1 lds')
    k.label(f'{p}_w2_n1')
    poll_flag(k, f'{p}_w2_fl', 122, 's43', 16, fail, sleep=2)
    k.label(f'{p}_w2_go')
    main(f'{p}_w2', 2)
    loop_end(f'{p}_w2')
    k.label(f'{p}_w3')
    k(f"""
    s_cmp_eq_u32 s20, {cfg.get('ref1', 0)}
    s_cselect_b32 s28, {cfg.get('nl', 16)}, 0
    v_cmp_gt_u32 vcc, s28, v1
    v_mul_u32_u24 v14, {cfg.get('lstride', 256)}, v1
    v_add_u32 v14, {HU1:#x}, v14
    v_mov_b32 v12, {BIG:#x}
    v_cndmask_b32 v123, v12, v14, vcc
    v_mov_b32 v15, -1
    v_lshlrev_b32 v13, 7, v1""")
    pf_setup(k, 50, 2, 1, cfg)
    k.label(f'{p}_w3_loop')
    main(f'{p}_w3', 3)
    loop_end(f'{p}_w3')
    for f in slows: f()

def gen_z(k, p, end, fail, cfg):
    keys = [('v', t, ks) for ks in range(10) for t in range(3)] + [('o', ci, ks) for ci in range(10) for ks in range(3)]
    l1 = [('v', 0, 8), ('v', 0, 9), ('v', 1, 8), ('v', 2, 8), ('v', 1, 9)]
    l2 = [('o', 1, 2), ('o', 3, 0), ('o', 4, 1), ('o', 5, 2), ('o', 7, 0), ('o', 8, 1), ('o', 9, 2)]
    wm = Wmap(keys, 8, set(l1 + l2))
    role_common(k, ('Wv', 'Wo'))
    gen_loader(k, 'VO', True, wm)
    ustamp(k, cfg, 5)
    k(f'v_cmp_ne_u32 vcc, 0, v20\ns_cbranch_vccz {p}_sl')
    rot_check(k, 23)
    sel_from(k, cfg, 20)
    k(f's_branch {p}_sk')
    k.label(f'{p}_sl')
    load_sel(k, cfg)
    k.label(f'{p}_sk')
    MEMB = 98304; VT = MEMB + 10240
    RING = [108, 116]
    hu = cfg.get('hu', 1)
    memaddr_setup(k, MEMB)
    def plane(d, c, t):
        k(f"""
        v_mul_u32_u24 v{d}, 768, v{c}
        v_and_b32 v{t}, 1, v{c}
        v_lshl_add_u32 v{d}, v{t}, 5, v{d}
        v_lshrrev_b32 v{t}, 1, v{c}
        v_lshl_add_u32 v{d}, v{t}, 7, v{d}""")
    k('v_and_b32 v11, 15, v1\nv_lshrrev_b32 v16, 4, v1\nv_and_b32 v17, 3, v1')
    plane(12, 16, 18); plane(14, 17, 18)
    k(f"""
    v_lshl_add_u32 v12, v11, 2, v12
    s_mul_i32 s28, s21, 192
    s_add_u32 s28, s28, {VT}
    v_add_u32 v12, s28, v12
    v_lshl_add_u32 v14, v16, 6, v14
    v_bfe_u32 v18, v1, 2, 2
    v_lshl_add_u32 v14, v18, 3, v14
    v_add_u32 v14, {VT}, v14
    v_lshlrev_b32 v15, 4, v11
    v_lshrrev_b32 v18, 1, v16
    v_lshl_add_u32 v15, v18, 3, v15
    v_and_b32 v18, 1, v16
    v_lshl_add_u32 v15, v18, 16, v15
    s_lshl_b32 s28, s20, 8
    s_lshl_b32 s42, s21, 14
    s_add_u32 s42, s42, s28
    s_add_u32 s42, s42, {ZM:#x}
    v_lshlrev_b32 v13, 7, v1
    s_add_u32 s30, s21, 15""")
    pf_setup(k, 44, 3, 's30', cfg)
    k(f"""
    s_mov_b32 s22, 0
    s_cmp_eq_u32 s21, 0
    s_cbranch_scc1 {p}_w0_loop
    s_cmp_eq_u32 s21, 1
    s_cbranch_scc1 {p}_w1_loop
    s_cmp_eq_u32 s21, 2
    s_cbranch_scc1 {p}_w2_loop
    s_branch {p}_w3_loop""")
    slows = []
    for w in range(4):
        pp = f'{p}_w{w}'
        k.label(f'{pp}_loop')
        for i in range(52): k(f'v_mov_b32 v{56+i}, 0')
        for i, key in enumerate(l1[:2]):
            for f in wload8(wm, key): k.lds(f(RING[i]))
        k('s_sub_u32 s46, s22, 1')
        region(k, 40, 's46')
        zregion(k, 43, 42)
        k(f's_cmp_lt_u32 s22, s54\ns_cselect_b32 s45, {XN:#x}, s44')
        for pr in range(1, 5): k(f's_add_u32 s{47+pr}, s43, {131072*pr}')
        k.wl_all()
        if hu and w < cfg.get('nref2', 1):
            k('s_sub_u32 s46, s22, 1')
            delay(k, cfg.get('zpre', 0))
            hu_wait(k, pp, HU2, 's46', 52 - 4 * (w == 0) * 8, fail, cfg, w)
            delay(k, cfg.get('d2', 0))
        k('s_barrier')
        if cfg.get('trace'): stamp(k, cfg, 4); k('s_memtime s[66:67]')
        wreg = {key: R(wm.loc[key], 8) for key in wm.loc}
        for i, key in enumerate(l1): wreg[key] = V(RING[i % 2], 8)
        smt = lambda t, ks: f'{SM} {V(56+4*t,4)}, {V(16+4*ks,4)}, {wreg[("v",t,ks)]}, v10'
        own, slow = mem_front(k, pp, w, fail, cfg, [smt(t, ks) for ks in (w, w + 4) for t in range(3)], list(range(56, 68)))
        slows.append(slow)
        stamp(k, cfg, 0)
        rest = [ks for ks in range(8) if ks not in (w, w + 4)]
        o0 = rest[:1] + [8] + rest[1:3] + [9] + rest[3:]
        o1 = rest[:2] + [8] + rest[2:5] + [9] + rest[5:]
        mats = []; items = []; idx = {}; ev = []
        for ks in o0:
            items.append(dict(id=('A', ks), kind='n', lds=True, fn=f'ds_read_b128 {V(16+4*ks,4)}, v9 offset:{1024*ks}'))
        for s_ in own: mats.append((s_, []))
        for ks in o0:
            idx[('v', 0, ks)] = len(mats); mats.append((smt(0, ks), [('A', ks)]))
        sq = [(t, ks) for ks in o1 for t in (1, 2)]
        sq = sq[:-6] + sq[-6::2] + sq[-5::2]
        for (t, ks) in sq:
            key = ('v', t, ks)
            idx[key] = len(mats); mats.append((smt(t, ks), [('W',) + key + (1,)] if key in l1[2:] else []))
        n1 = len(mats)
        for i, key in enumerate(l1[2:]):
            for h_, f in enumerate(wload8(wm, key)):
                ev.append((idx[l1[i]], dict(id=('W',) + key + (h_,), kind='n', lds=True, fn=f(RING[i % 2]))))
        ends = [idx[('v', 0, o0[-1])], n1 - 4, n1 - 1]
        items.append(dict(id=('p', 0, 0), kind='v', fn='v_add_f32 v56, v56, v58', states=(ends[0], 8), after=ends[0]))
        items.append(dict(id=('p', 0, 5), kind='v', fn='v_add_f32 v57, v57, v59'))
        items.append(dict(id=('p', 0, 1), kind='v', fn='v_cvt_pk_bf16_f32 v124, v56, v57'))
        ev.append((ends[0] + 7, dict(id=('pw', 0), kind='n', lds=True, fn='ds_write_b32 v12, v124', order=[('p', 0, 1)])))
        items.append(dict(id=('p', 1, 0), kind='v', fn='v_pk_add_f32 v[60:61], v[60:61], v[62:63]', states=(ends[1], 8), after=n1))
        items.append(dict(id=('p', 1, 1), kind='v', fn='v_cvt_pk_bf16_f32 v125, v60, v61'))
        items.append(dict(id=('p', 2, 0), kind='v', fn='v_pk_add_f32 v[64:65], v[64:65], v[66:67]', states=(ends[2], 8)))
        items.append(dict(id=('p', 2, 1), kind='v', fn='v_cvt_pk_bf16_f32 v126, v64, v65'))
        done = {w, w + 4}; freed = []
        for ks in o1:
            done.add(ks)
            for j in range(5):
                if j not in [x[0] for x in freed] and 2 * j in done and 2 * j + 1 in done: freed.append((j, idx[('v', 2, ks)]))
        dst = sorted([(g_, 16 + 8 * j) for j, g_ in freed] + [(idx[l1[4]], RING[0]), (idx[l1[3]], RING[1])])
        for key, (g_, r) in zip(l2, dst):
            wreg[key] = V(r, 8)
            for h_, f in enumerate(wload8(wm, key)):
                ev.append((g_, dict(id=('W',) + key + (h_,), kind='n', lds=True, fn=f(r))))
        if cfg.get('tb', 0) and w == 0:
            ev.append((7, dict(id='tb0', kind='n', fn=f's_add_u32 s28, s40, {0x300000 - 0x20000:#x}')))
            ev.append((8, dict(id='tb1', kind='n', fn=f's_min_u32 s28, s28, {WS_BYTES - 0x60000:#x}')))
            ev.append((9, dict(id='tb2', kind='n', fn='buffer_load_dword v127, off, s[8:11], s28')))
        if cfg.get('pf', 1) and w >= 1:
            ev.append((8, dict(id='pf', kind='n', fn='buffer_load_dword v127, v13, s[8:11], s45 offen sc1')))
            ev.append((9, dict(id='pf2', kind='n', fn='s_add_u32 s44, s44, 1310720')))
            for i_, t_ in enumerate(wrap('s44', UF, 1310720).split('\n')): ev.append((9 + i_ // 2, dict(id=('pfw', i_), kind='n', fn=t_)))
        ev.append((n1 + 50, dict(id=('pw', 1), kind='n', lds=True, fn='ds_write2_b32 v12, v125, v126 offset0:16 offset1:32', order=[('p', 2, 1)])))
        ev.sort(key=lambda x: x[0])
        for g_, it in ev:
            it['after'] = min(g_, n1); items.append(it)
        sched(k, mats, items, [True] * n1, pre_n=4)
        k.wl_all()
        k('s_barrier')
        stamp(k, cfg, 1)
        mats = []; items = []
        for ks in range(3):
            for u in range(2):
                items.append(dict(id=('AV', ks, u), kind='n', lds=True, fn=f'ds_read_b64_tr_b16 {V(56+4*ks+2*u,2)}, v14 offset:{(64*ks+8*u)*4}'))
        for it in items: it['t'] = k.lds(it['fn'])
        tks = {ks: items[2 * ks + 1]['t'] for ks in range(3)}
        items = []
        for pr in range(5):
            for ci in (2 * pr, 2 * pr + 1):
                for ks in range(3):
                    pre_ = f's_waitcnt lgkmcnt({4 - 2*ks})\n' if pr == 0 and ci == 0 else ''
                    mats.append((pre_ + f'{SM} {V(68+4*ci,4)}, {V(56+4*ks,4)}, {wreg[("o",ci,ks)]}, v10', []))
            a = 68 + 8 * pr; e_ = 6 * pr + 5
            if pr >= cfg.get('zpk', 4):
                items.append(dict(id=('q', pr, 0), kind='v', fn=f'v_pk_add_f32 {V(a,2)}, {V(a,2)}, {V(a+2,2)}', states=(e_ - 3, 8), after=e_ - 2))
                items.append(dict(id=('q', pr, 2), kind='v', fn=f'v_cvt_pk_bf16_f32 v{a+2}, v{a}, v{a+1}'))
                items.append(dict(id=('q', pr, 1), kind='v', fn=f'v_pk_add_f32 {V(a+4,2)}, {V(a+4,2)}, {V(a+6,2)}', states=(e_, 8)))
            else:
                items.append(dict(id=('q', pr, 0), kind='v', fn=f'v_add_f32 v{a}, v{a}, v{a+2}', states=(e_ - 3, 8), after=e_ - 2))
                items.append(dict(id=('q', pr, 6), kind='v', fn=f'v_add_f32 v{a+1}, v{a+1}, v{a+3}'))
                items.append(dict(id=('q', pr, 2), kind='v', fn=f'v_cvt_pk_bf16_f32 v{a+2}, v{a}, v{a+1}'))
                items.append(dict(id=('q', pr, 1), kind='v', fn=f'v_add_f32 v{a+4}, v{a+4}, v{a+6}', states=(e_, 8)))
                items.append(dict(id=('q', pr, 7), kind='v', fn=f'v_add_f32 v{a+5}, v{a+5}, v{a+7}'))
            items.append(dict(id=('q', pr, 3), kind='v', fn=f'v_cvt_pk_bf16_f32 v{a+3}, v{a+4}, v{a+5}'))
            items.append(dict(id=('q', pr, 4), kind='v2', fn=f'v_permlane16_swap_b32 v{a+2}, v{a+3}', states=(('q', pr, 3), 2)))
            items.append(dict(id=('q', pr, 5), kind='n', fn=f'buffer_store_dwordx2 {V(a+2,2)}, v15, s[8:11], {"s43" if pr == 0 else "s%d" % (47+pr)} offen sc1', order=[('q', pr, 4)]))
        for pr in range(4):
            i_ = [j for j, it in enumerate(items) if it['id'] == ('q', pr, 4)][0]
            j_ = [j for j, it in enumerate(items) if it['id'] == ('q', pr + 1, 0)][0]
            items.insert(j_, items.pop(i_))
        k.ld = k.lc
        sched(k, mats, items, [True] * 30)
        stamp(k, cfg, 2)
        trace_out(k, cfg, 56)
        k(f"""
        s_add_u32 s22, s22, 1
        s_cmp_lt_u32 s22, 64
        s_cbranch_scc1 {pp}_loop
        s_branch {end}""")
    for f in slows: f()

def gen_c(k, p, end, fail, cfg):
    load_sel(k, cfg)
    RED = 0
    k(f"""
    v_lshlrev_b32 v2, 4, v1
    v_and_b32 v4, 7, v1
    v_bfe_u32 v5, v1, 3, 1
    v_lshrrev_b32 v6, 4, v1
    s_mul_i32 s28, s21, 5120
    v_mul_u32_u24 v7, 640, v5
    v_lshl_add_u32 v7, v6, 7, v7
    v_lshl_add_u32 v7, v4, 4, v7
    v_add_u32 v7, s28, v7""")
    for t in range(4):
        k(f'v_add_u32 v{16+t}, {1280*t}, v7')
    k(f"""
    v_lshl_add_u32 v7, v5, 2, v6
    v_mul_u32_u24 v7, 640, v7
    v_lshl_add_u32 v7, v4, 4, v7
    s_add_u32 s28, s28, 512
    v_add_u32 v20, s28, v7""")
    for t in range(5): v_mbmap(k, 16 + t, 7)
    k(f"""
    s_lshl_b32 s28, s21, 10
    v_lshlrev_b32 v21, 7, v4
    v_add_u32 v21, s28, v21
    v_lshlrev_b32 v28, 5, v6
    v_bfe_u32 v7, v1, 2, 1
    v_lshl_add_u32 v28, v7, 4, v28
    v_lshl_add_u32 v28, v5, 9, v28
    v_bfe_u32 v7, v1, 1, 1
    v_lshl_add_u32 v28, v7, 8, v28
    v_and_b32 v7, 1, v1
    v_lshl_add_u32 v28, v7, 3, v28
    v_lshlrev_b32 v22, 2, v1
    s_lshl_b32 s28, s20, 8
    s_add_u32 s28, s28, {M_OFF}
    v_add_u32 v22, s28, v22""")
    v_mbmap(k, 22, 7)
    k(f"""
    v_mov_b32 v7, {BIG:#x}
    v_cmp_ne_u32 s[44:45], 0, v5
    s_nop 1
    s_lshl_b32 s28, s21, 10
    v_add_u32 v23, s28, v2
    s_lshl_b32 s42, s20, 15
    s_lshl_b32 s28, s21, 13
    s_add_u32 s42, s42, s28
    s_add_u32 s42, s42, {UF:#x}
    s_lshl_b32 s48, s20, 14
    s_lshl_b32 s28, s21, 11
    s_add_u32 s48, s48, s28
    s_add_u32 s48, s48, {ZM:#x}
    v_mul_u32_u24 v26, {cfg.get('lstride', 256)}, v1
    v_add_u32 v26, {HU2:#x}, v26
    s_cmp_eq_u32 s20, {cfg.get('ref2', 0)}
    s_cselect_b32 s28, {cfg.get('nl', 16)}, 0
    s_cmp_eq_u32 s21, {cfg.get('huwave', 1)}
    s_cselect_b32 s28, s28, 0
    v_cmp_gt_u32 vcc, s28, v1
    s_nop 1
    v_cndmask_b32 v26, v7, v26, vcc
    s_mov_b32 s46, {FU:#x}
    s_mov_b32 s22, 0""")
    hupos = cfg.get('hupos', 9)
    hu = cfg.get('hu', 0 if cfg.get('hu') == 0 else 1)
    reg = lambda j: 64 + 4 * j
    def ld(j):
        if j < 2: k(f'buffer_load_dwordx4 {V(reg(j),4)}, v2, s[8:11], s43 offen offset:{1024*j} sc1')
        else:     k(f'buffer_load_dwordx4 {V(reg(j),4)}, v{14+j}, s[8:11], s40 offen sc1')
    UB = 8192
    k(f"""
    v_and_b32 v21, 31, v1
    v_lshlrev_b32 v21, 7, v21
    v_mov_b32 v25, 0
    s_lshl_b32 s28, s21, 13
    s_sub_u32 s42, s42, s28
    s_add_u32 s28, s28, {UB}
    v_add_u32 v3, s28, v2
    s_mul_i32 s50, s21, 11264
    s_min_u32 s50, s50, {21*1024}
    s_add_u32 s42, s42, s50
    s_add_u32 s50, s50, {UB}""")
    k.label(f'{p}_loop')
    zregion(k, 43, 48)
    region(k, 40, 's22')
    k(f'v_mov_b32 v27, s22\ns_cmp_eq_u32 s21, 3\ns_cbranch_scc1 {p}_w3\n' + ('' if cfg.get('ctrig', 1) else 's_waitcnt vmcnt(0)\n') + 's_barrier')
    for j in range(3):
        k(f's_add_u32 m0, s50, {4096*j}\ns_add_u32 s28, s42, {4096*j}')
        for i in range(4 if j < 2 else 3):
            k(f'buffer_load_dwordx4 v2, s[8:11], s28 offen offset:{1024*i} sc1 lds')
    k('s_add_u32 s42, s42, 1310720')
    k(wrap('s42', UF, 1310720))
    k('s_waitcnt vmcnt(0)')
    if cfg.get('trace'): stamp(k, cfg, 0)
    k(f's_branch {p}_go')
    k.label(f'{p}_w3')
    k('s_sub_u32 s47, s22, 1')
    if cfg.get('ctrig', 1): hu_wait(k, p + '_g', HU2, 's47', 108, fail, dict(cfg, depth=cfg.get('tdepth', 2)))
    k(f'v_cmp_eq_u32 vcc, 0, v25\ns_cbranch_vccz {p}_fk')
    poll_flag(k, f'{p}_fl', 21, 's46', 24, fail, sleep=2)
    k(f's_branch {p}_tg')
    k.label(f'{p}_fk')
    for i in range(cfg.get('textra', 1)):
        k('buffer_load_dword v109, v108, s[8:11], s52 offen sc1\ns_waitcnt vmcnt(0)')
    k.label(f'{p}_tg')
    k(f"""
    s_barrier
    s_add_u32 s46, s46, 4096
    buffer_load_dword v25, v21, s[8:11], s46 offen sc1
    s_add_u32 s28, s40, {0x100000 - 0x20000:#x}
    {'buffer_load_dword v29, off, s[8:11], s28' if cfg.get('tb', 0) else ''}
    s_cmp_lg_u32 s22, 0
    s_cbranch_scc1 {p}_n0
    s_add_u32 s47, s56, {FKM:#x}""")
    poll_flag(k, f'{p}_f0', 21, 's47', 24, fail, sleep=2)
    k.label(f'{p}_n0')
    hu_wait(k, p, HU1, 's22', 108, fail, cfg)
    k.label(f'{p}_go')
    k('s_barrier')
    stamp(k, cfg, 4)
    def cp(pos):
        if pos in cfg.get('cprof', ()):
            i_ = cfg['cprof'].index(pos); k(f's_memtime s[{62+2*i_}:{63+2*i_}]')
    if cfg.get('cprof'): k('s_memtime s[60:61]')
    k('s_mov_b32 s39, 1')
    def rnd(first):
        for j in range(7):
            ld(j)
            if first and j in cfg.get('cbar', (1, 2, 3, 4, 5)): k('s_barrier')
        if not first:
            k('s_mov_b64 exec, -1')
            tmo(k, fail)
        extra = 0
        def huf(pos):
            nonlocal extra
            if first and hu and pos == hupos:
                k('buffer_store_dword v27, v26, s[8:11], s52 offen sc1'); extra += 1
            if first and hu and pos + 20 == hupos:
                k('s_barrier')
                k('buffer_store_dword v27, v26, s[8:11], s52 offen sc1'); extra += 1
        huf(-1)
        if first:
            for i in range(8): k(f'ds_read_b128 {V(32+4*i,4)}, v3 offset:{1024*i}')
        k(f's_waitcnt vmcnt({5+extra}) lgkmcnt(0)')
        huf(0)
        if first: cp(0)
        maxtree(k, 24, list(range(64, 72)))
        for t in range(5):
            k(f's_waitcnt vmcnt({4-t+extra})')
            huf(t + 1)
            if first: cp(t + 1)
            b = 72 + 4 * t
            a0, a1 = (32 + 8 * t, 36 + 8 * t) if t < 4 else (64, 68)
            k(f'{MF} v[8:11], {V(a0,4)}, {V(b,4)}, {"0" if t == 0 else "v[8:11]"}')
            k(f'v_max3_u32 v24, v24, v{b}, v{b+1}')
            k(f'{MF} v[12:15], {V(a1,4)}, {V(b,4)}, {"0" if t == 0 else "v[12:15]"}')
            k(f'v_max3_u32 v24, v24, v{b+2}, v{b+3}')
        k('v_cmp_eq_u32 vcc, -1, v24')
    def fold():
        k.nop(6)
        for i in range(4):
            k(f'v_add_f32_dpp v{8+i}, v{12+i}, v{8+i} row_ror:8 row_mask:0xf bank_mask:0xf')
        k(f'ds_write_b128 v23, v[8:11] offset:{RED}')
    rnd(True)
    fold()
    cp(6)
    k(f's_cbranch_vccnz {p}_retry')
    k.label(f'{p}_ok')
    stamp(k, cfg, 1)
    if hu and hupos == 7: k('buffer_store_dword v27, v26, s[8:11], s52 offen sc1')
    if hu and hupos == 9: k('s_barrier\nbuffer_store_dword v27, v26, s[8:11], s52 offen sc1')
    k(f"""
    s_cmp_lg_u32 s21, 0
    s_waitcnt lgkmcnt(0)
    s_barrier""")
    cp(7)
    k(f"""
    s_cbranch_scc1 {p}_nx
    ds_read_b64 v[96:97], v28 offset:{RED}
    ds_read_b64 v[98:99], v28 offset:{RED + 1024}
    ds_read_b64 v[100:101], v28 offset:{RED + 2048}
    ds_read_b64 v[102:103], v28 offset:{RED + 3072}
    s_waitcnt lgkmcnt(2)
    v_pk_add_f32 v[96:97], v[96:97], v[98:99]
    s_waitcnt lgkmcnt(0)
    v_pk_add_f32 v[100:101], v[100:101], v[102:103]
    v_pk_add_f32 v[96:97], v[96:97], v[100:101]
    v_cvt_pk_bf16_f32 v8, v96, v97
    buffer_store_dword v8, v22, s[8:11], s40 offen sc1""")
    cp(8)
    stamp(k, cfg, 2)
    k.label(f'{p}_nx')
    if hu and hupos == 8: k('buffer_store_dword v27, v26, s[8:11], s52 offen sc1')
    if cfg.get('stamp') is not None: k('s_add_u32 s58, s58, s39')
    if cfg.get('trace'): k('s_mov_b32 s59, s39')
    trace_out(k, cfg, 116)
    k(f"""
    s_add_u32 s22, s22, 1
    s_cmp_lt_u32 s22, 63
    s_cbranch_scc1 {p}_loop""")
    k(f's_branch {end}')
    k.label(f'{p}_retry')
    k('s_mov_b64 exec, vcc')
    rnd(False)
    k(f's_cbranch_vccnz {p}_retry')
    fold()
    k(f's_branch {p}_ok')

def poll_flag(k, lab, vaddr, sreg, tmp, fail, sleep=0, slow=None):
    k('s_mov_b32 s39, 0')
    k.label(lab)
    k(f'buffer_load_dword v{tmp}, v{vaddr}, s[8:11], {sreg} offen sc1')
    tmo(k, fail)
    k(f's_waitcnt vmcnt(0)')
    k(f'v_cmp_eq_u32 vcc, 0, v{tmp}')
    if sleep:
        k(f's_cbranch_vccz {lab}_ok')
        k(f's_sleep {sleep}')
        if slow: k(f's_cmp_ge_i32 s22, {slow[0]}\ns_cbranch_scc1 {lab}\ns_sleep {slow[1]}')
        k(f's_branch {lab}')
        k.label(lab + '_ok')
    else:
        k(f's_cbranch_vccnz {lab}')

def softmax_regs(k, regs, t0):
    n = len(regs)
    k(f'v_max3_f32 v{t0}, v{regs[0]}, v{regs[1]}, v{regs[2]}')
    i = 3
    while i + 1 < n:
        k(f'v_max3_f32 v{t0}, v{t0}, v{regs[i]}, v{regs[i+1]}'); i += 2
    if i < n: k(f'v_max_f32 v{t0}, v{t0}, v{regs[i]}')
    xlane(k, 'v_max_f32', t0, t0 + 1)
    k(f'v_mul_f32 v{t0}, s42, v{t0}')
    for r in regs: k(f'v_fma_f32 v{r}, v{r}, s42, -v{t0}')
    for r in regs: k(f'v_exp_f32 v{r}, v{r}')
    k(f'v_pk_add_f32 {V(t0,2)}, {V(regs[0],2)}, {V(regs[2],2)}')
    for i in range(4, n, 2): k(f'v_pk_add_f32 {V(t0,2)}, {V(t0,2)}, {V(regs[i],2)}')
    k(f'v_add_f32 v{t0}, v{t0}, v{t0+1}')
    xlane(k, 'v_add_f32', t0, t0 + 1)
    k(f'v_rcp_f32 v{t0}, v{t0}')
    k('s_nop 0')
    for i in range(0, n, 2):
        k(f'v_pk_mul_f32 {V(regs[i],2)}, {V(regs[i],2)}, {V(t0,2)} op_sel_hi:[1,0]')

def gen_x(k, p, end, fail, cfg):
    k(f"""
    s_and_b32 s31, s20, 4
    s_add_u32 s31, s31, s21
    s_and_b32 s32, s20, 3
    s_lshl_b32 s30, s31, 2
    s_add_u32 s30, s30, s32
    v_lshlrev_b32 v2, 4, v1
    v_and_b32 v4, 15, v1
    v_lshrrev_b32 v5, 4, v1
    s_lshl_b32 s28, s30, 7
    v_mov_b32 v6, s28
    v_mov_b32 v7, {BIG:#x}
    v_cmp_gt_u32 vcc, {FW}, v1
    v_lshl_add_u32 v8, v1, 2, v6
    s_nop 0
    v_cndmask_b32 v8, v7, v8, vcc
    v_mov_b32 v9, 1
    v_and_b32 v10, 7, v1
    v_lshlrev_b32 v10, 4, v10
    v_lshl_add_u32 v10, v5, 7, v10
    v_lshlrev_b32 v11, 4, v4
    v_lshl_add_u32 v11, v5, 3, v11
    v_cmp_gt_u32 vcc, 2, v5
    s_nop 1
    v_cndmask_b32 v11, v7, v11, vcc
    v_mov_b32 v7, 0xff800000
    v_cndmask_b32_e64 v16, v7, 0, vcc
    v_mov_b32 v17, v16
    v_mov_b32 v18, v16
    v_mov_b32 v19, v16
    v_lshlrev_b32 v3, 2, v5""")
    for r in range(4):
        k(f"""
        v_add_u32 v20, {r}, v3
        v_cmp_le_u32 vcc, v20, v4
        s_nop 1
        v_cndmask_b32_e64 v{12+r}, v7, 0, vcc""")
    k(f"""
    v_and_b32 v23, 1, v1
    v_mul_u32_u24 v23, {FP1 - FQK:#x}, v23
    v_add_u32 v23, v23, v6
    v_add_u32 v22, 4096, v23
    v_add_u32 v21, {FKM - FQK:#x}, v6
    v_add_u32 v21, s56, v21
    v_cmp_gt_u32 vcc, 32, v1
    s_mul_i32 s45, s30, 3072
    s_add_u32 s45, s45, {KM:#x}
    v_cndmask_b32 v22, v21, v22, vcc
    v_mov_b32 v62, v21
    s_mul_i32 s33, s30, 24576
    s_add_u32 s33, s33, {QF:#x}
    s_lshl_b32 s47, s30, 11
    s_add_u32 s47, s47, {PX:#x}
    s_lshl_b32 s46, s31, 11
    s_lshl_b32 s28, s32, 8
    s_add_u32 s46, s46, s28
    s_add_u32 s46, s46, {PX + 65536:#x}
    s_lshl_b32 s44, s22, 12
    s_add_u32 s44, s44, {FQK:#x}
    s_mul_i32 s28, s22, 98304
    s_add_u32 s45, s45, s28
    s_and_b32 s28, s22, {RING2 - 1}
    s_mul_i32 s28, s28, 786432
    s_add_u32 s33, s33, s28
    s_mul_i32 s28, s22, 81920
    s_add_u32 s46, s46, s28
    s_add_u32 s47, s47, s28
    s_sub_u32 s27, s26, 1
    s_cmp_eq_u32 s22, s27
    s_cselect_b64 vcc, -1, 0
    v_cndmask_b32 v22, v22, v62, vcc
    s_mov_b32 s42, {SCL!r}
    v_mov_b32 v50, 0
    v_mov_b32 v51, 0""")
    RG = lambda st, i: V(64 + i, 4) if st == 0 else A(i, 4)
    def qkload(st):
        for j in range(6):
            k(f's_add_u32 s28, s33, {4096*j}')
            for i in range(4):
                k(f'buffer_load_dwordx4 {RG(st, 16*j+4*i)}, v2, s[8:11], s28 offen offset:{1024*i} sc1')
        k('s_add_u32 s33, s33, 786432')
        k(wrap('s33', QF, 786432, RING2))
    poll_flag(k, f'{p}_f1', 23, 's44', 20, fail, sleep=4)
    qkload(0)
    k('v_mov_b32 v63, 0\ns_waitcnt vmcnt(0)')
    for st in range(2):
        Q = lambda qt, kk: RG(st, 4 * (6 * qt + kk))
        Kf = lambda kt, kk: RG(st, 48 + 4 * (6 * kt + kk))
        k.label(f'{p}_loop{st}')
        stamp(k, cfg, 0)
        k('v_cmp_eq_u32 vcc, 0, v63')
        for kk in range(6):
            k(f'{MF} v[24:27], {Kf(0,kk)}, {Q(0,kk)}, {"v[12:15]" if kk == 0 else "v[24:27]"}')
            k(f'{MF} v[32:35], {Kf(0,kk)}, {Q(1,kk)}, {"0" if kk == 0 else "v[32:35]"}')
            k(f'{MF} v[36:39], {Kf(1,kk)}, {Q(1,kk)}, {"v[12:15]" if kk == 0 else "v[36:39]"}')
        k(f's_cbranch_vccz {p}_go{st}')
        poll_flag(k, f'{p}_f2{st}', 22, 's44', 20, fail, sleep=1, slow=(58, cfg.get('slowx', 3)))
        k.label(f'{p}_go{st}')
        stamp(k, cfg, 1)
        for kk in range(6):
            k(f'buffer_load_dwordx4 {V(160+4*kk,4)}, v10, s[8:11], s45 offen offset:{512*kk} sc1')
        def mm(x):
            for kk in range(6):
                k(f's_waitcnt vmcnt({5-kk+x})')
                k(f'{MF} v[40:43], {V(160+4*kk,4)}, {Q(1,kk)}, {"v[16:19]" if kk == 0 else "v[40:43]"}')
                k(f'{MF} v[28:31], {V(160+4*kk,4)}, {Q(0,kk)}, {"v[16:19]" if kk == 0 else "v[28:31]"}')
        if st == 0:
            k(f's_cmp_lg_u32 s22, s27\ns_cbranch_scc1 {p}_nq')
            mm(0)
            k(f's_branch {p}_nq2')
            k.label(f'{p}_nq')
        qkload(1 - st)
        mm(24)
        if st == 0: k.label(f'{p}_nq2')
        k.nop(7)
        softmax_regs(k, list(range(32, 44)), 20)
        for i in range(6): k(f'v_cvt_pk_bf16_f32 v{56+i}, v{32+2*i}, v{33+2*i}')
        k('buffer_store_dwordx4 v[56:59], v2, s[8:11], s47 offen offset:1024 sc1\nbuffer_store_dwordx2 v[60:61], v11, s[8:11], s46 offen offset:1024 sc1')
        softmax_regs(k, list(range(24, 32)), 44)
        k(f"""
        v_cvt_pk_bf16_f32 v48, v24, v25
        v_cvt_pk_bf16_f32 v49, v26, v27
        v_cvt_pk_bf16_f32 v52, v28, v29
        v_cvt_pk_bf16_f32 v53, v30, v31
        buffer_store_dwordx4 v[48:51], v2, s[8:11], s47 offen sc1
        buffer_store_dwordx2 v[52:53], v11, s[8:11], s46 offen sc1
        s_add_u32 s28, s44, {FPX - FQK:#x}
        s_add_u32 s28, s28, s56
        s_add_u32 s44, s44, 4096
        buffer_load_dword v63, v22, s[8:11], s44 offen sc1
        s_add_u32 s45, s45, 98304
        s_add_u32 s46, s46, 81920
        s_add_u32 s47, s47, 81920
        s_waitcnt vmcnt(1)
        buffer_store_dword v9, v8, s[8:11], s28 offen sc1""")
        stamp(k, cfg, 2)
        k('s_add_u32 s22, s22, 1\ns_waitcnt vmcnt(1)')
        if st == 0: k(f's_cmp_ge_u32 s22, s26\ns_cbranch_scc1 {end}')
    k(f's_branch {p}_loop0')

def gen_o(k, p, end, fail, cfg):
    k(f's_load_dwordx2 s[28:29], s[0:1], {KA["x"]}')
    k('s_waitcnt lgkmcnt(0)')
    k.srd(12, 28, 2048 * 1280)
    k(f"""
    v_lshlrev_b32 v2, 4, v1
    v_and_b32 v4, 7, v1
    v_lshlrev_b32 v4, 7, v4
    s_lshl_b32 s28, s21, 10
    v_add_u32 v4, s28, v4
    v_and_b32 v5, 15, v1
    v_lshrrev_b32 v6, 4, v1
    v_mul_u32_u24 v5, 1280, v5
    v_lshl_add_u32 v5, v6, 3, v5
    s_and_b32 s30, s21, 1
    s_mul_i32 s30, s30, 20480
    s_lshr_b32 s29, s21, 1
    s_lshl_b32 s28, s20, 1
    s_add_u32 s29, s29, s28
    s_lshl_b32 s28, s29, 6
    s_add_u32 s28, s28, s30
    v_add_u32 v5, s28, v5
    s_lshl_b32 s28, s29, 10
    s_add_u32 s28, s28, s30
    v_add_u32 v13, s28, v2
    s_lshl_b32 s28, s21, 13
    v_add_u32 v6, s28, v2
    s_lshl_b32 s28, s21, 11
    v_add_u32 v7, s28, v2
    s_lshl_b32 s50, s20, 16
    s_add_u32 s50, s50, s28
    s_add_u32 s50, s50, {ZM:#x}
    s_mov_b32 s48, 0xffff0000""")
    flag_addr(k, 14)
    NG = 3
    k(f"""
    v_add_u32 v8, 0x200000, v4
    v_add_u32 v3, {0x200000 + FU - FPX + NG*4096:#x}, v4
    v_subrev_u32 v3, s56, v3
    v_cmp_gt_u32 vcc, 32, v1
    s_mul_i32 s51, s22, 1310720
    s_lshl_b32 s29, s20, 17
    v_cndmask_b32 v3, v3, v8, vcc
    s_add_u32 s51, s51, s29
    s_lshl_b32 s29, s21, 13
    s_add_u32 s51, s51, s29
    s_add_u32 s51, s51, {UF:#x}
    s_lshl_b32 s43, s22, 12
    s_add_u32 s44, s43, {FU:#x}""")
    def uload():
        for ct in range(4):
            for j in range(2):
                k(f's_add_u32 s29, s51, {32768*ct + 4096*j}')
                for i in range(4):
                    k(f'buffer_load_dwordx4 {A(32*ct+16*j+4*i,4)}, v2, s[8:11], s29 offen offset:{1024*i} sc1')
        k(f's_add_u32 s51, s51, {NG*1310720}')
        k(wrap('s51', UF, 1310720))
    poll_flag(k, f'{p}_f1', 4, 's44', 20, fail, sleep=cfg.get('sl1', 8))
    uload()
    k.label(f'{p}_loop')
    stamp(k, cfg, 0)
    k('s_lshl_b32 s43, s22, 12\ns_add_u32 s43, s43, s56')
    k('s_mul_i32 s45, s22, 40960')
    k('buffer_load_dwordx2 v[16:17], v5, s[12:15], s45 offen')
    k('buffer_load_dwordx2 v[18:19], v5, s[12:15], s45 offen offset:32')
    k(f's_add_u32 s44, s43, {FKM:#x}')
    poll_flag(k, f'{p}_f3', 4, 's44', 20, fail, sleep=3, slow=(58, cfg.get('slowo', 6)))
    zregion(k, 47, 50)
    k('s_mov_b32 s39, 0')
    k.label(f'{p}_z')
    for ct in range(4):
        k(f's_add_u32 s49, s47, {16384*ct}')
        for b in range(2):
            k(f'buffer_load_dwordx4 {V(208+8*ct+4*b,4)}, v2, s[8:11], s49 offen offset:{1024*b} sc1')
    tmo(k, fail)
    k('s_waitcnt vmcnt(0)')
    maxtree(k, 20, list(range(208, 240)))
    k('v_cmp_eq_u32 vcc, -1, v20')
    k(f's_cbranch_vccnz {p}_z')
    k(f"""
    s_add_u32 s44, s43, {FPX - 0x200000:#x}
    s_cmp_lt_u32 s22, {64 - NG}
    s_cselect_b64 vcc, -1, 0
    v_cndmask_b32 v3, v8, v3, vcc
    s_mul_i32 s47, s22, 81920
    s_add_u32 s47, s47, {PX:#x}
    s_lshl_b32 s29, s21, 12
    s_add_u32 s46, s47, s29
    s_add_u32 s46, s46, 65536
    s_lshl_b32 s29, s21, 14
    s_add_u32 s47, s47, s29""")
    poll_flag(k, f'{p}_f2', 3, 's44', 20, fail, sleep=1, slow=(58, cfg.get('slowo', 6)))
    stamp(k, cfg, 1)
    def pxl(n):
        k(f'buffer_load_dwordx4 {V(128+4*n,4)}, v2, s[8:11], {"s47" if n < 16 else "s46"} offen offset:{1024*(n%4)} sc1')
        if n % 4 == 3 and n < 12: k('s_add_u32 s47, s47, 4096')
    UPF = cfg.get('oup', 10)
    for n in range(UPF): pxl(n)
    acc = lambda ct, qt: V(24 + 4 * (4 * (ct >> 1) + 2 * qt + (ct & 1)), 4)
    for n in range(20):
        k(f's_waitcnt vmcnt({min(UPF - 1, 19 - n)})')
        h, qt = n >> 1, n & 1
        for ct in range(4):
            a_ = A(32 * ct + 4 * h, 4) if h < 8 else V(208 + 8 * ct + 4 * (h - 8), 4)
            k(f'{MF} {acc(ct,qt)}, {a_}, {V(128+4*n,4)}, {"0" if h == 0 else acc(ct,qt)}')
            if ct == 0 and n + UPF < 20: pxl(n + UPF)
    k.nop(4)
    for t in (0, 1, 4, 5, 2, 3, 6, 7):
        k(f'ds_write_b128 v6, {V(24+4*t,4)} offset:{1024*t}')
    k("""
    s_waitcnt lgkmcnt(0)
    s_barrier""")
    for c in range(2):
        for i in range(4):
            k(f'ds_read_b128 {V(64+16*c+4*i,4)}, v7 offset:{8192*i + 1024*c}')
    for i in range(4):
        k(f'v_lshlrev_b32 v{24+2*i}, 16, v{16+i}')
        k(f'v_and_b32 v{25+2*i}, s48, v{16+i}')
    k(f's_add_u32 s45, s45, {HH:#x}\ns_add_u32 s44, s43, {FH:#x}')
    for c in range(2):
        b = 64 + 16 * c
        k(f"""
        s_waitcnt lgkmcnt({4 - 4*c})
        v_pk_add_f32 {V(b,2)}, {V(b,2)}, {V(b+4,2)}
        v_pk_add_f32 {V(b+2,2)}, {V(b+2,2)}, {V(b+6,2)}
        v_pk_add_f32 {V(b+8,2)}, {V(b+8,2)}, {V(b+12,2)}
        v_pk_add_f32 {V(b+10,2)}, {V(b+10,2)}, {V(b+14,2)}
        v_pk_add_f32 {V(b,2)}, {V(b,2)}, {V(24+4*c,2)}
        v_pk_add_f32 {V(b+2,2)}, {V(b+2,2)}, {V(26+4*c,2)}
        v_pk_add_f32 {V(b,2)}, {V(b,2)}, {V(b+8,2)}
        v_pk_add_f32 {V(b+2,2)}, {V(b+2,2)}, {V(b+10,2)}
        v_cvt_pk_bf16_f32 v{32+2*c}, v{b}, v{b+1}
        v_cvt_pk_bf16_f32 v{33+2*c}, v{b+2}, v{b+3}""")
    k(f"""
    buffer_store_dwordx4 v[32:35], v13, s[8:11], s45 offen sc1
    s_cmp_ge_u32 s22, {64 - NG}
    s_cbranch_scc1 {p}_last""")
    uload()
    k(f"""
    s_waitcnt vmcnt(32)
    s_barrier
    buffer_store_dword v15, v14, s[8:11], s44 offen sc1""")
    stamp(k, cfg, 2)
    k(f's_add_u32 s22, s22, {NG}\ns_branch {p}_loop')
    k.label(f'{p}_last')
    k(f"""
    s_waitcnt vmcnt(0)
    s_barrier
    buffer_store_dword v15, v14, s[8:11], s44 offen sc1""")
    stamp(k, cfg, 2)
    k(f's_branch {end}')

def mega_epilogue(k, name, cfg):
    k.label(name + '_fail')
    k(f"""
    v_mov_b32 v4, 16
    s_lshl_b32 s28, s25, 8
    s_add_u32 s28, s28, s22
    s_add_u32 s28, s28, 0x10000
    v_mov_b32 v5, s28
    buffer_store_dword v5, v4, s[88:91], 0 offen
    s_endpgm""")
    k.label(name + '_end')
    if cfg.get('stamp') is not None:
        l = k.newlabel('L_nost')
        k(f"""
        s_cmp_ge_u32 s2, 256
        s_cbranch_scc1 {l}
        s_cmp_lg_u32 s21, 0
        s_cbranch_scc1 {l}
        s_memrealtime s[72:73]
        s_memtime s[78:79]
        s_waitcnt lgkmcnt(0)
        s_sub_u32 s78, s78, s76
        s_lshl_b32 s28, s25, 2
        s_add_u32 s28, s28, {STAMPS + 0x4000:#x}
        v_mov_b32 v4, 0
        v_mov_b32 v8, s78
        v_mov_b32 v9, s58
        buffer_store_dword v8, v4, s[8:11], s28 offen
        buffer_store_dword v9, v4, s[8:11], s28 offen offset:1024
        s_lshl_b32 s28, s25, 5
        s_add_u32 s28, s28, {STAMPS:#x}
        v_mov_b32 v4, 0
        v_mov_b32 v8, s60
        v_mov_b32 v9, s62
        v_mov_b32 v10, s64
        v_mov_b32 v11, s66
        v_mov_b32 v12, s68
        v_mov_b32 v13, s70
        v_mov_b32 v14, s72
        v_mov_b32 v15, s74
        buffer_store_dwordx4 v[8:11], v4, s[8:11], s28 offen
        buffer_store_dwordx4 v[12:15], v4, s[8:11], s28 offen offset:16""")
        if cfg.get('dbgv') is not None:
            k(f's_cmp_lg_u32 s25, {cfg["dbgv"]}\ns_cbranch_scc1 {l}\ns_nop 1')
            for i in range(8): k(f'v_subrev_u32 v{8+i}, s74, v{8+i}')
            k('buffer_store_dwordx4 v[8:11], v4, s[88:91], 0 offen offset:32\nbuffer_store_dwordx4 v[12:15], v4, s[88:91], 0 offen offset:48')
        k.label(l)
    k('s_endpgm')

def vid(k):
    k("""
    s_add_u32 s29, s2, s23
    s_sub_u32 s29, s29, 1
    s_lshr_b32 s25, s2, 3
    s_lshl_b32 s25, s25, 2
    s_and_b32 s28, s29, 3
    s_add_u32 s25, s25, s28
    s_and_b32 s28, s29, 4
    s_lshl_b32 s28, s28, 5
    s_add_u32 s25, s25, s28""")

def rot_check(k, v):
    k(f'v_readfirstlane_b32 s28, v{v}\ns_cmp_lg_u32 s28, s23\ns_cbranch_scc1 mega_kernel_redo')

def rot_wait(k, t):
    l = k.newlabel('L_rw')
    k(f'v_mov_b32 v{t}, 140\ns_mov_b32 s39, 0')
    k.label(l)
    k(f'buffer_load_dword v{t+1}, v{t}, s[88:91], 0 offen sc1')
    tmo(k, FAIL)
    k(f's_waitcnt vmcnt(0)\nv_cmp_eq_u32 vcc, 0, v{t+1}\ns_cbranch_vccnz {l}')
    rot_check(k, t + 1)

def gen_mega_kernel(k, name, cfg):
    mega_prologue(k, name)
    dbg_srd(k)
    k(f"""
    s_getreg_b32 s23, hwreg(HW_REG_XCC_ID)
    s_sub_u32 s23, s23, s2
    s_add_u32 s23, s23, {cfg.get('rotbias', 0)}
    s_and_b32 s23, s23, 7
    s_add_u32 s23, s23, 1
    s_add_u32 s28, s2, s21
    s_cmp_lg_u32 s28, 0
    s_cbranch_scc1 {name}_disp
    v_mov_b32 v4, 140
    v_mov_b32 v5, s23
    buffer_store_dword v5, v4, s[88:91], 0 offen sc1
    s_waitcnt vmcnt(0)
    s_branch {name}_disp""")
    k.label(name + '_redo')
    k('s_mov_b32 s23, s28\ns_waitcnt vmcnt(0) lgkmcnt(0)\ns_barrier')
    k.label(name + '_disp')
    vid(k)
    if cfg.get('swap', (104, 160, 24)):
        a, b, n = cfg.get('swap', (104, 160, 24))
        k(f"""
        s_sub_u32 s28, s25, {a}
        s_sub_u32 s29, s25, {b}
        s_add_u32 s30, s28, {b}
        s_add_u32 s31, s29, {a}
        s_cmp_lt_u32 s28, {n}
        s_cselect_b32 s25, s30, s25
        s_cmp_lt_u32 s29, {n}
        s_cselect_b32 s25, s31, s25""")
    if cfg.get('stamp') is not None:
        for i in range(60, 76): k(f's_mov_b32 s{i}, 0')
        ustamp(k, cfg, 7)
        k('s_memtime s[76:77]')
    E_, F_ = name + '_end', name + '_fail'
    G3 = name + '_g3'
    k(f"""
    s_mov_b32 s22, 0
    s_mov_b32 s24, 1
    s_and_b32 s20, s25, 31
    s_cmp_lt_u32 s25, 32
    s_cbranch_scc1 {name}_h
    s_cmp_lt_u32 s25, 64
    s_cbranch_scc1 {name}_z
    s_cmp_lt_u32 s25, 80
    s_cbranch_scc1 {name}_c0
    s_sub_u32 s30, s25, 80
    s_cmp_lt_u32 s25, 128
    s_cbranch_scc1 {name}_il
    s_cmp_lt_u32 s25, 192
    s_cbranch_scc1 {name}_vu0
    s_cmp_lt_u32 s25, 224
    s_cbranch_scc1 {name}_qk
    s_sub_u32 s30, s25, 176
    s_branch {name}_il""")
    k.label(name + '_c0')
    k('s_sub_u32 s30, s25, 64')
    gen_init_x(k, name + '_ix')
    k(f's_sub_u32 s20, s25, 64\ns_branch {name}_c')
    k.label(name + '_il')
    gen_init_ln(k, name + '_il')
    k(f's_sub_u32 s20, s25, 64\ns_cmp_lt_u32 s25, 104\ns_cbranch_scc1 {name}_c')
    load_sel(k, cfg)
    k(f"""
    s_and_b32 s20, s25, 7
    s_cmp_lt_u32 s25, 112
    s_cbranch_scc1 {name}_x
    s_cmp_lt_u32 s25, 128
    s_cbranch_scc1 {name}_g10
    s_cmp_ge_u32 s25, 254
    s_cbranch_scc1 {name}_wt
    s_sub_u32 s28, s25, 224
    s_mul_i32 s22, s28, 26
    s_lshr_b32 s22, s22, 8
    s_mul_i32 s29, s22, 10
    s_sub_u32 s20, s28, s29""")
    if 'O' in cfg.get('skip', ''): k(f's_branch {E_}')
    gen_o(k, name + '_o', G3, F_, cfg)
    k.label(name + '_wt')
    k('s_and_b32 s27, s25, 1\ns_lshl_b32 s27, s27, 4\ns_mov_b32 s26, 16')
    if 'W' in cfg.get('skip', ''): k(f's_branch {E_}')
    gen_wt(k, name + '_wt', name + '_wo', cfg)
    k.label(name + '_wo')
    k('s_and_b32 s20, s25, 1')
    k.label(name + '_wol')
    gen_wo(k, name + '_wo', cfg)
    k(f's_add_u32 s20, s20, 2\ns_cmp_lt_u32 s20, 5\ns_cbranch_scc1 {name}_wol\ns_branch {G3}')
    k.label(name + '_g10')
    if cfg.get('g1wait', 1):
        k(f'v_and_b32 v16, 31, v1\nv_lshlrev_b32 v16, 7, v16\ns_add_u32 s44, s56, {FKM:#x}')
        poll_flag(k, name + '_wf', 16, 's44', 17, F_, sleep=8)
    k('v_lshlrev_b32 v2, 4, v1')
    k('s_and_b32 s20, s25, 3\ns_bfe_u32 s22, s25, 0x20002\ns_cmp_eq_u32 s22, 3\ns_cselect_b32 s22, 0, s22\ns_cselect_b32 s28, 0, 4\ns_cselect_b32 s24, 1, 3\ns_cselect_b32 s26, 52, 64\ns_add_u32 s20, s20, s28')
    k.label(name + '_g1e')
    if '1' in cfg.get('skip', ''): k(f's_branch {E_}')
    gen_g1p(k, name + '_g1p', E_, F_, cfg)
    k.label(name + '_x')
    if 'X' in cfg.get('skip', ''): k(f's_branch {E_}')
    k('s_mov_b32 s26, 63')
    k.label(name + '_xe')
    gen_x(k, name + '_x', name + '_xd', F_, cfg)
    k.label(name + '_xd')
    k(f's_cmp_eq_u32 s26, 64\ns_cbranch_scc1 {G3}\ns_branch {E_}')
    k.label(name + '_c')
    gen_c(k, name + '_c', G3, F_, cfg)
    k.label(G3)
    if cfg.get('stamp') is not None and not LST: ustamp(k, cfg, 1 if cfg.get('stamp') == 98 else 5)
    k('s_cmp_lt_u32 s25, 224\ns_cselect_b32 s28, 8, 0\ns_add_u32 s28, s28, s25\ns_sub_u32 s28, s28, 96\ns_cmp_lt_u32 s25, 128\ns_cselect_b32 s20, s25, s28')
    if 'G' in cfg.get('skip', ''): k(f's_branch {E_}')
    gen_g3p(k, name + '_g3p', E_, F_, cfg)
    k.label(name + '_z')
    gen_z(k, name + '_z', G3, F_, cfg)
    k.label(name + '_h')
    gen_h(k, name + '_h', G3, F_, cfg)
    k.label(name + '_vu0')
    k('s_bfe_u32 s24, s25, 0x10005')
    gen_pj(k, name + '_pj', name + '_g2', cfg)
    k.label(name + '_g2')
    ustamp(k, cfg, 0)
    if 'G' in cfg.get('skip', ''): k(f's_branch {E_}')
    k('s_sub_u32 s27, s25, 96\ns_mov_b32 s26, 1')
    k.label(name + '_g2a')
    gen_wt(k, name + '_wt1', name + '_g2b', cfg, single=True)
    k.label(name + '_g2b')
    k(f's_add_u32 s27, s27, 32\ns_sub_u32 s28, s27, 96\ns_cmp_lt_u32 s28, 32\ns_cbranch_scc1 {name}_g2a')
    k('s_sub_u32 s20, s25, 128')
    gen_g2p(k, name + '_g2p', E_, F_, cfg)
    k.label(name + '_qk')
    gen_vu(k, name + '_vu', name + '_vue', F_, dict(cfg, stamp=cfg.get('stamp') if cfg.get('stamp') in (0, 97) else None))
    k.label(name + '_vue')
    k(f's_cmp_lt_u32 s25, 208\ns_cbranch_scc1 {G3}\ns_cmp_ge_u32 s25, 216\ns_cbranch_scc1 {name}_vug')
    k(f'v_mov_b32 v16, 0\ns_add_u32 s44, s56, {FKM + 61*4096:#x}')
    poll_flag(k, name + '_xw', 16, 's44', 17, F_, sleep=12)
    k(f's_and_b32 s20, s25, 7\ns_mov_b32 s22, 63\ns_mov_b32 s26, 64\ns_branch {name}_xe')
    k.label(name + '_vug')
    k(f's_and_b32 s20, s25, 3\ns_bfe_u32 s22, s25, 0x10002\ns_add_u32 s22, s22, 52\ns_mov_b32 s24, 2\ns_mov_b32 s26, 64\ns_branch {name}_g1e')
    mega_epilogue(k, name, cfg)

def mega_prologue(k, name, nwg=256):
    k.begin(name)
    k(f'''
    s_cmp_lt_u32 s2, {nwg}
    s_cbranch_scc1 {name}_in
    s_endpgm''')
    k.label(name + '_in')
    k(f'''
    s_load_dwordx4 s[4:7], s[0:1], {KA['dbg']}
    s_load_dwordx8 s[92:99], s[0:1], {KA['Wq']}
    v_and_b32 v1, 63, v0
    v_lshrrev_b32 v2, 6, v0
    s_nop 0
    v_readfirstlane_b32 s21, v2
    s_waitcnt lgkmcnt(0)''')
    k.srd(8, 6, WS_BYTES)

def far_branch(k, target):
    k(f's_branch {target}')

GC1 = -2.0 * (2.0 / 3.141592653589793) ** 0.5 * 1.4426950408889634
GC2 = GC1 * 0.044715

def gs(k, cfg, idx):
    if cfg.get('gstamp'): k(f's_memrealtime s[{60+2*idx}:{61+2*idx}]')

def gdump(k, cfg, n):
    if not cfg.get('gstamp'): return
    k(f"""
    s_waitcnt vmcnt(0)
    s_memrealtime s[74:75]
    s_waitcnt lgkmcnt(0)
    s_lshl_b32 s28, s2, 2
    s_add_u32 s28, s28, s21
    s_lshl_b32 s28, s28, 5
    s_add_u32 s28, s28, {TRACE + 0x200000 + n * 0x10000:#x}
    v_mov_b32 v4, 0""")
    for i in range(8): k(f'v_mov_b32 v{8+i}, s{60+2*i}')
    k('buffer_store_dwordx4 v[8:11], v4, s[8:11], s28 offen')
    k('buffer_store_dwordx4 v[12:15], v4, s[8:11], s28 offen offset:16')

def gen_wt(k, p, end, cfg, single=False):
    k(f's_load_dwordx2 s[28:29], s[0:1], {KA["w_sp"]}')
    k('s_waitcnt lgkmcnt(0)')
    k.srd(12, 28, 2048 * 4096)
    k(f"""
    v_lshlrev_b32 v2, 4, v1
    s_lshl_b32 s31, s21, 14
    s_lshl_b32 s30, s27, 16
    s_add_u32 s30, s30, s31
    s_lshl_b32 s28, s21, 6""")
    for r in range(4): k(f'v_xor_b32 v{4+r}, s28, v2\ns_add_u32 s28, s28, 16')
    k(f"""
    v_and_b32 v8, 15, v1
    v_lshrrev_b32 v9, 4, v1
    v_xor_b32 v9, v9, v8
    v_lshlrev_b32 v9, 4, v9
    v_lshl_add_u32 v9, v8, 12, v9
    s_lshl_b32 s28, s21, 10
    v_add_u32 v10, s28, v9
    v_xor_b32 v11, 64, v10
    v_xor_b32 v12, 128, v10
    v_xor_b32 v13, 192, v10
    s_mov_b32 s32, s27
    s_add_u32 s35, s32, s26""")
    def dma():
        for r in range(4):
            k(f's_add_u32 m0, s31, {4096*r}\ns_add_u32 s28, s30, {4096*r}')
            for i in range(4):
                k(f'buffer_load_dwordx4 v{4+r}, s[12:15], s28 offen offset:{1024*i} nt lds')
        k(f's_xor_b32 s31, s31, 65536\ns_add_u32 s30, s30, 65536\ns_and_b32 s30, s30, {2048*4096 - 1:#x}')
    dma()
    if not single: dma()
    k(f's_waitcnt vmcnt({0 if single else 16})')
    k.label(f'{p}_loop')
    k('s_barrier')
    for i in range(16): k(f'ds_read_b128 {V(16+4*i,4)}, v{10+i%4} offset:{256*(i//4)}')
    k(f"""
    s_lshr_b32 s28, s32, 1
    s_lshl_b32 s33, s28, 20
    s_and_b32 s28, s28, 15
    s_lshl_b32 s28, s28, 11
    s_add_u32 s33, s33, s28
    s_and_b32 s28, s32, 1
    s_mul_i32 s28, s28, {WST}
    s_add_u32 s33, s33, s28
    s_lshl_b32 s28, s21, 14
    s_add_u32 s33, s33, s28
    s_add_u32 s33, s33, {WSF:#x}""")
    for i in range(4): k(f'v_xor_b32 v{10+i}, 65536, v{10+i}')
    k('s_waitcnt lgkmcnt(0)')
    if not single:
        k('s_barrier')
        dma()
    for i in range(16):
        k(f'buffer_store_dwordx4 {V(16+4*i,4)}, v2, s[8:11], s33 offen offset:{1024*(i%4)} sc1')
        if i % 4 == 3: k('s_add_u32 s33, s33, 4096')
    k(f"""
    s_add_u32 s32, s32, 1
    s_cmp_lt_u32 s32, s35
    s_waitcnt vmcnt(32)
    s_cbranch_scc1 {p}_loop
    v_mov_b32 v6, {BIG:#x}
    v_lshlrev_b32 v7, 7, v0
    v_cmp_gt_u32 vcc, s26, v0
    s_lshl_b32 s28, s27, 7
    s_add_u32 s28, s28, {FWT:#x}
    v_cndmask_b32 v6, v6, v7, vcc
    v_mov_b32 v7, 1
    s_waitcnt vmcnt(0)
    s_barrier
    buffer_store_dword v7, v6, s[8:11], s28 offen sc1
    s_branch {end}""")

def gen_g1p(k, p, end, fail, cfg):
    SX = 81920; SA = SX + 512; SB = SA + 1024
    loc = {(t, kk): ('a', 4 * (3 * kk + t)) for kk in range(20) for t in range(3)}
    k(f's_load_dwordx2 s[28:29], s[0:1], {KA["w_in"]}')
    k('s_waitcnt lgkmcnt(0)')
    k.srd(12, 28, 640 * 3072)
    for i in range(3):
        k(f"""
        v_add_u32 v8, {64*i}, v1
        v_mul_u32_u24 v9, 2731, v8
        v_lshrrev_b32 v9, 16, v9
        v_mul_u32_u24 v10, 24, v9
        v_sub_u32 v10, v8, v10
        v_mul_u32_u24 v9, 3072, v9
        v_lshl_add_u32 v{144+i}, v10, 4, v9""")
    k(f"""
    v_lshrrev_b32 v11, 2, v1
    v_mul_u32_u24 v11, 384, v11
    v_and_b32 v10, 3, v1
    v_lshl_add_u32 v11, v10, 3, v11
    s_mul_i32 s28, s21, 96
    v_add_u32 v11, s28, v11
    s_mul_i32 s30, s20, 384
    s_mul_i32 s28, s21, {16*3072}
    s_add_u32 s30, s30, s28
    s_mul_i32 s32, s21, 6144""")
    k.vd = k.vc
    tick = {}
    def issue(c):
        for i in range(6):
            k(f's_add_u32 m0, s32, {(c%6)*24576 + i*1024}')
            k(f's_add_u32 s33, s30, {c*64*3072 + (i//3)*8*3072}')
            tick[c] = k.vm(f'buffer_load_dwordx4 v{144+i%3}, s[12:15], s33 offen lds')
    for c in range(6): issue(c)
    for c in range(10):
        k.wv(tick[c])
        k('s_barrier')
        k(f'v_add_u32 v13, {(c%6)*24576}, v11')
        for t in range(3):
            for k2 in range(2):
                for hf in range(2):
                    k(f'ds_read_b64_tr_b16 {R(loc[(t, 2*c+k2)], 2, 2*hf)}, v13 offset:{(32*k2+16*hf)*384 + t*32}')
        k('s_waitcnt lgkmcnt(0)')
        if c + 6 < 10 or c == 9: k('s_barrier')
        if c + 6 < 10: issue(c + 6)
    ustamp(k, cfg, 1)
    k(f"""
    v_mov_b32 v3, 9
    v_min_u32 v3, v3, v1
    v_lshlrev_b32 v3, 7, v3
    v_and_b32 v10, 15, v1
    v_lshrrev_b32 v11, 4, v1
    s_lshr_b32 s29, s21, 1
    s_mul_i32 s28, s29, 20480
    v_add_u32 v4, s28, v2
    v_lshrrev_b32 v12, 3, v10
    v_mul_u32_u24 v12, 20480, v12
    v_lshl_add_u32 v12, v11, 8, v12
    v_bfe_u32 v13, v10, 2, 1
    v_lshl_add_u32 v12, v13, 7, v12
    v_and_b32 v13, 3, v10
    v_lshl_add_u32 v12, v13, 4, v12
    s_lshl_b32 s28, s29, 6
    v_add_u32 v12, s28, v12
    s_cmp_ge_u32 s20, 4
    s_cselect_b64 vcc, -1, 0
    v_cndmask_b32 v4, v4, v12, vcc
    v_mov_b32 v5, v2
    s_mul_i32 s34, s21, 10240
    v_add_u32 v8, s34, v2
    s_and_b32 s35, s21, 1
    s_mul_i32 s35, s35, 10240
    s_add_u32 s35, s35, {HH:#x}
    v_mov_b32 v6, {BIG:#x}
    v_cmp_gt_u32 vcc, {FW}, v0
    v_lshlrev_b32 v7, 2, v0
    s_nop 0
    v_cndmask_b32 v6, v6, v7, vcc
    v_mov_b32 v7, 1
    s_lshl_b32 s28, s21, 7
    s_add_u32 s28, s28, {SX}
    v_lshlrev_b32 v9, 3, v10
    v_add_u32 v14, {SX}, v9
    v_add_u32 v9, s28, v9
    v_lshrrev_b32 v12, 2, v10
    v_cmp_eq_u32 vcc, v12, v11
    v_mov_b32 v12, {SB + 512}
    v_and_b32 v13, 1, v1
    v_cndmask_b32 v9, v12, v9, vcc
    v_cmp_ne_u32 s[48:49], 0, v13
    v_and_b32 v13, 2, v1
    v_cmp_ne_u32 s[50:51], 0, v13
    s_mov_b32 s45, {DUMMY:#x}
    v_lshlrev_b32 v15, 5, v11
    v_add_u32 v15, {SX}, v15
    s_mov_b32 s36, 0x3f803f80
    v_mov_b32 v16, s36
    v_mov_b32 v17, s36
    v_mov_b32 v18, s36
    v_mov_b32 v19, s36
    v_mov_b32 v20, {GC1!r}
    v_mov_b32 v22, {GC2!r}
    v_mov_b32 v24, 1.0
    s_mov_b32 s40, 0
    s_mov_b32 s41, 0
    s_cmp_ge_u32 s20, 4
    s_cbranch_scc1 {p}_z2""")
    CSR = 28
    acc = lambda tt, t3: 40 + 4 * (3 * tt + t3)
    def dma(seg):
        k(f's_mul_i32 s29, {seg}, 40960\ns_add_u32 s29, s29, s35\ns_add_u32 s28, s34, s40')
        for j in range(3):
            k(f's_add_u32 m0, s28, {4096*j}\ns_add_u32 s33, s29, {4096*j}')
            for i in range(4 if j < 2 else 2):
                k(f'buffer_load_dwordx4 v4, s[8:11], s33 offen offset:{1024*i} sc1 lds')
        k('s_xor_b32 s40, s40, 40960')
    def path(z2):
        q = f'{p}_{"b" if z2 else "a"}'
        mm = lambda d, w_, x_, c_: f'{MF} {d}, {x_}, {w_}, {c_}' if z2 else f'{MF} {d}, {w_}, {x_}, {c_}'
        for kk in range(20):
            for t in range(3):
                d = V(CSR + 4 * t, 4)
                k(mm(d, R(loc[(t, kk)], 4), 'v[16:19]', '0' if kk == 0 else d))
        k.label(f'{q}_loop')
        k(f's_cmp_lg_u32 s41, 0\ns_cbranch_scc1 {q}_have\ns_lshl_b32 s42, s22, 12\ns_add_u32 s42, s42, {FH:#x}\ns_add_u32 s42, s42, s56')
        poll_flag(k, f'{q}_f', 3, 's42', 26, fail, sleep=1, slow=(58, cfg.get('slow', 12)))
        dma('s22')
        k('s_waitcnt vmcnt(0)')
        k.label(f'{q}_have')
        stamp(k, cfg, 2)
        k(f"""
        s_add_u32 s43, s22, s24
        s_min_u32 s42, s43, 63
        s_lshl_b32 s42, s42, 12
        s_add_u32 s42, s42, {FH:#x}
        s_add_u32 s42, s42, s56
        s_waitcnt vmcnt({1 if z2 else 6})
        s_barrier
        buffer_load_dword v26, v3, s[8:11], s42 offen sc1""")
        mats = []; items = []; ev = []
        XR = [64 + 4 * i for i in range(8)]
        for kk in range(20):
            for tt in range(2):
                n_ = 2 * kk + tt; r = XR[n_ % 8]
                ev.append((max(3 * n_ - 15, 3 * (n_ - 8) + 2 if n_ >= 8 else -1), dict(id=('x', n_), kind='n', lds=True, fn=f'ds_read_b128 {V(r,4)}, v5 offset:{tt*20480 + kk*1024}')))
                for t in range(3):
                    d = V(acc(tt, t), 4)
                    mats.append((mm(d, R(loc[(t, kk)], 4), V(r, 4), '0' if kk == 0 else d), [('x', n_)]))
        smats = []
        for i in range(10):
            r = V(96 + 4 * i, 4)
            ev.append((1 + 3 * i, dict(id=('o', i), kind='n', lds=True, fn=f'ds_read_b128 {r}, v8 offset:{1024*i}')))
            smats.append((f'{MF} v[156:159], v[16:19], {r}, {"0" if i == 0 else "v[156:159]"}', [('o', i)]))
            smats.append((f'{MF} v[160:163], {r}, {r}, {"0" if i == 0 else "v[160:163]"}', []))
        SP = 42
        mats[SP:SP] = smats
        for j, (g_, it) in enumerate(ev):
            if it['id'][0] == 'x' and g_ >= SP: ev[j] = (g_ + 20, it)
        items.append(dict(id='s0', kind='v', fn='v_cndmask_b32 v160, v160, v161, s[48:49]', states=(SP + 19, 8), after=SP + 22))
        items.append(dict(id='s1', kind='v', fn='v_cndmask_b32 v162, v162, v163, s[48:49]'))
        items.append(dict(id='s2', kind='v', fn='v_cndmask_b32 v157, v160, v162, s[50:51]'))
        ev.append((SP + 26, dict(id='sw', kind='n', lds=True, fn='ds_write_b64 v9, v[156:157]', order=['s2'])))
        ev.append((SP + 31, dict(id='sv', kind='n', fn='s_waitcnt vmcnt(0)\nv_cmp_eq_u32 vcc, 0, v26')))
        ev.append((SP + 32, dict(id='sb', kind='bar', fn='s_barrier', deps=['sw'], order=['sw'])))
        kd = K(); k_save = k.L; k.L = kd.L
        k(f's_mov_b32 s41, 0\ns_cmp_ge_u32 s43, s26\ns_cbranch_scc1 {q}_nop\ns_cbranch_vccnz {q}_nop\ns_mov_b32 s41, 1')
        dma('s43')
        k.L = k_save
        if not z2: ev.append((SP + 32.5, dict(id='sf', kind='n', fn=f'buffer_store_dword v7, v6, s[8:11], s45 offen sc1')))
        ev.append((SP + 42, dict(id='sd', kind='n', fn='\n'.join(kd.L), label=f'{q}_nop')))
        RS, NB = 140, 148
        nst = 8 if z2 else 2
        if z2:
            for i in range(8):
                ev.append((SP + 33 + i, dict(id=('sr', i), kind='n', lds=True, fn=f'ds_read_b128 {V(96+4*i,4)}, v15 offset:{128*(i>>1) + 16*(i&1)}', order=['sb'])))
            src = lambda i: (96 + 16 * (i >> 2) + 2 * (i & 3), 104 + 16 * (i >> 2) + 2 * (i & 3))
            lastr = ('sr', 7)
        else:
            for i in range(4):
                ev.append((SP + 33 + i, dict(id=('sr', i), kind='n', lds=True, fn=f'ds_read_b64 {V(96+2*i,2)}, v14 offset:{128*i}', order=['sb'])))
            src = lambda i: (96 + 4 * i, 98 + 4 * i)
            lastr = ('sr', 3)
        fin = []
        for i in range(nst): fin.append(f'v_pk_add_f32 {V(src(i)[0],2)}, {V(src(i)[0],2)}, {V(src(i)[1],2)}')
        for i in range(nst): fin.append(f'v_pk_mul_f32 {V(src(i)[0],2)}, {V(src(i)[0],2)}, s[46:47]')
        for i in range(nst): fin.append(f'v_fma_f32 v{src(i)[0]+1}, -v{src(i)[0]}, v{src(i)[0]}, v{src(i)[0]+1}')
        for i in range(nst): fin.append(f'v_max_f32 v{src(i)[0]+1}, 0, v{src(i)[0]+1}')
        for i in range(nst): fin.append(f'v_add_f32 v{src(i)[0]+1}, 1e-5, v{src(i)[0]+1}')
        st = 1 if z2 else 2
        for i in range(nst): fin.append(f'v_rsq_f32 v{RS+st*i}, v{src(i)[0]+1}')
        fin.append('v_nop')
        for i in range(nst): fin.append(f'v_mul_f32_e64 v{NB+st*i}, -v{src(i)[0]}, v{RS+st*i}')
        for i, f_ in enumerate(fin):
            items.append(dict(id=('f', i), kind='v', fn=f_, deps=[lastr] if i == 0 else [], order=[lastr], after=SP + 46))
        ev.sort(key=lambda x: x[0])
        for g_, it in ev:
            it['after'] = g_; items.append(it)
        k(f's_mov_b32 s46, {1.0/640!r}\ns_mov_b32 s47, s46')
        sched(k, mats, items, [False] * 140, pre_n=3)
        stamp(k, cfg, 3)
        k('v_xor_b32 v5, 40960, v5\ns_nop 0\nv_add_u32 v8, s34, v5')
        for tt in range(2):
            for t in range(3):
                for h_ in range(2):
                    a = V(acc(tt, t) + 2 * h_, 2); c = V(CSR + 4 * t + 2 * h_, 2)
                    if z2:
                        k(f'v_pk_mul_f32 {a}, {a}, {V(RS+4*tt+2*h_,2)}')
                        k(f'v_pk_fma_f32 {a}, {c}, {V(NB+4*tt+2*h_,2)}, {a}')
                    else:
                        k(f'v_pk_mul_f32 {a}, {a}, {V(RS+2*tt,2)} op_sel_hi:[1,0]')
                        k(f'v_pk_fma_f32 {a}, {c}, {V(NB+2*tt,2)}, {a} op_sel_hi:[1,0,1]')
        for b in range(0, 24, 8):
            for i in range(0, 8, 2): k(f'v_pk_mul_f32 {V(64+i,2)}, {V(40+b+i,2)}, {V(40+b+i,2)}')
            for i in range(0, 8, 2): k(f'v_pk_fma_f32 {V(64+i,2)}, {V(64+i,2)}, v[22:23], v[20:21] op_sel_hi:[1,0,0]')
            for i in range(0, 8, 2): k(f'v_pk_mul_f32 {V(64+i,2)}, {V(64+i,2)}, {V(40+b+i,2)}')
            for i in range(8): k(f'v_exp_f32 v{64+i}, v{64+i}')
            for i in range(0, 8, 2): k(f'v_pk_add_f32 {V(64+i,2)}, {V(64+i,2)}, v[24:25] op_sel_hi:[1,0]')
            for i in range(8): k(f'v_rcp_f32 v{64+i}, v{64+i}')
            for i in range(0, 8, 2): k(f'v_pk_mul_f32 {V(40+b+i,2)}, {V(40+b+i,2)}, {V(64+i,2)}')
        if not z2:
            k(f"""
            s_mul_i32 s28, s20, 6144
            s_mul_i32 s29, s21, 1536
            s_add_u32 s28, s28, s29
            s_mul_i32 s29, s22, 49152
            s_add_u32 s28, s28, s29
            s_add_u32 s28, s28, {Z1F:#x}
            s_add_u32 s29, s28, 24576
            v_lshlrev_b32 v12, 3, v1""")
            for tt in range(2):
                for t3 in range(3):
                    a = acc(tt, t3); d = 72 + 2 * (2 * t3 + tt)
                    k(f'v_cvt_pk_bf16_f32 v{d}, v{a}, v{a+1}')
                    k(f'v_cvt_pk_bf16_f32 v{d+1}, v{a+2}, v{a+3}')
                    k(f'buffer_store_dwordx2 {V(d,2)}, v12, s[8:11], s{28+tt} offen offset:{512*t3} sc1')
        else:
            for tt in range(2):
                for r in range(4):
                    d = 96 + 8 * tt + 2 * r; a0, a1, a2 = (acc(tt, j) + r for j in range(3))
                    k(f'v_add_f32 v{d}, v{a0}, v{a1}')
                    k(f'v_mul_f32 v{d+1}, v{a0}, v{a0}')
                    k(f'v_add_f32 v{d}, v{d}, v{a2}')
                    k(f'v_fmac_f32 v{d+1}, v{a1}, v{a1}')
                    k(f'v_fmac_f32 v{d+1}, v{a2}, v{a2}')
            for sh in (8, 4, 2, 1):
                for i in range(16):
                    k(f'v_add_f32_dpp v{96+i}, v{96+i}, v{96+i} row_ror:{sh} row_mask:0xf bank_mask:0xf')
            k(f's_lshl_b32 s28, s21, 8\nv_add_u32 v13, s28, v15')
            for tt in range(2):
                k(f'ds_write_b128 v13, {V(96+8*tt,4)} offset:{SA - SX + 128*tt}')
                k(f'ds_write_b128 v13, {V(100+8*tt,4)} offset:{SA - SX + 128*tt + 16}')
            k(f"""
            s_waitcnt lgkmcnt(0)
            s_barrier
            s_cmp_lg_u32 s21, 0
            s_cbranch_scc1 {q}_w
            v_and_b32 v12, 31, v1
            v_lshlrev_b32 v12, 3, v12
            v_add_u32 v13, {SA}, v12
            ds_read_b64 v[96:97], v13
            ds_read_b64 v[98:99], v13 offset:256
            ds_read_b64 v[100:101], v13 offset:512
            ds_read_b64 v[102:103], v13 offset:768
            s_lshl_b32 s44, s22, 10
            s_add_u32 s44, s44, {ST:#x}
            s_add_u32 s44, s44, s56
            s_and_b32 s28, s20, 3
            s_lshl_b32 s28, s28, 8
            s_add_u32 s28, s28, s44
            s_waitcnt lgkmcnt(0)
            v_pk_add_f32 v[96:97], v[96:97], v[98:99]
            v_pk_add_f32 v[100:101], v[100:101], v[102:103]
            v_pk_add_f32 v[96:97], v[96:97], v[100:101]
            v_min_u32 v96, -2, v96
            v_min_u32 v97, -2, v97
            buffer_store_dwordx2 v[96:97], v12, s[8:11], s28 offen sc1
            s_mov_b32 s39, 0
            s_waitcnt vmcnt(0)""")
            k.label(f'{q}_sp')
            for i in range(4):
                k(f'buffer_load_dwordx2 {V(98+2*i,2)}, v12, s[8:11], s44 offen offset:{256*i} sc1')
            tmo(k, fail)
            k('s_waitcnt vmcnt(0)')
            maxtree(k, 10, list(range(98, 106)))
            k(f"""
            v_cmp_eq_u32 vcc, -1, v10
            s_cbranch_vccnz {q}_sp
            v_pk_add_f32 v[98:99], v[98:99], v[100:101]
            v_pk_add_f32 v[102:103], v[102:103], v[104:105]
            v_pk_add_f32 v[98:99], v[98:99], v[102:103]
            v_mul_f32 v98, {1.0/768!r}, v98
            v_mul_f32 v99, {1.0/768!r}, v99
            v_fma_f32 v99, -v98, v98, v99
            v_max_f32 v99, 0, v99
            v_add_f32 v99, 1e-5, v99
            v_rsq_f32 v100, v99
            s_nop 0
            v_mul_f32_e64 v101, -v98, v100
            ds_write_b64 v13, v[100:101] offset:{SB - SA}
            s_waitcnt lgkmcnt(0)""")
            k.label(f'{q}_w')
            k('s_barrier')
            for tt in range(2):
                k(f'ds_read_b128 {V(96+8*tt,4)}, v15 offset:{SB - SX + 128*tt}')
                k(f'ds_read_b128 {V(100+8*tt,4)}, v15 offset:{SB - SX + 128*tt + 16}')
            k(f"""
            s_sub_u32 s28, s20, 4
            s_mul_i32 s28, s28, 12
            s_mul_i32 s29, s21, 3
            s_add_u32 s28, s28, s29
            s_lshl_b32 s28, s28, 10
            s_mul_i32 s29, s22, 49152
            s_add_u32 s28, s28, s29
            s_add_u32 s28, s28, {Z2F:#x}
            s_waitcnt lgkmcnt(0)""")
            for t3 in range(3):
                d = 72 + 4 * t3
                for tt in range(2):
                    a = acc(tt, t3)
                    for r in range(4):
                        k(f'v_fma_f32 v{a+r}, v{a+r}, v{96+8*tt+2*r}, v{97+8*tt+2*r}')
                    k(f'v_cvt_pk_bf16_f32 v{d+2*tt}, v{a}, v{a+1}')
                    k(f'v_cvt_pk_bf16_f32 v{d+2*tt+1}, v{a+2}, v{a+3}')
                k(f'buffer_store_dwordx4 {V(d,4)}, v2, s[8:11], s28 offen offset:{1024*t3} sc1')
        k(f"""
        s_lshl_b32 s28, s20, 7
        s_add_u32 s28, s28, s22
        s_lshl_b32 s28, s28, 7
        s_add_u32 s28, s28, s56
        s_add_u32 s28, s28, {FG1:#x}""")
        if not z2:
            k(f's_mov_b32 s45, s28\ns_cmp_lt_u32 s43, s26\ns_cbranch_scc1 {q}_df')
        k(f"""
        s_waitcnt vmcnt(0)
        s_barrier
        buffer_store_dword v7, v6, s[8:11], s28 offen sc1""")
        k.label(f'{q}_df')
        stamp(k, cfg, 4)
        k(f"""
        s_mov_b32 s22, s43
        s_cmp_lt_u32 s22, s26
        s_cbranch_scc1 {q}_loop
        s_branch {end}""")
    path(False)
    k.label(f'{p}_z2')
    path(True)

def gen_g2p(k, p, end, fail, cfg):
    k(f's_load_dwordx2 s[28:29], s[0:1], {KA["b_sp"]}')
    k('s_waitcnt lgkmcnt(0)')
    k.srd(12, 28, 4096)
    acc = lambda tt, j: 64 + 4 * (6 * tt + j)
    k(f"""
    s_and_b32 s30, s20, 3
    s_lshl_b32 s30, s30, 2
    s_bfe_u32 s31, s20, 0x20002
    s_add_u32 s30, s30, s31
    s_lshr_b32 s31, s20, 4
    s_lshr_b32 s32, s21, 1
    s_and_b32 s33, s21, 1
    v_and_b32 v10, 15, v1
    v_lshlrev_b32 v10, 1, v10
    s_lshl_b32 s28, s30, 8
    s_lshl_b32 s29, s32, 7
    s_add_u32 s28, s28, s29""")
    for tt in range(4):
        k(f'buffer_load_ushort v{16+tt}, v10, s[12:15], s28 offen offset:{32*tt}')
    k(f"""
    s_add_u32 s28, s31, 4
    s_lshl_b32 s28, s28, 14
    s_add_u32 s28, s28, s56
    v_lshlrev_b32 v3, 7, v1
    v_add_u32 v3, s28, v3
    s_add_u32 s49, s28, {FG1 + 62*128:#x}
    v_mov_b32 v9, {BIG:#x}
    v_cmp_gt_u32 vcc, 62, v1
    s_lshl_b32 s28, s32, 13
    v_add_u32 v4, s28, v2
    v_cndmask_b32 v3, v9, v3, vcc
    s_mul_i32 s28, s33, 6144
    s_add_u32 s28, s28, 16384
    v_add_u32 v5, s28, v2
    s_lshl_b32 s36, s21, 12
    s_lshl_b32 s28, s30, 2
    s_add_u32 s28, s28, s21
    s_lshl_b32 s42, s28, 8
    s_add_u32 s42, s42, {FWT:#x}
    s_lshl_b32 s34, s28, 20
    s_and_b32 s28, s28, 15
    s_lshl_b32 s28, s28, 11
    s_add_u32 s34, s34, s28
    s_add_u32 s34, s34, {WSF:#x}
    v_add_u32 v12, {WST - 2048}, v2
    s_mul_i32 s37, s21, 6144
    s_add_u32 s37, s37, 16384
    s_mul_i32 s35, s31, 12288
    s_mul_i32 s28, s32, 49152
    s_add_u32 s35, s35, s28
    s_mul_i32 s28, s33, 6144
    s_add_u32 s35, s35, s28
    s_add_u32 s35, s35, {Z2F:#x}
    s_mov_b32 s38, {FG1:#x}
    v_mov_b32 v8, 0
    v_and_b32 v9, 1, v1
    v_lshlrev_b32 v9, 7, v9""")
    poll_flag(k, f'{p}_fw', 9, 's42', 11, fail, sleep=4)
    for tt in range(4):
        k(f'v_lshlrev_b32 v{16+tt}, 16, v{16+tt}')
        for i in range(24): k(f'v_mov_b32 v{acc(tt,0)+i}, v{16+tt}')
    k('s_mov_b32 s40, 0\ns_mov_b32 s22, -1\ns_barrier')
    k(f"""
    s_lshl_b32 s28, s30, 2
    s_lshl_b32 s29, s32, 1
    s_add_u32 s28, s28, s29
    s_lshl_b32 s42, s31, 7
    s_add_u32 s42, s42, s28
    s_lshl_b32 s42, s42, 7
    s_add_u32 s42, s42, {FG1:#x}
    s_add_u32 s42, s42, s56
    s_mul_i32 s43, s28, 49152
    s_lshl_b32 s29, s28, 20
    s_and_b32 s28, s28, 15
    s_lshl_b32 s28, s28, 11
    s_add_u32 s29, s29, s28
    s_add_u32 s29, s29, {WSF + 62*1024:#x}
    s_mul_i32 s28, s31, 6144
    s_add_u32 s43, s43, s28
    s_mul_i32 s28, s33, 3072
    s_add_u32 s43, s43, s28
    s_add_u32 s57, s43, {Z1F:#x}
    s_add_u32 s43, s43, {YF:#x}
    v_lshlrev_b32 v10, 3, v1
    s_mov_b32 s54, 0xffff0000""")
    for tt in range(4):
        k(f's_add_u32 s28, s29, {(tt>>1)*(0x100000 + 2048) + (tt&1)*WST}')
        for h_ in range(2): k(f'buffer_load_dwordx4 {A(160+8*tt+4*h_,4)}, v2, s[8:11], s28 offen offset:{1024*h_} sc1')
    def unpack(lo, hi):
        for i in range(lo, hi):
            k(f'v_lshlrev_b32 v{160+2*i}, 16, v{16+i}')
            k(f'v_and_b32 v{161+2*i}, s54, v{16+i}')
    def z1load(t0, t1):
        for tt in range(t0, t1):
            k(f's_add_u32 s28, s57, {24576*tt}')
            for j in range(6):
                k(f'buffer_load_dwordx2 {V(16+12*tt+2*j,2)}, v10, s[8:11], s28 offen offset:{512*j} sc1')
    NB = 11
    FLG = 'buffer_load_dword v8, v3, s[8:11], s38 offen sc1'
    batch = ['s_and_b32 s28, s40, 3\ns_mul_i32 s28, s28, 40960', 's_add_u32 m0, s28, s36\ns_add_u32 s40, s40, 1'] + \
            [f'buffer_load_dwordx4 v{(2,2,12,12)[i]}, s[8:11], s34 offen offset:{1024*i} sc1 lds' for i in range(4)] + \
            ['s_add_u32 m0, s28, s37\ns_add_u32 s34, s34, 2048'] + \
            [f'buffer_load_dwordx4 v2, s[8:11], s35 offen offset:{1024*i} sc1 lds' for i in range(3)] + \
            ['s_add_u32 m0, m0, 3072\ns_add_u32 s35, s35, 3072'] + \
            [f'buffer_load_dwordx4 v2, s[8:11], s35 offen offset:{1024*i} sc1 lds' for i in range(3)] + \
            [FLG + f'\ns_add_u32 s35, s35, {98304 - 3072}']
    rorder = []
    for h_ in range(2): rorder += [('z', h_, 0), ('w', h_, 0)] + [('z', h_, j) for j in range(1, 6)] + [('w', h_, t) for t in range(1, 4)]
    freg = lambda st, f: 80 * st + 40 * f[1] + (4 * f[2] if f[0] == 'z' else 24 + 4 * f[2])
    def reads(st):
        return [f'ds_read_b128 {A(freg(st,f),4)}, ' + (f'v7 offset:{12288*f[1] + 1024*f[2]}' if f[0] == 'z' else f'v6 offset:{2048*f[2] + 1024*f[1]}') for f in rorder]
    addr = 's_add_u32 s29, s22, 1\ns_and_b32 s29, s29, 3\ns_mul_i32 s29, s29, 40960\nv_add_u32 v6, s29, v4\nv_add_u32 v7, s29, v5'
    def mf(st, i):
        h_, tt, j = i // 24, (i % 24) // 6, i % 6
        return f'{MF} {V(acc(tt,j),4)}, {A(freg(st,("z",h_,j)),4)}, {A(freg(st,("w",h_,tt)),4)}, {V(acc(tt,j),4)}'
    rdy = 's_lshl_b32 s46, s40, 1\ns_add_u32 s46, s46, s32\ns_nop 0\ns_lshr_b64 s[44:45], s[44:45], s46\ns_nop 0\ns_nop 0'.split('\n')
    def late(st):
        k.label(f'{p}_late{st}')
        k(f's_cmp_eq_u32 s22, 30\ns_cbranch_scc1 {p}_fin\ns_mov_b32 s39, 0')
        k('s_lshl_b32 s46, s40, 1\ns_lshl_b64 s[50:51], 15, s46')
        k.label(f'{p}_lp{st}')
        k('s_mov_b64 exec, s[50:51]')
        k(FLG)
        k('s_mov_b64 exec, -1')
        tmo(k, fail)
        k('s_waitcnt vmcnt(0)\nv_cmp_ne_u32 s[44:45], 0, v8\ns_nop 3')
        for s_ in rdy: k(s_)
        k(f"""
        s_bitcmp1_b32 s44, 0
        s_cbranch_scc1 {p}_lr{st}
        s_mov_b32 s47, {st}
        s_cmp_eq_u32 s48, 0
        s_cbranch_scc1 {p}_tz""")
        k.label(f'{p}_tzr{st}')
        k(f"""
        s_sleep 1
        s_cmp_ge_i32 s22, 29
        s_cbranch_scc1 {p}_lp{st}
        s_sleep {2 * cfg.get('slow', 12)}
        s_branch {p}_lp{st}""")
        k.label(f'{p}_lr{st}')
        for s_ in batch: k(s_)
        k(addr)
        k(f's_bitcmp1_b32 s44, 2\ns_cbranch_scc0 {p}_l0{st}')
        for s_ in batch: k(s_)
        k(f's_waitcnt vmcnt({NB})\ns_branch {p}_l1{st}')
        k.label(f'{p}_l0{st}')
        k('s_waitcnt vmcnt(0)')
        k.label(f'{p}_l1{st}')
        k('s_barrier')
        for s_ in reads(st): k(s_)
        k(f's_add_u32 s22, s22, 1\ns_branch {p}_it{st}')
    k(f's_mov_b32 s48, 0\ns_branch {p}_late0')
    NF = 14
    for st in range(2):
        k.label(f'{p}_it{st}')
        if cfg.get('stamp') == 99 and st == 0:
            for i_, st_ in ((1, 0), (2, 8), (3, 16), (4, 24)): stamp(k, dict(stamp=st_), i_)
        waits = {0: 15, 4: 13, 6: 12, 12: 0}
        extra = {1: 'v_cmp_ne_u32 s[44:45], 0, v8', 2: 's_add_u32 s29, s22, 1\ns_and_b32 s29, s29, 3', 4: 's_mul_i32 s29, s29, 40960\nv_add_u32 v6, s29, v4',
                 6: 's_sub_u32 s41, s40, s22\nv_add_u32 v7, s29, v5', 7: rdy[0] + '\n' + rdy[1], 8: rdy[2] + '\n' + rdy[3], 9: rdy[4] + '\n' + rdy[5],
                 10: 's_cmp_lt_u32 s41, 4\ns_cselect_b32 s46, 5, 1', 12: 's_and_b32 s44, s44, s46\ns_cmp_eq_u32 s41, 4'}
        for i in range(NF):
            if i in waits: k(f's_waitcnt lgkmcnt({waits[i]})')
            k(mf(st, i))
            if i in extra: k(extra[i])
        k(f's_cbranch_scc0 {p}_n0{st}\ns_waitcnt vmcnt({2*NB})')
        k.label(f'{p}_n1{st}')
        k(mf(st, NF))
        k(f's_barrier\ns_cmp_eq_u32 s44, 1')
        k(mf(st, NF + 1))
        k(f's_cbranch_scc0 {p}_bd{st}')
        def rest(nb):
            r = reads(1 - st); b = list(batch) * nb if nb else [FLG]
            for i in range(NF + 2, 48):
                k(mf(st, i))
                n_ = i - NF - 2
                if n_ < 10:
                    k(r.pop(0)); k(r.pop(0))
                else:
                    for _ in range(2 if nb == 2 and len(b) > 47 - i else 1):
                        if b: k(b.pop(0))
                if i == 46: k('s_add_u32 s22, s22, 1')
            assert not r and not b
            k(f's_branch {p}_it{1-st}')
        rest(1)
        k.label(f'{p}_bd{st}')
        k(f's_cmp_eq_u32 s44, 5\ns_cbranch_scc1 {p}_d{st}')
        rest(0)
        k.label(f'{p}_d{st}')
        rest(2)
        k.label(f'{p}_n0{st}')
        k(f's_cmp_eq_u32 s41, 1\ns_cbranch_scc1 {p}_c{st}\ns_cmp_eq_u32 s41, 2\ns_cbranch_scc1 {p}_n00{st}\ns_waitcnt vmcnt({NB})\ns_branch {p}_n1{st}')
        k.label(f'{p}_n00{st}')
        k(f's_waitcnt vmcnt(0)\ns_branch {p}_n1{st}')
        k.label(f'{p}_c{st}')
        for i in range(NF, 48): k(mf(st, i))
        late(1 - st)
    k.label(f'{p}_tz')
    k(f'buffer_load_dword v11, v9, s[8:11], s42 offen sc1\ns_waitcnt vmcnt(0)\nv_cmp_eq_u32 vcc, 0, v11\ns_cbranch_vccnz {p}_tzn')
    z1load(0, 4)
    k('s_mov_b32 s48, 1\ns_waitcnt vmcnt(0)')
    unpack(0, 48)
    k.label(f'{p}_tzn')
    k(f's_cmp_eq_u32 s47, 0\ns_cbranch_scc1 {p}_tzr0\ns_branch {p}_tzr1')
    k.label(f'{p}_fin')
    k(f"""
    s_mul_i32 s35, s31, 12288
    s_mul_i32 s28, s33, 6144
    s_add_u32 s35, s35, s28
    s_add_u32 s35, s35, {Z2F + 62*49152:#x}
    v_mov_b32 v9, 0""")
    def last(h_, unp):
        q = f'{p}_{h_}{int(unp)}'
        if unp:
            poll_flag(k, f'{q}_fz', 9, 's42', 11, fail, sleep=1)
            z1load(2 * h_, 2 * h_ + 2)
        poll_flag(k, f'{q}_fl', 9, 's49', 11, fail, sleep=1)
        if h_ and cfg.get('stamp') == 63: ustamp(k, cfg, 2)
        k('s_add_u32 s28, s35, 3072')
        for j in range(6): k(f'buffer_load_dwordx4 {A(32+4*j,4)}, v2, s[8:11], {"s35" if j < 3 else "s28"} offen offset:{1024*(j%3)} sc1')
        if unp: unpack(24 * h_, 24 * h_ + 24)
        for j in range(6):
            k(f's_waitcnt vmcnt({5-j})')
            for tt in range(4): k(f'{MF} {V(acc(tt,j),4)}, {A(32+4*j,4)}, {A(160+8*tt+4*h_,4)}, {V(acc(tt,j),4)}')
        if h_ == 0: k('s_add_u32 s35, s35, 49152\ns_add_u32 s49, s49, 128\ns_add_u32 s42, s42, 128')
    k(f's_cmp_eq_u32 s48, 0\ns_cbranch_scc1 {p}_fin2')
    last(0, False); last(1, False)
    k(f's_branch {p}_epi')
    k.label(f'{p}_fin2')
    last(0, True); last(1, True)
    k.label(f'{p}_epi')
    if cfg.get('stamp') == 63: ustamp(k, cfg, 3)
    for j in range(3):
        for tt in range(4):
            d = 16 + 4 * (4 * j + tt); a = acc(tt, 2 * j)
            for i in range(4): k(f'v_pk_mul_f32 {V(a+2*i,2)}, {V(a+2*i,2)}, {V(96+a+2*i,2)}')
            k(f's_add_u32 s28, s43, {24576*tt}')
            for i in range(4): k(f'v_cvt_pk_bf16_f32 v{d+i}, v{a+2*i}, v{a+2*i+1}')
            k(f'buffer_store_dwordx4 {V(d,4)}, v2, s[8:11], s28 offen offset:{1024*j} sc1')
    k(f"""
    s_lshl_b32 s28, s30, 1
    s_add_u32 s28, s28, s32
    s_lshl_b32 s28, s28, 3
    s_lshl_b32 s29, s31, 1
    s_add_u32 s28, s28, s29
    s_add_u32 s28, s28, s33
    s_lshl_b32 s28, s28, 7
    s_add_u32 s28, s28, {FY:#x}
    v_mov_b32 v6, {BIG:#x}
    v_cmp_gt_u32 vcc, {FW}, v1
    v_lshlrev_b32 v7, 2, v1
    s_nop 0
    v_cndmask_b32 v6, v6, v7, vcc
    v_mov_b32 v7, 1
    s_waitcnt vmcnt(0)
    buffer_store_dword v7, v6, s[8:11], s28 offen sc1
    s_branch {end}""")

def gen_wo(k, p, cfg):
    k(f"""
    s_load_dwordx2 s[28:29], s[0:1], {KA['w_out']}
    v_lshrrev_b32 v4, 2, v1
    v_and_b32 v5, 3, v1
    v_mul_u32_u24 v6, 1280, v4
    v_lshl_add_u32 v6, v5, 4, v6
    v_lshlrev_b32 v7, 6, v4
    v_lshl_add_u32 v7, v5, 3, v7
    s_mul_i32 s32, s21, 24576
    v_add_u32 v7, s32, v7
    s_lshl_b32 s34, s20, 2
    s_add_u32 s34, s34, s21
    s_lshl_b32 s33, s34, 6
    s_mul_i32 s34, s34, 49152
    s_add_u32 s34, s34, {WOF:#x}
    s_mov_b32 s35, 2
    s_waitcnt lgkmcnt(0)""")
    k.srd(12, 28, 768 * 1280)
    k.label(f'{p}_r')
    for i in range(24):
        k(f's_add_u32 m0, s32, {1024*i}\ns_add_u32 s28, s33, {i*16*1280}')
        k('buffer_load_dwordx4 v6, s[12:15], s28 offen lds')
    k('s_waitcnt vmcnt(0)')
    for kk in range(12):
        for c in range(2):
            for hf in range(2):
                k(f'ds_read_b64_tr_b16 {V(16+8*kk+4*c+2*hf,2)}, v7 offset:{(32*kk+16*hf)*64 + 32*c}')
    k('s_waitcnt lgkmcnt(0)')
    for i in range(24):
        k(f'buffer_store_dwordx4 {V(16+4*i,4)}, v2, s[8:11], s34 offen offset:{1024*(i%4)} sc1')
        if i % 4 == 3: k('s_add_u32 s34, s34, 4096')
    k(f's_add_u32 s33, s33, {24*16*1280}\ns_sub_u32 s35, s35, 1\ns_cmp_lg_u32 s35, 0\ns_cbranch_scc1 {p}_r')
    flag_addr(k, 6)
    k(f's_mov_b32 s28, {FWO:#x}\ns_waitcnt vmcnt(0)\ns_barrier\nbuffer_store_dword v7, v6, s[8:11], s28 offen sc1')

def gen_g3p(k, p, end, fail, cfg):
    k(f"""
    s_load_dwordx2 s[28:29], s[0:1], {KA['out']}
    v_mbcnt_lo_u32_b32 v1, -1, 0
    v_mbcnt_hi_u32_b32 v1, -1, v1
    s_and_b32 s22, s20, 31
    s_lshr_b32 s20, s20, 5
    v_lshlrev_b32 v2, 4, v1
    v_mov_b32 v9, 0
    s_lshl_b32 s42, s20, 7
    s_add_u32 s42, s42, {FWO:#x}
    s_waitcnt vmcnt(0) lgkmcnt(0)
    s_barrier""")
    k.srd(16, 28, 2048 * 1280)
    poll_flag(k, f'{p}_fw', 9, 's42', 11, fail, sleep=8)
    k(f"""
    s_lshl_b32 s33, s20, 2
    s_add_u32 s33, s33, s21
    s_mul_i32 s34, s33, 49152
    s_add_u32 s34, s34, {WOF:#x}""")
    for i in range(48):
        k(f'buffer_load_dwordx4 {A(4*i,4)}, v2, s[8:11], s34 offen offset:{1024*(i%4)} sc1')
        if i % 4 == 3: k('s_add_u32 s34, s34, 4096')
    k(f"""
    s_mul_i32 s32, s21, 24576
    v_and_b32 v8, 15, v1
    v_lshrrev_b32 v9, 4, v1
    v_mul_u32_u24 v8, 1280, v8
    v_and_b32 v10, 1, v9
    v_lshl_add_u32 v8, v10, 5, v8
    v_lshrrev_b32 v10, 1, v9
    v_lshl_add_u32 v8, v10, 4, v8
    s_mul_i32 s36, s22, 81920
    s_lshl_b32 s37, s33, 10
    s_add_u32 s37, s37, s36
    s_add_u32 s37, s37, {HH:#x}
    s_lshl_b32 s28, s33, 6
    s_add_u32 s36, s36, s28
    v_and_b32 v9, 7, v1
    v_lshlrev_b32 v9, 7, v9
    s_lshl_b32 s42, s22, 10
    s_add_u32 s42, s42, {FY:#x}
    s_mul_i32 s34, s22, 98304
    s_add_u32 s34, s34, s32
    s_add_u32 s34, s34, {YF:#x}
    v_add_u32 v10, 49152, v2
    s_waitcnt vmcnt(0)
    s_cmp_lg_u32 s21, 0
    s_cbranch_scc1 {p}_go""")
    ustamp(k, cfg, 2) if cfg.get('stamp') == 98 else None
    k(f'v_mov_b32 v12, 0\ns_add_u32 s43, s56, {(FH + 63*4096, FG1 + 62*128, FG1 + 4*16384 + 62*128)[cfg.get("g3c", 2)]:#x}')
    poll_flag(k, f'{p}_fe', 12, 's43', 11, fail, sleep=cfg.get('g3s', 16))
    if cfg.get('g3one', 0):
        k('s_lshl_b32 s43, s20, 7\ns_add_u32 s43, s43, s42')
        poll_flag(k, f'{p}_fo', 12, 's43', 11, fail, sleep=cfg.get('sl5', 2))
    poll_flag(k, f'{p}_fy', 9, 's42', 11, fail, sleep=cfg.get('sl5', 2))
    k.label(f'{p}_go')
    k('s_barrier')
    ustamp(k, cfg, 3) if cfg.get('stamp') == 98 else None
    k.vd = k.vc
    acc = lambda tt, c: 32 + 8 * tt + 4 * c
    mats = []; items = []; ev = []
    NUP = cfg.get('g3up', 3)
    for j in range(6):
        g_ = -9 if j < NUP else 18 * (j - NUP) + 1
        ev.append((g_, dict(id=('m', j), kind='n', fn=f's_add_u32 m0, s32, {4096*j}\ns_add_u32 s28, s34, {4096*j}')))
        for i in range(4):
            ev.append((g_ if j < NUP else g_ + 2 + 4 * i, dict(id=('d', 4 * j + i), kind='n', vm=True, fn=f'buffer_load_dwordx4 v2, s[8:11], s28 offen offset:{1024*i} sc1 lds')))
    for tt in range(4):
        ev.append((81 + 4 * tt, dict(id=('h', tt), kind='n', vm=True, fn=f's_add_u32 s28, s37, {20480*tt}\nbuffer_load_dwordx4 {V(16+4*tt,4)}, v2, s[8:11], s28 offen sc1')))
    XR = [64 + 4 * i for i in range(12)]
    stages = {0: 1, 2: 3, 4: 7, 8: 11, 12: 15, 16: 19, 20: 23}
    for kk in range(24):
        if kk in stages:
            g_ = max(8 * kk - 12, -1)
            ev.append((g_ - 0.4, dict(id=('b', kk), kind='bar', fn='s_barrier', vdeps=[('d', stages[kk])], g=g_)))
        for tt in range(4):
            n = 4 * kk + tt; r = XR[n % 12]
            ev.append((max(2 * n - 12, -1), dict(id=('x', n), kind='n', lds=True, fn=f'ds_read_b128 {V(r,4)}, {"v2" if tt < 2 else "v10"} offset:{(tt&1)*24576 + kk*1024}')))
            for c in range(2):
                a = V(acc(tt, c), 4)
                mats.append((f'{MF} {a}, {A(8*kk+4*c,4)}, {V(r,4)}, {"0" if kk == 0 else a}', [('x', n)]))
    ev.sort(key=lambda x: x[0])
    for g_, it in ev:
        it['after'] = it.get('g', g_); items.append(it)
    sched(k, mats, items, [False] * 192, pre_n=5 * NUP + 7)
    ustamp(k, cfg, 4) if cfg.get('stamp') == 98 else None
    k('s_mov_b32 s46, 0xffff0000\ns_waitcnt vmcnt(0)')
    for tt in range(4):
        for i in range(4):
            k(f'v_lshlrev_b32 v{64+2*i}, 16, v{16+4*tt+i}')
            k(f'v_and_b32 v{65+2*i}, s46, v{16+4*tt+i}')
        for i in range(4):
            a = acc(tt, 0) + 2 * i
            k(f'v_pk_add_f32 {V(a,2)}, {V(a,2)}, {V(64+2*i,2)}')
        for i in range(4):
            a = acc(tt, 0) + 2 * i
            k(f'v_cvt_pk_bf16_f32 v{16+4*tt+i}, v{a}, v{a+1}')
        k(f's_add_u32 s28, s36, {20480*tt}\nv_permlane16_swap_b32 v{16+4*tt}, v{18+4*tt}\nv_permlane16_swap_b32 v{17+4*tt}, v{19+4*tt}')
        k(f'buffer_store_dwordx4 {V(16+4*tt,4)}, v8, s[16:19], s28 offen{cfg.get("ost", " sc1")}')
    k(f's_branch {end}')

def header():
    ref = open('cdna_kernels/' + NAME + '.s.ref').read().split('\n')
    out = []
    for line in ref:
        if line.startswith('; Override') : break
        out.append(line)
    return '\n'.join(out) + '\n'

def build_all(cfg):
    global NT1, NT2, RING, RING2, LST, TOUCH, FW, CORD
    CORD = cfg.get('cord', [0, 1, 2, 3, 4, 5, 7, 8, 9, 6])
    FW = cfg.get('fw', 32)
    TOUCH = cfg.get('touch', 0)
    LST = cfg.get('stamp') == 97
    RING = cfg.get('ring', 64); RING2 = cfg.get('ring2', 64)
    NT1 = ' nt' if cfg.get('nt1', 1) else ''
    NT2 = ' nt' if cfg.get('nt2', 1) else ''
    k = K()
    gen_mega_kernel(k, 'mega_kernel', cfg)
    body = k.text().replace('mega_kernel_', 'M_')
    kn = 'mega_kernel' if cfg.get('list', 1) else NAME + '_kernel'
    la = f'; @launch {"kernel=mega_kernel " if cfg.get("list", 1) else ""}grid=(256,1,1) block=(256,1,1) lds={LDS_BYTES}\n'
    return header() + la + '.amdgcn_target "amdgcn-amd-amdhsa--gfx950"\n.text\n' + body.replace('mega_kernel', kn) + '.section .rodata,"a"\n' + descriptor(kn, 512, 256)

if __name__ == '__main__':
    cfg = eval(sys.argv[2]) if len(sys.argv) > 2 else {}
    txt = build_all(cfg)
    open(sys.argv[1] if len(sys.argv) > 1 else 'cur.s', 'w').write(txt)
```

```python
import sys
from asmlib import *

NAME = 'sequential_preLN__memory_aug_recurrent_mem_tr__mixer_gmlp__prompt'
KA = dict(x=0, mem0=8, Wq=16, Wk=24, Wv=32, Wo=40, w_in=64, w_sp=72, b_sp=80, w_out=88, out=96, dbg=104, ws=112)
WS_BYTES = 0x10000000
WBYTES = 640 * 6144 * 2
XN   = 0x0000000
FL   = 0x0800000
FU, FQK, FKM, FPX = FL, FL + 0x40000, FL + 0xC0000, FL + 0x100000
DUMMY = 0x09C0000
STAMPS = 0x0C30000
TRACE = 0x0D00000
ST   = 0x0C00000
ZR   = 0x0A00000
QF   = 0x1000000
UF   = 0x4000000
ZM   = 0xC000000
KM   = 0xA400000
PX   = 0xAA00000
HH   = 0xB000000
Z1F  = 0xB400000
Z2F  = 0xB800000
YF   = 0xBC00000
VF   = 0x9000000
FP1  = 0x0880000
FH   = 0x0940000
FG1  = 0x0986000
FWT  = 0x09A8000
FY   = 0x09AC000
WSF  = ZM + 0xD0000
WST  = 66560
MB   = ZM + 0xC0000
WOF  = 0xA000000
FWO  = 0x09B4000
P_OFF, M_OFF = 0, 20480
LDS_BYTES = 163840
WL = 0
BIG = 0x7ff00000

def mbmap(off):
    return (off >> 13) * 16384 + (off & 8191)

def v_mbmap(k, d, t):
    k(f'v_lshrrev_b32 v{t}, 13, v{d}')
    k(f'v_lshlrev_b32 v{t}, 13, v{t}')
    k(f'v_add_u32 v{d}, v{d}, v{t}')

NINIT = 96
def dbg_srd(k):
    k.srd(88, 4, 256)

TOUCH = 0
def init_done(k, p):
    if TOUCH == 1:
        k(f'v_and_b32 v8, 127, v0\nv_lshlrev_b32 v8, 21, v8\nv_add_u32 v8, 0xa0000, v8\nbuffer_load_dword v9, v8, s[8:11], 0 offen')
    if LST: k('s_memrealtime s[60:61]\ns_waitcnt vmcnt(0)\ns_memrealtime s[62:63]')
    k(f"""
    s_waitcnt vmcnt(0)
    s_barrier
    s_cmp_lg_u32 s21, 0
    s_cbranch_scc1 {p}_id
    s_lshl_b32 s34, s34, 16
    s_add_u32 s34, s34, 1
    v_mov_b32 v8, s34
    v_mov_b32 v9, {BIG:#x}
    v_cmp_eq_u32 vcc, 0, v1
    s_nop 1
    v_cndmask_b32_e64 v9, v9, 0, vcc
    s_cmp_ge_u32 s35, 2
    s_cbranch_scc1 {p}_na
    s_lshl_b32 s35, s35, 2
    buffer_store_dword v8, v9, s[88:91], s35 offen offset:132 sc1""")
    k.label(f'{p}_na')
    k(f"""
    buffer_atomic_add v8, v9, s[88:91], 0 offen sc0 sc1
    s_waitcnt vmcnt(0)
    v_readfirstlane_b32 s28, v8
    s_add_u32 s28, s28, s34
    s_and_b32 s29, s28, 0xffff
    s_cmp_lg_u32 s29, {NINIT}
    s_cbranch_scc1 {p}_id
    s_lshr_b32 s28, s28, 16
    s_cmp_gt_u32 s28, 32
    s_cselect_b32 s28, 2, 1
    v_mov_b32 v8, s28
    buffer_store_dword v8, v9, s[88:91], 0 offen offset:128 sc1""")
    k.label(f'{p}_id')
    if TOUCH == 2:
        k(f'v_and_b32 v8, 127, v0\nv_lshlrev_b32 v8, 21, v8\nv_add_u32 v8, 0xa0000, v8\nbuffer_load_dword v9, v8, s[8:11], 0 offen')

def gen_init_ln(k, p):
    k(f's_load_dwordx2 s[28:29], s[0:1], {KA["x"]}')
    k(f"""
    v_lshlrev_b32 v2, 4, v1
    v_and_b32 v3, 15, v1
    v_lshrrev_b32 v4, 4, v1
    v_mul_u32_u24 v5, 1280, v3
    v_lshl_add_u32 v5, v4, 4, v5
    s_min_u32 s31, s30, 63
    s_mul_i32 s31, s31, 40960
    s_lshr_b32 s32, s21, 1
    s_mul_i32 s32, s32, 20480
    s_and_b32 s33, s21, 1
    s_mul_i32 s33, s33, 640
    s_add_u32 s32, s32, s33
    s_add_u32 s32, s32, s31
    s_waitcnt lgkmcnt(0)""")
    k.srd(12, 28, 2048 * 1280)
    for i in range(10):
        k(f'buffer_load_dwordx4 {V(16+4*i,4)}, v5, s[12:15], s32 offen offset:{64*i}')
    rot_wait(k, 8)
    k(f"""
    v_lshlrev_b32 v6, 4, v0
    v_mov_b32 v8, 0
    v_mov_b32 v9, 0
    v_mov_b32 v10, 0
    v_mov_b32 v11, 0
    s_mul_i32 s28, s30, 24576
    s_add_u32 s28, s28, {FL:#x}""")
    for j in range(6):
        k('buffer_store_dwordx4 v[8:11], v6, s[8:11], s28 offen sc1\ns_add_u32 s28, s28, 4096')
    k(f"""
    v_mov_b32 v60, -1
    v_mov_b32 v61, -1
    v_mov_b32 v62, -1
    v_mov_b32 v63, -1
    s_lshr_b32 s28, s30, 1
    s_mul_i32 s28, s28, 24576
    s_min_u32 s28, s28, {0xD0000 - 24576:#x}
    s_and_b32 s29, s30, 1
    s_lshl_b32 s29, s29, 20
    s_add_u32 s28, s28, s29
    s_add_u32 s28, s28, {ZM:#x}""")
    for j in range(6):
        k('buffer_store_dwordx4 v[60:63], v6, s[8:11], s28 offen sc1\ns_add_u32 s28, s28, 4096')
    k(f"""
    s_cmp_ge_u32 s30, 64
    s_cbranch_scc1 {p}_nl
    s_mov_b32 s34, 0x3f803f80
    s_mov_b32 s35, 0xffff0000
    s_lshl_b32 s28, s21, 7
    v_lshlrev_b32 v7, 3, v3
    v_add_u32 v7, s28, v7
    v_xor_b32 v6, 128, v7
    s_waitcnt vmcnt(12)""")
    for i in range(0, 40, 2):
        c = (lambda r: '0') if i == 0 else (lambda r: f'v{r}')
        k(f'v_dot2_f32_bf16 v12, v{16+i}, s34, {c(12)}')
        k(f'v_dot2_f32_bf16 v13, v{16+i}, v{16+i}, {c(13)}')
        k(f'v_dot2_f32_bf16 v14, v{17+i}, s34, {c(14)}')
        k(f'v_dot2_f32_bf16 v15, v{17+i}, v{17+i}, {c(15)}')
    k.nop(3)
    k('v_pk_add_f32 v[12:13], v[12:13], v[14:15]')
    for sw in ('v_permlane32_swap_b32', 'v_permlane16_swap_b32'):
        k(f'v_mov_b32 v14, v12\nv_mov_b32 v15, v13\ns_nop 1\n{sw} v12, v14\n{sw} v13, v15\nv_pk_add_f32 v[12:13], v[12:13], v[14:15]')
    k(f"""
    ds_write_b64 v7, v[12:13]
    s_waitcnt lgkmcnt(0)
    s_barrier
    ds_read_b64 v[14:15], v6
    s_mul_i32 s28, s21, 10240
    s_add_u32 s31, s31, s28
    s_waitcnt lgkmcnt(0)
    v_pk_add_f32 v[12:13], v[12:13], v[14:15]
    v_mul_f32 v12, {1.0/640!r}, v12
    v_mul_f32 v13, {1.0/640!r}, v13
    v_fma_f32 v13, -v12, v12, v13
    v_max_f32 v13, 0, v13
    v_add_f32 v13, 1e-5, v13
    v_rsq_f32 v14, v13
    s_nop 0
    v_mul_f32_e64 v12, -v12, v14""")
    for i in range(10):
        for j in range(4):
            r = 16 + 4 * i + j; tp = 56 + 2 * (j & 1)
            k(f'v_lshlrev_b32 v{tp}, 16, v{r}')
            k(f'v_and_b32 v{tp+1}, s35, v{r}')
            k(f'v_pk_fma_f32 {V(tp,2)}, {V(tp,2)}, v[14:15], v[12:13] op_sel_hi:[1,0,0]')
            k(f'v_cvt_pk_bf16_f32 v{r}, v{tp}, v{tp+1}')
        k(f'buffer_store_dwordx4 {V(16+4*i,4)}, v2, s[8:11], s31 offen offset:{1024*(i%4)} sc1')
        if i % 4 == 3: k('s_add_u32 s31, s31, 4096')
    k.label(f'{p}_nl')
    k('s_mov_b32 s34, 0\ns_mov_b32 s35, s30')
    init_done(k, p)

def gen_init_x(k, p):
    k(f"""
    s_load_dwordx2 s[28:29], s[0:1], {KA["mem0"]}
    v_lshlrev_b32 v5, 4, v0
    s_lshl_b32 s31, s30, 12
    v_add_u32 v8, s31, v5
    v_lshrrev_b32 v9, 8, v8
    v_bfe_u32 v10, v8, 5, 1
    v_lshl_add_u32 v9, v9, 1, v10
    v_bfe_u32 v10, v8, 6, 2
    v_bfe_u32 v11, v8, 4, 1
    v_lshl_add_u32 v10, v10, 1, v11
    v_mul_u32_u24 v10, 1280, v10
    v_lshl_add_u32 v10, v9, 4, v10
    v_mov_b32 v11, {BIG:#x}
    v_cmp_gt_u32 vcc, 10240, v8
    v_add_u32 v8, {M_OFF}, v8""")
    v_mbmap(k, 8, 9)
    k(f"""
    v_cndmask_b32 v10, v11, v10, vcc
    v_cndmask_b32 v8, v11, v8, vcc
    v_lshlrev_b32 v6, 2, v1
    s_mov_b32 s36, -1
    s_mov_b32 s37, -1
    s_lshl_b32 s38, s30, 14
    s_lshl_b32 s33, s21, 11
    s_add_u32 s38, s38, s33
    s_add_u32 s38, s38, {ZR + 0xB0000:#x}
    s_waitcnt lgkmcnt(0)""")
    k.srd(12, 28, 8 * 1280)
    k('buffer_load_dwordx4 v[16:19], v10, s[12:15], 0 offen\nbuffer_store_dword v6, v6, s[8:11], s38 offen sc1\ns_waitcnt vmcnt(0)')
    for rep in range(5):
        for hf in ((0, 1), (1, 0))[rep & 1]:
            k(f"""
            s_add_u32 s33, s38, {hf*8192 + rep*256 + 512}
            s_memtime s[40:41]
            s_waitcnt lgkmcnt(0)
            buffer_store_dword v6, v6, s[8:11], s33 offen sc1
            s_waitcnt vmcnt(0)
            s_memtime s[42:43]
            s_waitcnt lgkmcnt(0)
            s_sub_u32 s42, s42, s40
            s_min_u32 s{36+hf}, s{36+hf}, s42""")
    rot_wait(k, 12)
    k(f"""
    v_mov_b32 v12, -1
    v_mov_b32 v13, -1
    v_mov_b32 v14, -1
    v_mov_b32 v15, -1
    s_add_u32 s29, s31, {ST:#x}
    buffer_store_dwordx4 v[12:15], v5, s[8:11], s29 offen sc1
    s_and_b32 s28, s31, 0x7000
    s_add_u32 s29, s28, {ZR + 0xA0000:#x}
    s_add_u32 s28, s28, {ST + 0x10000:#x}
    s_cmp_lt_u32 s30, 8
    s_cselect_b32 s29, s29, s28
    buffer_store_dwordx4 v[12:15], v5, s[8:11], s29 offen sc1
    s_mov_b32 s28, {MB - 0x100000:#x}
    s_mov_b32 s29, {MB - 0x100000 + 8192:#x}
    v_min_u32 v16, -2, v16
    v_min_u32 v17, -2, v17
    v_min_u32 v18, -2, v18
    v_min_u32 v19, -2, v19
    buffer_store_dwordx4 v[16:19], v8, s[8:11], s28 offen sc1
    buffer_store_dwordx4 v[16:19], v8, s[8:11], s29 offen sc1
    s_cmp_lt_u32 s37, s36
    s_cselect_b32 s34, 1, 0
    s_lshl_b32 s28, s21, 2
    v_mov_b32 v4, s28
    v_mov_b32 v7, s34
    ds_write_b32 v4, v7
    v_mov_b32 v4, 0
    s_waitcnt lgkmcnt(0)
    s_barrier
    ds_read_b128 v[20:23], v4
    s_waitcnt lgkmcnt(0)
    v_add3_u32 v20, v20, v21, v22
    v_add_u32 v20, v20, v23
    s_nop 0
    v_readfirstlane_b32 s34, v20
    s_mov_b32 s35, 2""")
    init_done(k, p)

class Wmap:
    def __init__(self, keys, size, ldskeys):
        self.size = size; self.loc = {}; self.tmp = {}; self.slot = {}
        a = 0; v = 128; t = 32
        for key in keys:
            if key in ldskeys:
                self.tmp[key] = ('v', t); self.slot[key] = (t - 32) // 4; t += size
            elif a < 256:
                self.loc[key] = ('a', a); a += size
            else:
                self.loc[key] = ('v', v); v += size
        assert a == 256 and v == 256 and t == 128, (a, v, t)
    def ld(self, key):
        return self.loc.get(key) or self.tmp[key]

NT1 = ''
NT2 = ''
LST = False
def lstamp(k, c):
    if LST and c in (0, 3, 6, 9): k(f's_memrealtime s[{60+2*(c//3)}:{61+2*(c//3)}]')

def gen_loader(k, kind, sparse, wm, early=lambda: None):
    k.c('---- weight loader')
    for i in range(3):
        k(f'v_add_u32 v8, {64*i}, v1')
        k(f'v_mul_u32_u24 v9, 2731, v8')
        k(f'v_lshrrev_b32 v9, 16, v9')
        k(f'v_mul_u32_u24 v10, 24, v9')
        k(f'v_sub_u32 v10, v8, v10')
        k(f'v_mul_u32_u24 v9, 12288, v9')
        k(f'v_lshl_add_u32 v{4+i}, v10, 4, v9')
    k('''
    v_lshrrev_b32 v8, 3, v1
    v_mul_u32_u24 v8, 1280, v8
    v_and_b32 v9, 7, v1
    v_lshl_add_u32 v7, v9, 4, v8
    v_lshrrev_b32 v8, 4, v1
    v_bfe_u32 v9, v1, 2, 2
    v_and_b32 v10, 3, v1''')
    if sparse:
        k('''
        v_lshrrev_b32 v11, 1, v8
        v_lshlrev_b32 v11, 4, v11
        v_and_b32 v12, 1, v8
        v_lshl_add_u32 v11, v12, 2, v11
        v_and_b32 v12, 1, v9
        v_add_u32 v11, v11, v12
        v_lshrrev_b32 v12, 1, v9
        v_lshl_add_u32 v11, v12, 3, v11''')
    else:
        k('v_lshl_add_u32 v11, v8, 3, v9')
    k('v_mul_u32_u24 v11, 384, v11')
    k('v_lshl_add_u32 v11, v10, 3, v11')
    if kind == 'QK':
        k('''
        s_lshr_b32 s28, s21, 1
        s_mul_i32 s28, s28, 24576
        s_and_b32 s29, s21, 1
        s_mul_i32 s29, s29, 192
        s_add_u32 s28, s28, s29''')
    else:
        k('s_mul_i32 s28, s21, 96')
    k('v_add_u32 v11, s28, v11')
    if kind == 'VO':
        if sparse:
            k('v_and_b32 v12, 1, v9')
            k('v_lshrrev_b32 v13, 1, v9')
            k('v_lshl_add_u32 v12, v12, 1, v13')
            k('v_lshl_add_u32 v12, v8, 3, v12')
        else:      k('v_lshl_add_u32 v12, v8, 2, v9')
        k('v_lshlrev_b32 v12, 7, v12')
        k('v_lshl_add_u32 v12, v10, 3, v12')
        k('s_lshl_b32 s28, s21, 5')
        k('s_add_u32 s28, s28, 24576')
        k('v_add_u32 v12, s28, v12')
    k('''
    s_mul_i32 s30, s20, 384
    s_mul_i32 s28, s21, 196608
    s_add_u32 s30, s30, s28
    s_mul_i32 s31, s20, 245760
    s_mul_i32 s28, s21, 61440
    s_add_u32 s31, s31, s28
    s_mul_i32 s32, s21, 6144''')
    tick = {}
    CO = CORD
    def issue(n):
        c = CO[n]
        slot = ((n + 2) % 3) * 49152
        for m in range(2):
            for i in range(6):
                k(f's_add_u32 m0, s32, {slot + m*24576 + i*1024}')
                if m == 0 or kind == 'QK':
                    k(f's_add_u32 s33, s30, {c*786432 + (i//3)*98304}')
                    tick[n] = k.vm(f'buffer_load_dwordx4 v{4+i%3}, {S(12+4*m,4)}, s33 offen{NT1} lds')
                else:
                    k(f's_add_u32 s33, s31, {i*10240 + c*128}')
                    tick[n] = k.vm(f'buffer_load_dwordx4 v7, s[16:19], s33 offen{NT1} lds')
    for n in range(3): issue(n)
    for n in range(10):
        c = CO[n]
        slot = ((n + 2) % 3) * 49152
        k.wv(tick[n])
        k('s_barrier')
        lstamp(k, n)
        k(f'v_add_u32 v13, {slot}, v11')
        if kind == 'VO': k(f'v_add_u32 v14, {slot}, v12')
        nt = 6 if kind == 'QK' else 3
        for t in range(nt):
            for pi in range(4):
                fr, tq = pi >> 1, pi & 1
                if sparse:
                    key = (t, c) if kind == 'QK' else ('v', t, c)
                    dst = R(wm.ld(key), 2, 2 * pi); row = 32 * fr + 2 * tq
                else:
                    key = (t, 2 * c + fr) if kind == 'QK' else ('v', t, 2 * c + fr)
                    dst = R(wm.ld(key), 2, 2 * tq); row = 32 * fr + 4 * tq
                k.lds(f'ds_read_b64_tr_b16 {dst}, v13 offset:{row*384 + t*32}')
        if kind == 'VO':
            for kk in range(6):
                for hf in range(2):
                    if sparse:
                        dst = R(wm.ld(('o', c, kk >> 1)), 2, 4 * (kk & 1) + 2 * hf); row = 32 * kk + 4 * hf
                    else:
                        dst = R(wm.ld(('o', c, kk)), 2, 2 * hf); row = 32 * kk + 16 * hf
                    k.lds(f'ds_read_b64_tr_b16 {dst}, v14 offset:{row*128}')
        k.wl_all()
        k('s_barrier')
        if n == 6:
            k('v_mov_b32 v16, 128')
            tick[8] = k.vm('buffer_load_dwordx4 v[20:23], v16, s[88:91], 0 offen sc1')
        if n + 3 < 10: issue(n + 3)
        if n == 8:
            k(f'v_lshlrev_b32 v2, 4, v1\ns_mul_i32 s28, s21, 24576\nv_add_u32 v3, s28, v2')
            for i in range(24):
                k.lds(f'ds_write_b128 v3, {V(32+4*i,4)} offset:{WL + 1024*i}')
            k.wl_all()
            early()

def stream(k, ops, loads, rings, dist, preissued=None, maxper=2, tail=(), group=1, minpos=None):
    first = {}; last = {}
    for i, (_, keys, _) in enumerate(ops):
        for key in keys:
            first.setdefault(key, i); last[key] = i
    for key, i in tail:
        first[key] = i; last[key] = i
    order = sorted(first, key=lambda x: first[x])
    reg = {}; tk = {}; pos = {}
    nxt = {n: 0 for n in rings}; occ = {}
    if preissued:
        for key, (r, t) in preissued.items():
            reg[key] = r; tk[key] = t
            ring = loads[key][0]
            if r in rings[ring]:
                occ[(ring, r)] = key
                nxt[ring] = (rings[ring].index(r) + 1) % len(rings[ring])
    for key in order:
        if key in reg: continue
        ring = loads[key][0]
        r = rings[ring][nxt[ring]]; nxt[ring] = (nxt[ring] + 1) % len(rings[ring])
        p = first[key] - dist
        if (ring, r) in occ: p = max(p, last[occ[(ring, r)]] + 1)
        if minpos and key in minpos: p = max(p, minpos[key])
        occ[(ring, r)] = key
        p = max(p, 0)
        assert p <= first[key] - first[key] % group, (key, p, first[key])
        reg[key] = r; pos[key] = p
    pend = sorted(pos, key=lambda x: (first[x]))
    tailkeys = set(key for key, _ in tail); tout = []
    def issue(key):
        for f in loads[key][1]:
            tk[key] = k.lds(f(reg[key]))
        pend.remove(key)
        if key in tailkeys: tout.append((key, reg[key]))
    for i, (fn, keys, post) in enumerate(ops):
        n = 0
        for key in list(pend):
            if pos[key] <= i and (n < maxper or first[key] <= i + group or i == 0):
                issue(key); n += 1
        if i % group == 0:
            need = [tk[key] for j in range(i, min(i + group, len(ops))) for key in ops[j][1]]
            if need: k.wl(max(need))
        k(fn(reg))
        for p in post:
            if callable(p): p()
            else: k(p)
    for key in list(pend): issue(key)
    return tout

def role_common(k, mats):
    w = dict(Wq=92, Wk=94, Wv=96, Wo=98)
    k.srd(12, w[mats[0]], WBYTES)
    k.srd(16, w[mats[1]], WBYTES)

FW = 32
def flag_addr(k, d, src='v0', line='s20'):
    if line: k(f's_lshl_b32 s28, {line}, 7')
    k(f'''
    v_mov_b32 v{d}, {BIG:#x}
    v_lshl_add_u32 v{d+1}, {src}, 2, {'s28' if line else '0'}
    v_cmp_gt_u32 vcc, {FW}, {src}
    s_nop 1
    v_cndmask_b32 v{d}, v{d}, v{d+1}, vcc
    v_mov_b32 v{d+1}, 1''')

MF = 'v_mfma_f32_16x16x32_bf16'
SM = 'v_smfmac_f32_16x16x64_bf16'

def regmap(keys, v0):
    loc = {}; a = 0; v = v0
    for key in keys:
        if a < 256: loc[key] = ('a', a); a += 4
        else: loc[key] = ('v', v); v += 4
    assert v == 256, v
    return loc

def gen_loader2(k, kind, loc, p, cfg, setup, start, after):
    k.c('---- weight loader')
    NS = 3; SB0 = 61440
    if kind == 'PJ':
        for i in range(3):
            k(f"""
            v_add_u32 v100, {64*i}, v1
            v_mul_u32_u24 v101, 2731, v100
            v_lshrrev_b32 v101, 16, v101
            v_mul_u32_u24 v102, 24, v101
            v_sub_u32 v102, v100, v102
            v_mul_u32_u24 v101, 12288, v101
            v_lshl_add_u32 v{96+i}, v102, 4, v101""")
    k("""
    v_lshrrev_b32 v100, 3, v1
    v_and_b32 v101, 7, v1
    v_lshlrev_b32 v101, 4, v101
    v_mul_u32_u24 v99, 12288, v100
    v_add_u32 v99, v99, v101""")
    if kind == 'VU':
        k('v_mul_u32_u24 v96, 1280, v100\nv_add_u32 v96, v96, v101')
    k("""
    v_lshrrev_b32 v100, 4, v1
    v_bfe_u32 v101, v1, 2, 2
    v_and_b32 v102, 3, v1
    v_lshl_add_u32 v103, v100, 3, v101
    v_lshlrev_b32 v104, 7, v103
    v_lshl_add_u32 v104, v102, 3, v104
    v_add_u32 v104, 24576, v104""")
    if kind == 'PJ':
        k("""
        v_mul_u32_u24 v103, 384, v103
        v_lshl_add_u32 v103, v102, 3, v103
        s_lshl_b32 s28, s21, 7
        v_add_u32 v103, s28, v103
        s_mul_i32 s80, s20, 384
        s_mul_i32 s28, s21, 196608
        s_add_u32 s80, s80, s28
        s_add_u32 s81, s80, s33""")
    else:
        k("""
        v_and_b32 v103, 1, v101
        v_lshlrev_b32 v103, 4, v103
        v_lshrrev_b32 v105, 1, v101
        v_add_u32 v103, v103, v105
        v_lshl_add_u32 v103, v100, 2, v103
        v_lshlrev_b32 v103, 7, v103
        v_lshl_add_u32 v103, v102, 3, v103
        s_lshl_b32 s28, s21, 5
        v_add_u32 v103, s28, v103
        s_lshr_b32 s28, s21, 1
        s_lshl_b32 s28, s28, 6
        v_add_u32 v104, s28, v104
        s_mul_i32 s80, s20, 245760
        s_mul_i32 s28, s21, 61440
        s_add_u32 s80, s80, s28
        s_mul_i32 s81, s20, 384
        s_mul_i32 s28, s21, 196608
        s_add_u32 s81, s81, s28
        s_add_u32 s81, s81, 256""")
    k('s_mul_i32 s82, s21, 6144\ns_lshl_b32 s84, s21, 11')
    tick = {}
    def issue(c):
        slot = SB0 + (c % NS) * 32768
        if 3 <= c: tick[c - 1] = k.vm('buffer_load_dwordx4 v[92:95], v100, s[88:91], 0 offen sc1')
        for i in range(6):
            k(f's_add_u32 m0, s82, {slot + i*1024}')
            if kind == 'PJ':
                k(f's_add_u32 s85, s80, {c*786432 + (i//3)*98304}')
                k.vm(f'buffer_load_dwordx4 v{96+i%3}, s[12:15], s85 offen{NT2} lds')
            else:
                k(f's_add_u32 s85, s80, {i*10240 + c*128}')
                k.vm(f'buffer_load_dwordx4 v96, s[12:15], s85 offen{NT2} lds')
        for i in range(2):
            k(f's_add_u32 m0, s84, {slot + 24576 + i*1024}')
            k(f's_add_u32 s85, s81, {c*786432 + i*98304}')
            tick[c] = k.vm(f'buffer_load_dwordx4 v99, s[16:19], s85 offen{NT2} lds')
    k('v_mov_b32 v100, 128\nv_mov_b32 v92, 0\nv_mov_b32 v93, 0\nv_mov_b32 v94, 0\nv_mov_b32 v95, 0\ns_mov_b32 s86, 0\nv_lshlrev_b32 v2, 4, v1')
    for c in range(NS): issue(c)
    setup()
    for c in range(10):
        slot = SB0 + (c % NS) * 32768
        k.wv(tick[c])
        k('s_barrier')
        lstamp(k, c)
        k(f'v_add_u32 v105, {slot}, v103')
        k(f'v_add_u32 v106, {slot}, v104')
        def areads(nt, areg, rs, keyf):
            for t in range(nt):
                for pi in range(4):
                    fr, tq = pi >> 1, pi & 1
                    k(f'ds_read_b64_tr_b16 {R(loc[keyf(t, 2*c+fr)], 2, 2*tq)}, v{areg} offset:{(32*fr+4*tq)*rs + t*32}')
        if kind == 'PJ':
            k(f's_cmp_eq_u32 s21, 3\ns_cbranch_scc1 {p}_l{c}v')
            areads(4, 105, 384, lambda t, kk: (t, kk))
            k(f's_branch {p}_l{c}e')
            k.label(f'{p}_l{c}v')
            areads(4, 106, 128, lambda t, kk: (t, kk))
            k.label(f'{p}_l{c}e')
        else:
            areads(2, 106, 128, lambda t, kk: ('v', t, kk))
            for kk in range(6):
                for hf in range(2):
                    k(f'ds_read_b64_tr_b16 {R(loc[("o", c, kk)], 2, 2*hf)}, v105 offset:{(32*kk+2*hf)*128}')
        k('s_waitcnt lgkmcnt(0)')
        if c + NS < 10 or c == 9: k('s_barrier')
        if c == 2:
            k(f'v_cmp_eq_u32 vcc, 0, v95\ns_cbranch_vccnz {p}_r0')
            rot_check(k, 95)
            k(f's_branch {p}_r1')
            k.label(f'{p}_r0')
            rot_wait(k, 101)
            k.label(f'{p}_r1')
        if 2 <= c <= 5:
            k(f's_cmp_lg_u32 s86, 0\ns_cbranch_scc1 {p}_g{c}\nv_min_u32 v101, v93, v94\nv_cmp_ne_u32 vcc, 0, v101')
            if c < 5: k(f's_cbranch_vccz {p}_g{c}')
            else:
                k(f's_cbranch_vccnz {p}_gs')
                load_sel(k, cfg, 101, 107)
                k.label(f'{p}_gs')
            start()
            k('s_mov_b32 s86, 1')
            k.label(f'{p}_g{c}')
        if c == 8:
            k(f'v_cmp_ne_u32 vcc, 0, v92\ns_cbranch_vccz {p}_gw')
            sel_from(k, cfg, 92)
            k(f's_branch {p}_gx')
            k.label(f'{p}_gw')
            load_sel(k, cfg, 101, 107)
            k.label(f'{p}_gx')
        if c + NS < 10: issue(c + NS)
        after(c)

def gen_pj(k, p, end, cfg={}):
    loc = regmap([(t, kk) for kk in range(20) for t in range(4)], 192)
    k(f"""
    s_cmp_eq_u32 s24, 0
    s_cselect_b64 s[28:29], s[94:95], s[92:93]
    s_lshl_b32 s33, s24, 7""")
    k.srd(12, 28, WBYTES)
    k.srd(16, 96, WBYTES)
    XB = 0
    def dma_list(slot):
        return [f's_add_u32 m0, s34, {slot}\ns_add_u32 s29, s35, 4096\nbuffer_load_dwordx4 v2, s[8:11], s35 offen sc1 lds'] + \
               [f'buffer_load_dwordx4 v2, s[8:11], s35 offen offset:{1024*i} sc1 lds' for i in (1, 2, 3)] + \
               [f's_add_u32 m0, m0, 4096\ns_add_u32 s35, s35, 20480\nbuffer_load_dwordx4 v2, s[8:11], s29 offen sc1 lds']
    def setup():
        flag_addr(k, 6)
        k(f"""
        s_mul_i32 s35, s21, 5120
        s_add_u32 s34, s35, {XB}
        s_lshl_b32 s38, s21, 11
        s_mul_i32 s28, s24, 12288
        s_sub_u32 s38, s38, s28
        s_add_u32 s38, s38, {QF + 12288:#x}
        s_lshl_b32 s28, s24, 11
        s_add_u32 s28, s28, {VF:#x}
        s_mov_b32 s44, 6144
        s_cmp_eq_u32 s21, 3
        s_cselect_b32 s38, s28, s38
        s_cselect_b32 s44, 4096, s44
        s_cselect_b32 s45, 1, 3
        s_lshl_b32 s28, s45, 13
        s_mul_i32 s28, s20, s28
        s_add_u32 s38, s38, s28
        s_lshl_b32 s45, s45, 18
        s_mov_b32 s36, {DUMMY + 4096:#x}
        s_mov_b32 s37, {DUMMY:#x}
        s_mul_i32 s43, s24, {FP1 - FQK:#x}
        s_add_u32 s43, s43, {FQK:#x}
        s_mov_b32 s40, 40960
        s_mov_b32 s41, 0
        s_mov_b32 s42, 20480
        v_add_u32 v4, {XB + 40960}, v2
        v_add_u32 v5, {XB}, v2""")
        for i in range(3):
            d = 24 + i
            k(f"""
            s_mul_i32 s28, s21, 12
            s_add_u32 s28, s28, {4*i}
            v_lshrrev_b32 v8, 4, v1
            v_add_u32 v8, s28, v8
            v_and_b32 v9, 15, v1
            v_lshlrev_b32 v9, 4, v9
            s_lshl_b32 s28, s20, 8
            v_lshl_add_u32 v{d}, v8, 14, v9
            v_add_u32 v{d}, s28, v{d}
            v_subrev_u32 v10, 40, v8
            v_lshl_add_u32 v10, v10, 8, v9
            s_mul_i32 s28, s20, 640
            v_add_u32 v11, s28, v10
            s_mul_i32 s28, s20, 384
            s_add_u32 s28, s28, {M_OFF - 640}
            v_add_u32 v12, s28, v10
            v_cmp_gt_u32 vcc, 640, v10
            s_nop 1
            v_cndmask_b32 v11, v12, v11, vcc""")
            v_mbmap(k, 11, 12)
            k(f"""
            v_add_u32 v11, {MB - ZM:#x}, v11
            v_mov_b32 v12, {BIG:#x}
            v_cmp_gt_u32 vcc, 1024, v10
            s_nop 1
            v_cndmask_b32 v11, v12, v11, vcc
            v_cmp_gt_u32 vcc, 40, v8
            s_nop 1
            v_cndmask_b32 v{d}, v11, v{d}, vcc""")
        k('s_cmp_eq_u32 s24, 0\ns_cselect_b64 vcc, -1, 0')
        for i in range(3): k(f'v_cndmask_b32 v{24+i}, v12, v{24+i}, vcc')
        k(f'v_mov_b32 v28, -1\nv_mov_b32 v29, -1\nv_mov_b32 v30, -1\nv_mov_b32 v31, -1\ns_mov_b32 s46, {ZM + 0x200000:#x}')
    def start():
        for slot in (0, 20480, 40960):
            for s_ in dma_list(slot): k(s_)
    def after(c):
        if c < 8: return
        ops = []; loads = {}
        for kk in (range(18) if c == 8 else range(18, 20)):
            for tt in range(2):
                loads[(kk, tt)] = ('x', [lambda r, kk=kk, tt=tt: f'ds_read_b128 {V(r,4)}, v2 offset:{XB + tt*20480 + kk*1024}'])
                for t in range(4):
                    acc = V((8, 76)[tt] + 4 * t, 4); c_ = '0' if kk == 0 else acc
                    ops.append((lambda rg, key=(t, kk), acc=acc, c_=c_, xk=(kk, tt): f'{MF} {acc}, {R(loc[key],4)}, {V(rg[xk],4)}, {c_}', [(kk, tt)], []))
        stream(k, ops, loads, dict(x=[32, 36, 40, 44, 48]), 12, maxper=1, group=4)
    gen_loader2(k, 'PJ', loc, p, cfg, setup, start, after)
    ustamp(k, cfg, 5)
    k('s_add_u32 s28, s38, s44')
    k.nop(4)
    for tt in range(2):
        a = (8, 76)[tt]
        for j in range(2):
            d = 52 + 8 * tt + 4 * j
            for i in range(4): k(f'v_cvt_pk_bf16_f32 v{d+i}, v{a+8*j+i}, v{a+8*j+4+i}')
            k(f'buffer_store_dwordx4 {V(d,4)}, v2, s[8:11], {"s38" if tt == 0 else "s28"} offen offset:{1024*j} sc1')
    k(f"""
    s_add_u32 s38, s38, s45
    s_mov_b32 s22, 1
    s_waitcnt vmcnt(0)
    s_barrier
    buffer_store_dword v7, v6, s[8:11], s43 offen sc1
    s_add_u32 s43, s43, 4096""")
    for s_ in dma_list('s41'): k(s_)
    ACC = (8, 76)
    XR = [96 + 4 * i for i in range(8)]
    NPF = 4
    for n in range(NPF): k.lds(f'ds_read_b128 {V(XR[n],4)}, v4 offset:{n*1024}')
    k.label(f'{p}_loop')
    k.lc += NPF; k.ld = k.lc - NPF
    pre = {('x', n): k.ld + 1 + n for n in range(NPF)}
    stamp(k, cfg, 0)
    mats = []; items = []; ev = []
    for n in range(NPF, 40 + NPF):
        u, kk = (n // 20) % 2, n % 20
        ev.append((4 * (n - NPF) + (0 if n & 1 else 4) - 3, dict(id=('x', n), kind='n', lds=True, fn=f'ds_read_b128 {V(XR[n%8],4)}, v{4+u} offset:{kk*1024}',
                   order=[('bar', n // 20 - 1)] if n >= 20 else [])))
    for u in range(2):
        a0 = ACC[u]; pa = ACC[1 - u]; b = 80 * u
        for kk in range(20):
            n = 20 * u + kk
            for t in range(4):
                acc = V(a0 + 4 * t, 4)
                need = [('x', n), ('x', n | 1)] if t == 0 and not (n & 1) else []
                mats.append((f'{MF} {acc}, {R(loc[(t,kk)],4)}, {V(XR[n%8],4)}, {"0" if kk == 0 else acc}', need))
        E = lambda g_, fn, **kw: ev.append((b + g_, dict(id=('e', u, len(ev)), kind='n', fn=fn, **kw)))
        for j in range(2):
            for i in range(4):
                it = dict(id=('c', u, j, i), kind='v', fn=f'v_cvt_pk_bf16_f32 v{64+4*j+i}, v{pa+8*j+i}, v{pa+8*j+4+i}', after=b + 3)
                if j == 0 and i == 0: it['states'] = (max(b - 1, 0), 8)
                items.append(it)
            E(6 + 4 * j, f'buffer_store_dwordx4 {V(64+4*j,4)}, v2, s[8:11], s36 offen offset:{1024*j} sc1', order=[('c', u, j, 3)])
        E(0, f's_add_u32 s28, s41, {XB}'); E(0, f'v_add_u32 v{5-u}, s28, v2')
        if u == 0:
            E(12, 's_mov_b32 s36, s38'); E(12, 's_add_u32 s38, s38, s45')
            if RING2 < 64:
                E(13, f's_and_b32 s87, s22, {RING2 - 1}'); E(13, f's_cmp_eq_u32 s87, {RING2 - 1}'); E(14, f's_cselect_b32 s87, {RING2}, 0'); E(14, 's_mul_i32 s87, s87, s45'); E(16, 's_sub_u32 s38, s38, s87')
            for i, s_ in enumerate(['s_lshr_b32 s47, s46, 21', 's_xor_b32 s47, s47, s53', 's_and_b32 s47, s47, 1', 's_xor_b32 s47, s47, 1', 's_lshl_b32 s47, s47, 13', 's_add_u32 s47, s47, s46', 's_add_u32 s46, s46, 0x100000',
                                     's_cmp_eq_u32 s22, 63', 's_cselect_b32 s47, 0xe00000, s47']):
                E(18 + i // 2, s_)
        else:
            E(12, 's_add_u32 s36, s36, s44'); E(12, 's_add_u32 s22, s22, 1')
        if u == 0:
            E(40, f's_cmp_lt_u32 s22, {cfg.get("pje", 6)}'); E(40, f's_cselect_b32 s49, s37, {DUMMY:#x}')
            E(57, f's_cbranch_scc0 {p}_ne\ns_waitcnt vmcnt(0)', label=f'{p}_ne')
            E(69, 'buffer_store_dword v7, v6, s[8:11], s49 offen sc1')
        E(58, f's_waitcnt vmcnt({6 if u else 2})')
        ev.append((b + 58, dict(id=('bar', u), kind='bar', fn='s_barrier')))
        E(59, 's_add_u32 m0, s34, s42'); E(59, 's_add_u32 s29, s35, 4096')
        for i in range(4): E(60 + 2 * i, f'buffer_load_dwordx4 v2, s[8:11], s35 offen offset:{1024*i} sc1 lds')
        E(67, 's_add_u32 m0, m0, 4096'); E(67, 's_add_u32 s35, s35, 20480')
        E(68, 'buffer_load_dwordx4 v2, s[8:11], s29 offen sc1 lds')
        if u == 0:
            for i in range(3): E(70 + 2 * i, f'buffer_store_dwordx4 v[28:31], v{24+i}, s[8:11], s47 offen sc1')
        else:
            E(70, 'buffer_store_dword v7, v6, s[8:11], s37 offen sc1')
            E(72, 's_mov_b32 s37, s43'); E(72, 's_add_u32 s43, s43, 4096')
        E(75, 's_mov_b32 s28, s40'); E(75, 's_mov_b32 s40, s41'); E(76, 's_mov_b32 s41, s42'); E(76, 's_mov_b32 s42, s28')
        if u == 1: E(78, 's_cmp_lt_u32 s22, 64')
    ev.sort(key=lambda x: x[0])
    for g_, it in ev:
        it['after'] = g_; items.append(it)
    sched(k, mats, items, [False] * 160, pre=pre)
    k(f's_cbranch_scc1 {p}_loop')
    k.wl_all(True)
    k.nop(4)
    for i in range(8):
        k(f'v_cvt_pk_bf16_f32 v{64+i}, v{76+8*(i//4)+i%4}, v{80+8*(i//4)+i%4}')
    for j in range(2):
        k(f'buffer_store_dwordx4 {V(64+4*j,4)}, v2, s[8:11], s36 offen offset:{1024*j} sc1')
    k(f"""
    s_waitcnt vmcnt(0)
    s_barrier
    buffer_store_dword v7, v6, s[8:11], s37 offen sc1
    s_branch {end}""")

def xn_ready(k, p, cfg):
    pass

def gen_vu(k, p, end, fail, cfg={}):
    loc = regmap([('v', t, kk) for kk in range(20) for t in range(2)] + [('o', ci, kk) for ci in range(10) for kk in range(6)], 112)
    role_common(k, ('Wo', 'Wv'))
    XB = 0; VX = 98304; NP = cfg.get('np', 6)
    def xdma():
        out = []
        for j in range(3):
            for i in range(4 if j < 2 else 2):
                pre_ = f's_add_u32 m0, s34, {4096*j}\ns_add_u32 s29, s35, {4096*j}\n' if i == 0 else ''
                out.append(pre_ + f'buffer_load_dwordx4 v2, s[8:11], s29 offen offset:{1024*i} sc1 lds')
        out[-1] += '\ns_add_u32 s35, s35, 40960'
        return out
    vdma = ['s_mov_b32 m0, s46\ns_xor_b32 s46, s46, 16384\nbuffer_load_dwordx4 v2, s[8:11], s45 offen sc1 lds',
            'buffer_load_dwordx4 v2, s[8:11], s45 offen offset:1024 sc1 lds\ns_add_u32 s45, s45, 262144']
    def setup():
        flag_addr(k, 6)
        k(f"""
        s_and_b32 s28, s21, 1
        s_mul_i32 s29, s28, 20480
        v_add_u32 v4, s29, v2
        v_add_u32 v5, {VX}, v2
        s_mul_i32 s28, s28, 6144
        s_lshr_b32 s29, s21, 1
        s_lshl_b32 s29, s29, 10
        s_add_u32 s28, s28, s29
        s_add_u32 s28, s28, 4096
        v_add_u32 v3, s28, v5
        v_and_b32 v108, 1, v1
        v_mul_u32_u24 v108, {FP1 - FQK:#x}, v108
        s_lshl_b32 s28, s20, 7
        v_add_u32 v108, s28, v108
        s_mul_i32 s35, s21, 10240
        s_add_u32 s34, s35, {XB}
        s_lshl_b32 s36, s21, 15
        s_lshl_b32 s28, s20, 10
        s_add_u32 s36, s36, s28
        s_add_u32 s36, s36, {UF:#x}
        s_mov_b32 s37, {DUMMY:#x}
        s_mov_b32 s43, {FU:#x}
        s_mov_b32 s44, {FQK:#x}
        s_mov_b32 s47, 1
        s_lshr_b32 s28, s21, 1
        s_mul_i32 s45, s28, 6144
        s_and_b32 s28, s21, 1
        s_lshl_b32 s28, s28, 11
        s_add_u32 s45, s45, s28
        s_add_u32 s46, s45, {VX}
        s_lshl_b32 s45, s21, 11
        s_lshl_b32 s28, s20, 13
        s_add_u32 s45, s45, s28
        s_add_u32 s45, s45, {VF:#x}""")
    def start():
        for s_ in xdma(): k(s_)
    gen_loader2(k, 'VU', loc, p, cfg, setup, start, lambda c: None)
    ustamp(k, cfg, 5)
    for j in range(3):
        k(f's_add_u32 m0, s34, {40960 + 4096*j}\ns_add_u32 s29, s35, {NP*40960 + 4096*j}')
        for i in range(4 if j < 2 else 2): k(f'buffer_load_dwordx4 v2, s[8:11], s29 offen offset:{1024*i} sc1 lds')
    k.label(f'{p}_loop')
    stamp(k, cfg, 0)
    k('s_barrier')
    stamp(k, cfg, 1)
    ops = []; loads = {}
    for kk in range(20):
        loads[('x', kk)] = ('x', [lambda r, kk=kk: f'ds_read_b128 {V(r,4)}, v4 offset:{kk*1024}'])
        for t in range(2):
            acc = V(8 + 4 * t, 4); c = '0' if kk == 0 else acc
            ops.append((lambda rg, key=('v', t, kk), acc=acc, c=c, kk=kk: f'{MF} {acc}, {R(loc[key],4)}, {V(rg[("x",kk)],4)}, {c}', [('x', kk)], []))
    stream(k, ops, loads, dict(x=[48 + 4 * i for i in range(8)]), 12, group=2)
    k(f's_cmp_eq_u32 s47, 0\ns_cbranch_scc1 {p}_nf')
    poll_flag(k, f'{p}_f0', 108, 's44', 109, fail, sleep=1)
    for s_ in vdma: k(s_)
    k.label(f'{p}_nf')
    k.nop(6)
    for i in range(4): k(f'v_cvt_pk_bf16_f32 v{32+i}, v{8+i}, v{12+i}')
    k.lds('ds_write_b128 v3, v[32:35]')
    k(f's_add_u32 s44, s44, 4096\ns_min_u32 s44, s44, {FQK + 63*4096:#x}')
    k.wl_all()
    stamp(k, cfg, 2)
    k('s_waitcnt vmcnt(0)')
    k('s_barrier')
    stamp(k, cfg, 3)
    pre = {}
    for kk in range(6):
        for tt in range(2):
            r = 48 + 4 * (2 * kk + tt)
            pre[('V', kk, tt)] = (r, k.lds(f'ds_read_b128 {V(r,4)}, v5 offset:{tt*6144 + kk*1024}'))
    k(f's_cmp_eq_u32 s22, {NP}\ns_cbranch_scc1 {p}_pl')
    k(f"""
    buffer_store_dword v7, v6, s[8:11], s37 offen sc1
    buffer_load_dword v109, v108, s[8:11], s44 offen sc1
    s_mov_b32 s37, s43
    s_add_u32 s43, s43, 4096
    s_mov_b32 s38, s36
    s_add_u32 s36, s36, 1310720
    v_xor_b32 v5, 16384, v5
    v_xor_b32 v3, 16384, v3""")
    ops = []; loads = {key: ('none', []) for key in pre}
    def epi(ci):
        a = 8 + 8 * (ci % 3); d = 32 + 4 * (ci % 3)
        return [f'v_cvt_pk_bf16_f32 v{d+i}, v{a+2*i}, v{a+2*i+1}' for i in range(4)] + \
               [f'buffer_store_dwordx4 {V(d,4)}, v2, s[8:11], s38 offen sc1\ns_add_u32 s38, s38, 131072']
    posts = {}
    xd = xdma()
    for i, s_ in enumerate(xd): posts.setdefault(12 * (i // 2) + 2 + 3 * (i % 2), []).append(s_)
    posts.setdefault(72, []).append('s_waitcnt vmcnt(15)\nv_cmp_eq_u32 vcc, 0, v109')
    def chk():
        k(f's_mov_b32 s47, 1\ns_cbranch_vccnz {p}_late\ns_mov_b32 s47, 0')
        for s_ in vdma: k(s_)
        k.label(f'{p}_late')
    posts.setdefault(74, []).append(chk)
    for ci in range(10):
        e = epi(ci - 1) if ci > 0 else []
        for n in range(12):
            kk, tt = n >> 1, n & 1
            acc = V(8 + 8 * (ci % 3) + 4 * tt, 4); c = '0' if kk == 0 else acc; vk = ('V', kk, tt)
            post = ([e[n - 7]] if 7 <= n < 7 + len(e) else []) + posts.get(12 * ci + n, [])
            ops.append((lambda rg, key=('o', ci, kk), acc=acc, c=c, vk=vk: f'{MF} {acc}, {V(rg[vk],4)}, {R(loc[key],4)}, {c}', [vk], post))
    stream(k, ops, loads, dict(none=[]), 12, preissued=pre)
    k.nop(8)
    for s_ in epi(9): k(s_)
    stamp(k, cfg, 4)
    k(f"""
    s_add_u32 s22, s22, 1
    s_cmp_gt_u32 s22, {cfg.get('nimm', 2)}
    s_waitcnt vmcnt(7)
    s_cbranch_scc1 {p}_loop
    s_waitcnt vmcnt(0)
    s_barrier
    buffer_store_dword v7, v6, s[8:11], s37 offen sc1
    s_mov_b32 s37, {DUMMY:#x}
    s_branch {p}_loop""")
    k.label(f'{p}_pl')
    k(f"""
    buffer_store_dword v7, v6, s[8:11], s37 offen sc1
    s_mov_b32 s37, {DUMMY:#x}
    v_xor_b32 v5, 16384, v5
    v_xor_b32 v3, 16384, v3
    v_xor_b32 v4, 40960, v4
    s_mov_b32 s38, {DUMMY + 4096:#x}
    s_mov_b32 s48, 0
    s_add_u32 s35, s35, 40960""")
    k.label(f'{p}_pll')
    k.lc += 12; k.ld = k.lc - 12
    k.vd = k.vc
    pre = {('V', n): k.ld + 1 + n for n in range(12)}
    mats = []; items = []; ev = []; endt = {}
    uacc = lambda ci, tt: 8 + 8 * (ci & 1) + 4 * tt
    def utile(ci):
        for n in range(12):
            kk, tt = n >> 1, n & 1
            a = V(uacc(ci, tt), 4)
            mats.append((f'{MF} {a}, {V(48+4*n,4)}, {R(loc[("o",ci,kk)],4)}, {"0" if kk == 0 else a}', [('V', n)] if ci == 0 else []))
        endt[ci] = len(mats) - 1
    for ci in range(5): utile(ci)
    XR = [44, 96, 100, 104]
    for kk in range(20):
        ev.append((max(60 + 2 * kk - 7, 60 + 2 * (kk - 4) + 1), dict(id=('x', kk), kind='n', lds=True, fn=f'ds_read_b128 {V(XR[kk%4],4)}, v4 offset:{kk*1024}')))
        for t in range(2):
            a = V(24 + 4 * t, 4)
            mats.append((f'{MF} {a}, {R(loc[("v",t,kk)],4)}, {V(XR[kk%4],4)}, {"0" if kk == 0 else a}', [('x', kk)]))
    for ci in range(5, 10): utile(ci)
    def uepi(ci, e_):
        a = uacc(ci, 0); d = 32 + 4 * (ci & 1)
        for i in range(4):
            it = dict(id=('u', ci, i), kind='v', fn=f'v_cvt_pk_bf16_f32 v{d+i}, v{a+2*i}, v{a+2*i+1}', after=e_ + 3)
            if i == 0: it['states'] = (max(e_, 0), 8)
            items.append(it)
        ev.append((e_ + 7, dict(id=('us', ci), kind='n', vm=True, fn=f'buffer_store_dwordx4 {V(d,4)}, v2, s[8:11], s38 offen sc1', order=[('u', ci, 3)])))
        ev.append((e_ + 7, dict(id=('ua', ci), kind='n', fn='s_mov_b32 s38, s36' if ci == 9 else 's_add_u32 s38, s38, 131072')))
    uepi(9, -1)
    for ci in range(5): uepi(ci, endt[ci])
    for i in range(4):
        it = dict(id=('w', i), kind='v', fn=f'v_cvt_pk_bf16_f32 v{40+i}, v{24+i}, v{28+i}', after=102)
        if i == 0: it['states'] = (99, 8)
        items.append(it)
    ev.append((106, dict(id='ww', kind='n', lds=True, fn='ds_write_b128 v3, v[40:43]', order=[('w', 3)])))
    for ci in range(5, 9): uepi(ci, endt[ci])
    ev.append((1, dict(id='fl', kind='n', vm=True, fn='buffer_load_dword v109, v108, s[8:11], s44 offen sc1')))
    ev.append((12, dict(id='s0', kind='n', fn='s_add_u32 s49, s34, s48')))
    ev.append((13, dict(id='s1', kind='n', fn='s_add_u32 s36, s36, 1310720')))
    for i_, t_ in enumerate(wrap('s36', UF, 1310720).split('\n')): ev.append((16 + i_ // 2, dict(id=('wr', i_), kind='n', fn=t_)))
    ev.append((13, dict(id='s2', kind='n', fn='s_xor_b32 s48, s48, 40960')))
    g_ = 20
    for j in range(3):
        ev.append((g_, dict(id=('m', j), kind='n', fn=f's_add_u32 m0, s49, {4096*j}')))
        ev.append((g_, dict(id=('m2', j), kind='n', fn=f's_add_u32 s29, s35, {4096*j}')))
        g_ += 1
        for i in range(4 if j < 2 else 2):
            ev.append((g_, dict(id=('xd', j, i), kind='n', vm=True, fn=f'buffer_load_dwordx4 v2, s[8:11], s29 offen offset:{1024*i} sc1 lds'))); g_ += 2
    ev.append((g_, dict(id='s3', kind='n', fn='s_add_u32 s35, s35, 40960')))
    ev.append((68, dict(id='fc', kind='n', vdeps=['fl'], fn='v_cmp_eq_u32 vcc, 0, v109')))
    ev.append((70, dict(id='fb', kind='n', fn=f's_cbranch_vccnz {p}_plate', label=f'{p}_pon')))
    ev.append((70, dict(id='v0', kind='n', fn='s_mov_b32 m0, s46')))
    ev.append((72, dict(id='v1', kind='n', vm=True, fn='buffer_load_dwordx4 v2, s[8:11], s45 offen sc1 lds')))
    ev.append((74, dict(id='v2', kind='n', vm=True, fn='buffer_load_dwordx4 v2, s[8:11], s45 offen offset:1024 sc1 lds')))
    ev.append((108, dict(id='v3', kind='n', fn='s_xor_b32 s46, s46, 16384')))
    ev.append((108, dict(id='v4', kind='n', fn='s_add_u32 s45, s45, 262144')))
    for i_, t_ in enumerate(wrap('s45', VF, 262144, RING2).split('\n')): ev.append((116 + i_ // 2, dict(id=('wr2', i_), kind='n', fn=t_)))
    ev.append((109, dict(id='v5', kind='n', fn='s_add_u32 s44, s44, 4096')))
    ev.append((109, dict(id='v6', kind='n', fn=f's_min_u32 s44, s44, {FQK + 63*4096:#x}')))
    ev.append((140, dict(id='bar', kind='bar', deps=['ww'], vdeps=['v2'], fn='s_barrier')))
    ev.append((56, dict(id='bar0', kind='bar', vdeps=[('us', 9)], fn='s_barrier')))
    ev.append((58, dict(id='fs', kind='n', vm=True, fn='buffer_store_dword v7, v6, s[8:11], s37 offen sc1')))
    ev.append((144, dict(id='t0', kind='n', fn='s_mov_b32 s37, s43')))
    ev.append((144, dict(id='t1', kind='n', fn='s_add_u32 s43, s43, 4096')))
    ev.append((145, dict(id='t2', kind='n', fn='s_add_u32 s22, s22, 1')))
    ev.append((145, dict(id='t3', kind='n', fn='v_xor_b32 v4, 40960, v4')))
    ev.append((146, dict(id='t4', kind='n', fn='v_xor_b32 v3, 16384, v3')))
    for n in range(12):
        ev.append((148 + n - 0.1, dict(id=('R', n), kind='n', lds=True, fn=f'ds_read_b128 {V(48+4*n,4)}, v5 offset:{(n&1)*6144 + (n>>1)*1024}', g=148 + n)))
    ev.sort(key=lambda x: x[0])
    for g_, it in ev:
        it['after'] = it.get('g', g_); items.append(it)
    sched(k, mats, items, [False] * 160, pre=pre)
    k(f"""
    v_xor_b32 v5, 16384, v5
    s_cmp_lt_u32 s22, 64
    s_cbranch_scc1 {p}_pll""")
    k.wl_all(True)
    k.nop(4)
    for i in range(4): k(f'v_cvt_pk_bf16_f32 v{36+i}, v{16+2*i}, v{17+2*i}')
    k(f"""
    buffer_store_dwordx4 v[36:39], v2, s[8:11], s38 offen sc1
    s_waitcnt vmcnt(0)
    s_barrier
    buffer_store_dword v7, v6, s[8:11], s37 offen sc1
    s_branch {end}""")
    k.label(f'{p}_plate')
    poll_flag(k, f'{p}_f1', 108, 's44', 109, fail, sleep=2)
    k(f's_branch {p}_pon')

TMO = 400000
FAIL = 'mega_kernel_fail'
PL = 8
CS = 1600
SCL = (192 ** -0.5) * 1.4426950408889634

def region(k, d, sreg):
    k(f"""
    s_lshr_b32 s28, {sreg}, 1
    s_xor_b32 s28, s28, s53
    s_and_b32 s28, s28, 1
    s_xor_b32 s28, s28, 1
    s_lshl_b32 s28, s28, 13
    s_lshl_b32 s{d}, {sreg}, 20
    s_add_u32 s{d}, s{d}, s28
    s_add_u32 s{d}, s{d}, {MB:#x}""")

def sel_from(k, cfg, v):
    if LST: k('s_memrealtime s[68:69]')
    k(f'v_readfirstlane_b32 s53, v{v}')
    k('s_sub_u32 s53, s53, 1')
    if cfg.get('sel') is not None: k(f's_mov_b32 s53, {cfg["sel"]}')
    k(f"""
    s_and_b32 s53, s53, 1
    s_lshl_b32 s52, s53, 13
    s_add_u32 s52, s52, {ZR:#x}
    s_xor_b32 s56, s53, {cfg.get('fsh', 1)}
    s_lshl_b32 s56, s56, 13
    s_lshr_b32 s55, s25, 2
    s_and_b32 s55, s55, {cfg.get('nl', 16) - 1}
    s_mul_i32 s55, s55, {cfg.get('lstride', 256)}
    s_mov_b32 s58, 0""")

def load_sel(k, cfg, t=16, t2=18):
    l = k.newlabel('L_go')
    k(f'v_mov_b32 v{t}, 128\ns_mov_b32 s39, 0')
    k.label(l)
    k(f'buffer_load_dword v{t+1}, v{t}, s[88:91], 0 offen sc1')
    k(f'buffer_load_dword v{t2}, v{t}, s[88:91], 0 offen offset:12 sc1')
    tmo(k, FAIL)
    k(f's_waitcnt vmcnt(0)\nv_cmp_eq_u32 vcc, 0, v{t2}\ns_cbranch_vccnz {l}')
    rot_check(k, t2)
    k(f'v_cmp_ne_u32 vcc, 0, v{t+1}\ns_cbranch_vccnz {l}k\ns_sleep 3\ns_branch {l}')
    k.label(l + 'k')
    sel_from(k, cfg, t + 1)

def zregion(k, d, base):
    k(f"""
    s_lshr_b32 s28, s22, 1
    s_xor_b32 s28, s28, s53
    s_and_b32 s28, s28, 1
    s_xor_b32 s28, s28, 1
    s_lshl_b32 s28, s28, 13
    s_lshl_b32 s{d}, s22, 20
    s_add_u32 s{d}, s{d}, s28
    s_add_u32 s{d}, s{d}, s{base}""")

RING = 64
def wrap(reg, base, stride, n=None):
    n = n or RING
    if n >= 64: return 's_nop 0'
    return f's_cmp_ge_u32 {reg}, {base + n*stride:#x}\ns_cselect_b32 s87, {n*stride:#x}, 0\ns_sub_u32 {reg}, {reg}, s87'

def maxtree(k, d, regs):
    k(f'v_max3_u32 v{d}, v{regs[0]}, v{regs[1]}, v{regs[2]}')
    i = 3
    while i + 1 < len(regs):
        k(f'v_max3_u32 v{d}, v{d}, v{regs[i]}, v{regs[i+1]}'); i += 2
    if i < len(regs): k(f'v_max_u32 v{d}, v{d}, v{regs[i]}')

def tmo(k, fail):
    k(f's_add_u32 s39, s39, 1')
    k(f's_cmp_gt_u32 s39, {TMO}')
    k(f's_cbranch_scc1 {fail}')

def memaddr_setup(k, MEMB):
    k(f"""
    s_lshl_b32 s28, s21, 10
    v_add_u32 v7, s28, v2
    v_add_u32 v4, {M_OFF}, v7
    v_add_u32 v5, {M_OFF + 4096}, v7
    v_add_u32 v7, {MEMB}, v7
    v_add_u32 v6, 3072, v5
    v_add_u32 v9, {MEMB}, v2""")
    for d in (4, 5, 6): v_mbmap(k, d, 11)
    k(f"""
    v_and_b32 v11, 2, v1
    v_mov_b32 v10, 0x4444
    v_mov_b32 v12, 0xeeee
    v_cmp_ne_u32 vcc, 0, v11
    s_nop 1
    v_cndmask_b32 v10, v10, v12, vcc""")

def poll_mem(k, p, fail, D=0):
    twait(k, D)
    k('s_mov_b32 s39, 0')
    k.label(f'{p}_poll')
    for i in range(3):
        k(f'buffer_load_dwordx4 {V(16+4*i,4)}, v{4+i}, s[8:11], s40 offen sc1')
    tmo(k, fail)
    k('s_waitcnt vmcnt(0)')
    k('ds_write_b128 v7, v[16:19]')
    k('ds_write_b128 v7, v[20:23] offset:4096')
    k('ds_write_b128 v8, v[24:27]')
    maxtree(k, 11, list(range(16, 28)))
    k('v_cmp_eq_u32 vcc, -1, v11')
    k(f's_cbranch_vccnz {p}_poll')
    k('s_waitcnt lgkmcnt(0)')
    k('s_barrier')
    tref(k, D)
    k('s_add_u32 s58, s58, s39')

def tref(k, D):
    if D: k('s_memtime s[54:55]')

def twait(k, D):
    if not D: return
    l = k.newlabel('L_tw')
    k.label(l)
    k(f"""
    s_memtime s[56:57]
    s_waitcnt lgkmcnt(0)
    s_sub_u32 s56, s56, s54
    s_cmp_lt_u32 s56, {D}
    s_cbranch_scc1 {l}""")

def wload8(wm, key):
    return [lambda r, key=key: f'ds_read_b128 {V(r,4)}, v3 offset:{WL + wm.slot[key]*1024}',
            lambda r, key=key: f'ds_read_b128 {V(r+4,4)}, v3 offset:{WL + wm.slot[key]*1024 + 1024}']

def pairpost(a, b, d):
    return [f'v_permlane32_swap_b32 v{a+i}, v{b+i}' for i in range(4)] + \
           [f'v_add_f32 v{a+i}, v{a+i}, v{b+i}' for i in range(4)] + \
           [f'v_cvt_pk_bf16_f32 v{d}, v{a}, v{a+1}', f'v_cvt_pk_bf16_f32 v{d+1}, v{a+2}, v{a+3}']

def xlane(k, op, m, t):
    k(f"""
    v_mov_b32 v{t}, v{m}
    s_nop 1
    v_permlane32_swap_b32 v{m}, v{t}
    {op} v{m}, v{m}, v{t}
    v_mov_b32 v{t}, v{m}
    s_nop 1
    v_permlane16_swap_b32 v{m}, v{t}
    {op} v{m}, v{m}, v{t}""")

def stamp(k, cfg, idx):
    if cfg.get('cprof'): return
    if cfg.get('hprof'):
        if idx == 4: k('s_memtime s[60:61]')
        if idx == 2 and len(cfg['hprof']) < 4: k('s_memtime s[68:69]')
        if idx == 0 and len(cfg['hprof']) < 3: k('s_memtime s[66:67]')
        return
    if cfg.get('trace') == 2:
        if idx in (2, 4): k(f's_memtime s[{60+2*idx}:{61+2*idx}]')
        return
    if cfg.get('trace'):
        k(f's_memrealtime s[{60+2*idx}:{61+2*idx}]'); return
    if cfg.get('stamp') is None: return
    l = k.newlabel('L_st')
    k(f's_cmp_lg_u32 s22, {cfg["stamp"]}')
    k(f's_cbranch_scc1 {l}')
    k(f'{"s_memtime" if cfg.get("cyc") else "s_memrealtime"} s[{60+2*idx}:{61+2*idx}]')
    k.label(l)

def trace_out(k, cfg, t0):
    if not cfg.get('trace'): return
    k(f"""
    s_waitcnt lgkmcnt(0)
    s_lshl_b32 s28, s25, 2
    s_add_u32 s28, s28, s21
    s_lshl_b32 s28, s28, 6
    s_add_u32 s28, s28, s22
    s_lshl_b32 s28, s28, 5
    s_add_u32 s28, s28, {TRACE:#x}
    v_mov_b32 v{t0}, s60
    v_mov_b32 v{t0+1}, s62
    v_mov_b32 v{t0+2}, s64
    v_mov_b32 v{t0+3}, s66
    v_mov_b32 v{t0+4}, s68
    v_mov_b32 v{t0+5}, s59
    v_mov_b32 v{t0+8}, 0
    buffer_store_dwordx4 {V(t0,4)}, v{t0+8}, s[8:11], s28 offen
    buffer_store_dwordx2 {V(t0+4,2)}, v{t0+8}, s[8:11], s28 offen offset:16
    s_nop 1""")

def ustamp(k, cfg, idx):
    if cfg.get('stamp') is None or (LST and idx < 5): return
    k(f's_memrealtime s[{60+2*idx}:{61+2*idx}]')

HU1, HU2 = 0xA0000, 0xA4000

def delay(k, n):
    if n >= 64: k(f's_sleep {n // 64}')
    r = (n % 64) // 4
    if r: k.nop(r)

def hu_wait(k, p, base, starget, t0, fail, cfg, line=0):
    depth = cfg.get('depth', 3)
    nref = cfg.get('nref', 1)
    k(f's_add_u32 s28, s55, {base:#x}\nv_mov_b32 v{t0}, s28')
    k('s_mov_b32 s39, 0')
    k('s_waitcnt vmcnt(0)')
    for i in range(depth):
        k(f'buffer_load_dword v{t0+1+i}, v{t0}, s[8:11], s52 offen sc1')
        if i + 1 < depth: k.nop(cfg.get('spr', 16))
    k.label(f'{p}_hu')
    for i in range(depth):
        k(f's_waitcnt vmcnt({depth-1})')
        k(f'v_cmp_gt_i32 vcc, {starget}, v{t0+1+i}')
        k(f's_cbranch_vccz {p}_hud')
        k(f'buffer_load_dword v{t0+1+i}, v{t0}, s[8:11], s52 offen sc1')
    tmo(k, fail)
    k(f's_branch {p}_hu')
    k.label(f'{p}_hud')

class Gaps:
    def __init__(self, k): self.k = k

def pf_setup(k, sreg, mul, add, cfg):
    k(f"""
    s_lshr_b32 s28, s20, 2
    s_and_b32 s54, s28, 3
    s_add_u32 s54, s54, {cfg.get('pfs', 4)}
    s_mul_i32 s28, s28, {mul}
    s_add_u32 s28, s28, {add}
    s_lshr_b32 s29, s28, 2
    s_lshl_b32 s29, s29, 17
    s_and_b32 s28, s28, 3
    s_lshl_b32 s28, s28, 13
    s_add_u32 s{sreg}, s28, s29
    s_and_b32 s28, s20, 3
    s_lshl_b32 s28, s28, 15
    s_add_u32 s{sreg}, s{sreg}, s28
    s_add_u32 s{sreg}, s{sreg}, {UF + cfg.get('pfa', 1) * 1310720:#x}""")

def mem_front(k, p, w, fail, cfg, own_ops, zero_regs, behind=None, nb=0):
    three = w in (1, 2)
    regs = [16 + 4 * w, 32 + 4 * w] + ([44 + 4 * w] if three else [])
    n = len(regs)
    lds_ = lambda i: f'buffer_load_dwordx4 {V(regs[i],4)}, v{4+i}, s[8:11], s40 offen sc1'
    wr_ = lambda i: f'ds_write_b128 v7, {V(regs[i],4)} offset:{(0, 4096, 7168)[i]}'
    def ld():
        for i in range(n): k(lds_(i))
    def take(x):
        k('s_waitcnt vmcnt(0)')
        for i in range(n): k(wr_(i))
        maxtree(k, 11, [r + j for r in regs for j in range(4)])
        k('v_cmp_eq_u32 vcc, -1, v11')
    ops = list(own_ops)
    fa = [ks for ks in range(4) if ks != w]
    k(lds_(0) + '\ns_barrier\n' + lds_(1) + '\ns_barrier')
    if three: k(lds_(2))
    if behind: behind()
    k('s_mov_b32 s39, 1')
    o0, o1 = regs[:2]; o2 = regs[-1]
    T = dict(a=f'v_max3_u32 v11, v{o0}, v{o0+1}, v{o0+2}', b=f'v_max_u32 v11, v11, v{o0+3}', c=f'v_max3_u32 v11, v{o1}, v{o1+1}, v{o1+2}', d=f'v_max_u32 v11, v11, v{o1+3}',
             e=f'v_max3_u32 v11, v11, v{o2}, v{o2+1}' if three else '', f=f'v_max3_u32 v11, v11, v{o2+2}, v{o2+3}' if three else '', C='v_cmp_eq_u32 vcc, -1, v11')
    plan = cfg.get('fplan', 'W1 a b C S S S S J1 BA r0 S r1 r2 S W2 S c S W3 S d e S f C L S S J2 BB') if len(ops) == 12 else \
           cfg.get('zplan', 'W1 a b C S S S J1 BA r0 r1 r2 W2 S c d S W3 e f C S L S S J2 BB S')
    done = []; snap = {}; tk = {}
    for tok in plan.split():
        if tok == 'S':
            done.append(ops.pop(0)); k(done[-1])
        elif tok[0] == 'J':
            k(f's_cbranch_vccnz {p}_slow{tok[1]}'); k.label(f'{p}_back{tok[1]}'); snap[tok[1]] = list(done)
        elif tok[0] == 'W':
            i = int(tok[1]) - 1
            if i < n:
                k(f's_waitcnt vmcnt({n-1-i+nb})'); tk[tok] = k.lds(wr_(i))
        elif tok[0] == 'r':
            ks = fa[int(tok[1])]; tk[tok] = k.lds(f'ds_read_b128 {V(16+4*ks,4)}, v9 offset:{1024*ks}')
        elif tok == 'BA':
            k.wl(tk['W1']); k('s_barrier')
        elif tok == 'L': k.wl(tk['r0'])
        elif tok == 'BB':
            k.wl_all(); k('s_barrier')
        elif T[tok]: k(T[tok])
    assert not ops
    if cfg.get('stamp') is not None: k('s_add_u32 s58, s58, s39')
    if cfg.get('trace'): k('s_mov_b32 s59, s39')
    def slow():
        for j in '12':
            k.label(f'{p}_slow{j}')
            k('s_mov_b64 exec, vcc')
            ld()
            k('s_mov_b64 exec, -1')
            k.nop(3)
            for r in zero_regs: k(f'v_mov_b32 v{r}, 0')
            tmo(k, fail)
            take(0)
            k(f's_cbranch_vccnz {p}_slow{j}')
            for s_ in snap[j]: k(s_)
            k(f's_waitcnt lgkmcnt(0)\ns_branch {p}_back{j}')
    return slow

def sched(k, mats, items, sm, pre_n=0, pre=None):
    tk = dict(pre or {}); vt = {}
    nq = [it for it in items if it['kind'] in ('n', 'bar')]
    vq = [it for it in items if it['kind'] in ('v', 'v2')]
    done = set(); pos = 0; matpos = {}
    def ready(it, i):
        if it.get('after', -1) > i: return False
        if any(d not in done for d in it.get('order', [])): return False
        st = it.get('states')
        if st is not None and (st[0] not in matpos or pos - matpos[st[0]] < st[1]): return False
        return True
    def emit(it):
        nonlocal pos
        n0 = len(k.L)
        for d in it.get('deps', []): k.wl(tk[d])
        for d in it.get('vdeps', []): k.wv(vt[d])
        if it.get('lds'): tk[it['id']] = k.lds(it['fn'])
        elif it.get('vm'): vt[it['id']] = k.vm(it['fn'])
        else: k(it['fn'])
        if it.get('label'):
            k.label(it['label']); n0 += 1
        done.add(it['id']); it['pos'] = pos + len(k.L) - n0
        matpos[it['id']] = it['pos']
        used = len(k.L) - n0 + (1 if it['kind'] == 'v2' else 0)
        pos += len(k.L) - n0
        return used
    def waitneed(i):
        return i < len(mats) and any(d in tk and tk[d] > k.ld for d in mats[i][1])
    for _ in range(pre_n): emit(nq.pop(0))
    for i, (fn, need) in enumerate(mats):
        for d in need:
            while d not in tk:
                it = nq.pop(0); assert ready(it, i), (it, i); emit(it)
        n0 = len(k.L)
        if need: k.wl(max(tk[d] for d in need))
        k(fn); pos += len(k.L) - n0; matpos[i] = pos
        slots = 2
        wantv = bool(vq) and ready(vq[0], i)
        nmax = 1 if wantv else 2
        if waitneed(i + 1) and all(d in tk for d in mats[i + 1][1]):
            look = [tk[d] for j in range(i + 1, min(i + 4, len(mats))) for d in mats[j][1] if d in tk and tk[d] <= k.lc - 2 or (j == i + 1)]
            k.wl(max(look)); pos += 1; slots -= 1; nmax -= 1
        while nmax > 0 and slots > 0 and nq and ready(nq[0], i):
            it_ = nq.pop(0); u = emit(it_); slots -= u; nmax -= u
            for _ in range(it_.get('glue', 0)): slots -= emit(nq.pop(0))
        nv = 0
        while slots > 0 and vq and ready(vq[0], i) and (nv == 0 or not sm[i]):
            it_ = vq.pop(0); slots -= emit(it_); nv += 1
            for x in list(nq):
                if x.get('now') == it_['id']:
                    nq.remove(x); slots -= emit(x)
        if nv == 0 and slots > 0 and vq and vq[0].get('states') and vq[0]['states'][0] in matpos and vq[0].get('after', -1) <= i + 3:
            k.nop(slots); pos += slots
    while nq or vq:
        cand = [q for q in (vq, nq) if q and ready(q[0], len(mats))]
        if cand: emit(cand[0].pop(0))
        else: k.nop(1); pos += 1
    return tk, pos, matpos

def gen_h(k, p, end, fail, cfg):
    keys = [(t, ks) for pr in range(3) for ks in range(10) for t in (2 * pr, 2 * pr + 1)]
    ldsk = [(t, ks) for pr in range(3) for ks in (8, 9) for t in (2 * pr, 2 * pr + 1)]
    wm = Wmap(keys, 8, set(ldsk))
    role_common(k, ('Wq', 'Wk'))
    def early():
        k(f's_lshl_b32 s28, s20, 7\nv_mov_b32 v122, s28\ns_mov_b32 s43, {FQK:#x}')
        k.vm('buffer_load_dword v24, v122, s[8:11], s43 offen sc1')
    gen_loader(k, 'QK', True, wm, early)
    ustamp(k, cfg, 5)
    k(f's_waitcnt vmcnt(0)\nv_min_u32 v24, v24, v20\nv_cmp_ne_u32 vcc, 0, v20\ns_cbranch_vccz {p}_sl')
    rot_check(k, 23)
    sel_from(k, cfg, 20)
    k(f's_branch {p}_sk')
    k.label(f'{p}_sl')
    load_sel(k, cfg)
    k.label(f'{p}_sk')
    MEMB = 98304; QKT = MEMB + 10240; ZER = QKT + 4 * CS + 128; KXB = 131072
    RING = [80, 88, 96, 104, 112]
    hu = cfg.get('hu', 1)
    memaddr_setup(k, MEMB)
    k(f"""
    v_and_b32 v11, 15, v1
    v_lshrrev_b32 v12, 2, v11
    v_mul_u32_u24 v12, 272, v12
    v_lshrrev_b32 v13, 4, v1
    v_lshl_add_u32 v121, v13, 4, v2
    v_add_u32 v121, {QKT}, v121
    v_lshl_add_u32 v12, v13, 5, v12
    v_and_b32 v13, 3, v1
    v_lshl_add_u32 v12, v13, 2, v12
    s_lshr_b32 s28, s21, 1
    s_lshl_b32 s28, s28, 7
    s_and_b32 s29, s21, 1
    s_mul_i32 s29, s29, 3264
    s_add_u32 s28, s28, s29
    s_add_u32 s28, s28, {QKT}
    v_add_u32 v120, s28, v12
    v_add_u32 v126, 1088, v120
    v_add_u32 v127, 2176, v120
    v_add_u32 v0, {KXB}, v2
    s_max_u32 s48, s21, 1
    s_sub_u32 s48, s48, 1
    s_lshl_b32 s48, s48, 12
    s_add_u32 s47, s48, {KXB}
    s_mul_i32 s28, s20, 24576
    s_add_u32 s48, s48, s28
    s_add_u32 s48, s48, {QF + 12288:#x}
    s_lshl_b32 s28, s20, 7
    v_mov_b32 v122, s28
    s_mov_b32 s43, {FQK:#x}""")
    def kxdma():
        k('s_mov_b32 m0, s49')
        k('s_xor_b32 s47, s47, 16384')
        for i in range(4):
            k(f'buffer_load_dwordx4 v2, s[8:11], s48 offen offset:{1024*i} sc1 lds')
        k('s_mov_b32 s49, s47')
        k('s_add_u32 s48, s48, 786432')
        k(wrap('s48', QF, 786432, RING2))
    k(f'v_cmp_ne_u32 vcc, 0, v24\ns_cbranch_vccnz {p}_pk')
    poll_flag(k, f'{p}_pz', 122, 's43', 17, fail, sleep=1)
    k.label(f'{p}_pk')
    k('s_mov_b32 s49, s47')
    kxdma()
    k(f's_sub_u32 s49, s47, {KXB + 16384 - 116736}')
    k(f"""
    v_lshrrev_b32 v13, 4, v1
    s_waitcnt lgkmcnt(0)
    s_mov_b32 s22, 0
    s_cmp_eq_u32 s21, 0
    s_cbranch_scc1 {p}_w0
    s_cmp_eq_u32 s21, 1
    s_cbranch_scc1 {p}_w1
    s_cmp_eq_u32 s21, 2
    s_cbranch_scc1 {p}_w2
    s_branch {p}_w3""")
    slows = []
    def main(pp, w):
        pr_ = [f'v_mov_b32 v{56+i}, 0' for i in range(24)] + [f(RING[i]) for i, key in enumerate(ldsk[:5]) for f in wload8(wm, key)]
        h1n = cfg.get('h1n', 3)
        if w == 3 and h1n >= 0: pr_.insert(h1n, 'buffer_store_dword v15, v123, s[8:11], s52 offen sc1\nv_mov_b32 v15, s22')
        if w == 3 and h1n < 0: pr_.append('v_mov_b32 v15, s22')
        for s_ in pr_: (k.lds if s_.startswith('ds_') else k)(s_)
        k('s_sub_u32 s46, s22, 1')
        region(k, 40, 's46')
        if w == 0: region(k, 41, 's22')
        if w >= 2: k(f's_cmp_lt_u32 s22, s54\ns_cselect_b32 s51, {XN:#x}, s50')
        k.wl_all()
        k('s_waitcnt vmcnt(0)')
        if cfg.get('trace'): stamp(k, cfg, 3)
        if hu and cfg.get('nref2', 1) > 1: k('s_barrier')
        if hu and w == cfg.get('hpw', 0):
            hu_wait(k, pp, HU2, 's46', 52 - 4 * (w == 0) * 8, fail, cfg, w)
        k('s_barrier')
        if cfg.get('trace'): stamp(k, cfg, 4)
        wreg = {key: R(wm.loc[key], 8) for key in wm.loc}
        for i, key in enumerate(ldsk): wreg[key] = V(RING[i % 5], 8)
        smt = lambda t, ks: f'{SM} {V(56+4*t,4)}, {V(16+4*ks,4)}, {wreg[(t,ks)]}, v10'
        rest = [ks for ks in range(8) if ks not in (w, w + 4)]
        fa, fb = rest[:3], rest[3:]
        def kxearly():
            k('s_barrier')
            k.nop(cfg.get('kxn', 0))
            if w > 0: kxdma()
        kxe = (kxearly, 4 if w > 0 else 0) if cfg.get('kxe', 1) else ()
        slows.append(mem_front(k, pp, w, fail, cfg, [smt(t, w) for t in range(6)] + [smt(t, w + 4) for t in range(4)] + [smt(0, fa[0]), smt(1, fa[0])], list(range(56, 80)), *kxe))
        if w == 0 or cfg.get('trace'): stamp(k, cfg, 0)
        order = [[fb[0], 8, fb[1], fb[2], 9], [fa[1], fa[2], 8, fb[0], fb[1], 9, fb[2]], [8, fa[0], 9, w + 4, fa[1], fa[2]] + fb]
        mats = []; items = []; idx = {}
        own3 = 7 + w if w in (1, 2) else None
        for ks in order[0]:
            if ks != own3: items.append(dict(id=('A', ks), kind='n', lds=True, fn=f'ds_read_b128 {V(16+4*ks,4)}, v9 offset:{1024*ks}'))
        for (t, ks) in [(0, fa[1]), (1, fa[1]), (0, fa[2]), (1, fa[2]), (2, fa[0]), (3, fa[0])]: mats.append((smt(t, ks), []))
        for pr in range(3):
            sq = [(t, ks) for ks in order[pr] for t in (2 * pr, 2 * pr + 1)]
            if pr == 2: sq = sq[:-6] + sq[-6::2] + sq[-5::2]
            for (t, ks) in sq:
                need = [('A', ks)] if pr == 0 and ks != own3 else []
                if (t, ks) in ldsk[5:]: need = need + [('W', t, ks, 1)]
                idx[(t, ks)] = len(mats)
                mats.append((smt(t, ks), need))
        nsm = len(mats)
        endp = [idx[(2 * pr + 1, order[pr][-1])] for pr in range(3)]
        ev = []
        for i, key in enumerate(ldsk[5:]):
            for h_, f in enumerate(wload8(wm, key)):
                ev.append((max(idx[ldsk[i]], idx[key] - 16), dict(id=('W',) + key + (h_,), kind='n', lds=True, fn=f(RING[i % 5]), after=idx[ldsk[i]])))
        for pr in range(3):
            a = 56 + 8 * pr
            e0 = idx[(2 * pr, order[pr][-1])]
            if pr == 2 and w != 0:
                items.append(dict(id=('p', pr, 0), kind='v', fn=f'v_pk_add_f32 {V(a,2)}, {V(a,2)}, {V(a+2,2)}', states=(e0, 8), after=endp[pr]))
                items.append(dict(id=('p', pr, 1), kind='v', fn=f'v_pk_add_f32 {V(a+4,2)}, {V(a+4,2)}, {V(a+6,2)}', states=(endp[pr], 8)))
            else:
                items.append(dict(id=('p', pr, 0), kind='v', fn=f'v_add_f32 v{a}, v{a}, v{a+2}', states=(e0, 8), after=e0 + 1))
                items.append(dict(id=('p', pr, 5), kind='v', fn=f'v_add_f32 v{a+1}, v{a+1}, v{a+3}'))
                items.append(dict(id=('p', pr, 1), kind='v', fn=f'v_add_f32 v{a+4}, v{a+4}, v{a+6}', states=(endp[pr], 8)))
                items.append(dict(id=('p', pr, 6), kind='v', fn=f'v_add_f32 v{a+5}, v{a+5}, v{a+7}'))
            items.append(dict(id=('p', pr, 2), kind='v', fn=f'v_cvt_pk_bf16_f32 v124, v{a}, v{a+4}'))
            items.append(dict(id=('p', pr, 3), kind='v', fn=f'v_cvt_pk_bf16_f32 v125, v{a+1}, v{a+5}'))
            wgap = endp[pr] + (8 if pr < 2 else 4)
            ev.append((wgap, dict(id=('pw', pr), kind='n', lds=True, fn=f'ds_write2_b32 v{(120,126,127)[pr]}, v124, v125 offset0:0 offset1:4', order=[('p', pr, 3)], now=('p', pr, 3) if pr == 2 else None)))
        if w > 0 and not cfg.get('kxe', 1):
            kd = K(); sv = k.L; k.L = kd.L; kxdma(); k.L = sv
            for i_, t_ in enumerate(kd.L): ev.append((cfg.get('kxg', 16) + (0, 0, 1, 3, 7, 9, 10, 10, 13, 13, 14)[i_], dict(id=('kx', i_), kind='n', fn=t_.strip())))
        if cfg.get('tb', 0) and w == 1:
            ev.append((3, dict(id='tb0', kind='n', fn=f's_add_u32 s28, s40, {0x300000 - 0x20000:#x}')))
            ev.append((3, dict(id='tb1', kind='n', fn=f's_min_u32 s28, s28, {WS_BYTES - 0x60000:#x}')))
            ev.append((4, dict(id='tb2', kind='n', fn='buffer_load_dword v12, v13, s[8:11], s28 offen')))
        if cfg.get('pf', 1) and w >= 2:
            ev.append((2, dict(id='pf', kind='n', fn='buffer_load_dword v12, v13, s[8:11], s51 offen sc1')))
            ev.append((2, dict(id='pf2', kind='n', fn='s_add_u32 s50, s50, 1310720')))
            for i_, t_ in enumerate(wrap('s50', UF, 1310720).split('\n')): ev.append((11 + i_ // 2, dict(id=('pfw', i_), kind='n', fn=t_)))
        bx = endp[1] + cfg.get('bx', 13)
        ev.append((bx, dict(id='barX', kind='bar', fn='s_barrier', deps=[('pw', 1)], after=bx, order=[('pw', 1)])))
        sm = [True] * nsm
        if w == 0:
            kko = [0, 3, 1, 4, 2, 5]
            kxo = [6 * kt + kk for kk in kko for kt in range(2)]
            kxr = [(16 + 4 * w, 4, None), (56, endp[0] + 10, ('p', 0, 3)), (60, endp[0] + 11, ('p', 0, 3))] + \
                  [(16 + 4 * ks, idx[(5, ks)], None) for ks in order[2]]
            kxreg = {}
            for i, (r, g_, o_) in zip(kxo, kxr):
                kxreg[i] = r
                ev.append((g_, dict(id=('K', i), kind='n', lds=True, fn=f'ds_read_b128 {V(r,4)}, v0 offset:{1024*i}', after=g_, order=[o_] if o_ else [])))
            seq = []
            for kk in kko[:4]: seq += [('x0', kk), ('x1', kk), ('m', kk)]
            seq += [('m', 2), ('m', 5), ('x1', 2), ('x1', 5), ('x0', 2), ('x0', 5)]
            by = nsm + cfg.get('by', 8)
            FR = {0: 96, 3: 100, 1: 80, 4: 84, 2: 88, 5: 92}
            for kk in kko:
                bar, g_ = {0: ('barX', bx), 1: ('barX', bx), 2: ('barY', by)}[kk % 3]
                ev.append((g_ + 0.5, dict(id=('F', kk), kind='n', lds=True, order=[bar], fn=f'ds_read_b128 {V(FR[kk],4)}, v121 offset:{1088*kk}')))
            ev.append((by, dict(id='barY', kind='bar', fn='s_barrier', deps=[('pw', 2)], after=by, order=[('pw', 2)], glue=2)))
            started = set()
            for j_, (ty, kk) in enumerate(seq):
                F = V(FR[kk], 4); d_ = {'x0': 'v[64:67]', 'x1': 'v[68:71]', 'm': 'v[116:119]'}[ty]
                c_ = d_ if ty in started else ('v[12:15]' if ty == 'm' else '0'); started.add(ty)
                i_ = kk + (6 if ty == 'x1' else 0)
                need = [('F', kk)] + ([] if ty == 'm' else [('K', i_)])
                if j_ == 0: need = [('F', 0), ('F', 3), ('K', 0), ('K', 6), ('K', 3), ('K', 9)]
                if j_ == 6: need = [('F', 1), ('F', 4), ('K', 1), ('K', 7), ('K', 4), ('K', 10)]
                mats.append((f'{MF} {d_}, {F if ty == "m" else V(kxreg[i_],4)}, {F}, {c_}', need))
                sm.append(False)
            lm = nsm + 13
            UP = 'row_ror:8 row_mask:0xf bank_mask:0xc'
            items.append(dict(id='c0', kind='v', fn='v_max3_f32 v72, v116, v117, v118', states=(lm, 8), after=lm))
            items.append(dict(id='c1', kind='v', fn='v_max_f32 v72, v72, v119'))
            items.append(dict(id='c2', kind='v', fn=f'v_mov_b32_dpp v116, v118 {UP}'))
            items.append(dict(id='c3', kind='v', fn=f'v_mov_b32_dpp v117, v119 {UP}'))
            items.append(dict(id='c4', kind='v', fn='v_max3_f32 v72, v72, v68, v69', states=(nsm + 15, 8)))
            items.append(dict(id='c5', kind='v', fn='v_max3_f32 v72, v72, v70, v71'))
            items.append(dict(id='c6', kind='v', fn='v_max3_f32 v72, v72, v64, v65', states=(nsm + 17, 8)))
        else:
            ev.append((nsm + 99, dict(id='barY', kind='bar', fn='s_barrier', deps=[('pw', 2)], order=[('pw', 2)])))
            if w == 3 and h1n < 0:
                g_ = {-1: nsm + 100, -2: nsm + 98}.get(h1n, nsm + 2 + h1n)
                ev.append((g_, dict(id='hu1', kind='n', fn='buffer_store_dword v15, v123, s[8:11], s52 offen sc1')))
        for i_, g_ in enumerate(cfg.get('hprof', ())):
            if g_ < len(mats): ev.append((g_ - 0.01, dict(id=('hp', i_), kind='n', fn=f's_memtime s[{62+2*i_}:{63+2*i_}]', after=g_)))
        ev.sort(key=lambda x: x[0])
        for g_, it in ev:
            it['after'] = max(it.get('after', -1), min(int(g_), len(mats)) if g_ < len(mats) else len(mats))
            items.append(it)
        sched(k, mats, items, sm, pre_n=1)
        if w == 0 or cfg.get('trace'): stamp(k, cfg, 1)
    def loop_end(pp):
        if not pp.endswith('w3'): trace_out(k, cfg, 56)
        k(f"""
        s_add_u32 s22, s22, 1
        s_cmp_lt_u32 s22, 64
        s_cbranch_scc1 {pp}_loop
        s_branch {end}""")
    k.label(f'{p}_w0')
    k(f"""
    s_mul_i32 s28, s20, 640
    v_and_b32 v12, 7, v1
    v_lshlrev_b32 v12, 4, v12
    v_lshl_add_u32 v122, v13, 7, v12
    v_lshrrev_b32 v14, 3, v11
    v_lshl_add_u32 v122, v14, 3, v122
    v_add_u32 v122, s28, v122
    v_lshl_add_u32 v123, v14, 2, v12
    v_and_b32 v14, 1, v13
    v_lshl_add_u32 v123, v14, 3, v123
    s_add_u32 s28, s28, 512
    v_add_u32 v123, s28, v123""")
    v_mbmap(k, 122, 12); v_mbmap(k, 123, 12)
    k(f"""
    v_cmp_lt_u32 s[44:45], 1, v13
    v_mov_b32 v12, {BIG:#x}
    v_cmp_lt_u32 vcc, 1, v13
    v_mov_b32 v1, {SCL!r}
    s_nop 0
    v_cndmask_b32 v123, v12, v123, vcc
    v_mov_b32 v12, 0xff800000
    v_cndmask_b32_e64 v12, v12, 0, vcc
    v_mov_b32 v13, v12
    v_mov_b32 v14, v12
    v_mov_b32 v15, v12
    s_mov_b32 s42, {SCL!r}
    s_mov_b32 s43, {SCL!r}""")
    k.label(f'{p}_w0_loop')
    main(f'{p}_w0', 0)
    UP = 'row_ror:8 row_mask:0xf bank_mask:0xc'
    HUS = 'buffer_store_dword v11, v1, s[8:11], s52 offen sc1'
    NEG = 'op_sel_hi:[1,1,0] neg_lo:[0,0,1] neg_hi:[0,0,1]'
    k(f"""
    v_max3_f32 v72, v72, v66, v67
    v_mov_b32 v73, v72
    v_mov_b32_dpp v64, v68 {UP}
    v_mov_b32_dpp v65, v69 {UP}
    v_permlane32_swap_b32 v72, v73
    v_max_f32 v72, v72, v73
    v_mov_b32 v73, v72
    v_mov_b32_dpp v66, v70 {UP}
    v_mov_b32_dpp v67, v71 {UP}
    v_permlane16_swap_b32 v72, v73
    v_max_f32 v72, v72, v73
    v_mul_f32 v74, v72, v1
    v_xor_b32 v0, 16384, v0
    v_mul_f32_dpp v74, v72, v1 {UP}
    v_pk_fma_f32 v[64:65], v[64:65], s[42:43], v[74:75] {NEG}
    v_pk_fma_f32 v[66:67], v[66:67], s[42:43], v[74:75] {NEG}
    v_pk_fma_f32 v[116:117], v[116:117], s[42:43], v[74:75] {NEG}
    v_exp_f32 v64, v64
    v_exp_f32 v65, v65
    v_exp_f32 v66, v66
    v_exp_f32 v67, v67
    v_exp_f32 v116, v116
    v_exp_f32 v117, v117
    v_pk_add_f32 v[72:73], v[64:65], v[66:67]
    v_pk_add_f32 v[72:73], v[72:73], v[116:117]
    v_add_f32 v72, v72, v73
    s_nop 0
    s_nop 0
    v_add_f32_dpp v72, v72, v72 row_ror:8 row_mask:0xf bank_mask:0xf""")
    xlane(k, 'v_add_f32', 72, 73)
    k(f"""
    v_rcp_f32 v72, v72
    s_nop 0
    v_pk_mul_f32 v[64:65], v[64:65], v[72:73] op_sel_hi:[1,0]
    v_pk_mul_f32 v[66:67], v[66:67], v[72:73] op_sel_hi:[1,0]
    v_cvt_pk_bf16_f32 v74, v64, v65
    v_cvt_pk_bf16_f32 v75, v66, v67
    buffer_store_dwordx2 v[74:75], v122, s[8:11], s41 offen sc1
    v_pk_mul_f32 v[116:117], v[116:117], v[72:73] op_sel_hi:[1,0]
    v_cvt_pk_bf16_f32 v76, v116, v117
    buffer_store_dword v76, v123, s[8:11], s41 offen sc1""")
    stamp(k, cfg, 2)
    loop_end(f'{p}_w0')
    k.label(f'{p}_w1')
    k(f"""
    v_mov_b32 v123, v122
    v_lshlrev_b32 v12, 4, v11
    v_lshl_add_u32 v122, v13, 7, v12
    v_subrev_u32 v122, 128, v122
    v_mov_b32 v12, {BIG:#x}
    v_cmp_lt_u32 vcc, 7, v11
    s_nop 1
    v_cndmask_b32 v122, v12, v122, vcc
    v_cmp_gt_u32 vcc, {FW}, v1
    v_lshl_add_u32 v123, v1, 2, v123
    s_nop 0
    v_cndmask_b32 v123, v12, v123, vcc
    v_mov_b32 v14, 1
    v_mov_b32 v13, 0
    s_mul_i32 s42, s20, 3072
    s_add_u32 s42, s42, {KM:#x}
    s_add_u32 s43, s56, {FKM:#x}""")
    k.label(f'{p}_w1_loop')
    main(f'{p}_w1', 1)
    delay(k, cfg.get('kmdelay', 0))
    tk = []
    for kk in range(6):
        tk.append(k.lds(f'ds_read_b128 {V(88+4*kk,4)}, v121 offset:{1088*kk}'))
    for kk in range(6):
        k.wl(tk[kk])
        k(f'buffer_store_dwordx4 {V(88+4*kk,4)}, v122, s[8:11], s42 offen offset:{512*kk} sc1')
    k(f"""
    s_waitcnt vmcnt(0)
    buffer_store_dword v14, v123, s[8:11], s43 offen sc1
    s_add_u32 s42, s42, 98304
    s_add_u32 s43, s43, 4096""")
    loop_end(f'{p}_w1')
    k.label(f'{p}_w2')
    pf_setup(k, 50, 2, 0, cfg)
    k('v_lshlrev_b32 v13, 7, v1')
    k.label(f'{p}_w2_loop')
    k(f's_add_u32 s43, s43, 4096')
    k(f's_min_u32 s43, s43, {FQK + 63*4096:#x}')
    k(f's_cmp_eq_u32 s22, 0\ns_cbranch_scc1 {p}_w2_go\ns_cmp_lg_u32 s22, 1\ns_cbranch_scc1 {p}_w2_n1\ns_sub_u32 s44, s43, 4096')
    poll_flag(k, f'{p}_w2_f1', 122, 's44', 16, fail, sleep=2)
    k(f's_mul_i32 s28, s20, 24576\ns_add_u32 s28, s28, {QF + 12288 + 786432:#x}')
    for j in range(3):
        k(f's_mov_b32 m0, {KXB + 16384 + 4096*j}\ns_add_u32 s29, s28, {4096*j}')
        for i in range(4): k(f'buffer_load_dwordx4 v2, s[8:11], s29 offen offset:{1024*i} sc1 lds')
    k.label(f'{p}_w2_n1')
    poll_flag(k, f'{p}_w2_fl', 122, 's43', 16, fail, sleep=2)
    k.label(f'{p}_w2_go')
    main(f'{p}_w2', 2)
    loop_end(f'{p}_w2')
    k.label(f'{p}_w3')
    k(f"""
    s_cmp_eq_u32 s20, {cfg.get('ref1', 0)}
    s_cselect_b32 s28, {cfg.get('nl', 16)}, 0
    v_cmp_gt_u32 vcc, s28, v1
    v_mul_u32_u24 v14, {cfg.get('lstride', 256)}, v1
    v_add_u32 v14, {HU1:#x}, v14
    v_mov_b32 v12, {BIG:#x}
    v_cndmask_b32 v123, v12, v14, vcc
    v_mov_b32 v15, -1
    v_lshlrev_b32 v13, 7, v1""")
    pf_setup(k, 50, 2, 1, cfg)
    k.label(f'{p}_w3_loop')
    main(f'{p}_w3', 3)
    loop_end(f'{p}_w3')
    for f in slows: f()

def gen_z(k, p, end, fail, cfg):
    keys = [('v', t, ks) for ks in range(10) for t in range(3)] + [('o', ci, ks) for ci in range(10) for ks in range(3)]
    l1 = [('v', 0, 8), ('v', 0, 9), ('v', 1, 8), ('v', 2, 8), ('v', 1, 9)]
    l2 = [('o', 1, 2), ('o', 3, 0), ('o', 4, 1), ('o', 5, 2), ('o', 7, 0), ('o', 8, 1), ('o', 9, 2)]
    wm = Wmap(keys, 8, set(l1 + l2))
    role_common(k, ('Wv', 'Wo'))
    gen_loader(k, 'VO', True, wm)
    ustamp(k, cfg, 5)
    k(f'v_cmp_ne_u32 vcc, 0, v20\ns_cbranch_vccz {p}_sl')
    rot_check(k, 23)
    sel_from(k, cfg, 20)
    k(f's_branch {p}_sk')
    k.label(f'{p}_sl')
    load_sel(k, cfg)
    k.label(f'{p}_sk')
    MEMB = 98304; VT = MEMB + 10240
    RING = [108, 116]
    hu = cfg.get('hu', 1)
    memaddr_setup(k, MEMB)
    def plane(d, c, t):
        k(f"""
        v_mul_u32_u24 v{d}, 768, v{c}
        v_and_b32 v{t}, 1, v{c}
        v_lshl_add_u32 v{d}, v{t}, 5, v{d}
        v_lshrrev_b32 v{t}, 1, v{c}
        v_lshl_add_u32 v{d}, v{t}, 7, v{d}""")
    k('v_and_b32 v11, 15, v1\nv_lshrrev_b32 v16, 4, v1\nv_and_b32 v17, 3, v1')
    plane(12, 16, 18); plane(14, 17, 18)
    k(f"""
    v_lshl_add_u32 v12, v11, 2, v12
    s_mul_i32 s28, s21, 192
    s_add_u32 s28, s28, {VT}
    v_add_u32 v12, s28, v12
    v_lshl_add_u32 v14, v16, 6, v14
    v_bfe_u32 v18, v1, 2, 2
    v_lshl_add_u32 v14, v18, 3, v14
    v_add_u32 v14, {VT}, v14
    v_lshlrev_b32 v15, 4, v11
    v_lshrrev_b32 v18, 1, v16
    v_lshl_add_u32 v15, v18, 3, v15
    v_and_b32 v18, 1, v16
    v_lshl_add_u32 v15, v18, 16, v15
    s_lshl_b32 s28, s20, 8
    s_lshl_b32 s42, s21, 14
    s_add_u32 s42, s42, s28
    s_add_u32 s42, s42, {ZM:#x}
    v_lshlrev_b32 v13, 7, v1
    s_add_u32 s30, s21, 15""")
    pf_setup(k, 44, 3, 's30', cfg)
    k(f"""
    s_mov_b32 s22, 0
    s_cmp_eq_u32 s21, 0
    s_cbranch_scc1 {p}_w0_loop
    s_cmp_eq_u32 s21, 1
    s_cbranch_scc1 {p}_w1_loop
    s_cmp_eq_u32 s21, 2
    s_cbranch_scc1 {p}_w2_loop
    s_branch {p}_w3_loop""")
    slows = []
    for w in range(4):
        pp = f'{p}_w{w}'
        k.label(f'{pp}_loop')
        for i in range(52): k(f'v_mov_b32 v{56+i}, 0')
        for i, key in enumerate(l1[:2]):
            for f in wload8(wm, key): k.lds(f(RING[i]))
        k('s_sub_u32 s46, s22, 1')
        region(k, 40, 's46')
        zregion(k, 43, 42)
        k(f's_cmp_lt_u32 s22, s54\ns_cselect_b32 s45, {XN:#x}, s44')
        for pr in range(1, 5): k(f's_add_u32 s{47+pr}, s43, {131072*pr}')
        k.wl_all()
        if hu and w < cfg.get('nref2', 1):
            k('s_sub_u32 s46, s22, 1')
            delay(k, cfg.get('zpre', 0))
            hu_wait(k, pp, HU2, 's46', 52 - 4 * (w == 0) * 8, fail, cfg, w)
            delay(k, cfg.get('d2', 0))
        k('s_barrier')
        if cfg.get('trace'):
            stamp(k, cfg, 4)
            if not cfg.get('hprof'): k('s_memtime s[66:67]')
        wreg = {key: R(wm.loc[key], 8) for key in wm.loc}
        l1r = [RING[0], RING[1], 16, 24, RING[0]]
        for key, r in zip(l1, l1r): wreg[key] = V(r, 8)
        smt = lambda t, ks: f'{SM} {V(56+4*t,4)}, {V(16+4*ks,4)}, {wreg[("v",t,ks)]}, v10'
        rest = [ks for ks in range(8) if ks not in (w, w + 4)]
        fa, fb = rest[:3], rest[3:]
        slows.append(mem_front(k, pp, w, fail, cfg, [smt(t, ks) for ks in (w, w + 4, fa[0]) for t in range(3)], list(range(56, 68))))
        stamp(k, cfg, 0)
        o0 = [8, fb[0], 9, fb[1], fb[2]]
        o1 = [fb[0], fb[1], 8, fb[2], 9]
        mats = []; items = []; idx = {}; ev = []
        own3 = 7 + w if w in (1, 2) else None
        for ks in o0:
            if ks != own3: items.append(dict(id=('A', ks), kind='n', lds=True, fn=f'ds_read_b128 {V(16+4*ks,4)}, v9 offset:{1024*ks}'))
        for ks in fa[1:]:
            for t in range(3): mats.append((smt(t, ks), []))
        for ks in o0:
            idx[('v', 0, ks)] = len(mats); mats.append((smt(0, ks), [('A', ks)] if ks != own3 else []))
        sq = [(t, ks) for ks in o1 for t in (1, 2)]
        sq = sq[:-6] + sq[-6::2] + sq[-5::2]
        for (t, ks) in sq:
            key = ('v', t, ks)
            idx[key] = len(mats); mats.append((smt(t, ks), [('W',) + key + (1,)] if key in l1[2:] else []))
        n1 = len(mats)
        for key, r, g_ in zip(l1[2:], l1r[2:], (5, 7, idx[l1[0]])):
            for h_, f in enumerate(wload8(wm, key)):
                ev.append((g_, dict(id=('W',) + key + (h_,), kind='n', lds=True, fn=f(r))))
        ends = [idx[('v', 0, o0[-1])], n1 - 4, n1 - 1]
        items.append(dict(id=('p', 0, 0), kind='v', fn='v_add_f32 v56, v56, v58', states=(ends[0], 8), after=ends[0]))
        items.append(dict(id=('p', 0, 5), kind='v', fn='v_add_f32 v57, v57, v59'))
        items.append(dict(id=('p', 0, 1), kind='v', fn='v_cvt_pk_bf16_f32 v124, v56, v57'))
        ev.append((ends[0] + 7, dict(id=('pw', 0), kind='n', lds=True, fn='ds_write_b32 v12, v124', order=[('p', 0, 1)])))
        items.append(dict(id=('p', 1, 0), kind='v', fn='v_pk_add_f32 v[60:61], v[60:61], v[62:63]', states=(ends[1], 8), after=n1))
        items.append(dict(id=('p', 1, 1), kind='v', fn='v_cvt_pk_bf16_f32 v125, v60, v61'))
        items.append(dict(id=('p', 2, 0), kind='v', fn='v_pk_add_f32 v[64:65], v[64:65], v[66:67]', states=(ends[2], 8)))
        items.append(dict(id=('p', 2, 1), kind='v', fn='v_cvt_pk_bf16_f32 v126, v64, v65'))
        free = lambda a_, b_: max(idx.get(('v', 2, ks), 0) for ks in (a_, b_))
        dst = sorted([(idx[l1[1]], RING[1]), (idx[l1[2]], 16), (idx[l1[3]], 24), (idx[l1[4]], RING[0]), (free(4, 5), 32), (free(6, 7), 40), (free(8, 9), 48)])
        late2 = []
        for n_, (key, (g_, r)) in enumerate(zip(l2, dst)):
            wreg[key] = V(r, 8)
            for h_, f in enumerate(wload8(wm, key)):
                it = dict(id=('W',) + key + (h_,), kind='n', lds=True, fn=f(r))
                if n_ < 3: ev.append((g_, it))
                else: late2.append(it)
        if cfg.get('tb', 0) and w == 0:
            ev.append((2, dict(id='tb0', kind='n', fn=f's_add_u32 s28, s40, {0x300000 - 0x20000:#x}')))
            ev.append((2, dict(id='tb1', kind='n', fn=f's_min_u32 s28, s28, {WS_BYTES - 0x60000:#x}')))
            ev.append((3, dict(id='tb2', kind='n', fn='buffer_load_dword v127, off, s[8:11], s28')))
        if cfg.get('pf', 1) and w >= 1:
            ev.append((3, dict(id='pf', kind='n', fn='buffer_load_dword v127, v13, s[8:11], s45 offen sc1')))
            ev.append((3, dict(id='pf2', kind='n', fn='s_add_u32 s44, s44, 1310720')))
            for i_, t_ in enumerate(wrap('s44', UF, 1310720).split('\n')): ev.append((4, dict(id=('pfw', i_), kind='n', fn=t_)))
        ev.append((n1 + 50, dict(id=('pw', 1), kind='n', lds=True, fn='ds_write2_b32 v12, v125, v126 offset0:16 offset1:32', order=[('p', 2, 1)])))
        ev.sort(key=lambda x: x[0])
        for g_, it in ev:
            it['after'] = min(g_, n1); items.append(it)
        sched(k, mats, items, [True] * n1, pre_n=1)
        k.wl_all()
        k('s_barrier')
        stamp(k, cfg, 1)
        mats = []; items = []
        for ks in range(3):
            for u in range(2):
                items.append(dict(id=('AV', ks, u), kind='n', lds=True, fn=f'ds_read_b64_tr_b16 {V(56+4*ks+2*u,2)}, v14 offset:{(64*ks+8*u)*4}'))
        for it in items: it['t'] = k.lds(it['fn'])
        tks = {ks: items[2 * ks + 1]['t'] for ks in range(3)}
        items = []
        for pr in range(5):
            for ci in (2 * pr, 2 * pr + 1):
                for ks in range(3):
                    pre_ = f's_waitcnt lgkmcnt({4 - 2*ks})\n' if pr == 0 and ci == 0 else ''
                    mats.append((pre_ + f'{SM} {V(68+4*ci,4)}, {V(56+4*ks,4)}, {wreg[("o",ci,ks)]}, v10', [('W', 'o', ci, ks, 1)] if ('o', ci, ks) in l2[3:] else []))
            a = 68 + 8 * pr; e_ = 6 * pr + 5
            if pr >= cfg.get('zpk', 4):
                items.append(dict(id=('q', pr, 0), kind='v', fn=f'v_pk_add_f32 {V(a,2)}, {V(a,2)}, {V(a+2,2)}', states=(e_ - 3, 8), after=e_ - 2))
                items.append(dict(id=('q', pr, 2), kind='v', fn=f'v_cvt_pk_bf16_f32 v{a+2}, v{a}, v{a+1}'))
                items.append(dict(id=('q', pr, 1), kind='v', fn=f'v_pk_add_f32 {V(a+4,2)}, {V(a+4,2)}, {V(a+6,2)}', states=(e_, 8)))
            else:
                items.append(dict(id=('q', pr, 0), kind='v', fn=f'v_add_f32 v{a}, v{a}, v{a+2}', states=(e_ - 3, 8), after=e_ - 2))
                items.append(dict(id=('q', pr, 6), kind='v', fn=f'v_add_f32 v{a+1}, v{a+1}, v{a+3}'))
                items.append(dict(id=('q', pr, 2), kind='v', fn=f'v_cvt_pk_bf16_f32 v{a+2}, v{a}, v{a+1}'))
                items.append(dict(id=('q', pr, 1), kind='v', fn=f'v_add_f32 v{a+4}, v{a+4}, v{a+6}', states=(e_, 8)))
                items.append(dict(id=('q', pr, 7), kind='v', fn=f'v_add_f32 v{a+5}, v{a+5}, v{a+7}'))
            items.append(dict(id=('q', pr, 3), kind='v', fn=f'v_cvt_pk_bf16_f32 v{a+3}, v{a+4}, v{a+5}'))
            items.append(dict(id=('q', pr, 4), kind='v2', fn=f'v_permlane16_swap_b32 v{a+2}, v{a+3}', states=(('q', pr, 3), 2)))
            items.append(dict(id=('q', pr, 5), kind='n', fn=f'buffer_store_dwordx2 {V(a+2,2)}, v15, s[8:11], {"s43" if pr == 0 else "s%d" % (47+pr)} offen sc1', order=[('q', pr, 4)]))
        for pr in range(4):
            i_ = [j for j, it in enumerate(items) if it['id'] == ('q', pr, 4)][0]
            j_ = [j for j, it in enumerate(items) if it['id'] == ('q', pr + 1, 0)][0]
            items.insert(j_, items.pop(i_))
        for it in late2: it['after'] = 2
        items = late2 + items
        k.ld = k.lc
        sched(k, mats, items, [True] * 30)
        stamp(k, cfg, 2)
        trace_out(k, cfg, 56)
        k(f"""
        s_add_u32 s22, s22, 1
        s_cmp_lt_u32 s22, 64
        s_cbranch_scc1 {pp}_loop
        s_branch {end}""")
    for f in slows: f()

def gen_c(k, p, end, fail, cfg):
    load_sel(k, cfg)
    RED = 0
    k(f"""
    v_lshlrev_b32 v2, 4, v1
    v_and_b32 v4, 7, v1
    v_bfe_u32 v5, v1, 3, 1
    v_lshrrev_b32 v6, 4, v1
    s_mul_i32 s28, s21, 5120
    v_mul_u32_u24 v7, 640, v5
    v_lshl_add_u32 v7, v6, 7, v7
    v_lshl_add_u32 v7, v4, 4, v7
    v_add_u32 v7, s28, v7""")
    for t in range(4):
        k(f'v_add_u32 v{16+t}, {1280*t}, v7')
    k(f"""
    v_lshl_add_u32 v7, v5, 2, v6
    v_mul_u32_u24 v7, 640, v7
    v_lshl_add_u32 v7, v4, 4, v7
    s_add_u32 s28, s28, 512
    v_add_u32 v20, s28, v7""")
    for t in range(5): v_mbmap(k, 16 + t, 7)
    k(f"""
    s_lshl_b32 s28, s21, 10
    v_lshlrev_b32 v21, 7, v4
    v_add_u32 v21, s28, v21
    v_lshlrev_b32 v28, 5, v6
    v_bfe_u32 v7, v1, 2, 1
    v_lshl_add_u32 v28, v7, 4, v28
    v_lshl_add_u32 v28, v5, 9, v28
    v_bfe_u32 v7, v1, 1, 1
    v_lshl_add_u32 v28, v7, 8, v28
    v_and_b32 v7, 1, v1
    v_lshl_add_u32 v28, v7, 3, v28
    v_lshlrev_b32 v22, 2, v1
    s_lshl_b32 s28, s20, 8
    s_add_u32 s28, s28, {M_OFF}
    v_add_u32 v22, s28, v22""")
    v_mbmap(k, 22, 7)
    k(f"""
    v_mov_b32 v7, {BIG:#x}
    v_cmp_ne_u32 s[44:45], 0, v5
    s_nop 1
    s_lshl_b32 s28, s21, 10
    v_add_u32 v23, s28, v2
    s_lshl_b32 s42, s20, 15
    s_lshl_b32 s28, s21, 13
    s_add_u32 s42, s42, s28
    s_add_u32 s42, s42, {UF:#x}
    s_lshl_b32 s48, s20, 14
    s_lshl_b32 s28, s21, 11
    s_add_u32 s48, s48, s28
    s_add_u32 s48, s48, {ZM:#x}
    v_mul_u32_u24 v26, {cfg.get('lstride', 256)}, v1
    v_add_u32 v26, {HU2:#x}, v26
    s_cmp_eq_u32 s20, {cfg.get('ref2', 0)}
    s_cselect_b32 s28, {cfg.get('nl', 16)}, 0
    s_cmp_eq_u32 s21, {cfg.get('huwave', 1)}
    s_cselect_b32 s28, s28, 0
    v_cmp_gt_u32 vcc, s28, v1
    s_nop 1
    v_cndmask_b32 v26, v7, v26, vcc
    s_mov_b32 s46, {FU:#x}
    s_mov_b32 s22, 0""")
    hupos = cfg.get('hupos', 9)
    hu = cfg.get('hu', 0 if cfg.get('hu') == 0 else 1)
    reg = lambda j: 64 + 4 * j
    def ld(j):
        if j < 2: k(f'buffer_load_dwordx4 {V(reg(j),4)}, v2, s[8:11], s43 offen offset:{1024*j} sc1')
        else:     k(f'buffer_load_dwordx4 {V(reg(j),4)}, v{14+j}, s[8:11], s40 offen sc1')
    UB = 8192
    k(f"""
    v_and_b32 v21, 31, v1
    v_lshlrev_b32 v21, 7, v21
    v_mov_b32 v25, 0
    s_lshl_b32 s28, s21, 13
    s_sub_u32 s42, s42, s28
    s_add_u32 s28, s28, {UB}
    v_add_u32 v3, s28, v2
    s_mul_i32 s50, s21, 11264
    s_min_u32 s50, s50, {21*1024}
    s_add_u32 s42, s42, s50
    s_add_u32 s50, s50, {UB}""")
    k.label(f'{p}_loop')
    zregion(k, 43, 48)
    region(k, 40, 's22')
    k(f'v_mov_b32 v27, s22\ns_cmp_eq_u32 s21, 3\ns_cbranch_scc1 {p}_w3\n' + ('' if cfg.get('ctrig', 1) else 's_waitcnt vmcnt(0)\n') + 's_barrier')
    for j in range(3):
        k(f's_add_u32 m0, s50, {4096*j}\ns_add_u32 s28, s42, {4096*j}')
        for i in range(4 if j < 2 else 3):
            k(f'buffer_load_dwordx4 v2, s[8:11], s28 offen offset:{1024*i} sc1 lds')
    k('s_add_u32 s42, s42, 1310720')
    k(wrap('s42', UF, 1310720))
    k('s_waitcnt vmcnt(0)')
    if cfg.get('trace'): stamp(k, cfg, 0)
    k(f's_branch {p}_go')
    k.label(f'{p}_w3')
    k(f's_cmp_lg_u32 s22, 0\ns_cbranch_scc1 {p}_n0')
    poll_flag(k, f'{p}_f00', 21, 's46', 24, fail, sleep=1)
    k(f's_add_u32 s47, s56, {FKM:#x}\nbuffer_load_dword v24, v21, s[8:11], s47 offen sc1\ns_barrier\ns_add_u32 s46, s46, 4096')
    k(f's_waitcnt vmcnt(0)\nv_cmp_eq_u32 vcc, 0, v24\ns_cbranch_vccz {p}_go')
    poll_flag(k, f'{p}_f0', 21, 's47', 24, fail, sleep=1)
    k(f's_branch {p}_go')
    k.label(f'{p}_n0')
    k('s_sub_u32 s47, s22, 1')
    if cfg.get('ctrig', 1): hu_wait(k, p + '_g', HU2, 's47', 108, fail, dict(cfg, depth=cfg.get('tdepth', 2)))
    k(f'v_cmp_eq_u32 vcc, 0, v25\ns_cbranch_vccz {p}_fk')
    poll_flag(k, f'{p}_fl', 21, 's46', 24, fail, sleep=2)
    k(f's_branch {p}_tg')
    k.label(f'{p}_fk')
    for i in range(cfg.get('textra', 1)):
        k('buffer_load_dword v109, v108, s[8:11], s52 offen sc1\ns_waitcnt vmcnt(0)')
    k.label(f'{p}_tg')
    k(f"""
    s_barrier
    s_add_u32 s46, s46, 4096
    buffer_load_dword v25, v21, s[8:11], s46 offen sc1
    s_add_u32 s28, s40, {0x100000 - 0x20000:#x}
    {'buffer_load_dword v29, off, s[8:11], s28' if cfg.get('tb', 0) else ''}
    """)
    hu_wait(k, p, HU1, 's22', 108, fail, cfg)
    k.label(f'{p}_go')
    k('s_barrier')
    stamp(k, cfg, 4)
    def cp(pos):
        if pos in cfg.get('cprof', ()):
            i_ = cfg['cprof'].index(pos); k(f's_memtime s[{62+2*i_}:{63+2*i_}]')
    if cfg.get('cprof'): k('s_memtime s[60:61]')
    k('s_mov_b32 s39, 1')
    def rnd(first):
        for j in range(7):
            ld(j)
            if first and j in cfg.get('cbar', (1, 2, 3, 4, 5)): k('s_barrier')
        if not first:
            k('s_mov_b64 exec, -1')
            tmo(k, fail)
        extra = 0
        def huf(pos):
            nonlocal extra
            if first and hu and pos == hupos:
                k('buffer_store_dword v27, v26, s[8:11], s52 offen sc1'); extra += 1
            if first and hu and pos + 20 == hupos:
                k('s_barrier')
                k('buffer_store_dword v27, v26, s[8:11], s52 offen sc1'); extra += 1
        huf(-1)
        if first:
            for i in range(8): k(f'ds_read_b128 {V(32+4*i,4)}, v3 offset:{1024*i}')
        k(f's_waitcnt vmcnt({5+extra}) lgkmcnt(0)')
        huf(0)
        if first: cp(0)
        maxtree(k, 24, list(range(64, 72)))
        for t in range(5):
            k(f's_waitcnt vmcnt({4-t+extra})')
            huf(t + 1)
            if first: cp(t + 1)
            b = 72 + 4 * t
            a0, a1 = (32 + 8 * t, 36 + 8 * t) if t < 4 else (64, 68)
            k(f'{MF} v[8:11], {V(a0,4)}, {V(b,4)}, {"0" if t == 0 else "v[8:11]"}')
            k(f'v_max3_u32 v24, v24, v{b}, v{b+1}')
            k(f'{MF} v[12:15], {V(a1,4)}, {V(b,4)}, {"0" if t == 0 else "v[12:15]"}')
            k(f'v_max3_u32 v24, v24, v{b+2}, v{b+3}')
        k('v_cmp_eq_u32 vcc, -1, v24')
    def fold():
        k.nop(6)
        for i in range(4):
            k(f'v_add_f32_dpp v{8+i}, v{12+i}, v{8+i} row_ror:8 row_mask:0xf bank_mask:0xf')
        k(f'ds_write_b128 v23, v[8:11] offset:{RED}')
    rnd(True)
    fold()
    cp(6)
    k(f's_cbranch_vccnz {p}_retry')
    k.label(f'{p}_ok')
    stamp(k, cfg, 1)
    if hu and hupos == 7: k('buffer_store_dword v27, v26, s[8:11], s52 offen sc1')
    if hu and hupos == 9: k('s_barrier\nbuffer_store_dword v27, v26, s[8:11], s52 offen sc1')
    k(f"""
    s_cmp_lg_u32 s21, 0
    s_waitcnt lgkmcnt(0)
    s_barrier""")
    cp(7)
    k(f"""
    s_cbranch_scc1 {p}_nx
    ds_read_b64 v[96:97], v28 offset:{RED}
    ds_read_b64 v[98:99], v28 offset:{RED + 1024}
    ds_read_b64 v[100:101], v28 offset:{RED + 2048}
    ds_read_b64 v[102:103], v28 offset:{RED + 3072}
    s_waitcnt lgkmcnt(2)
    v_pk_add_f32 v[96:97], v[96:97], v[98:99]
    s_waitcnt lgkmcnt(0)
    v_pk_add_f32 v[100:101], v[100:101], v[102:103]
    v_pk_add_f32 v[96:97], v[96:97], v[100:101]
    v_cvt_pk_bf16_f32 v8, v96, v97
    buffer_store_dword v8, v22, s[8:11], s40 offen sc1""")
    cp(8)
    stamp(k, cfg, 2)
    k.label(f'{p}_nx')
    if hu and hupos == 8: k('buffer_store_dword v27, v26, s[8:11], s52 offen sc1')
    if cfg.get('stamp') is not None: k('s_add_u32 s58, s58, s39')
    if cfg.get('trace'): k('s_mov_b32 s59, s39')
    trace_out(k, cfg, 116)
    k(f"""
    s_add_u32 s22, s22, 1
    s_cmp_lt_u32 s22, 63
    s_cbranch_scc1 {p}_loop""")
    k(f's_branch {end}')
    k.label(f'{p}_retry')
    k('s_mov_b64 exec, vcc')
    rnd(False)
    k(f's_cbranch_vccnz {p}_retry')
    fold()
    k(f's_branch {p}_ok')

def poll_flag(k, lab, vaddr, sreg, tmp, fail, sleep=0, slow=None):
    k('s_mov_b32 s39, 0')
    k.label(lab)
    k(f'buffer_load_dword v{tmp}, v{vaddr}, s[8:11], {sreg} offen sc1')
    tmo(k, fail)
    k(f's_waitcnt vmcnt(0)')
    k(f'v_cmp_eq_u32 vcc, 0, v{tmp}')
    if sleep:
        k(f's_cbranch_vccz {lab}_ok')
        k(f's_sleep {sleep}')
        if slow: k(f's_cmp_ge_i32 s22, {slow[0]}\ns_cbranch_scc1 {lab}\ns_sleep {slow[1]}')
        k(f's_branch {lab}')
        k.label(lab + '_ok')
    else:
        k(f's_cbranch_vccnz {lab}')

def softmax_regs(k, regs, t0):
    n = len(regs)
    k(f'v_max3_f32 v{t0}, v{regs[0]}, v{regs[1]}, v{regs[2]}')
    i = 3
    while i + 1 < n:
        k(f'v_max3_f32 v{t0}, v{t0}, v{regs[i]}, v{regs[i+1]}'); i += 2
    if i < n: k(f'v_max_f32 v{t0}, v{t0}, v{regs[i]}')
    xlane(k, 'v_max_f32', t0, t0 + 1)
    k(f'v_mul_f32 v{t0}, s42, v{t0}')
    for r in regs: k(f'v_fma_f32 v{r}, v{r}, s42, -v{t0}')
    for r in regs: k(f'v_exp_f32 v{r}, v{r}')
    k(f'v_pk_add_f32 {V(t0,2)}, {V(regs[0],2)}, {V(regs[2],2)}')
    for i in range(4, n, 2): k(f'v_pk_add_f32 {V(t0,2)}, {V(t0,2)}, {V(regs[i],2)}')
    k(f'v_add_f32 v{t0}, v{t0}, v{t0+1}')
    xlane(k, 'v_add_f32', t0, t0 + 1)
    k(f'v_rcp_f32 v{t0}, v{t0}')
    k('s_nop 0')
    for i in range(0, n, 2):
        k(f'v_pk_mul_f32 {V(regs[i],2)}, {V(regs[i],2)}, {V(t0,2)} op_sel_hi:[1,0]')

def gen_x(k, p, end, fail, cfg):
    k(f"""
    s_and_b32 s31, s20, 4
    s_add_u32 s31, s31, s21
    s_and_b32 s32, s20, 3
    s_lshl_b32 s30, s31, 2
    s_add_u32 s30, s30, s32
    v_lshlrev_b32 v2, 4, v1
    v_and_b32 v4, 15, v1
    v_lshrrev_b32 v5, 4, v1
    s_lshl_b32 s28, s30, 7
    v_mov_b32 v6, s28
    v_mov_b32 v7, {BIG:#x}
    v_cmp_gt_u32 vcc, {FW}, v1
    v_lshl_add_u32 v8, v1, 2, v6
    s_nop 0
    v_cndmask_b32 v8, v7, v8, vcc
    v_mov_b32 v9, 1
    v_and_b32 v10, 7, v1
    v_lshlrev_b32 v10, 4, v10
    v_lshl_add_u32 v10, v5, 7, v10
    v_lshlrev_b32 v11, 4, v4
    v_lshl_add_u32 v11, v5, 3, v11
    v_cmp_gt_u32 vcc, 2, v5
    s_nop 1
    v_cndmask_b32 v11, v7, v11, vcc
    v_mov_b32 v7, 0xff800000
    v_cndmask_b32_e64 v16, v7, 0, vcc
    v_mov_b32 v17, v16
    v_mov_b32 v18, v16
    v_mov_b32 v19, v16
    v_lshlrev_b32 v3, 2, v5""")
    for r in range(4):
        k(f"""
        v_add_u32 v20, {r}, v3
        v_cmp_le_u32 vcc, v20, v4
        s_nop 1
        v_cndmask_b32_e64 v{12+r}, v7, 0, vcc""")
    k(f"""
    v_and_b32 v23, 1, v1
    v_mul_u32_u24 v23, {FP1 - FQK:#x}, v23
    v_add_u32 v23, v23, v6
    v_add_u32 v22, 4096, v23
    v_add_u32 v21, {FKM - FQK:#x}, v6
    v_add_u32 v21, s56, v21
    v_cmp_gt_u32 vcc, 32, v1
    s_mul_i32 s45, s30, 3072
    s_add_u32 s45, s45, {KM:#x}
    v_cndmask_b32 v22, v21, v22, vcc
    v_mov_b32 v62, v21
    s_mul_i32 s33, s30, 24576
    s_add_u32 s33, s33, {QF:#x}
    s_lshl_b32 s47, s30, 11
    s_add_u32 s47, s47, {PX:#x}
    s_lshl_b32 s46, s31, 11
    s_lshl_b32 s28, s32, 8
    s_add_u32 s46, s46, s28
    s_add_u32 s46, s46, {PX + 65536:#x}
    s_lshl_b32 s44, s22, 12
    s_add_u32 s44, s44, {FQK:#x}
    s_mul_i32 s28, s22, 98304
    s_add_u32 s45, s45, s28
    s_and_b32 s28, s22, {RING2 - 1}
    s_mul_i32 s28, s28, 786432
    s_add_u32 s33, s33, s28
    s_mul_i32 s28, s22, 81920
    s_add_u32 s46, s46, s28
    s_add_u32 s47, s47, s28
    s_sub_u32 s27, s26, 1
    s_cmp_eq_u32 s22, s27
    s_cselect_b64 vcc, -1, 0
    v_cndmask_b32 v22, v22, v62, vcc
    s_mov_b32 s42, {SCL!r}
    v_mov_b32 v50, 0
    v_mov_b32 v51, 0""")
    RG = lambda st, i: V(64 + i, 4) if st == 0 else A(i, 4)
    def qkload(st):
        for j in range(6):
            k(f's_add_u32 s28, s33, {4096*j}')
            for i in range(4):
                k(f'buffer_load_dwordx4 {RG(st, 16*j+4*i)}, v2, s[8:11], s28 offen offset:{1024*i} sc1')
        k('s_add_u32 s33, s33, 786432')
        k(wrap('s33', QF, 786432, RING2))
    poll_flag(k, f'{p}_f1', 23, 's44', 20, fail, sleep=4)
    qkload(0)
    k('v_mov_b32 v63, 0\ns_waitcnt vmcnt(0)')
    for st in range(2):
        Q = lambda qt, kk: RG(st, 4 * (6 * qt + kk))
        Kf = lambda kt, kk: RG(st, 48 + 4 * (6 * kt + kk))
        k.label(f'{p}_loop{st}')
        stamp(k, cfg, 0)
        k('v_cmp_eq_u32 vcc, 0, v63')
        for kk in range(6):
            k(f'{MF} v[24:27], {Kf(0,kk)}, {Q(0,kk)}, {"v[12:15]" if kk == 0 else "v[24:27]"}')
            k(f'{MF} v[32:35], {Kf(0,kk)}, {Q(1,kk)}, {"0" if kk == 0 else "v[32:35]"}')
            k(f'{MF} v[36:39], {Kf(1,kk)}, {Q(1,kk)}, {"v[12:15]" if kk == 0 else "v[36:39]"}')
        k(f's_cbranch_vccz {p}_go{st}')
        poll_flag(k, f'{p}_f2{st}', 22, 's44', 20, fail, sleep=1, slow=(58, cfg.get('slowx', 3)))
        k.label(f'{p}_go{st}')
        stamp(k, cfg, 1)
        for kk in range(6):
            k(f'buffer_load_dwordx4 {V(160+4*kk,4)}, v10, s[8:11], s45 offen offset:{512*kk} sc1')
        def mm(x):
            for kk in range(6):
                k(f's_waitcnt vmcnt({5-kk+x})')
                k(f'{MF} v[40:43], {V(160+4*kk,4)}, {Q(1,kk)}, {"v[16:19]" if kk == 0 else "v[40:43]"}')
                k(f'{MF} v[28:31], {V(160+4*kk,4)}, {Q(0,kk)}, {"v[16:19]" if kk == 0 else "v[28:31]"}')
        if st == 0:
            k(f's_cmp_lg_u32 s22, s27\ns_cbranch_scc1 {p}_nq')
            mm(0)
            k(f's_branch {p}_nq2')
            k.label(f'{p}_nq')
        qkload(1 - st)
        mm(24)
        if st == 0: k.label(f'{p}_nq2')
        k.nop(7)
        softmax_regs(k, list(range(32, 44)), 20)
        for i in range(6): k(f'v_cvt_pk_bf16_f32 v{56+i}, v{32+2*i}, v{33+2*i}')
        k('buffer_store_dwordx4 v[56:59], v2, s[8:11], s47 offen offset:1024 sc1\nbuffer_store_dwordx2 v[60:61], v11, s[8:11], s46 offen offset:1024 sc1')
        softmax_regs(k, list(range(24, 32)), 44)
        k(f"""
        v_cvt_pk_bf16_f32 v48, v24, v25
        v_cvt_pk_bf16_f32 v49, v26, v27
        v_cvt_pk_bf16_f32 v52, v28, v29
        v_cvt_pk_bf16_f32 v53, v30, v31
        buffer_store_dwordx4 v[48:51], v2, s[8:11], s47 offen sc1
        buffer_store_dwordx2 v[52:53], v11, s[8:11], s46 offen sc1
        s_add_u32 s28, s44, {FPX - FQK:#x}
        s_add_u32 s28, s28, s56
        s_add_u32 s44, s44, 4096
        buffer_load_dword v63, v22, s[8:11], s44 offen sc1
        s_add_u32 s45, s45, 98304
        s_add_u32 s46, s46, 81920
        s_add_u32 s47, s47, 81920
        s_waitcnt vmcnt(1)
        buffer_store_dword v9, v8, s[8:11], s28 offen sc1""")
        stamp(k, cfg, 2)
        k('s_add_u32 s22, s22, 1\ns_waitcnt vmcnt(1)')
        if st == 0: k(f's_cmp_ge_u32 s22, s26\ns_cbranch_scc1 {end}')
    k(f's_branch {p}_loop0')

def gen_o(k, p, end, fail, cfg):
    k(f's_load_dwordx2 s[28:29], s[0:1], {KA["x"]}')
    k('s_waitcnt lgkmcnt(0)')
    k.srd(12, 28, 2048 * 1280)
    k(f"""
    v_lshlrev_b32 v2, 4, v1
    v_and_b32 v4, 7, v1
    v_lshlrev_b32 v4, 7, v4
    s_lshl_b32 s28, s21, 10
    v_add_u32 v4, s28, v4
    v_and_b32 v5, 15, v1
    v_lshrrev_b32 v6, 4, v1
    v_mul_u32_u24 v5, 1280, v5
    v_lshl_add_u32 v5, v6, 3, v5
    s_and_b32 s30, s21, 1
    s_mul_i32 s30, s30, 20480
    s_lshr_b32 s29, s21, 1
    s_lshl_b32 s28, s20, 1
    s_add_u32 s29, s29, s28
    s_lshl_b32 s28, s29, 6
    s_add_u32 s28, s28, s30
    v_add_u32 v5, s28, v5
    s_lshl_b32 s28, s29, 10
    s_add_u32 s28, s28, s30
    v_add_u32 v13, s28, v2
    s_lshl_b32 s28, s21, 13
    v_add_u32 v6, s28, v2
    s_lshl_b32 s28, s21, 11
    v_add_u32 v7, s28, v2
    s_lshl_b32 s50, s20, 16
    s_add_u32 s50, s50, s28
    s_add_u32 s50, s50, {ZM:#x}
    s_mov_b32 s48, 0xffff0000""")
    flag_addr(k, 14)
    NG = 3
    k(f"""
    v_add_u32 v8, 0x200000, v4
    v_add_u32 v3, {0x200000 + FU - FPX + NG*4096:#x}, v4
    v_subrev_u32 v3, s56, v3
    v_cmp_gt_u32 vcc, 32, v1
    s_mul_i32 s51, s22, 1310720
    s_lshl_b32 s29, s20, 17
    v_cndmask_b32 v3, v3, v8, vcc
    s_add_u32 s51, s51, s29
    s_lshl_b32 s29, s21, 13
    s_add_u32 s51, s51, s29
    s_add_u32 s51, s51, {UF:#x}
    s_lshl_b32 s43, s22, 12
    s_add_u32 s44, s43, {FU:#x}""")
    def uload():
        for ct in range(4):
            for j in range(2):
                k(f's_add_u32 s29, s51, {32768*ct + 4096*j}')
                for i in range(4):
                    k(f'buffer_load_dwordx4 {A(32*ct+16*j+4*i,4)}, v2, s[8:11], s29 offen offset:{1024*i} sc1')
        k(f's_add_u32 s51, s51, {NG*1310720}')
        k(wrap('s51', UF, 1310720))
    poll_flag(k, f'{p}_f1', 4, 's44', 20, fail, sleep=cfg.get('sl1', 8))
    uload()
    k.label(f'{p}_loop')
    stamp(k, cfg, 0)
    k('s_lshl_b32 s43, s22, 12\ns_add_u32 s43, s43, s56')
    k('s_mul_i32 s45, s22, 40960')
    k('buffer_load_dwordx2 v[16:17], v5, s[12:15], s45 offen')
    k('buffer_load_dwordx2 v[18:19], v5, s[12:15], s45 offen offset:32')
    k(f's_add_u32 s44, s43, {FKM:#x}')
    poll_flag(k, f'{p}_f3', 4, 's44', 20, fail, sleep=3, slow=(58, cfg.get('slowo', 6)))
    zregion(k, 47, 50)
    k('s_mov_b32 s39, 0')
    k.label(f'{p}_z')
    for ct in range(4):
        k(f's_add_u32 s49, s47, {16384*ct}')
        for b in range(2):
            k(f'buffer_load_dwordx4 {V(208+8*ct+4*b,4)}, v2, s[8:11], s49 offen offset:{1024*b} sc1')
    tmo(k, fail)
    k('s_waitcnt vmcnt(0)')
    maxtree(k, 20, list(range(208, 240)))
    k('v_cmp_eq_u32 vcc, -1, v20')
    k(f's_cbranch_vccnz {p}_z')
    k(f"""
    s_add_u32 s44, s43, {FPX - 0x200000:#x}
    s_cmp_lt_u32 s22, {64 - NG}
    s_cselect_b64 vcc, -1, 0
    v_cndmask_b32 v3, v8, v3, vcc
    s_mul_i32 s47, s22, 81920
    s_add_u32 s47, s47, {PX:#x}
    s_lshl_b32 s29, s21, 12
    s_add_u32 s46, s47, s29
    s_add_u32 s46, s46, 65536
    s_lshl_b32 s29, s21, 14
    s_add_u32 s47, s47, s29""")
    poll_flag(k, f'{p}_f2', 3, 's44', 20, fail, sleep=1, slow=(58, cfg.get('slowo', 6)))
    stamp(k, cfg, 1)
    def pxl(n):
        k(f'buffer_load_dwordx4 {V(128+4*n,4)}, v2, s[8:11], {"s47" if n < 16 else "s46"} offen offset:{1024*(n%4)} sc1')
        if n % 4 == 3 and n < 12: k('s_add_u32 s47, s47, 4096')
    UPF = cfg.get('oup', 10)
    for n in range(UPF): pxl(n)
    acc = lambda ct, qt: V(24 + 4 * (4 * (ct >> 1) + 2 * qt + (ct & 1)), 4)
    for n in range(20):
        k(f's_waitcnt vmcnt({min(UPF - 1, 19 - n)})')
        h, qt = n >> 1, n & 1
        for ct in range(4):
            a_ = A(32 * ct + 4 * h, 4) if h < 8 else V(208 + 8 * ct + 4 * (h - 8), 4)
            k(f'{MF} {acc(ct,qt)}, {a_}, {V(128+4*n,4)}, {"0" if h == 0 else acc(ct,qt)}')
            if ct == 0 and n + UPF < 20: pxl(n + UPF)
    k.nop(4)
    for t in (0, 1, 4, 5, 2, 3, 6, 7):
        k(f'ds_write_b128 v6, {V(24+4*t,4)} offset:{1024*t}')
    k("""
    s_waitcnt lgkmcnt(0)
    s_barrier""")
    for c in range(2):
        for i in range(4):
            k(f'ds_read_b128 {V(64+16*c+4*i,4)}, v7 offset:{8192*i + 1024*c}')
    for i in range(4):
        k(f'v_lshlrev_b32 v{24+2*i}, 16, v{16+i}')
        k(f'v_and_b32 v{25+2*i}, s48, v{16+i}')
    k(f's_add_u32 s45, s45, {HH:#x}\ns_add_u32 s44, s43, {FH:#x}')
    for c in range(2):
        b = 64 + 16 * c
        k(f"""
        s_waitcnt lgkmcnt({4 - 4*c})
        v_pk_add_f32 {V(b,2)}, {V(b,2)}, {V(b+4,2)}
        v_pk_add_f32 {V(b+2,2)}, {V(b+2,2)}, {V(b+6,2)}
        v_pk_add_f32 {V(b+8,2)}, {V(b+8,2)}, {V(b+12,2)}
        v_pk_add_f32 {V(b+10,2)}, {V(b+10,2)}, {V(b+14,2)}
        v_pk_add_f32 {V(b,2)}, {V(b,2)}, {V(24+4*c,2)}
        v_pk_add_f32 {V(b+2,2)}, {V(b+2,2)}, {V(26+4*c,2)}
        v_pk_add_f32 {V(b,2)}, {V(b,2)}, {V(b+8,2)}
        v_pk_add_f32 {V(b+2,2)}, {V(b+2,2)}, {V(b+10,2)}
        v_cvt_pk_bf16_f32 v{32+2*c}, v{b}, v{b+1}
        v_cvt_pk_bf16_f32 v{33+2*c}, v{b+2}, v{b+3}""")
    k(f"""
    buffer_store_dwordx4 v[32:35], v13, s[8:11], s45 offen sc1
    s_cmp_ge_u32 s22, {64 - NG}
    s_cbranch_scc1 {p}_last""")
    uload()
    k(f"""
    s_waitcnt vmcnt(32)
    s_barrier
    buffer_store_dword v15, v14, s[8:11], s44 offen sc1""")
    stamp(k, cfg, 2)
    k(f's_add_u32 s22, s22, {NG}\ns_branch {p}_loop')
    k.label(f'{p}_last')
    k(f"""
    s_waitcnt vmcnt(0)
    s_barrier
    buffer_store_dword v15, v14, s[8:11], s44 offen sc1""")
    stamp(k, cfg, 2)
    k(f's_branch {end}')

def mega_epilogue(k, name, cfg):
    k.label(name + '_fail')
    k(f"""
    v_mov_b32 v4, 16
    s_lshl_b32 s28, s25, 8
    s_add_u32 s28, s28, s22
    s_add_u32 s28, s28, 0x10000
    v_mov_b32 v5, s28
    buffer_store_dword v5, v4, s[88:91], 0 offen
    s_endpgm""")
    k.label(name + '_end')
    if cfg.get('stamp') is not None:
        l = k.newlabel('L_nost')
        k(f"""
        s_cmp_ge_u32 s2, 256
        s_cbranch_scc1 {l}
        s_cmp_lg_u32 s21, 0
        s_cbranch_scc1 {l}
        s_memrealtime s[72:73]
        s_memtime s[78:79]
        s_waitcnt lgkmcnt(0)
        s_sub_u32 s78, s78, s76
        s_lshl_b32 s28, s25, 2
        s_add_u32 s28, s28, {STAMPS + 0x4000:#x}
        v_mov_b32 v4, 0
        v_mov_b32 v8, s78
        v_mov_b32 v9, s58
        buffer_store_dword v8, v4, s[8:11], s28 offen
        buffer_store_dword v9, v4, s[8:11], s28 offen offset:1024
        s_lshl_b32 s28, s25, 5
        s_add_u32 s28, s28, {STAMPS:#x}
        v_mov_b32 v4, 0
        v_mov_b32 v8, s60
        v_mov_b32 v9, s62
        v_mov_b32 v10, s64
        v_mov_b32 v11, s66
        v_mov_b32 v12, s68
        v_mov_b32 v13, s70
        v_mov_b32 v14, s72
        v_mov_b32 v15, s74
        buffer_store_dwordx4 v[8:11], v4, s[8:11], s28 offen
        buffer_store_dwordx4 v[12:15], v4, s[8:11], s28 offen offset:16""")
        if cfg.get('dbgv') is not None:
            k(f's_cmp_lg_u32 s25, {cfg["dbgv"]}\ns_cbranch_scc1 {l}\ns_nop 1')
            for i in range(8): k(f'v_subrev_u32 v{8+i}, s74, v{8+i}')
            k('buffer_store_dwordx4 v[8:11], v4, s[88:91], 0 offen offset:32\nbuffer_store_dwordx4 v[12:15], v4, s[88:91], 0 offen offset:48')
        k.label(l)
    k('s_endpgm')

def vid(k):
    k("""
    s_add_u32 s29, s2, s23
    s_sub_u32 s29, s29, 1
    s_lshr_b32 s25, s2, 3
    s_lshl_b32 s25, s25, 2
    s_and_b32 s28, s29, 3
    s_add_u32 s25, s25, s28
    s_and_b32 s28, s29, 4
    s_lshl_b32 s28, s28, 5
    s_add_u32 s25, s25, s28""")

def rot_check(k, v):
    k(f'v_readfirstlane_b32 s28, v{v}\ns_cmp_lg_u32 s28, s23\ns_cbranch_scc1 mega_kernel_redo')

def rot_wait(k, t):
    l = k.newlabel('L_rw')
    k(f'v_mov_b32 v{t}, 140\ns_mov_b32 s39, 0')
    k.label(l)
    k(f'buffer_load_dword v{t+1}, v{t}, s[88:91], 0 offen sc1')
    tmo(k, FAIL)
    k(f's_waitcnt vmcnt(0)\nv_cmp_eq_u32 vcc, 0, v{t+1}\ns_cbranch_vccnz {l}')
    rot_check(k, t + 1)

def gen_mega_kernel(k, name, cfg):
    mega_prologue(k, name)
    dbg_srd(k)
    k(f"""
    s_getreg_b32 s23, hwreg(HW_REG_XCC_ID)
    s_sub_u32 s23, s23, s2
    s_add_u32 s23, s23, {cfg.get('rotbias', 0)}
    s_and_b32 s23, s23, 7
    s_add_u32 s23, s23, 1
    s_add_u32 s28, s2, s21
    s_cmp_lg_u32 s28, 0
    s_cbranch_scc1 {name}_disp
    v_mov_b32 v4, 140
    v_mov_b32 v5, s23
    buffer_store_dword v5, v4, s[88:91], 0 offen sc1
    s_waitcnt vmcnt(0)
    s_branch {name}_disp""")
    k.label(name + '_redo')
    k('s_mov_b32 s23, s28\ns_waitcnt vmcnt(0) lgkmcnt(0)\ns_barrier')
    k.label(name + '_disp')
    vid(k)
    if cfg.get('swap', (104, 160, 24)):
        a, b, n = cfg.get('swap', (104, 160, 24))
        k(f"""
        s_sub_u32 s28, s25, {a}
        s_sub_u32 s29, s25, {b}
        s_add_u32 s30, s28, {b}
        s_add_u32 s31, s29, {a}
        s_cmp_lt_u32 s28, {n}
        s_cselect_b32 s25, s30, s25
        s_cmp_lt_u32 s29, {n}
        s_cselect_b32 s25, s31, s25""")
    if cfg.get('stamp') is not None:
        for i in range(60, 76): k(f's_mov_b32 s{i}, 0')
        ustamp(k, cfg, 7)
        k('s_memtime s[76:77]')
    E_, F_ = name + '_end', name + '_fail'
    G3 = name + '_g3'
    k(f"""
    s_mov_b32 s22, 0
    s_mov_b32 s24, 1
    s_and_b32 s20, s25, 31
    s_cmp_lt_u32 s25, 32
    s_cbranch_scc1 {name}_h
    s_cmp_lt_u32 s25, 64
    s_cbranch_scc1 {name}_z
    s_cmp_lt_u32 s25, 80
    s_cbranch_scc1 {name}_c0
    s_sub_u32 s30, s25, 80
    s_cmp_lt_u32 s25, 128
    s_cbranch_scc1 {name}_il
    s_cmp_lt_u32 s25, 192
    s_cbranch_scc1 {name}_vu0
    s_cmp_lt_u32 s25, 224
    s_cbranch_scc1 {name}_qk
    s_sub_u32 s30, s25, 176
    s_branch {name}_il""")
    k.label(name + '_c0')
    k('s_sub_u32 s30, s25, 64')
    gen_init_x(k, name + '_ix')
    k(f's_sub_u32 s20, s25, 64\ns_branch {name}_c')
    k.label(name + '_il')
    gen_init_ln(k, name + '_il')
    k(f's_sub_u32 s20, s25, 64\ns_cmp_lt_u32 s25, 104\ns_cbranch_scc1 {name}_c')
    load_sel(k, cfg)
    k(f"""
    s_and_b32 s20, s25, 7
    s_cmp_lt_u32 s25, 112
    s_cbranch_scc1 {name}_x
    s_cmp_lt_u32 s25, 128
    s_cbranch_scc1 {name}_g10
    s_cmp_ge_u32 s25, 254
    s_cbranch_scc1 {name}_wt
    s_sub_u32 s28, s25, 224
    s_mul_i32 s22, s28, 26
    s_lshr_b32 s22, s22, 8
    s_mul_i32 s29, s22, 10
    s_sub_u32 s20, s28, s29""")
    if 'O' in cfg.get('skip', ''): k(f's_branch {E_}')
    gen_o(k, name + '_o', G3, F_, cfg)
    k.label(name + '_wt')
    k('s_and_b32 s27, s25, 1\ns_lshl_b32 s27, s27, 4\ns_mov_b32 s26, 16')
    if 'W' in cfg.get('skip', ''): k(f's_branch {E_}')
    gen_wt(k, name + '_wt', name + '_wo', cfg)
    k.label(name + '_wo')
    k('s_and_b32 s20, s25, 1')
    k.label(name + '_wol')
    gen_wo(k, name + '_wo', cfg)
    k(f's_add_u32 s20, s20, 2\ns_cmp_lt_u32 s20, 5\ns_cbranch_scc1 {name}_wol\ns_branch {G3}')
    k.label(name + '_g10')
    if cfg.get('g1wait', 1):
        k(f'v_and_b32 v16, 31, v1\nv_lshlrev_b32 v16, 7, v16\ns_add_u32 s44, s56, {FKM:#x}')
        poll_flag(k, name + '_wf', 16, 's44', 17, F_, sleep=8)
    k('v_lshlrev_b32 v2, 4, v1')
    k('s_and_b32 s20, s25, 3\ns_bfe_u32 s22, s25, 0x20002\ns_cmp_eq_u32 s22, 3\ns_cselect_b32 s22, 0, s22\ns_cselect_b32 s28, 0, 4\ns_cselect_b32 s24, 1, 3\ns_cselect_b32 s26, 52, 64\ns_add_u32 s20, s20, s28')
    k.label(name + '_g1e')
    if '1' in cfg.get('skip', ''): k(f's_branch {E_}')
    gen_g1p(k, name + '_g1p', E_, F_, cfg)
    k.label(name + '_x')
    if 'X' in cfg.get('skip', ''): k(f's_branch {E_}')
    k('s_mov_b32 s26, 63')
    k.label(name + '_xe')
    gen_x(k, name + '_x', name + '_xd', F_, cfg)
    k.label(name + '_xd')
    k(f's_cmp_eq_u32 s26, 64\ns_cbranch_scc1 {G3}\ns_branch {E_}')
    k.label(name + '_c')
    gen_c(k, name + '_c', G3, F_, cfg)
    k.label(G3)
    if cfg.get('stamp') is not None and not LST: ustamp(k, cfg, 1 if cfg.get('stamp') == 98 else 5)
    k('s_cmp_lt_u32 s25, 224\ns_cselect_b32 s28, 8, 0\ns_add_u32 s28, s28, s25\ns_sub_u32 s28, s28, 96\ns_cmp_lt_u32 s25, 128\ns_cselect_b32 s20, s25, s28')
    if 'G' in cfg.get('skip', ''): k(f's_branch {E_}')
    gen_g3p(k, name + '_g3p', E_, F_, cfg)
    k.label(name + '_z')
    gen_z(k, name + '_z', G3, F_, cfg)
    k.label(name + '_h')
    gen_h(k, name + '_h', G3, F_, cfg)
    k.label(name + '_vu0')
    k('s_bfe_u32 s24, s25, 0x10005')
    gen_pj(k, name + '_pj', name + '_g2', cfg)
    k.label(name + '_g2')
    ustamp(k, cfg, 0)
    if 'G' in cfg.get('skip', ''): k(f's_branch {E_}')
    k('s_sub_u32 s27, s25, 96\ns_mov_b32 s26, 1')
    k.label(name + '_g2a')
    gen_wt(k, name + '_wt1', name + '_g2b', cfg, single=True)
    k.label(name + '_g2b')
    k(f's_add_u32 s27, s27, 32\ns_sub_u32 s28, s27, 96\ns_cmp_lt_u32 s28, 32\ns_cbranch_scc1 {name}_g2a')
    k('s_sub_u32 s20, s25, 128')
    gen_g2p(k, name + '_g2p', E_, F_, cfg)
    k.label(name + '_qk')
    gen_vu(k, name + '_vu', name + '_vue', F_, dict(cfg, stamp=cfg.get('stamp') if cfg.get('stamp') in (0, 97) else None))
    k.label(name + '_vue')
    k(f's_cmp_lt_u32 s25, 208\ns_cbranch_scc1 {G3}\ns_cmp_ge_u32 s25, 216\ns_cbranch_scc1 {name}_vug')
    k(f'v_mov_b32 v16, 0\ns_add_u32 s44, s56, {FKM + 61*4096:#x}')
    poll_flag(k, name + '_xw', 16, 's44', 17, F_, sleep=12)
    k(f's_and_b32 s20, s25, 7\ns_mov_b32 s22, 63\ns_mov_b32 s26, 64\ns_branch {name}_xe')
    k.label(name + '_vug')
    k(f's_and_b32 s20, s25, 3\ns_bfe_u32 s22, s25, 0x10002\ns_add_u32 s22, s22, 52\ns_mov_b32 s24, 2\ns_mov_b32 s26, 64\ns_branch {name}_g1e')
    mega_epilogue(k, name, cfg)

def mega_prologue(k, name, nwg=256):
    k.begin(name)
    k(f'''
    s_cmp_lt_u32 s2, {nwg}
    s_cbranch_scc1 {name}_in
    s_endpgm''')
    k.label(name + '_in')
    k(f'''
    s_load_dwordx4 s[4:7], s[0:1], {KA['dbg']}
    s_load_dwordx8 s[92:99], s[0:1], {KA['Wq']}
    v_and_b32 v1, 63, v0
    v_lshrrev_b32 v2, 6, v0
    s_nop 0
    v_readfirstlane_b32 s21, v2
    s_waitcnt lgkmcnt(0)''')
    k.srd(8, 6, WS_BYTES)

def far_branch(k, target):
    k(f's_branch {target}')

GC1 = -2.0 * (2.0 / 3.141592653589793) ** 0.5 * 1.4426950408889634
GC2 = GC1 * 0.044715

def gs(k, cfg, idx):
    if cfg.get('gstamp'): k(f's_memrealtime s[{60+2*idx}:{61+2*idx}]')

def gdump(k, cfg, n):
    if not cfg.get('gstamp'): return
    k(f"""
    s_waitcnt vmcnt(0)
    s_memrealtime s[74:75]
    s_waitcnt lgkmcnt(0)
    s_lshl_b32 s28, s2, 2
    s_add_u32 s28, s28, s21
    s_lshl_b32 s28, s28, 5
    s_add_u32 s28, s28, {TRACE + 0x200000 + n * 0x10000:#x}
    v_mov_b32 v4, 0""")
    for i in range(8): k(f'v_mov_b32 v{8+i}, s{60+2*i}')
    k('buffer_store_dwordx4 v[8:11], v4, s[8:11], s28 offen')
    k('buffer_store_dwordx4 v[12:15], v4, s[8:11], s28 offen offset:16')

def gen_wt(k, p, end, cfg, single=False):
    k(f's_load_dwordx2 s[28:29], s[0:1], {KA["w_sp"]}')
    k('s_waitcnt lgkmcnt(0)')
    k.srd(12, 28, 2048 * 4096)
    k(f"""
    v_lshlrev_b32 v2, 4, v1
    s_lshl_b32 s31, s21, 14
    s_lshl_b32 s30, s27, 16
    s_add_u32 s30, s30, s31
    s_lshl_b32 s28, s21, 6""")
    for r in range(4): k(f'v_xor_b32 v{4+r}, s28, v2\ns_add_u32 s28, s28, 16')
    k(f"""
    v_and_b32 v8, 15, v1
    v_lshrrev_b32 v9, 4, v1
    v_xor_b32 v9, v9, v8
    v_lshlrev_b32 v9, 4, v9
    v_lshl_add_u32 v9, v8, 12, v9
    s_lshl_b32 s28, s21, 10
    v_add_u32 v10, s28, v9
    v_xor_b32 v11, 64, v10
    v_xor_b32 v12, 128, v10
    v_xor_b32 v13, 192, v10
    s_mov_b32 s32, s27
    s_add_u32 s35, s32, s26""")
    def dma():
        for r in range(4):
            k(f's_add_u32 m0, s31, {4096*r}\ns_add_u32 s28, s30, {4096*r}')
            for i in range(4):
                k(f'buffer_load_dwordx4 v{4+r}, s[12:15], s28 offen offset:{1024*i} nt lds')
        k(f's_xor_b32 s31, s31, 65536\ns_add_u32 s30, s30, 65536\ns_and_b32 s30, s30, {2048*4096 - 1:#x}')
    dma()
    if not single: dma()
    k(f's_waitcnt vmcnt({0 if single else 16})')
    k.label(f'{p}_loop')
    k('s_barrier')
    for i in range(16): k(f'ds_read_b128 {V(16+4*i,4)}, v{10+i%4} offset:{256*(i//4)}')
    k(f"""
    s_lshr_b32 s28, s32, 1
    s_lshl_b32 s33, s28, 20
    s_and_b32 s28, s28, 15
    s_lshl_b32 s28, s28, 11
    s_add_u32 s33, s33, s28
    s_and_b32 s28, s32, 1
    s_mul_i32 s28, s28, {WST}
    s_add_u32 s33, s33, s28
    s_lshl_b32 s28, s21, 14
    s_add_u32 s33, s33, s28
    s_add_u32 s33, s33, {WSF:#x}""")
    for i in range(4): k(f'v_xor_b32 v{10+i}, 65536, v{10+i}')
    k('s_waitcnt lgkmcnt(0)')
    if not single:
        k('s_barrier')
        dma()
    for i in range(16):
        k(f'buffer_store_dwordx4 {V(16+4*i,4)}, v2, s[8:11], s33 offen offset:{1024*(i%4)} sc1')
        if i % 4 == 3: k('s_add_u32 s33, s33, 4096')
    k(f"""
    s_add_u32 s32, s32, 1
    s_cmp_lt_u32 s32, s35
    s_waitcnt vmcnt(32)
    s_cbranch_scc1 {p}_loop
    v_mov_b32 v6, {BIG:#x}
    v_lshlrev_b32 v7, 7, v0
    v_cmp_gt_u32 vcc, s26, v0
    s_lshl_b32 s28, s27, 7
    s_add_u32 s28, s28, {FWT:#x}
    v_cndmask_b32 v6, v6, v7, vcc
    v_mov_b32 v7, 1
    s_waitcnt vmcnt(0)
    s_barrier
    buffer_store_dword v7, v6, s[8:11], s28 offen sc1
    s_branch {end}""")

def gen_g1p(k, p, end, fail, cfg):
    SX = 81920; SA = SX + 512; SB = SA + 1024
    loc = {(t, kk): ('a', 4 * (3 * kk + t)) for kk in range(20) for t in range(3)}
    k(f's_load_dwordx2 s[28:29], s[0:1], {KA["w_in"]}')
    k('s_waitcnt lgkmcnt(0)')
    k.srd(12, 28, 640 * 3072)
    for i in range(3):
        k(f"""
        v_add_u32 v8, {64*i}, v1
        v_mul_u32_u24 v9, 2731, v8
        v_lshrrev_b32 v9, 16, v9
        v_mul_u32_u24 v10, 24, v9
        v_sub_u32 v10, v8, v10
        v_mul_u32_u24 v9, 3072, v9
        v_lshl_add_u32 v{144+i}, v10, 4, v9""")
    k(f"""
    v_lshrrev_b32 v11, 2, v1
    v_mul_u32_u24 v11, 384, v11
    v_and_b32 v10, 3, v1
    v_lshl_add_u32 v11, v10, 3, v11
    s_mul_i32 s28, s21, 96
    v_add_u32 v11, s28, v11
    s_mul_i32 s30, s20, 384
    s_mul_i32 s28, s21, {16*3072}
    s_add_u32 s30, s30, s28
    s_mul_i32 s32, s21, 6144""")
    k.vd = k.vc
    tick = {}
    def issue(c):
        for i in range(6):
            k(f's_add_u32 m0, s32, {(c%6)*24576 + i*1024}')
            k(f's_add_u32 s33, s30, {c*64*3072 + (i//3)*8*3072}')
            tick[c] = k.vm(f'buffer_load_dwordx4 v{144+i%3}, s[12:15], s33 offen lds')
    for c in range(6): issue(c)
    for c in range(10):
        k.wv(tick[c])
        k('s_barrier')
        k(f'v_add_u32 v13, {(c%6)*24576}, v11')
        for t in range(3):
            for k2 in range(2):
                for hf in range(2):
                    k(f'ds_read_b64_tr_b16 {R(loc[(t, 2*c+k2)], 2, 2*hf)}, v13 offset:{(32*k2+16*hf)*384 + t*32}')
        k('s_waitcnt lgkmcnt(0)')
        if c + 6 < 10 or c == 9: k('s_barrier')
        if c + 6 < 10: issue(c + 6)
    ustamp(k, cfg, 1)
    k(f"""
    v_mov_b32 v3, 9
    v_min_u32 v3, v3, v1
    v_lshlrev_b32 v3, 7, v3
    v_and_b32 v10, 15, v1
    v_lshrrev_b32 v11, 4, v1
    s_lshr_b32 s29, s21, 1
    s_mul_i32 s28, s29, 20480
    v_add_u32 v4, s28, v2
    v_lshrrev_b32 v12, 3, v10
    v_mul_u32_u24 v12, 20480, v12
    v_lshl_add_u32 v12, v11, 8, v12
    v_bfe_u32 v13, v10, 2, 1
    v_lshl_add_u32 v12, v13, 7, v12
    v_and_b32 v13, 3, v10
    v_lshl_add_u32 v12, v13, 4, v12
    s_lshl_b32 s28, s29, 6
    v_add_u32 v12, s28, v12
    s_cmp_ge_u32 s20, 4
    s_cselect_b64 vcc, -1, 0
    v_cndmask_b32 v4, v4, v12, vcc
    v_mov_b32 v5, v2
    s_mul_i32 s34, s21, 10240
    v_add_u32 v8, s34, v2
    s_and_b32 s35, s21, 1
    s_mul_i32 s35, s35, 10240
    s_add_u32 s35, s35, {HH:#x}
    v_mov_b32 v6, {BIG:#x}
    v_cmp_gt_u32 vcc, {FW}, v0
    v_lshlrev_b32 v7, 2, v0
    s_nop 0
    v_cndmask_b32 v6, v6, v7, vcc
    v_mov_b32 v7, 1
    s_lshl_b32 s28, s21, 7
    s_add_u32 s28, s28, {SX}
    v_lshlrev_b32 v9, 3, v10
    v_add_u32 v14, {SX}, v9
    v_add_u32 v9, s28, v9
    v_lshrrev_b32 v12, 2, v10
    v_cmp_eq_u32 vcc, v12, v11
    v_mov_b32 v12, {SB + 512}
    v_and_b32 v13, 1, v1
    v_cndmask_b32 v9, v12, v9, vcc
    v_cmp_ne_u32 s[48:49], 0, v13
    v_and_b32 v13, 2, v1
    v_cmp_ne_u32 s[50:51], 0, v13
    s_mov_b32 s45, {DUMMY:#x}
    v_lshlrev_b32 v15, 5, v11
    v_add_u32 v15, {SX}, v15
    s_mov_b32 s36, 0x3f803f80
    v_mov_b32 v16, s36
    v_mov_b32 v17, s36
    v_mov_b32 v18, s36
    v_mov_b32 v19, s36
    v_mov_b32 v20, {GC1!r}
    v_mov_b32 v22, {GC2!r}
    v_mov_b32 v24, 1.0
    s_mov_b32 s40, 0
    s_mov_b32 s41, 0
    s_cmp_ge_u32 s20, 4
    s_cbranch_scc1 {p}_z2""")
    CSR = 28
    acc = lambda tt, t3: 40 + 4 * (3 * tt + t3)
    def dma(seg):
        k(f's_mul_i32 s29, {seg}, 40960\ns_add_u32 s29, s29, s35\ns_add_u32 s28, s34, s40')
        for j in range(3):
            k(f's_add_u32 m0, s28, {4096*j}\ns_add_u32 s33, s29, {4096*j}')
            for i in range(4 if j < 2 else 2):
                k(f'buffer_load_dwordx4 v4, s[8:11], s33 offen offset:{1024*i} sc1 lds')
        k('s_xor_b32 s40, s40, 40960')
    def path(z2):
        q = f'{p}_{"b" if z2 else "a"}'
        mm = lambda d, w_, x_, c_: f'{MF} {d}, {x_}, {w_}, {c_}' if z2 else f'{MF} {d}, {w_}, {x_}, {c_}'
        for kk in range(20):
            for t in range(3):
                d = V(CSR + 4 * t, 4)
                k(mm(d, R(loc[(t, kk)], 4), 'v[16:19]', '0' if kk == 0 else d))
        k.label(f'{q}_loop')
        k(f's_cmp_lg_u32 s41, 0\ns_cbranch_scc1 {q}_have\ns_lshl_b32 s42, s22, 12\ns_add_u32 s42, s42, {FH:#x}\ns_add_u32 s42, s42, s56')
        poll_flag(k, f'{q}_f', 3, 's42', 26, fail, sleep=1, slow=(58, cfg.get('slow', 12)))
        dma('s22')
        k('s_waitcnt vmcnt(0)')
        k.label(f'{q}_have')
        stamp(k, cfg, 2)
        k(f"""
        s_add_u32 s43, s22, s24
        s_min_u32 s42, s43, 63
        s_lshl_b32 s42, s42, 12
        s_add_u32 s42, s42, {FH:#x}
        s_add_u32 s42, s42, s56
        s_waitcnt vmcnt({1 if z2 else 6})
        s_barrier
        buffer_load_dword v26, v3, s[8:11], s42 offen sc1""")
        mats = []; items = []; ev = []
        XR = [64 + 4 * i for i in range(8)]
        for kk in range(20):
            for tt in range(2):
                n_ = 2 * kk + tt; r = XR[n_ % 8]
                ev.append((max(3 * n_ - 15, 3 * (n_ - 8) + 2 if n_ >= 8 else -1), dict(id=('x', n_), kind='n', lds=True, fn=f'ds_read_b128 {V(r,4)}, v5 offset:{tt*20480 + kk*1024}')))
                for t in range(3):
                    d = V(acc(tt, t), 4)
                    mats.append((mm(d, R(loc[(t, kk)], 4), V(r, 4), '0' if kk == 0 else d), [('x', n_)]))
        smats = []
        for i in range(10):
            r = V(96 + 4 * i, 4)
            ev.append((1 + 3 * i, dict(id=('o', i), kind='n', lds=True, fn=f'ds_read_b128 {r}, v8 offset:{1024*i}')))
            smats.append((f'{MF} v[156:159], v[16:19], {r}, {"0" if i == 0 else "v[156:159]"}', [('o', i)]))
            smats.append((f'{MF} v[160:163], {r}, {r}, {"0" if i == 0 else "v[160:163]"}', []))
        SP = 42
        mats[SP:SP] = smats
        for j, (g_, it) in enumerate(ev):
            if it['id'][0] == 'x' and g_ >= SP: ev[j] = (g_ + 20, it)
        items.append(dict(id='s0', kind='v', fn='v_cndmask_b32 v160, v160, v161, s[48:49]', states=(SP + 19, 8), after=SP + 22))
        items.append(dict(id='s1', kind='v', fn='v_cndmask_b32 v162, v162, v163, s[48:49]'))
        items.append(dict(id='s2', kind='v', fn='v_cndmask_b32 v157, v160, v162, s[50:51]'))
        ev.append((SP + 26, dict(id='sw', kind='n', lds=True, fn='ds_write_b64 v9, v[156:157]', order=['s2'])))
        ev.append((SP + 31, dict(id='sv', kind='n', fn='s_waitcnt vmcnt(0)\nv_cmp_eq_u32 vcc, 0, v26')))
        ev.append((SP + 32, dict(id='sb', kind='bar', fn='s_barrier', deps=['sw'], order=['sw'])))
        kd = K(); k_save = k.L; k.L = kd.L
        k(f's_mov_b32 s41, 0\ns_cmp_ge_u32 s43, s26\ns_cbranch_scc1 {q}_nop\ns_cbranch_vccnz {q}_nop\ns_mov_b32 s41, 1')
        dma('s43')
        k.L = k_save
        if not z2: ev.append((SP + 32.5, dict(id='sf', kind='n', fn=f'buffer_store_dword v7, v6, s[8:11], s45 offen sc1')))
        ev.append((SP + 42, dict(id='sd', kind='n', fn='\n'.join(kd.L), label=f'{q}_nop')))
        RS, NB = 140, 148
        nst = 8 if z2 else 2
        if z2:
            for i in range(8):
                ev.append((SP + 33 + i, dict(id=('sr', i), kind='n', lds=True, fn=f'ds_read_b128 {V(96+4*i,4)}, v15 offset:{128*(i>>1) + 16*(i&1)}', order=['sb'])))
            src = lambda i: (96 + 16 * (i >> 2) + 2 * (i & 3), 104 + 16 * (i >> 2) + 2 * (i & 3))
            lastr = ('sr', 7)
        else:
            for i in range(4):
                ev.append((SP + 33 + i, dict(id=('sr', i), kind='n', lds=True, fn=f'ds_read_b64 {V(96+2*i,2)}, v14 offset:{128*i}', order=['sb'])))
            src = lambda i: (96 + 4 * i, 98 + 4 * i)
            lastr = ('sr', 3)
        fin = []
        for i in range(nst): fin.append(f'v_pk_add_f32 {V(src(i)[0],2)}, {V(src(i)[0],2)}, {V(src(i)[1],2)}')
        for i in range(nst): fin.append(f'v_pk_mul_f32 {V(src(i)[0],2)}, {V(src(i)[0],2)}, s[46:47]')
        for i in range(nst): fin.append(f'v_fma_f32 v{src(i)[0]+1}, -v{src(i)[0]}, v{src(i)[0]}, v{src(i)[0]+1}')
        for i in range(nst): fin.append(f'v_max_f32 v{src(i)[0]+1}, 0, v{src(i)[0]+1}')
        for i in range(nst): fin.append(f'v_add_f32 v{src(i)[0]+1}, 1e-5, v{src(i)[0]+1}')
        st = 1 if z2 else 2
        for i in range(nst): fin.append(f'v_rsq_f32 v{RS+st*i}, v{src(i)[0]+1}')
        fin.append('v_nop')
        for i in range(nst): fin.append(f'v_mul_f32_e64 v{NB+st*i}, -v{src(i)[0]}, v{RS+st*i}')
        for i, f_ in enumerate(fin):
            items.append(dict(id=('f', i), kind='v', fn=f_, deps=[lastr] if i == 0 else [], order=[lastr], after=SP + 46))
        ev.sort(key=lambda x: x[0])
        for g_, it in ev:
            it['after'] = g_; items.append(it)
        k(f's_mov_b32 s46, {1.0/640!r}\ns_mov_b32 s47, s46')
        sched(k, mats, items, [False] * 140, pre_n=3)
        stamp(k, cfg, 3)
        k('v_xor_b32 v5, 40960, v5\ns_nop 0\nv_add_u32 v8, s34, v5')
        for tt in range(2):
            for t in range(3):
                for h_ in range(2):
                    a = V(acc(tt, t) + 2 * h_, 2); c = V(CSR + 4 * t + 2 * h_, 2)
                    if z2:
                        k(f'v_pk_mul_f32 {a}, {a}, {V(RS+4*tt+2*h_,2)}')
                        k(f'v_pk_fma_f32 {a}, {c}, {V(NB+4*tt+2*h_,2)}, {a}')
                    else:
                        k(f'v_pk_mul_f32 {a}, {a}, {V(RS+2*tt,2)} op_sel_hi:[1,0]')
                        k(f'v_pk_fma_f32 {a}, {c}, {V(NB+2*tt,2)}, {a} op_sel_hi:[1,0,1]')
        for b in range(0, 24, 8):
            for i in range(0, 8, 2): k(f'v_pk_mul_f32 {V(64+i,2)}, {V(40+b+i,2)}, {V(40+b+i,2)}')
            for i in range(0, 8, 2): k(f'v_pk_fma_f32 {V(64+i,2)}, {V(64+i,2)}, v[22:23], v[20:21] op_sel_hi:[1,0,0]')
            for i in range(0, 8, 2): k(f'v_pk_mul_f32 {V(64+i,2)}, {V(64+i,2)}, {V(40+b+i,2)}')
            for i in range(8): k(f'v_exp_f32 v{64+i}, v{64+i}')
            for i in range(0, 8, 2): k(f'v_pk_add_f32 {V(64+i,2)}, {V(64+i,2)}, v[24:25] op_sel_hi:[1,0]')
            for i in range(8): k(f'v_rcp_f32 v{64+i}, v{64+i}')
            for i in range(0, 8, 2): k(f'v_pk_mul_f32 {V(40+b+i,2)}, {V(40+b+i,2)}, {V(64+i,2)}')
        if not z2:
            k(f"""
            s_mul_i32 s28, s20, 6144
            s_mul_i32 s29, s21, 1536
            s_add_u32 s28, s28, s29
            s_mul_i32 s29, s22, 49152
            s_add_u32 s28, s28, s29
            s_add_u32 s28, s28, {Z1F:#x}
            s_add_u32 s29, s28, 24576
            v_lshlrev_b32 v12, 3, v1""")
            for tt in range(2):
                for t3 in range(3):
                    a = acc(tt, t3); d = 72 + 2 * (2 * t3 + tt)
                    k(f'v_cvt_pk_bf16_f32 v{d}, v{a}, v{a+1}')
                    k(f'v_cvt_pk_bf16_f32 v{d+1}, v{a+2}, v{a+3}')
                    k(f'buffer_store_dwordx2 {V(d,2)}, v12, s[8:11], s{28+tt} offen offset:{512*t3} sc1')
        else:
            for tt in range(2):
                for r in range(4):
                    d = 96 + 8 * tt + 2 * r; a0, a1, a2 = (acc(tt, j) + r for j in range(3))
                    k(f'v_add_f32 v{d}, v{a0}, v{a1}')
                    k(f'v_mul_f32 v{d+1}, v{a0}, v{a0}')
                    k(f'v_add_f32 v{d}, v{d}, v{a2}')
                    k(f'v_fmac_f32 v{d+1}, v{a1}, v{a1}')
                    k(f'v_fmac_f32 v{d+1}, v{a2}, v{a2}')
            for sh in (8, 4, 2, 1):
                for i in range(16):
                    k(f'v_add_f32_dpp v{96+i}, v{96+i}, v{96+i} row_ror:{sh} row_mask:0xf bank_mask:0xf')
            k(f's_lshl_b32 s28, s21, 8\nv_add_u32 v13, s28, v15')
            for tt in range(2):
                k(f'ds_write_b128 v13, {V(96+8*tt,4)} offset:{SA - SX + 128*tt}')
                k(f'ds_write_b128 v13, {V(100+8*tt,4)} offset:{SA - SX + 128*tt + 16}')
            k(f"""
            s_waitcnt lgkmcnt(0)
            s_barrier
            s_cmp_lg_u32 s21, 0
            s_cbranch_scc1 {q}_w
            v_and_b32 v12, 31, v1
            v_lshlrev_b32 v12, 3, v12
            v_add_u32 v13, {SA}, v12
            ds_read_b64 v[96:97], v13
            ds_read_b64 v[98:99], v13 offset:256
            ds_read_b64 v[100:101], v13 offset:512
            ds_read_b64 v[102:103], v13 offset:768
            s_lshl_b32 s44, s22, 10
            s_add_u32 s44, s44, {ST:#x}
            s_add_u32 s44, s44, s56
            s_and_b32 s28, s20, 3
            s_lshl_b32 s28, s28, 8
            s_add_u32 s28, s28, s44
            s_waitcnt lgkmcnt(0)
            v_pk_add_f32 v[96:97], v[96:97], v[98:99]
            v_pk_add_f32 v[100:101], v[100:101], v[102:103]
            v_pk_add_f32 v[96:97], v[96:97], v[100:101]
            v_min_u32 v96, -2, v96
            v_min_u32 v97, -2, v97
            buffer_store_dwordx2 v[96:97], v12, s[8:11], s28 offen sc1
            s_mov_b32 s39, 0
            s_waitcnt vmcnt(0)""")
            k.label(f'{q}_sp')
            for i in range(4):
                k(f'buffer_load_dwordx2 {V(98+2*i,2)}, v12, s[8:11], s44 offen offset:{256*i} sc1')
            tmo(k, fail)
            k('s_waitcnt vmcnt(0)')
            maxtree(k, 10, list(range(98, 106)))
            k(f"""
            v_cmp_eq_u32 vcc, -1, v10
            s_cbranch_vccnz {q}_sp
            v_pk_add_f32 v[98:99], v[98:99], v[100:101]
            v_pk_add_f32 v[102:103], v[102:103], v[104:105]
            v_pk_add_f32 v[98:99], v[98:99], v[102:103]
            v_mul_f32 v98, {1.0/768!r}, v98
            v_mul_f32 v99, {1.0/768!r}, v99
            v_fma_f32 v99, -v98, v98, v99
            v_max_f32 v99, 0, v99
            v_add_f32 v99, 1e-5, v99
            v_rsq_f32 v100, v99
            s_nop 0
            v_mul_f32_e64 v101, -v98, v100
            ds_write_b64 v13, v[100:101] offset:{SB - SA}
            s_waitcnt lgkmcnt(0)""")
            k.label(f'{q}_w')
            k('s_barrier')
            for tt in range(2):
                k(f'ds_read_b128 {V(96+8*tt,4)}, v15 offset:{SB - SX + 128*tt}')
                k(f'ds_read_b128 {V(100+8*tt,4)}, v15 offset:{SB - SX + 128*tt + 16}')
            k(f"""
            s_sub_u32 s28, s20, 4
            s_mul_i32 s28, s28, 12
            s_mul_i32 s29, s21, 3
            s_add_u32 s28, s28, s29
            s_lshl_b32 s28, s28, 10
            s_mul_i32 s29, s22, 49152
            s_add_u32 s28, s28, s29
            s_add_u32 s28, s28, {Z2F:#x}
            s_waitcnt lgkmcnt(0)""")
            for t3 in range(3):
                d = 72 + 4 * t3
                for tt in range(2):
                    a = acc(tt, t3)
                    for r in range(4):
                        k(f'v_fma_f32 v{a+r}, v{a+r}, v{96+8*tt+2*r}, v{97+8*tt+2*r}')
                    k(f'v_cvt_pk_bf16_f32 v{d+2*tt}, v{a}, v{a+1}')
                    k(f'v_cvt_pk_bf16_f32 v{d+2*tt+1}, v{a+2}, v{a+3}')
                k(f'buffer_store_dwordx4 {V(d,4)}, v2, s[8:11], s28 offen offset:{1024*t3} sc1')
        k(f"""
        s_lshl_b32 s28, s20, 7
        s_add_u32 s28, s28, s22
        s_lshl_b32 s28, s28, 7
        s_add_u32 s28, s28, s56
        s_add_u32 s28, s28, {FG1:#x}""")
        if not z2:
            k(f's_mov_b32 s45, s28\ns_cmp_lt_u32 s43, s26\ns_cbranch_scc1 {q}_df')
        k(f"""
        s_waitcnt vmcnt(0)
        s_barrier
        buffer_store_dword v7, v6, s[8:11], s28 offen sc1""")
        k.label(f'{q}_df')
        stamp(k, cfg, 4)
        k(f"""
        s_mov_b32 s22, s43
        s_cmp_lt_u32 s22, s26
        s_cbranch_scc1 {q}_loop
        s_branch {end}""")
    path(False)
    k.label(f'{p}_z2')
    path(True)

def gen_g2p(k, p, end, fail, cfg):
    k(f's_load_dwordx2 s[28:29], s[0:1], {KA["b_sp"]}')
    k('s_waitcnt lgkmcnt(0)')
    k.srd(12, 28, 4096)
    acc = lambda tt, j: 64 + 4 * (6 * tt + j)
    k(f"""
    s_and_b32 s30, s20, 3
    s_lshl_b32 s30, s30, 2
    s_bfe_u32 s31, s20, 0x20002
    s_add_u32 s30, s30, s31
    s_lshr_b32 s31, s20, 4
    s_lshr_b32 s32, s21, 1
    s_and_b32 s33, s21, 1
    v_and_b32 v10, 15, v1
    v_lshlrev_b32 v10, 1, v10
    s_lshl_b32 s28, s30, 8
    s_lshl_b32 s29, s32, 7
    s_add_u32 s28, s28, s29""")
    for tt in range(4):
        k(f'buffer_load_ushort v{16+tt}, v10, s[12:15], s28 offen offset:{32*tt}')
    k(f"""
    s_add_u32 s28, s31, 4
    s_lshl_b32 s28, s28, 14
    s_add_u32 s28, s28, s56
    v_lshlrev_b32 v3, 7, v1
    v_add_u32 v3, s28, v3
    s_add_u32 s49, s28, {FG1 + 62*128:#x}
    v_mov_b32 v9, {BIG:#x}
    v_cmp_gt_u32 vcc, 62, v1
    s_lshl_b32 s28, s32, 13
    v_add_u32 v4, s28, v2
    v_cndmask_b32 v3, v9, v3, vcc
    s_mul_i32 s28, s33, 6144
    s_add_u32 s28, s28, 16384
    v_add_u32 v5, s28, v2
    s_lshl_b32 s36, s21, 12
    s_lshl_b32 s28, s30, 2
    s_add_u32 s28, s28, s21
    s_lshl_b32 s42, s28, 8
    s_add_u32 s42, s42, {FWT:#x}
    s_lshl_b32 s34, s28, 20
    s_and_b32 s28, s28, 15
    s_lshl_b32 s28, s28, 11
    s_add_u32 s34, s34, s28
    s_add_u32 s34, s34, {WSF:#x}
    v_add_u32 v12, {WST - 2048}, v2
    s_mul_i32 s37, s21, 6144
    s_add_u32 s37, s37, 16384
    s_mul_i32 s35, s31, 12288
    s_mul_i32 s28, s32, 49152
    s_add_u32 s35, s35, s28
    s_mul_i32 s28, s33, 6144
    s_add_u32 s35, s35, s28
    s_add_u32 s35, s35, {Z2F:#x}
    s_mov_b32 s38, {FG1:#x}
    v_mov_b32 v8, 0
    v_and_b32 v9, 1, v1
    v_lshlrev_b32 v9, 7, v9""")
    poll_flag(k, f'{p}_fw', 9, 's42', 11, fail, sleep=4)
    for tt in range(4):
        k(f'v_lshlrev_b32 v{16+tt}, 16, v{16+tt}')
        for i in range(24): k(f'v_mov_b32 v{acc(tt,0)+i}, v{16+tt}')
    k('s_mov_b32 s40, 0\ns_mov_b32 s22, -1\ns_barrier')
    k(f"""
    s_lshl_b32 s28, s30, 2
    s_lshl_b32 s29, s32, 1
    s_add_u32 s28, s28, s29
    s_lshl_b32 s42, s31, 7
    s_add_u32 s42, s42, s28
    s_lshl_b32 s42, s42, 7
    s_add_u32 s42, s42, {FG1:#x}
    s_add_u32 s42, s42, s56
    s_mul_i32 s43, s28, 49152
    s_lshl_b32 s29, s28, 20
    s_and_b32 s28, s28, 15
    s_lshl_b32 s28, s28, 11
    s_add_u32 s29, s29, s28
    s_add_u32 s29, s29, {WSF + 62*1024:#x}
    s_mul_i32 s28, s31, 6144
    s_add_u32 s43, s43, s28
    s_mul_i32 s28, s33, 3072
    s_add_u32 s43, s43, s28
    s_add_u32 s57, s43, {Z1F:#x}
    s_add_u32 s43, s43, {YF:#x}
    v_lshlrev_b32 v10, 3, v1
    s_mov_b32 s54, 0xffff0000""")
    for tt in range(4):
        k(f's_add_u32 s28, s29, {(tt>>1)*(0x100000 + 2048) + (tt&1)*WST}')
        for h_ in range(2): k(f'buffer_load_dwordx4 {A(160+8*tt+4*h_,4)}, v2, s[8:11], s28 offen offset:{1024*h_} sc1')
    def unpack(lo, hi):
        for i in range(lo, hi):
            k(f'v_lshlrev_b32 v{160+2*i}, 16, v{16+i}')
            k(f'v_and_b32 v{161+2*i}, s54, v{16+i}')
    def z1load(t0, t1):
        for tt in range(t0, t1):
            k(f's_add_u32 s28, s57, {24576*tt}')
            for j in range(6):
                k(f'buffer_load_dwordx2 {V(16+12*tt+2*j,2)}, v10, s[8:11], s28 offen offset:{512*j} sc1')
    NB = 11
    FLG = 'buffer_load_dword v8, v3, s[8:11], s38 offen sc1'
    batch = ['s_and_b32 s28, s40, 3\ns_mul_i32 s28, s28, 40960', 's_add_u32 m0, s28, s36\ns_add_u32 s40, s40, 1'] + \
            [f'buffer_load_dwordx4 v{(2,2,12,12)[i]}, s[8:11], s34 offen offset:{1024*i} sc1 lds' for i in range(4)] + \
            ['s_add_u32 m0, s28, s37\ns_add_u32 s34, s34, 2048'] + \
            [f'buffer_load_dwordx4 v2, s[8:11], s35 offen offset:{1024*i} sc1 lds' for i in range(3)] + \
            ['s_add_u32 m0, m0, 3072\ns_add_u32 s35, s35, 3072'] + \
            [f'buffer_load_dwordx4 v2, s[8:11], s35 offen offset:{1024*i} sc1 lds' for i in range(3)] + \
            [FLG + f'\ns_add_u32 s35, s35, {98304 - 3072}']
    rorder = []
    for h_ in range(2): rorder += [('z', h_, 0), ('w', h_, 0)] + [('z', h_, j) for j in range(1, 6)] + [('w', h_, t) for t in range(1, 4)]
    freg = lambda st, f: 80 * st + 40 * f[1] + (4 * f[2] if f[0] == 'z' else 24 + 4 * f[2])
    def reads(st):
        return [f'ds_read_b128 {A(freg(st,f),4)}, ' + (f'v7 offset:{12288*f[1] + 1024*f[2]}' if f[0] == 'z' else f'v6 offset:{2048*f[2] + 1024*f[1]}') for f in rorder]
    addr = 's_add_u32 s29, s22, 1\ns_and_b32 s29, s29, 3\ns_mul_i32 s29, s29, 40960\nv_add_u32 v6, s29, v4\nv_add_u32 v7, s29, v5'
    def mf(st, i):
        h_, tt, j = i // 24, (i % 24) // 6, i % 6
        return f'{MF} {V(acc(tt,j),4)}, {A(freg(st,("z",h_,j)),4)}, {A(freg(st,("w",h_,tt)),4)}, {V(acc(tt,j),4)}'
    rdy = 's_lshl_b32 s46, s40, 1\ns_add_u32 s46, s46, s32\ns_nop 0\ns_lshr_b64 s[44:45], s[44:45], s46\ns_nop 0\ns_nop 0'.split('\n')
    def late(st):
        k.label(f'{p}_late{st}')
        k(f's_cmp_eq_u32 s22, 30\ns_cbranch_scc1 {p}_fin\ns_mov_b32 s39, 0')
        k('s_lshl_b32 s46, s40, 1\ns_lshl_b64 s[50:51], 15, s46')
        k.label(f'{p}_lp{st}')
        k('s_mov_b64 exec, s[50:51]')
        k(FLG)
        k('s_mov_b64 exec, -1')
        tmo(k, fail)
        k('s_waitcnt vmcnt(0)\nv_cmp_ne_u32 s[44:45], 0, v8\ns_nop 3')
        for s_ in rdy: k(s_)
        k(f"""
        s_bitcmp1_b32 s44, 0
        s_cbranch_scc1 {p}_lr{st}
        s_mov_b32 s47, {st}
        s_cmp_eq_u32 s48, 0
        s_cbranch_scc1 {p}_tz""")
        k.label(f'{p}_tzr{st}')
        k(f"""
        s_sleep 1
        s_cmp_ge_i32 s22, 29
        s_cbranch_scc1 {p}_lp{st}
        s_sleep {2 * cfg.get('slow', 12)}
        s_branch {p}_lp{st}""")
        k.label(f'{p}_lr{st}')
        for s_ in batch: k(s_)
        k(addr)
        k(f's_bitcmp1_b32 s44, 2\ns_cbranch_scc0 {p}_l0{st}')
        for s_ in batch: k(s_)
        k(f's_waitcnt vmcnt({NB})\ns_branch {p}_l1{st}')
        k.label(f'{p}_l0{st}')
        k('s_waitcnt vmcnt(0)')
        k.label(f'{p}_l1{st}')
        k('s_barrier')
        for s_ in reads(st): k(s_)
        k(f's_add_u32 s22, s22, 1\ns_branch {p}_it{st}')
    k(f's_mov_b32 s48, 0\ns_branch {p}_late0')
    NF = 14
    for st in range(2):
        k.label(f'{p}_it{st}')
        if cfg.get('stamp') == 99 and st == 0:
            for i_, st_ in ((1, 0), (2, 8), (3, 16), (4, 24)): stamp(k, dict(stamp=st_), i_)
        waits = {0: 15, 4: 13, 6: 12, 12: 0}
        extra = {1: 'v_cmp_ne_u32 s[44:45], 0, v8', 2: 's_add_u32 s29, s22, 1\ns_and_b32 s29, s29, 3', 4: 's_mul_i32 s29, s29, 40960\nv_add_u32 v6, s29, v4',
                 6: 's_sub_u32 s41, s40, s22\nv_add_u32 v7, s29, v5', 7: rdy[0] + '\n' + rdy[1], 8: rdy[2] + '\n' + rdy[3], 9: rdy[4] + '\n' + rdy[5],
                 10: 's_cmp_lt_u32 s41, 4\ns_cselect_b32 s46, 5, 1', 12: 's_and_b32 s44, s44, s46\ns_cmp_eq_u32 s41, 4'}
        for i in range(NF):
            if i in waits: k(f's_waitcnt lgkmcnt({waits[i]})')
            k(mf(st, i))
            if i in extra: k(extra[i])
        k(f's_cbranch_scc0 {p}_n0{st}\ns_waitcnt vmcnt({2*NB})')
        k.label(f'{p}_n1{st}')
        k(mf(st, NF))
        k(f's_barrier\ns_cmp_eq_u32 s44, 1')
        k(mf(st, NF + 1))
        k(f's_cbranch_scc0 {p}_bd{st}')
        def rest(nb):
            r = reads(1 - st); b = list(batch) * nb if nb else [FLG]
            for i in range(NF + 2, 48):
                k(mf(st, i))
                n_ = i - NF - 2
                if n_ < 10:
                    k(r.pop(0)); k(r.pop(0))
                else:
                    for _ in range(2 if nb == 2 and len(b) > 47 - i else 1):
                        if b: k(b.pop(0))
                if i == 46: k('s_add_u32 s22, s22, 1')
            assert not r and not b
            k(f's_branch {p}_it{1-st}')
        rest(1)
        k.label(f'{p}_bd{st}')
        k(f's_cmp_eq_u32 s44, 5\ns_cbranch_scc1 {p}_d{st}')
        rest(0)
        k.label(f'{p}_d{st}')
        rest(2)
        k.label(f'{p}_n0{st}')
        k(f's_cmp_eq_u32 s41, 1\ns_cbranch_scc1 {p}_c{st}\ns_cmp_eq_u32 s41, 2\ns_cbranch_scc1 {p}_n00{st}\ns_waitcnt vmcnt({NB})\ns_branch {p}_n1{st}')
        k.label(f'{p}_n00{st}')
        k(f's_waitcnt vmcnt(0)\ns_branch {p}_n1{st}')
        k.label(f'{p}_c{st}')
        for i in range(NF, 48): k(mf(st, i))
        late(1 - st)
    k.label(f'{p}_tz')
    k(f'buffer_load_dword v11, v9, s[8:11], s42 offen sc1\ns_waitcnt vmcnt(0)\nv_cmp_eq_u32 vcc, 0, v11\ns_cbranch_vccnz {p}_tzn')
    z1load(0, 4)
    k('s_mov_b32 s48, 1\ns_waitcnt vmcnt(0)')
    unpack(0, 48)
    k.label(f'{p}_tzn')
    k(f's_cmp_eq_u32 s47, 0\ns_cbranch_scc1 {p}_tzr0\ns_branch {p}_tzr1')
    k.label(f'{p}_fin')
    k(f"""
    s_mul_i32 s35, s31, 12288
    s_mul_i32 s28, s33, 6144
    s_add_u32 s35, s35, s28
    s_add_u32 s35, s35, {Z2F + 62*49152:#x}
    v_mov_b32 v9, 0""")
    def last(h_, unp):
        q = f'{p}_{h_}{int(unp)}'
        if unp:
            poll_flag(k, f'{q}_fz', 9, 's42', 11, fail, sleep=1)
            z1load(2 * h_, 2 * h_ + 2)
        poll_flag(k, f'{q}_fl', 9, 's49', 11, fail, sleep=1)
        if h_ and cfg.get('stamp') == 63: ustamp(k, cfg, 2)
        k('s_add_u32 s28, s35, 3072')
        for j in range(6): k(f'buffer_load_dwordx4 {A(32+4*j,4)}, v2, s[8:11], {"s35" if j < 3 else "s28"} offen offset:{1024*(j%3)} sc1')
        if unp: unpack(24 * h_, 24 * h_ + 24)
        for j in range(6):
            k(f's_waitcnt vmcnt({5-j})')
            for tt in range(4): k(f'{MF} {V(acc(tt,j),4)}, {A(32+4*j,4)}, {A(160+8*tt+4*h_,4)}, {V(acc(tt,j),4)}')
        if h_ == 0: k('s_add_u32 s35, s35, 49152\ns_add_u32 s49, s49, 128\ns_add_u32 s42, s42, 128')
    k(f's_cmp_eq_u32 s48, 0\ns_cbranch_scc1 {p}_fin2')
    last(0, False); last(1, False)
    k(f's_branch {p}_epi')
    k.label(f'{p}_fin2')
    last(0, True); last(1, True)
    k.label(f'{p}_epi')
    if cfg.get('stamp') == 63: ustamp(k, cfg, 3)
    for j in range(3):
        for tt in range(4):
            d = 16 + 4 * (4 * j + tt); a = acc(tt, 2 * j)
            for i in range(4): k(f'v_pk_mul_f32 {V(a+2*i,2)}, {V(a+2*i,2)}, {V(96+a+2*i,2)}')
            k(f's_add_u32 s28, s43, {24576*tt}')
            for i in range(4): k(f'v_cvt_pk_bf16_f32 v{d+i}, v{a+2*i}, v{a+2*i+1}')
            k(f'buffer_store_dwordx4 {V(d,4)}, v2, s[8:11], s28 offen offset:{1024*j} sc1')
    k(f"""
    s_lshl_b32 s28, s30, 1
    s_add_u32 s28, s28, s32
    s_lshl_b32 s28, s28, 3
    s_lshl_b32 s29, s31, 1
    s_add_u32 s28, s28, s29
    s_add_u32 s28, s28, s33
    s_lshl_b32 s28, s28, 7
    s_add_u32 s28, s28, {FY:#x}
    v_mov_b32 v6, {BIG:#x}
    v_cmp_gt_u32 vcc, {FW}, v1
    v_lshlrev_b32 v7, 2, v1
    s_nop 0
    v_cndmask_b32 v6, v6, v7, vcc
    v_mov_b32 v7, 1
    s_waitcnt vmcnt(0)
    buffer_store_dword v7, v6, s[8:11], s28 offen sc1
    s_branch {end}""")

def gen_wo(k, p, cfg):
    k(f"""
    s_load_dwordx2 s[28:29], s[0:1], {KA['w_out']}
    v_lshrrev_b32 v4, 2, v1
    v_and_b32 v5, 3, v1
    v_mul_u32_u24 v6, 1280, v4
    v_lshl_add_u32 v6, v5, 4, v6
    v_lshlrev_b32 v7, 6, v4
    v_lshl_add_u32 v7, v5, 3, v7
    s_mul_i32 s32, s21, 24576
    v_add_u32 v7, s32, v7
    s_lshl_b32 s34, s20, 2
    s_add_u32 s34, s34, s21
    s_lshl_b32 s33, s34, 6
    s_mul_i32 s34, s34, 49152
    s_add_u32 s34, s34, {WOF:#x}
    s_mov_b32 s35, 2
    s_waitcnt lgkmcnt(0)""")
    k.srd(12, 28, 768 * 1280)
    k.label(f'{p}_r')
    for i in range(24):
        k(f's_add_u32 m0, s32, {1024*i}\ns_add_u32 s28, s33, {i*16*1280}')
        k('buffer_load_dwordx4 v6, s[12:15], s28 offen lds')
    k('s_waitcnt vmcnt(0)')
    for kk in range(12):
        for c in range(2):
            for hf in range(2):
                k(f'ds_read_b64_tr_b16 {V(16+8*kk+4*c+2*hf,2)}, v7 offset:{(32*kk+16*hf)*64 + 32*c}')
    k('s_waitcnt lgkmcnt(0)')
    for i in range(24):
        k(f'buffer_store_dwordx4 {V(16+4*i,4)}, v2, s[8:11], s34 offen offset:{1024*(i%4)} sc1')
        if i % 4 == 3: k('s_add_u32 s34, s34, 4096')
    k(f's_add_u32 s33, s33, {24*16*1280}\ns_sub_u32 s35, s35, 1\ns_cmp_lg_u32 s35, 0\ns_cbranch_scc1 {p}_r')
    flag_addr(k, 6)
    k(f's_mov_b32 s28, {FWO:#x}\ns_waitcnt vmcnt(0)\ns_barrier\nbuffer_store_dword v7, v6, s[8:11], s28 offen sc1')

def gen_g3p(k, p, end, fail, cfg):
    k(f"""
    s_load_dwordx2 s[28:29], s[0:1], {KA['out']}
    v_mbcnt_lo_u32_b32 v1, -1, 0
    v_mbcnt_hi_u32_b32 v1, -1, v1
    s_and_b32 s22, s20, 31
    s_lshr_b32 s20, s20, 5
    v_lshlrev_b32 v2, 4, v1
    v_mov_b32 v9, 0
    s_lshl_b32 s42, s20, 7
    s_add_u32 s42, s42, {FWO:#x}
    s_waitcnt vmcnt(0) lgkmcnt(0)
    s_barrier""")
    k.srd(16, 28, 2048 * 1280)
    poll_flag(k, f'{p}_fw', 9, 's42', 11, fail, sleep=8)
    k(f"""
    s_lshl_b32 s33, s20, 2
    s_add_u32 s33, s33, s21
    s_mul_i32 s34, s33, 49152
    s_add_u32 s34, s34, {WOF:#x}""")
    for i in range(48):
        k(f'buffer_load_dwordx4 {A(4*i,4)}, v2, s[8:11], s34 offen offset:{1024*(i%4)} sc1')
        if i % 4 == 3: k('s_add_u32 s34, s34, 4096')
    k(f"""
    s_mul_i32 s32, s21, 24576
    v_and_b32 v8, 15, v1
    v_lshrrev_b32 v9, 4, v1
    v_mul_u32_u24 v8, 1280, v8
    v_and_b32 v10, 1, v9
    v_lshl_add_u32 v8, v10, 5, v8
    v_lshrrev_b32 v10, 1, v9
    v_lshl_add_u32 v8, v10, 4, v8
    s_mul_i32 s36, s22, 81920
    s_lshl_b32 s37, s33, 10
    s_add_u32 s37, s37, s36
    s_add_u32 s37, s37, {HH:#x}
    s_lshl_b32 s28, s33, 6
    s_add_u32 s36, s36, s28
    v_and_b32 v9, 7, v1
    v_lshlrev_b32 v9, 7, v9
    s_lshl_b32 s42, s22, 10
    s_add_u32 s42, s42, {FY:#x}
    s_mul_i32 s34, s22, 98304
    s_add_u32 s34, s34, s32
    s_add_u32 s34, s34, {YF:#x}
    v_add_u32 v10, 49152, v2
    s_waitcnt vmcnt(0)
    s_cmp_lg_u32 s21, 0
    s_cbranch_scc1 {p}_go""")
    ustamp(k, cfg, 2) if cfg.get('stamp') == 98 else None
    k(f'v_mov_b32 v12, 0\ns_add_u32 s43, s56, {(FH + 63*4096, FG1 + 62*128, FG1 + 4*16384 + 62*128)[cfg.get("g3c", 2)]:#x}')
    poll_flag(k, f'{p}_fe', 12, 's43', 11, fail, sleep=cfg.get('g3s', 16))
    if cfg.get('g3one', 0):
        k('s_lshl_b32 s43, s20, 7\ns_add_u32 s43, s43, s42')
        poll_flag(k, f'{p}_fo', 12, 's43', 11, fail, sleep=cfg.get('sl5', 2))
    poll_flag(k, f'{p}_fy', 9, 's42', 11, fail, sleep=cfg.get('sl5', 2))
    k.label(f'{p}_go')
    k('s_barrier')
    ustamp(k, cfg, 3) if cfg.get('stamp') == 98 else None
    k.vd = k.vc
    acc = lambda tt, c: 32 + 8 * tt + 4 * c
    mats = []; items = []; ev = []
    NUP = cfg.get('g3up', 3)
    for j in range(6):
        g_ = -9 if j < NUP else 18 * (j - NUP) + 1
        ev.append((g_, dict(id=('m', j), kind='n', fn=f's_add_u32 m0, s32, {4096*j}\ns_add_u32 s28, s34, {4096*j}')))
        for i in range(4):
            ev.append((g_ if j < NUP else g_ + 2 + 4 * i, dict(id=('d', 4 * j + i), kind='n', vm=True, fn=f'buffer_load_dwordx4 v2, s[8:11], s28 offen offset:{1024*i} sc1 lds')))
    for tt in range(4):
        ev.append((81 + 4 * tt, dict(id=('h', tt), kind='n', vm=True, fn=f's_add_u32 s28, s37, {20480*tt}\nbuffer_load_dwordx4 {V(16+4*tt,4)}, v2, s[8:11], s28 offen sc1')))
    XR = [64 + 4 * i for i in range(12)]
    stages = {0: 1, 2: 3, 4: 7, 8: 11, 12: 15, 16: 19, 20: 23}
    for kk in range(24):
        if kk in stages:
            g_ = max(8 * kk - 12, -1)
            ev.append((g_ - 0.4, dict(id=('b', kk), kind='bar', fn='s_barrier', vdeps=[('d', stages[kk])], g=g_)))
        for tt in range(4):
            n = 4 * kk + tt; r = XR[n % 12]
            ev.append((max(2 * n - 12, -1), dict(id=('x', n), kind='n', lds=True, fn=f'ds_read_b128 {V(r,4)}, {"v2" if tt < 2 else "v10"} offset:{(tt&1)*24576 + kk*1024}')))
            for c in range(2):
                a = V(acc(tt, c), 4)
                mats.append((f'{MF} {a}, {A(8*kk+4*c,4)}, {V(r,4)}, {"0" if kk == 0 else a}', [('x', n)]))
    ev.sort(key=lambda x: x[0])
    for g_, it in ev:
        it['after'] = it.get('g', g_); items.append(it)
    sched(k, mats, items, [False] * 192, pre_n=5 * NUP + 7)
    ustamp(k, cfg, 4) if cfg.get('stamp') == 98 else None
    k('s_mov_b32 s46, 0xffff0000\ns_waitcnt vmcnt(0)')
    for tt in range(4):
        for i in range(4):
            k(f'v_lshlrev_b32 v{64+2*i}, 16, v{16+4*tt+i}')
            k(f'v_and_b32 v{65+2*i}, s46, v{16+4*tt+i}')
        for i in range(4):
            a = acc(tt, 0) + 2 * i
            k(f'v_pk_add_f32 {V(a,2)}, {V(a,2)}, {V(64+2*i,2)}')
        for i in range(4):
            a = acc(tt, 0) + 2 * i
            k(f'v_cvt_pk_bf16_f32 v{16+4*tt+i}, v{a}, v{a+1}')
        k(f's_add_u32 s28, s36, {20480*tt}\nv_permlane16_swap_b32 v{16+4*tt}, v{18+4*tt}\nv_permlane16_swap_b32 v{17+4*tt}, v{19+4*tt}')
        k(f'buffer_store_dwordx4 {V(16+4*tt,4)}, v8, s[16:19], s28 offen{cfg.get("ost", " sc1")}')
    k(f's_branch {end}')

def header():
    ref = open('cdna_kernels/' + NAME + '.s.ref').read().split('\n')
    out = []
    for line in ref:
        if line.startswith('; Override') : break
        out.append(line)
    return '\n'.join(out) + '\n'

def build_all(cfg):
    global NT1, NT2, RING, RING2, LST, TOUCH, FW, CORD
    CORD = cfg.get('cord', [0, 1, 2, 3, 4, 5, 7, 8, 9, 6])
    FW = cfg.get('fw', 32)
    TOUCH = cfg.get('touch', 0)
    LST = cfg.get('stamp') == 97
    RING = cfg.get('ring', 64); RING2 = cfg.get('ring2', 64)
    NT1 = ' nt' if cfg.get('nt1', 1) else ''
    NT2 = ' nt' if cfg.get('nt2', 1) else ''
    k = K()
    gen_mega_kernel(k, 'mega_kernel', cfg)
    body = k.text().replace('mega_kernel_', 'M_')
    kn = 'mega_kernel' if cfg.get('list', 1) else NAME + '_kernel'
    la = f'; @launch {"kernel=mega_kernel " if cfg.get("list", 1) else ""}grid=(256,1,1) block=(256,1,1) lds={LDS_BYTES}\n'
    return header() + la + '.amdgcn_target "amdgcn-amd-amdhsa--gfx950"\n.text\n' + body.replace('mega_kernel', kn) + '.section .rodata,"a"\n' + descriptor(kn, 512, 256)

if __name__ == '__main__':
    cfg = eval(sys.argv[2]) if len(sys.argv) > 2 else {}
    txt = build_all(cfg)
    open(sys.argv[1] if len(sys.argv) > 1 else 'cur.s', 'w').write(txt)
```

```python
import sys
from asmlib import *

NAME = 'sequential_preLN__memory_aug_recurrent_mem_tr__mixer_gmlp__prompt'
KA = dict(x=0, mem0=8, Wq=16, Wk=24, Wv=32, Wo=40, w_in=64, w_sp=72, b_sp=80, w_out=88, out=96, dbg=104, ws=112)
WS_BYTES = 0x10000000
WBYTES = 640 * 6144 * 2
XN   = 0x0000000
FL   = 0x0800000
FU, FQK, FKM, FPX = FL, FL + 0x40000, FL + 0xC0000, FL + 0x100000
DUMMY = 0x09C0000
STAMPS = 0x0C30000
TRACE = 0x0D00000
ST   = 0x0C00000
ZR   = 0x0A00000
QF   = 0x1000000
UF   = 0x4000000
ZM   = 0xC000000
KM   = 0xA400000
PX   = 0xAA00000
HH   = 0xB000000
Z1F  = 0xB400000
Z2F  = 0xB800000
YF   = 0xBC00000
VF   = 0x9000000
FP1  = 0x0880000
FH   = 0x0940000
FG1  = 0x0986000
FWT  = 0x09A8000
FY   = 0x09AC000
WSF  = ZM + 0xD0000
WST  = 66560
MB   = ZM + 0xC0000
WOF  = 0xA000000
FWO  = 0x09B4000
P_OFF, M_OFF = 0, 20480
LDS_BYTES = 163840
WL = 0
BIG = 0x7ff00000

def mbmap(off):
    return (off >> 13) * 16384 + (off & 8191)

def v_mbmap(k, d, t):
    k(f'v_lshrrev_b32 v{t}, 13, v{d}')
    k(f'v_lshlrev_b32 v{t}, 13, v{t}')
    k(f'v_add_u32 v{d}, v{d}, v{t}')

NINIT = 96
def dbg_srd(k):
    k.srd(88, 4, 256)

TOUCH = 0
def init_done(k, p):
    if TOUCH == 1:
        k(f'v_and_b32 v8, 127, v0\nv_lshlrev_b32 v8, 21, v8\nv_add_u32 v8, 0xa0000, v8\nbuffer_load_dword v9, v8, s[8:11], 0 offen')
    if LST: k('s_memrealtime s[60:61]\ns_waitcnt vmcnt(0)\ns_memrealtime s[62:63]')
    k(f"""
    s_waitcnt vmcnt(0)
    s_barrier
    s_cmp_lg_u32 s21, 0
    s_cbranch_scc1 {p}_id
    s_lshl_b32 s34, s34, 16
    s_add_u32 s34, s34, 1
    v_mov_b32 v8, s34
    v_mov_b32 v9, {BIG:#x}
    v_cmp_eq_u32 vcc, 0, v1
    s_nop 1
    v_cndmask_b32_e64 v9, v9, 0, vcc
    s_cmp_ge_u32 s35, 2
    s_cbranch_scc1 {p}_na
    s_lshl_b32 s35, s35, 2
    buffer_store_dword v8, v9, s[88:91], s35 offen offset:132 sc1""")
    k.label(f'{p}_na')
    k(f"""
    buffer_atomic_add v8, v9, s[88:91], 0 offen sc0 sc1
    s_waitcnt vmcnt(0)
    v_readfirstlane_b32 s28, v8
    s_add_u32 s28, s28, s34
    s_and_b32 s29, s28, 0xffff
    s_cmp_lg_u32 s29, {NINIT}
    s_cbranch_scc1 {p}_id
    s_lshr_b32 s28, s28, 16
    s_cmp_gt_u32 s28, 32
    s_cselect_b32 s28, 2, 1
    v_mov_b32 v8, s28
    buffer_store_dword v8, v9, s[88:91], 0 offen offset:128 sc1""")
    k.label(f'{p}_id')
    if TOUCH == 2:
        k(f'v_and_b32 v8, 127, v0\nv_lshlrev_b32 v8, 21, v8\nv_add_u32 v8, 0xa0000, v8\nbuffer_load_dword v9, v8, s[8:11], 0 offen')

def gen_init_ln(k, p):
    k(f's_load_dwordx2 s[28:29], s[0:1], {KA["x"]}')
    k(f"""
    v_lshlrev_b32 v2, 4, v1
    v_and_b32 v3, 15, v1
    v_lshrrev_b32 v4, 4, v1
    v_mul_u32_u24 v5, 1280, v3
    v_lshl_add_u32 v5, v4, 4, v5
    s_min_u32 s31, s30, 63
    s_mul_i32 s31, s31, 40960
    s_lshr_b32 s32, s21, 1
    s_mul_i32 s32, s32, 20480
    s_and_b32 s33, s21, 1
    s_mul_i32 s33, s33, 640
    s_add_u32 s32, s32, s33
    s_add_u32 s32, s32, s31
    s_waitcnt lgkmcnt(0)""")
    k.srd(12, 28, 2048 * 1280)
    for i in range(10):
        k(f'buffer_load_dwordx4 {V(16+4*i,4)}, v5, s[12:15], s32 offen offset:{64*i}')
    rot_wait(k, 8)
    k(f"""
    v_lshlrev_b32 v6, 4, v0
    v_mov_b32 v8, 0
    v_mov_b32 v9, 0
    v_mov_b32 v10, 0
    v_mov_b32 v11, 0
    s_mul_i32 s28, s30, 24576
    s_add_u32 s28, s28, {FL:#x}""")
    for j in range(6):
        k('buffer_store_dwordx4 v[8:11], v6, s[8:11], s28 offen sc1\ns_add_u32 s28, s28, 4096')
    k(f"""
    v_mov_b32 v60, -1
    v_mov_b32 v61, -1
    v_mov_b32 v62, -1
    v_mov_b32 v63, -1
    s_lshr_b32 s28, s30, 1
    s_mul_i32 s28, s28, 24576
    s_min_u32 s28, s28, {0xD0000 - 24576:#x}
    s_and_b32 s29, s30, 1
    s_lshl_b32 s29, s29, 20
    s_add_u32 s28, s28, s29
    s_add_u32 s28, s28, {ZM:#x}""")
    for j in range(6):
        k('buffer_store_dwordx4 v[60:63], v6, s[8:11], s28 offen sc1\ns_add_u32 s28, s28, 4096')
    k(f"""
    s_cmp_ge_u32 s30, 64
    s_cbranch_scc1 {p}_nl
    s_mov_b32 s34, 0x3f803f80
    s_mov_b32 s35, 0xffff0000
    s_lshl_b32 s28, s21, 7
    v_lshlrev_b32 v7, 3, v3
    v_add_u32 v7, s28, v7
    v_xor_b32 v6, 128, v7
    s_waitcnt vmcnt(12)""")
    for i in range(0, 40, 2):
        c = (lambda r: '0') if i == 0 else (lambda r: f'v{r}')
        k(f'v_dot2_f32_bf16 v12, v{16+i}, s34, {c(12)}')
        k(f'v_dot2_f32_bf16 v13, v{16+i}, v{16+i}, {c(13)}')
        k(f'v_dot2_f32_bf16 v14, v{17+i}, s34, {c(14)}')
        k(f'v_dot2_f32_bf16 v15, v{17+i}, v{17+i}, {c(15)}')
    k.nop(3)
    k('v_pk_add_f32 v[12:13], v[12:13], v[14:15]')
    for sw in ('v_permlane32_swap_b32', 'v_permlane16_swap_b32'):
        k(f'v_mov_b32 v14, v12\nv_mov_b32 v15, v13\ns_nop 1\n{sw} v12, v14\n{sw} v13, v15\nv_pk_add_f32 v[12:13], v[12:13], v[14:15]')
    k(f"""
    ds_write_b64 v7, v[12:13]
    s_waitcnt lgkmcnt(0)
    s_barrier
    ds_read_b64 v[14:15], v6
    s_mul_i32 s28, s21, 10240
    s_add_u32 s31, s31, s28
    s_waitcnt lgkmcnt(0)
    v_pk_add_f32 v[12:13], v[12:13], v[14:15]
    v_mul_f32 v12, {1.0/640!r}, v12
    v_mul_f32 v13, {1.0/640!r}, v13
    v_fma_f32 v13, -v12, v12, v13
    v_max_f32 v13, 0, v13
    v_add_f32 v13, 1e-5, v13
    v_rsq_f32 v14, v13
    s_nop 0
    v_mul_f32_e64 v12, -v12, v14""")
    for i in range(10):
        for j in range(4):
            r = 16 + 4 * i + j; tp = 56 + 2 * (j & 1)
            k(f'v_lshlrev_b32 v{tp}, 16, v{r}')
            k(f'v_and_b32 v{tp+1}, s35, v{r}')
            k(f'v_pk_fma_f32 {V(tp,2)}, {V(tp,2)}, v[14:15], v[12:13] op_sel_hi:[1,0,0]')
            k(f'v_cvt_pk_bf16_f32 v{r}, v{tp}, v{tp+1}')
        k(f'buffer_store_dwordx4 {V(16+4*i,4)}, v2, s[8:11], s31 offen offset:{1024*(i%4)} sc1')
        if i % 4 == 3: k('s_add_u32 s31, s31, 4096')
    k.label(f'{p}_nl')
    k('s_mov_b32 s34, 0\ns_mov_b32 s35, s30')
    init_done(k, p)

def gen_init_x(k, p):
    k(f"""
    s_load_dwordx2 s[28:29], s[0:1], {KA["mem0"]}
    v_lshlrev_b32 v5, 4, v0
    s_lshl_b32 s31, s30, 12
    v_add_u32 v8, s31, v5
    v_lshrrev_b32 v9, 8, v8
    v_bfe_u32 v10, v8, 5, 1
    v_lshl_add_u32 v9, v9, 1, v10
    v_bfe_u32 v10, v8, 6, 2
    v_bfe_u32 v11, v8, 4, 1
    v_lshl_add_u32 v10, v10, 1, v11
    v_mul_u32_u24 v10, 1280, v10
    v_lshl_add_u32 v10, v9, 4, v10
    v_mov_b32 v11, {BIG:#x}
    v_cmp_gt_u32 vcc, 10240, v8
    v_add_u32 v8, {M_OFF}, v8""")
    v_mbmap(k, 8, 9)
    k(f"""
    v_cndmask_b32 v10, v11, v10, vcc
    v_cndmask_b32 v8, v11, v8, vcc
    v_lshlrev_b32 v6, 2, v1
    s_mov_b32 s36, -1
    s_mov_b32 s37, -1
    s_lshl_b32 s38, s30, 14
    s_lshl_b32 s33, s21, 11
    s_add_u32 s38, s38, s33
    s_add_u32 s38, s38, {ZR + 0xB0000:#x}
    s_waitcnt lgkmcnt(0)""")
    k.srd(12, 28, 8 * 1280)
    k('buffer_load_dwordx4 v[16:19], v10, s[12:15], 0 offen\nbuffer_store_dword v6, v6, s[8:11], s38 offen sc1\ns_waitcnt vmcnt(0)')
    for rep in range(5):
        for hf in ((0, 1), (1, 0))[rep & 1]:
            k(f"""
            s_add_u32 s33, s38, {hf*8192 + rep*256 + 512}
            s_memtime s[40:41]
            s_waitcnt lgkmcnt(0)
            buffer_store_dword v6, v6, s[8:11], s33 offen sc1
            s_waitcnt vmcnt(0)
            s_memtime s[42:43]
            s_waitcnt lgkmcnt(0)
            s_sub_u32 s42, s42, s40
            s_min_u32 s{36+hf}, s{36+hf}, s42""")
    rot_wait(k, 12)
    k(f"""
    v_mov_b32 v12, -1
    v_mov_b32 v13, -1
    v_mov_b32 v14, -1
    v_mov_b32 v15, -1
    s_add_u32 s29, s31, {ST:#x}
    buffer_store_dwordx4 v[12:15], v5, s[8:11], s29 offen sc1
    s_and_b32 s28, s31, 0x7000
    s_add_u32 s29, s28, {ZR + 0xA0000:#x}
    s_add_u32 s28, s28, {ST + 0x10000:#x}
    s_cmp_lt_u32 s30, 8
    s_cselect_b32 s29, s29, s28
    buffer_store_dwordx4 v[12:15], v5, s[8:11], s29 offen sc1
    s_mov_b32 s28, {MB - 0x100000:#x}
    s_mov_b32 s29, {MB - 0x100000 + 8192:#x}
    v_min_u32 v16, -2, v16
    v_min_u32 v17, -2, v17
    v_min_u32 v18, -2, v18
    v_min_u32 v19, -2, v19
    buffer_store_dwordx4 v[16:19], v8, s[8:11], s28 offen sc1
    buffer_store_dwordx4 v[16:19], v8, s[8:11], s29 offen sc1
    s_cmp_lt_u32 s37, s36
    s_cselect_b32 s34, 1, 0
    s_lshl_b32 s28, s21, 2
    v_mov_b32 v4, s28
    v_mov_b32 v7, s34
    ds_write_b32 v4, v7
    v_mov_b32 v4, 0
    s_waitcnt lgkmcnt(0)
    s_barrier
    ds_read_b128 v[20:23], v4
    s_waitcnt lgkmcnt(0)
    v_add3_u32 v20, v20, v21, v22
    v_add_u32 v20, v20, v23
    s_nop 0
    v_readfirstlane_b32 s34, v20
    s_mov_b32 s35, 2""")
    init_done(k, p)

class Wmap:
    def __init__(self, keys, size, ldskeys):
        self.size = size; self.loc = {}; self.tmp = {}; self.slot = {}
        a = 0; v = 128; t = 32
        for key in keys:
            if key in ldskeys:
                self.tmp[key] = ('v', t); self.slot[key] = (t - 32) // 4; t += size
            elif a < 256:
                self.loc[key] = ('a', a); a += size
            else:
                self.loc[key] = ('v', v); v += size
        assert a == 256 and v == 256 and t == 128, (a, v, t)
    def ld(self, key):
        return self.loc.get(key) or self.tmp[key]

NT1 = ''
NT2 = ''
LST = False
def lstamp(k, c):
    if LST and c in (0, 3, 6, 9): k(f's_memrealtime s[{60+2*(c//3)}:{61+2*(c//3)}]')

def gen_loader(k, kind, sparse, wm, early=lambda: None):
    k.c('---- weight loader')
    for i in range(3):
        k(f'v_add_u32 v8, {64*i}, v1')
        k(f'v_mul_u32_u24 v9, 2731, v8')
        k(f'v_lshrrev_b32 v9, 16, v9')
        k(f'v_mul_u32_u24 v10, 24, v9')
        k(f'v_sub_u32 v10, v8, v10')
        k(f'v_mul_u32_u24 v9, 12288, v9')
        k(f'v_lshl_add_u32 v{4+i}, v10, 4, v9')
    k('''
    v_lshrrev_b32 v8, 3, v1
    v_mul_u32_u24 v8, 1280, v8
    v_and_b32 v9, 7, v1
    v_lshl_add_u32 v7, v9, 4, v8
    v_lshrrev_b32 v8, 4, v1
    v_bfe_u32 v9, v1, 2, 2
    v_and_b32 v10, 3, v1''')
    if sparse:
        k('''
        v_lshrrev_b32 v11, 1, v8
        v_lshlrev_b32 v11, 4, v11
        v_and_b32 v12, 1, v8
        v_lshl_add_u32 v11, v12, 2, v11
        v_and_b32 v12, 1, v9
        v_add_u32 v11, v11, v12
        v_lshrrev_b32 v12, 1, v9
        v_lshl_add_u32 v11, v12, 3, v11''')
    else:
        k('v_lshl_add_u32 v11, v8, 3, v9')
    k('v_mul_u32_u24 v11, 384, v11')
    k('v_lshl_add_u32 v11, v10, 3, v11')
    if kind == 'QK':
        k('''
        s_lshr_b32 s28, s21, 1
        s_mul_i32 s28, s28, 24576
        s_and_b32 s29, s21, 1
        s_mul_i32 s29, s29, 192
        s_add_u32 s28, s28, s29''')
    else:
        k('s_mul_i32 s28, s21, 96')
    k('v_add_u32 v11, s28, v11')
    if kind == 'VO':
        if sparse:
            k('v_and_b32 v12, 1, v9')
            k('v_lshrrev_b32 v13, 1, v9')
            k('v_lshl_add_u32 v12, v12, 1, v13')
            k('v_lshl_add_u32 v12, v8, 3, v12')
        else:      k('v_lshl_add_u32 v12, v8, 2, v9')
        k('v_lshlrev_b32 v12, 7, v12')
        k('v_lshl_add_u32 v12, v10, 3, v12')
        k('s_lshl_b32 s28, s21, 5')
        k('s_add_u32 s28, s28, 24576')
        k('v_add_u32 v12, s28, v12')
    k('''
    s_mul_i32 s30, s20, 384
    s_mul_i32 s28, s21, 196608
    s_add_u32 s30, s30, s28
    s_mul_i32 s31, s20, 245760
    s_mul_i32 s28, s21, 61440
    s_add_u32 s31, s31, s28
    s_mul_i32 s32, s21, 6144''')
    tick = {}
    CO = CORD
    def issue(n):
        c = CO[n]
        slot = ((n + 2) % 3) * 49152
        for m in range(2):
            for i in range(6):
                k(f's_add_u32 m0, s32, {slot + m*24576 + i*1024}')
                if m == 0 or kind == 'QK':
                    k(f's_add_u32 s33, s30, {c*786432 + (i//3)*98304}')
                    tick[n] = k.vm(f'buffer_load_dwordx4 v{4+i%3}, {S(12+4*m,4)}, s33 offen{NT1} lds')
                else:
                    k(f's_add_u32 s33, s31, {i*10240 + c*128}')
                    tick[n] = k.vm(f'buffer_load_dwordx4 v7, s[16:19], s33 offen{NT1} lds')
    for n in range(3): issue(n)
    for n in range(10):
        c = CO[n]
        slot = ((n + 2) % 3) * 49152
        k.wv(tick[n])
        k('s_barrier')
        lstamp(k, n)
        k(f'v_add_u32 v13, {slot}, v11')
        if kind == 'VO': k(f'v_add_u32 v14, {slot}, v12')
        nt = 6 if kind == 'QK' else 3
        for t in range(nt):
            for pi in range(4):
                fr, tq = pi >> 1, pi & 1
                if sparse:
                    key = (t, c) if kind == 'QK' else ('v', t, c)
                    dst = R(wm.ld(key), 2, 2 * pi); row = 32 * fr + 2 * tq
                else:
                    key = (t, 2 * c + fr) if kind == 'QK' else ('v', t, 2 * c + fr)
                    dst = R(wm.ld(key), 2, 2 * tq); row = 32 * fr + 4 * tq
                k.lds(f'ds_read_b64_tr_b16 {dst}, v13 offset:{row*384 + t*32}')
        if kind == 'VO':
            for kk in range(6):
                for hf in range(2):
                    if sparse:
                        dst = R(wm.ld(('o', c, kk >> 1)), 2, 4 * (kk & 1) + 2 * hf); row = 32 * kk + 4 * hf
                    else:
                        dst = R(wm.ld(('o', c, kk)), 2, 2 * hf); row = 32 * kk + 16 * hf
                    k.lds(f'ds_read_b64_tr_b16 {dst}, v14 offset:{row*128}')
        k.wl_all()
        k('s_barrier')
        if n == 6:
            k('v_mov_b32 v16, 128')
            tick[8] = k.vm('buffer_load_dwordx4 v[20:23], v16, s[88:91], 0 offen sc1')
        if n + 3 < 10: issue(n + 3)
        if n == 8:
            k(f'v_lshlrev_b32 v2, 4, v1\ns_mul_i32 s28, s21, 24576\nv_add_u32 v3, s28, v2')
            for i in range(24):
                k.lds(f'ds_write_b128 v3, {V(32+4*i,4)} offset:{WL + 1024*i}')
            k.wl_all()
            early()

def stream(k, ops, loads, rings, dist, preissued=None, maxper=2, tail=(), group=1, minpos=None):
    first = {}; last = {}
    for i, (_, keys, _) in enumerate(ops):
        for key in keys:
            first.setdefault(key, i); last[key] = i
    for key, i in tail:
        first[key] = i; last[key] = i
    order = sorted(first, key=lambda x: first[x])
    reg = {}; tk = {}; pos = {}
    nxt = {n: 0 for n in rings}; occ = {}
    if preissued:
        for key, (r, t) in preissued.items():
            reg[key] = r; tk[key] = t
            ring = loads[key][0]
            if r in rings[ring]:
                occ[(ring, r)] = key
                nxt[ring] = (rings[ring].index(r) + 1) % len(rings[ring])
    for key in order:
        if key in reg: continue
        ring = loads[key][0]
        r = rings[ring][nxt[ring]]; nxt[ring] = (nxt[ring] + 1) % len(rings[ring])
        p = first[key] - dist
        if (ring, r) in occ: p = max(p, last[occ[(ring, r)]] + 1)
        if minpos and key in minpos: p = max(p, minpos[key])
        occ[(ring, r)] = key
        p = max(p, 0)
        assert p <= first[key] - first[key] % group, (key, p, first[key])
        reg[key] = r; pos[key] = p
    pend = sorted(pos, key=lambda x: (first[x]))
    tailkeys = set(key for key, _ in tail); tout = []
    def issue(key):
        for f in loads[key][1]:
            tk[key] = k.lds(f(reg[key]))
        pend.remove(key)
        if key in tailkeys: tout.append((key, reg[key]))
    for i, (fn, keys, post) in enumerate(ops):
        n = 0
        for key in list(pend):
            if pos[key] <= i and (n < maxper or first[key] <= i + group or i == 0):
                issue(key); n += 1
        if i % group == 0:
            need = [tk[key] for j in range(i, min(i + group, len(ops))) for key in ops[j][1]]
            if need: k.wl(max(need))
        k(fn(reg))
        for p in post:
            if callable(p): p()
            else: k(p)
    for key in list(pend): issue(key)
    return tout

def role_common(k, mats):
    w = dict(Wq=92, Wk=94, Wv=96, Wo=98)
    k.srd(12, w[mats[0]], WBYTES)
    k.srd(16, w[mats[1]], WBYTES)

FW = 32
def flag_addr(k, d, src='v0', line='s20'):
    if line: k(f's_lshl_b32 s28, {line}, 7')
    k(f'''
    v_mov_b32 v{d}, {BIG:#x}
    v_lshl_add_u32 v{d+1}, {src}, 2, {'s28' if line else '0'}
    v_cmp_gt_u32 vcc, {FW}, {src}
    s_nop 1
    v_cndmask_b32 v{d}, v{d}, v{d+1}, vcc
    v_mov_b32 v{d+1}, 1''')

MF = 'v_mfma_f32_16x16x32_bf16'
SM = 'v_smfmac_f32_16x16x64_bf16'

def regmap(keys, v0):
    loc = {}; a = 0; v = v0
    for key in keys:
        if a < 256: loc[key] = ('a', a); a += 4
        else: loc[key] = ('v', v); v += 4
    assert v == 256, v
    return loc

def gen_loader2(k, kind, loc, p, cfg, setup, start, after):
    k.c('---- weight loader')
    NS = 3; SB0 = 61440
    if kind == 'PJ':
        for i in range(3):
            k(f"""
            v_add_u32 v100, {64*i}, v1
            v_mul_u32_u24 v101, 2731, v100
            v_lshrrev_b32 v101, 16, v101
            v_mul_u32_u24 v102, 24, v101
            v_sub_u32 v102, v100, v102
            v_mul_u32_u24 v101, 12288, v101
            v_lshl_add_u32 v{96+i}, v102, 4, v101""")
    k("""
    v_lshrrev_b32 v100, 3, v1
    v_and_b32 v101, 7, v1
    v_lshlrev_b32 v101, 4, v101
    v_mul_u32_u24 v99, 12288, v100
    v_add_u32 v99, v99, v101""")
    if kind == 'VU':
        k('v_mul_u32_u24 v96, 1280, v100\nv_add_u32 v96, v96, v101')
    k("""
    v_lshrrev_b32 v100, 4, v1
    v_bfe_u32 v101, v1, 2, 2
    v_and_b32 v102, 3, v1
    v_lshl_add_u32 v103, v100, 3, v101
    v_lshlrev_b32 v104, 7, v103
    v_lshl_add_u32 v104, v102, 3, v104
    v_add_u32 v104, 24576, v104""")
    if kind == 'PJ':
        k("""
        v_mul_u32_u24 v103, 384, v103
        v_lshl_add_u32 v103, v102, 3, v103
        s_lshl_b32 s28, s21, 7
        v_add_u32 v103, s28, v103
        s_mul_i32 s80, s20, 384
        s_mul_i32 s28, s21, 196608
        s_add_u32 s80, s80, s28
        s_add_u32 s81, s80, s33""")
    else:
        k("""
        v_and_b32 v103, 1, v101
        v_lshlrev_b32 v103, 4, v103
        v_lshrrev_b32 v105, 1, v101
        v_add_u32 v103, v103, v105
        v_lshl_add_u32 v103, v100, 2, v103
        v_lshlrev_b32 v103, 7, v103
        v_lshl_add_u32 v103, v102, 3, v103
        s_lshl_b32 s28, s21, 5
        v_add_u32 v103, s28, v103
        s_lshr_b32 s28, s21, 1
        s_lshl_b32 s28, s28, 6
        v_add_u32 v104, s28, v104
        s_mul_i32 s80, s20, 245760
        s_mul_i32 s28, s21, 61440
        s_add_u32 s80, s80, s28
        s_mul_i32 s81, s20, 384
        s_mul_i32 s28, s21, 196608
        s_add_u32 s81, s81, s28
        s_add_u32 s81, s81, 256""")
    k('s_mul_i32 s82, s21, 6144\ns_lshl_b32 s84, s21, 11')
    tick = {}
    def issue(c):
        slot = SB0 + (c % NS) * 32768
        if 3 <= c: tick[c - 1] = k.vm('buffer_load_dwordx4 v[92:95], v100, s[88:91], 0 offen sc1')
        for i in range(6):
            k(f's_add_u32 m0, s82, {slot + i*1024}')
            if kind == 'PJ':
                k(f's_add_u32 s85, s80, {c*786432 + (i//3)*98304}')
                k.vm(f'buffer_load_dwordx4 v{96+i%3}, s[12:15], s85 offen{NT2} lds')
            else:
                k(f's_add_u32 s85, s80, {i*10240 + c*128}')
                k.vm(f'buffer_load_dwordx4 v96, s[12:15], s85 offen{NT2} lds')
        for i in range(2):
            k(f's_add_u32 m0, s84, {slot + 24576 + i*1024}')
            k(f's_add_u32 s85, s81, {c*786432 + i*98304}')
            tick[c] = k.vm(f'buffer_load_dwordx4 v99, s[16:19], s85 offen{NT2} lds')
    k('v_mov_b32 v100, 128\nv_mov_b32 v92, 0\nv_mov_b32 v93, 0\nv_mov_b32 v94, 0\nv_mov_b32 v95, 0\ns_mov_b32 s86, 0\nv_lshlrev_b32 v2, 4, v1')
    for c in range(NS): issue(c)
    setup()
    for c in range(10):
        slot = SB0 + (c % NS) * 32768
        k.wv(tick[c])
        k('s_barrier')
        lstamp(k, c)
        k(f'v_add_u32 v105, {slot}, v103')
        k(f'v_add_u32 v106, {slot}, v104')
        def areads(nt, areg, rs, keyf):
            for t in range(nt):
                for pi in range(4):
                    fr, tq = pi >> 1, pi & 1
                    k(f'ds_read_b64_tr_b16 {R(loc[keyf(t, 2*c+fr)], 2, 2*tq)}, v{areg} offset:{(32*fr+4*tq)*rs + t*32}')
        if kind == 'PJ':
            k(f's_cmp_eq_u32 s21, 3\ns_cbranch_scc1 {p}_l{c}v')
            areads(4, 105, 384, lambda t, kk: (t, kk))
            k(f's_branch {p}_l{c}e')
            k.label(f'{p}_l{c}v')
            areads(4, 106, 128, lambda t, kk: (t, kk))
            k.label(f'{p}_l{c}e')
        else:
            areads(2, 106, 128, lambda t, kk: ('v', t, kk))
            for kk in range(6):
                for hf in range(2):
                    k(f'ds_read_b64_tr_b16 {R(loc[("o", c, kk)], 2, 2*hf)}, v105 offset:{(32*kk+2*hf)*128}')
        k('s_waitcnt lgkmcnt(0)')
        if c + NS < 10 or c == 9: k('s_barrier')
        if c == 2:
            k(f'v_cmp_eq_u32 vcc, 0, v95\ns_cbranch_vccnz {p}_r0')
            rot_check(k, 95)
            k(f's_branch {p}_r1')
            k.label(f'{p}_r0')
            rot_wait(k, 101)
            k.label(f'{p}_r1')
        if 2 <= c <= 5:
            k(f's_cmp_lg_u32 s86, 0\ns_cbranch_scc1 {p}_g{c}\nv_min_u32 v101, v93, v94\nv_cmp_ne_u32 vcc, 0, v101')
            if c < 5: k(f's_cbranch_vccz {p}_g{c}')
            else:
                k(f's_cbranch_vccnz {p}_gs')
                load_sel(k, cfg, 101, 107)
                k.label(f'{p}_gs')
            start()
            k('s_mov_b32 s86, 1')
            k.label(f'{p}_g{c}')
        if c == 8:
            k(f'v_cmp_ne_u32 vcc, 0, v92\ns_cbranch_vccz {p}_gw')
            sel_from(k, cfg, 92)
            k(f's_branch {p}_gx')
            k.label(f'{p}_gw')
            load_sel(k, cfg, 101, 107)
            k.label(f'{p}_gx')
        if c + NS < 10: issue(c + NS)
        after(c)

def gen_pj(k, p, end, cfg={}):
    loc = regmap([(t, kk) for kk in range(20) for t in range(4)], 192)
    k(f"""
    s_cmp_eq_u32 s24, 0
    s_cselect_b64 s[28:29], s[94:95], s[92:93]
    s_lshl_b32 s33, s24, 7""")
    k.srd(12, 28, WBYTES)
    k.srd(16, 96, WBYTES)
    XB = 0
    def dma_list(slot):
        return [f's_add_u32 m0, s34, {slot}\ns_add_u32 s29, s35, 4096\nbuffer_load_dwordx4 v2, s[8:11], s35 offen sc1 lds'] + \
               [f'buffer_load_dwordx4 v2, s[8:11], s35 offen offset:{1024*i} sc1 lds' for i in (1, 2, 3)] + \
               [f's_add_u32 m0, m0, 4096\ns_add_u32 s35, s35, 20480\nbuffer_load_dwordx4 v2, s[8:11], s29 offen sc1 lds']
    def setup():
        flag_addr(k, 6)
        k(f"""
        s_mul_i32 s35, s21, 5120
        s_add_u32 s34, s35, {XB}
        s_lshl_b32 s38, s21, 11
        s_mul_i32 s28, s24, 12288
        s_sub_u32 s38, s38, s28
        s_add_u32 s38, s38, {QF + 12288:#x}
        s_lshl_b32 s28, s24, 11
        s_add_u32 s28, s28, {VF:#x}
        s_mov_b32 s44, 6144
        s_cmp_eq_u32 s21, 3
        s_cselect_b32 s38, s28, s38
        s_cselect_b32 s44, 4096, s44
        s_cselect_b32 s45, 1, 3
        s_lshl_b32 s28, s45, 13
        s_mul_i32 s28, s20, s28
        s_add_u32 s38, s38, s28
        s_lshl_b32 s45, s45, 18
        s_mov_b32 s36, {DUMMY + 4096:#x}
        s_mov_b32 s37, {DUMMY:#x}
        s_mul_i32 s43, s24, {FP1 - FQK:#x}
        s_add_u32 s43, s43, {FQK:#x}
        s_mov_b32 s40, 40960
        s_mov_b32 s41, 0
        s_mov_b32 s42, 20480
        v_add_u32 v4, {XB + 40960}, v2
        v_add_u32 v5, {XB}, v2""")
        for i in range(3):
            d = 24 + i
            k(f"""
            s_mul_i32 s28, s21, 12
            s_add_u32 s28, s28, {4*i}
            v_lshrrev_b32 v8, 4, v1
            v_add_u32 v8, s28, v8
            v_and_b32 v9, 15, v1
            v_lshlrev_b32 v9, 4, v9
            s_lshl_b32 s28, s20, 8
            v_lshl_add_u32 v{d}, v8, 14, v9
            v_add_u32 v{d}, s28, v{d}
            v_subrev_u32 v10, 40, v8
            v_lshl_add_u32 v10, v10, 8, v9
            s_mul_i32 s28, s20, 640
            v_add_u32 v11, s28, v10
            s_mul_i32 s28, s20, 384
            s_add_u32 s28, s28, {M_OFF - 640}
            v_add_u32 v12, s28, v10
            v_cmp_gt_u32 vcc, 640, v10
            s_nop 1
            v_cndmask_b32 v11, v12, v11, vcc""")
            v_mbmap(k, 11, 12)
            k(f"""
            v_add_u32 v11, {MB - ZM:#x}, v11
            v_mov_b32 v12, {BIG:#x}
            v_cmp_gt_u32 vcc, 1024, v10
            s_nop 1
            v_cndmask_b32 v11, v12, v11, vcc
            v_cmp_gt_u32 vcc, 40, v8
            s_nop 1
            v_cndmask_b32 v{d}, v11, v{d}, vcc""")
        k('s_cmp_eq_u32 s24, 0\ns_cselect_b64 vcc, -1, 0')
        for i in range(3): k(f'v_cndmask_b32 v{24+i}, v12, v{24+i}, vcc')
        k(f'v_mov_b32 v28, -1\nv_mov_b32 v29, -1\nv_mov_b32 v30, -1\nv_mov_b32 v31, -1\ns_mov_b32 s46, {ZM + 0x200000:#x}')
    def start():
        for slot in (0, 20480, 40960):
            for s_ in dma_list(slot): k(s_)
    def after(c):
        if c < 8: return
        ops = []; loads = {}
        for kk in (range(18) if c == 8 else range(18, 20)):
            for tt in range(2):
                loads[(kk, tt)] = ('x', [lambda r, kk=kk, tt=tt: f'ds_read_b128 {V(r,4)}, v2 offset:{XB + tt*20480 + kk*1024}'])
                for t in range(4):
                    acc = V((8, 76)[tt] + 4 * t, 4); c_ = '0' if kk == 0 else acc
                    ops.append((lambda rg, key=(t, kk), acc=acc, c_=c_, xk=(kk, tt): f'{MF} {acc}, {R(loc[key],4)}, {V(rg[xk],4)}, {c_}', [(kk, tt)], []))
        stream(k, ops, loads, dict(x=[32, 36, 40, 44, 48]), 12, maxper=1, group=4)
    gen_loader2(k, 'PJ', loc, p, cfg, setup, start, after)
    ustamp(k, cfg, 5)
    k('s_add_u32 s28, s38, s44')
    k.nop(4)
    for tt in range(2):
        a = (8, 76)[tt]
        for j in range(2):
            d = 52 + 8 * tt + 4 * j
            for i in range(4): k(f'v_cvt_pk_bf16_f32 v{d+i}, v{a+8*j+i}, v{a+8*j+4+i}')
            k(f'buffer_store_dwordx4 {V(d,4)}, v2, s[8:11], {"s38" if tt == 0 else "s28"} offen offset:{1024*j} sc1')
    k(f"""
    s_add_u32 s38, s38, s45
    s_mov_b32 s22, 1
    s_waitcnt vmcnt(0)
    s_barrier
    buffer_store_dword v7, v6, s[8:11], s43 offen sc1
    s_add_u32 s43, s43, 4096""")
    for s_ in dma_list('s41'): k(s_)
    ACC = (8, 76)
    XR = [96 + 4 * i for i in range(8)]
    NPF = 4
    for n in range(NPF): k.lds(f'ds_read_b128 {V(XR[n],4)}, v4 offset:{n*1024}')
    k.label(f'{p}_loop')
    k.lc += NPF; k.ld = k.lc - NPF
    pre = {('x', n): k.ld + 1 + n for n in range(NPF)}
    stamp(k, cfg, 0)
    mats = []; items = []; ev = []
    for n in range(NPF, 40 + NPF):
        u, kk = (n // 20) % 2, n % 20
        ev.append((4 * (n - NPF) + (0 if n & 1 else 4) - 3, dict(id=('x', n), kind='n', lds=True, fn=f'ds_read_b128 {V(XR[n%8],4)}, v{4+u} offset:{kk*1024}',
                   order=[('bar', n // 20 - 1)] if n >= 20 else [])))
    for u in range(2):
        a0 = ACC[u]; pa = ACC[1 - u]; b = 80 * u
        for kk in range(20):
            n = 20 * u + kk
            for t in range(4):
                acc = V(a0 + 4 * t, 4)
                need = [('x', n), ('x', n | 1)] if t == 0 and not (n & 1) else []
                mats.append((f'{MF} {acc}, {R(loc[(t,kk)],4)}, {V(XR[n%8],4)}, {"0" if kk == 0 else acc}', need))
        E = lambda g_, fn, **kw: ev.append((b + g_, dict(id=('e', u, len(ev)), kind='n', fn=fn, **kw)))
        for j in range(2):
            for i in range(4):
                it = dict(id=('c', u, j, i), kind='v', fn=f'v_cvt_pk_bf16_f32 v{64+4*j+i}, v{pa+8*j+i}, v{pa+8*j+4+i}', after=b + 3)
                if j == 0 and i == 0: it['states'] = (max(b - 1, 0), 8)
                items.append(it)
            E(6 + 4 * j, f'buffer_store_dwordx4 {V(64+4*j,4)}, v2, s[8:11], s36 offen offset:{1024*j} sc1', order=[('c', u, j, 3)])
        E(0, f's_add_u32 s28, s41, {XB}'); E(0, f'v_add_u32 v{5-u}, s28, v2')
        if u == 0:
            E(12, 's_mov_b32 s36, s38'); E(12, 's_add_u32 s38, s38, s45')
            if RING2 < 64:
                E(13, f's_and_b32 s87, s22, {RING2 - 1}'); E(13, f's_cmp_eq_u32 s87, {RING2 - 1}'); E(14, f's_cselect_b32 s87, {RING2}, 0'); E(14, 's_mul_i32 s87, s87, s45'); E(16, 's_sub_u32 s38, s38, s87')
            for i, s_ in enumerate(['s_lshr_b32 s47, s46, 21', 's_xor_b32 s47, s47, s53', 's_and_b32 s47, s47, 1', 's_xor_b32 s47, s47, 1', 's_lshl_b32 s47, s47, 13', 's_add_u32 s47, s47, s46', 's_add_u32 s46, s46, 0x100000',
                                     's_cmp_eq_u32 s22, 63', 's_cselect_b32 s47, 0xe00000, s47']):
                E(18 + i // 2, s_)
        else:
            E(12, 's_add_u32 s36, s36, s44'); E(12, 's_add_u32 s22, s22, 1')
        if u == 0:
            E(40, f's_cmp_lt_u32 s22, {cfg.get("pje", 6)}'); E(40, f's_cselect_b32 s49, s37, {DUMMY:#x}')
            E(57, f's_cbranch_scc0 {p}_ne\ns_waitcnt vmcnt(0)', label=f'{p}_ne')
            E(69, 'buffer_store_dword v7, v6, s[8:11], s49 offen sc1')
        E(58, f's_waitcnt vmcnt({6 if u else 2})')
        ev.append((b + 58, dict(id=('bar', u), kind='bar', fn='s_barrier')))
        E(59, 's_add_u32 m0, s34, s42'); E(59, 's_add_u32 s29, s35, 4096')
        for i in range(4): E(60 + 2 * i, f'buffer_load_dwordx4 v2, s[8:11], s35 offen offset:{1024*i} sc1 lds')
        E(67, 's_add_u32 m0, m0, 4096'); E(67, 's_add_u32 s35, s35, 20480')
        E(68, 'buffer_load_dwordx4 v2, s[8:11], s29 offen sc1 lds')
        if u == 0:
            for i in range(3): E(70 + 2 * i, f'buffer_store_dwordx4 v[28:31], v{24+i}, s[8:11], s47 offen sc1')
        else:
            E(70, 'buffer_store_dword v7, v6, s[8:11], s37 offen sc1')
            E(72, 's_mov_b32 s37, s43'); E(72, 's_add_u32 s43, s43, 4096')
        E(75, 's_mov_b32 s28, s40'); E(75, 's_mov_b32 s40, s41'); E(76, 's_mov_b32 s41, s42'); E(76, 's_mov_b32 s42, s28')
        if u == 1: E(78, 's_cmp_lt_u32 s22, 64')
    ev.sort(key=lambda x: x[0])
    for g_, it in ev:
        it['after'] = g_; items.append(it)
    sched(k, mats, items, [False] * 160, pre=pre)
    k(f's_cbranch_scc1 {p}_loop')
    k.wl_all(True)
    k.nop(4)
    for i in range(8):
        k(f'v_cvt_pk_bf16_f32 v{64+i}, v{76+8*(i//4)+i%4}, v{80+8*(i//4)+i%4}')
    for j in range(2):
        k(f'buffer_store_dwordx4 {V(64+4*j,4)}, v2, s[8:11], s36 offen offset:{1024*j} sc1')
    k(f"""
    s_waitcnt vmcnt(0)
    s_barrier
    buffer_store_dword v7, v6, s[8:11], s37 offen sc1
    s_branch {end}""")

def xn_ready(k, p, cfg):
    pass

def gen_vu(k, p, end, fail, cfg={}):
    loc = regmap([('v', t, kk) for kk in range(20) for t in range(2)] + [('o', ci, kk) for ci in range(10) for kk in range(6)], 112)
    role_common(k, ('Wo', 'Wv'))
    XB = 0; VX = 98304; NP = cfg.get('np', 6)
    def xdma():
        out = []
        for j in range(3):
            for i in range(4 if j < 2 else 2):
                pre_ = f's_add_u32 m0, s34, {4096*j}\ns_add_u32 s29, s35, {4096*j}\n' if i == 0 else ''
                out.append(pre_ + f'buffer_load_dwordx4 v2, s[8:11], s29 offen offset:{1024*i} sc1 lds')
        out[-1] += '\ns_add_u32 s35, s35, 40960'
        return out
    vdma = ['s_mov_b32 m0, s46\ns_xor_b32 s46, s46, 16384\nbuffer_load_dwordx4 v2, s[8:11], s45 offen sc1 lds',
            'buffer_load_dwordx4 v2, s[8:11], s45 offen offset:1024 sc1 lds\ns_add_u32 s45, s45, 262144']
    def setup():
        flag_addr(k, 6)
        k(f"""
        s_and_b32 s28, s21, 1
        s_mul_i32 s29, s28, 20480
        v_add_u32 v4, s29, v2
        v_add_u32 v5, {VX}, v2
        s_mul_i32 s28, s28, 6144
        s_lshr_b32 s29, s21, 1
        s_lshl_b32 s29, s29, 10
        s_add_u32 s28, s28, s29
        s_add_u32 s28, s28, 4096
        v_add_u32 v3, s28, v5
        v_and_b32 v108, 1, v1
        v_mul_u32_u24 v108, {FP1 - FQK:#x}, v108
        s_lshl_b32 s28, s20, 7
        v_add_u32 v108, s28, v108
        s_mul_i32 s35, s21, 10240
        s_add_u32 s34, s35, {XB}
        s_lshl_b32 s36, s21, 15
        s_lshl_b32 s28, s20, 10
        s_add_u32 s36, s36, s28
        s_add_u32 s36, s36, {UF:#x}
        s_mov_b32 s37, {DUMMY:#x}
        s_mov_b32 s43, {FU:#x}
        s_mov_b32 s44, {FQK:#x}
        s_mov_b32 s47, 1
        s_lshr_b32 s28, s21, 1
        s_mul_i32 s45, s28, 6144
        s_and_b32 s28, s21, 1
        s_lshl_b32 s28, s28, 11
        s_add_u32 s45, s45, s28
        s_add_u32 s46, s45, {VX}
        s_lshl_b32 s45, s21, 11
        s_lshl_b32 s28, s20, 13
        s_add_u32 s45, s45, s28
        s_add_u32 s45, s45, {VF:#x}""")
    def start():
        for s_ in xdma(): k(s_)
    gen_loader2(k, 'VU', loc, p, cfg, setup, start, lambda c: None)
    ustamp(k, cfg, 5)
    for j in range(3):
        k(f's_add_u32 m0, s34, {40960 + 4096*j}\ns_add_u32 s29, s35, {NP*40960 + 4096*j}')
        for i in range(4 if j < 2 else 2): k(f'buffer_load_dwordx4 v2, s[8:11], s29 offen offset:{1024*i} sc1 lds')
    k.label(f'{p}_loop')
    stamp(k, cfg, 0)
    k('s_barrier')
    stamp(k, cfg, 1)
    ops = []; loads = {}
    for kk in range(20):
        loads[('x', kk)] = ('x', [lambda r, kk=kk: f'ds_read_b128 {V(r,4)}, v4 offset:{kk*1024}'])
        for t in range(2):
            acc = V(8 + 4 * t, 4); c = '0' if kk == 0 else acc
            ops.append((lambda rg, key=('v', t, kk), acc=acc, c=c, kk=kk: f'{MF} {acc}, {R(loc[key],4)}, {V(rg[("x",kk)],4)}, {c}', [('x', kk)], []))
    stream(k, ops, loads, dict(x=[48 + 4 * i for i in range(8)]), 12, group=2)
    k(f's_cmp_eq_u32 s47, 0\ns_cbranch_scc1 {p}_nf')
    poll_flag(k, f'{p}_f0', 108, 's44', 109, fail, sleep=1)
    for s_ in vdma: k(s_)
    k.label(f'{p}_nf')
    k.nop(6)
    for i in range(4): k(f'v_cvt_pk_bf16_f32 v{32+i}, v{8+i}, v{12+i}')
    k.lds('ds_write_b128 v3, v[32:35]')
    k(f's_add_u32 s44, s44, 4096\ns_min_u32 s44, s44, {FQK + 63*4096:#x}')
    k.wl_all()
    stamp(k, cfg, 2)
    k('s_waitcnt vmcnt(0)')
    k('s_barrier')
    stamp(k, cfg, 3)
    pre = {}
    for kk in range(6):
        for tt in range(2):
            r = 48 + 4 * (2 * kk + tt)
            pre[('V', kk, tt)] = (r, k.lds(f'ds_read_b128 {V(r,4)}, v5 offset:{tt*6144 + kk*1024}'))
    k(f's_cmp_eq_u32 s22, {NP}\ns_cbranch_scc1 {p}_pl')
    k(f"""
    buffer_store_dword v7, v6, s[8:11], s37 offen sc1
    buffer_load_dword v109, v108, s[8:11], s44 offen sc1
    s_mov_b32 s37, s43
    s_add_u32 s43, s43, 4096
    s_mov_b32 s38, s36
    s_add_u32 s36, s36, 1310720
    v_xor_b32 v5, 16384, v5
    v_xor_b32 v3, 16384, v3""")
    ops = []; loads = {key: ('none', []) for key in pre}
    def epi(ci):
        a = 8 + 8 * (ci % 3); d = 32 + 4 * (ci % 3)
        return [f'v_cvt_pk_bf16_f32 v{d+i}, v{a+2*i}, v{a+2*i+1}' for i in range(4)] + \
               [f'buffer_store_dwordx4 {V(d,4)}, v2, s[8:11], s38 offen sc1\ns_add_u32 s38, s38, 131072']
    posts = {}
    xd = xdma()
    for i, s_ in enumerate(xd): posts.setdefault(12 * (i // 2) + 2 + 3 * (i % 2), []).append(s_)
    posts.setdefault(72, []).append('s_waitcnt vmcnt(15)\nv_cmp_eq_u32 vcc, 0, v109')
    def chk():
        k(f's_mov_b32 s47, 1\ns_cbranch_vccnz {p}_late\ns_mov_b32 s47, 0')
        for s_ in vdma: k(s_)
        k.label(f'{p}_late')
    posts.setdefault(74, []).append(chk)
    for ci in range(10):
        e = epi(ci - 1) if ci > 0 else []
        for n in range(12):
            kk, tt = n >> 1, n & 1
            acc = V(8 + 8 * (ci % 3) + 4 * tt, 4); c = '0' if kk == 0 else acc; vk = ('V', kk, tt)
            post = ([e[n - 7]] if 7 <= n < 7 + len(e) else []) + posts.get(12 * ci + n, [])
            ops.append((lambda rg, key=('o', ci, kk), acc=acc, c=c, vk=vk: f'{MF} {acc}, {V(rg[vk],4)}, {R(loc[key],4)}, {c}', [vk], post))
    stream(k, ops, loads, dict(none=[]), 12, preissued=pre)
    k.nop(8)
    for s_ in epi(9): k(s_)
    stamp(k, cfg, 4)
    k(f"""
    s_add_u32 s22, s22, 1
    s_cmp_gt_u32 s22, {cfg.get('nimm', 2)}
    s_waitcnt vmcnt(7)
    s_cbranch_scc1 {p}_loop
    s_waitcnt vmcnt(0)
    s_barrier
    buffer_store_dword v7, v6, s[8:11], s37 offen sc1
    s_mov_b32 s37, {DUMMY:#x}
    s_branch {p}_loop""")
    k.label(f'{p}_pl')
    k(f"""
    buffer_store_dword v7, v6, s[8:11], s37 offen sc1
    s_mov_b32 s37, {DUMMY:#x}
    v_xor_b32 v5, 16384, v5
    v_xor_b32 v3, 16384, v3
    v_xor_b32 v4, 40960, v4
    s_mov_b32 s38, {DUMMY + 4096:#x}
    s_mov_b32 s48, 0
    s_add_u32 s35, s35, 40960""")
    k.label(f'{p}_pll')
    k.lc += 12; k.ld = k.lc - 12
    k.vd = k.vc
    pre = {('V', n): k.ld + 1 + n for n in range(12)}
    mats = []; items = []; ev = []; endt = {}
    uacc = lambda ci, tt: 8 + 8 * (ci & 1) + 4 * tt
    def utile(ci):
        for n in range(12):
            kk, tt = n >> 1, n & 1
            a = V(uacc(ci, tt), 4)
            mats.append((f'{MF} {a}, {V(48+4*n,4)}, {R(loc[("o",ci,kk)],4)}, {"0" if kk == 0 else a}', [('V', n)] if ci == 0 else []))
        endt[ci] = len(mats) - 1
    for ci in range(5): utile(ci)
    XR = [44, 96, 100, 104]
    for kk in range(20):
        ev.append((max(60 + 2 * kk - 7, 60 + 2 * (kk - 4) + 1), dict(id=('x', kk), kind='n', lds=True, fn=f'ds_read_b128 {V(XR[kk%4],4)}, v4 offset:{kk*1024}')))
        for t in range(2):
            a = V(24 + 4 * t, 4)
            mats.append((f'{MF} {a}, {R(loc[("v",t,kk)],4)}, {V(XR[kk%4],4)}, {"0" if kk == 0 else a}', [('x', kk)]))
    for ci in range(5, 10): utile(ci)
    def uepi(ci, e_):
        a = uacc(ci, 0); d = 32 + 4 * (ci & 1)
        for i in range(4):
            it = dict(id=('u', ci, i), kind='v', fn=f'v_cvt_pk_bf16_f32 v{d+i}, v{a+2*i}, v{a+2*i+1}', after=e_ + 3)
            if i == 0: it['states'] = (max(e_, 0), 8)
            items.append(it)
        ev.append((e_ + 7, dict(id=('us', ci), kind='n', vm=True, fn=f'buffer_store_dwordx4 {V(d,4)}, v2, s[8:11], s38 offen sc1', order=[('u', ci, 3)])))
        ev.append((e_ + 7, dict(id=('ua', ci), kind='n', fn='s_mov_b32 s38, s36' if ci == 9 else 's_add_u32 s38, s38, 131072')))
    uepi(9, -1)
    for ci in range(5): uepi(ci, endt[ci])
    for i in range(4):
        it = dict(id=('w', i), kind='v', fn=f'v_cvt_pk_bf16_f32 v{40+i}, v{24+i}, v{28+i}', after=102)
        if i == 0: it['states'] = (99, 8)
        items.append(it)
    ev.append((106, dict(id='ww', kind='n', lds=True, fn='ds_write_b128 v3, v[40:43]', order=[('w', 3)])))
    for ci in range(5, 9): uepi(ci, endt[ci])
    ev.append((1, dict(id='fl', kind='n', vm=True, fn='buffer_load_dword v109, v108, s[8:11], s44 offen sc1')))
    ev.append((12, dict(id='s0', kind='n', fn='s_add_u32 s49, s34, s48')))
    ev.append((13, dict(id='s1', kind='n', fn='s_add_u32 s36, s36, 1310720')))
    for i_, t_ in enumerate(wrap('s36', UF, 1310720).split('\n')): ev.append((16 + i_ // 2, dict(id=('wr', i_), kind='n', fn=t_)))
    ev.append((13, dict(id='s2', kind='n', fn='s_xor_b32 s48, s48, 40960')))
    g_ = 20
    for j in range(3):
        ev.append((g_, dict(id=('m', j), kind='n', fn=f's_add_u32 m0, s49, {4096*j}')))
        ev.append((g_, dict(id=('m2', j), kind='n', fn=f's_add_u32 s29, s35, {4096*j}')))
        g_ += 1
        for i in range(4 if j < 2 else 2):
            ev.append((g_, dict(id=('xd', j, i), kind='n', vm=True, fn=f'buffer_load_dwordx4 v2, s[8:11], s29 offen offset:{1024*i} sc1 lds'))); g_ += 2
    ev.append((g_, dict(id='s3', kind='n', fn='s_add_u32 s35, s35, 40960')))
    ev.append((68, dict(id='fc', kind='n', vdeps=['fl'], fn='v_cmp_eq_u32 vcc, 0, v109')))
    ev.append((70, dict(id='fb', kind='n', fn=f's_cbranch_vccnz {p}_plate', label=f'{p}_pon')))
    ev.append((70, dict(id='v0', kind='n', fn='s_mov_b32 m0, s46')))
    ev.append((72, dict(id='v1', kind='n', vm=True, fn='buffer_load_dwordx4 v2, s[8:11], s45 offen sc1 lds')))
    ev.append((74, dict(id='v2', kind='n', vm=True, fn='buffer_load_dwordx4 v2, s[8:11], s45 offen offset:1024 sc1 lds')))
    ev.append((108, dict(id='v3', kind='n', fn='s_xor_b32 s46, s46, 16384')))
    ev.append((108, dict(id='v4', kind='n', fn='s_add_u32 s45, s45, 262144')))
    for i_, t_ in enumerate(wrap('s45', VF, 262144, RING2).split('\n')): ev.append((116 + i_ // 2, dict(id=('wr2', i_), kind='n', fn=t_)))
    ev.append((109, dict(id='v5', kind='n', fn='s_add_u32 s44, s44, 4096')))
    ev.append((109, dict(id='v6', kind='n', fn=f's_min_u32 s44, s44, {FQK + 63*4096:#x}')))
    ev.append((140, dict(id='bar', kind='bar', deps=['ww'], vdeps=['v2'], fn='s_barrier')))
    ev.append((56, dict(id='bar0', kind='bar', vdeps=[('us', 9)], fn='s_barrier')))
    ev.append((58, dict(id='fs', kind='n', vm=True, fn='buffer_store_dword v7, v6, s[8:11], s37 offen sc1')))
    ev.append((144, dict(id='t0', kind='n', fn='s_mov_b32 s37, s43')))
    ev.append((144, dict(id='t1', kind='n', fn='s_add_u32 s43, s43, 4096')))
    ev.append((145, dict(id='t2', kind='n', fn='s_add_u32 s22, s22, 1')))
    ev.append((145, dict(id='t3', kind='n', fn='v_xor_b32 v4, 40960, v4')))
    ev.append((146, dict(id='t4', kind='n', fn='v_xor_b32 v3, 16384, v3')))
    for n in range(12):
        ev.append((148 + n - 0.1, dict(id=('R', n), kind='n', lds=True, fn=f'ds_read_b128 {V(48+4*n,4)}, v5 offset:{(n&1)*6144 + (n>>1)*1024}', g=148 + n)))
    ev.sort(key=lambda x: x[0])
    for g_, it in ev:
        it['after'] = it.get('g', g_); items.append(it)
    sched(k, mats, items, [False] * 160, pre=pre)
    k(f"""
    v_xor_b32 v5, 16384, v5
    s_cmp_lt_u32 s22, 64
    s_cbranch_scc1 {p}_pll""")
    k.wl_all(True)
    k.nop(4)
    for i in range(4): k(f'v_cvt_pk_bf16_f32 v{36+i}, v{16+2*i}, v{17+2*i}')
    k(f"""
    buffer_store_dwordx4 v[36:39], v2, s[8:11], s38 offen sc1
    s_waitcnt vmcnt(0)
    s_barrier
    buffer_store_dword v7, v6, s[8:11], s37 offen sc1
    s_branch {end}""")
    k.label(f'{p}_plate')
    poll_flag(k, f'{p}_f1', 108, 's44', 109, fail, sleep=2)
    k(f's_branch {p}_pon')

TMO = 400000
FAIL = 'mega_kernel_fail'
PL = 8
CS = 1600
SCL = (192 ** -0.5) * 1.4426950408889634

def region(k, d, sreg):
    k(f"""
    s_lshr_b32 s28, {sreg}, 1
    s_xor_b32 s28, s28, s53
    s_and_b32 s28, s28, 1
    s_xor_b32 s28, s28, 1
    s_lshl_b32 s28, s28, 13
    s_lshl_b32 s{d}, {sreg}, 20
    s_add_u32 s{d}, s{d}, s28
    s_add_u32 s{d}, s{d}, {MB:#x}""")

def sel_from(k, cfg, v):
    if LST: k('s_memrealtime s[68:69]')
    k(f'v_readfirstlane_b32 s53, v{v}')
    k('s_sub_u32 s53, s53, 1')
    if cfg.get('sel') is not None: k(f's_mov_b32 s53, {cfg["sel"]}')
    k(f"""
    s_and_b32 s53, s53, 1
    s_lshl_b32 s52, s53, 13
    s_add_u32 s52, s52, {ZR:#x}
    s_xor_b32 s56, s53, {cfg.get('fsh', 1)}
    s_lshl_b32 s56, s56, 13
    s_lshr_b32 s55, s25, 2
    s_and_b32 s55, s55, {cfg.get('nl', 16) - 1}
    s_mul_i32 s55, s55, {cfg.get('lstride', 256)}
    s_mov_b32 s58, 0""")

def load_sel(k, cfg, t=16, t2=18):
    l = k.newlabel('L_go')
    k(f'v_mov_b32 v{t}, 128\ns_mov_b32 s39, 0')
    k.label(l)
    k(f'buffer_load_dword v{t+1}, v{t}, s[88:91], 0 offen sc1')
    k(f'buffer_load_dword v{t2}, v{t}, s[88:91], 0 offen offset:12 sc1')
    tmo(k, FAIL)
    k(f's_waitcnt vmcnt(0)\nv_cmp_eq_u32 vcc, 0, v{t2}\ns_cbranch_vccnz {l}')
    rot_check(k, t2)
    k(f'v_cmp_ne_u32 vcc, 0, v{t+1}\ns_cbranch_vccnz {l}k\ns_sleep 3\ns_branch {l}')
    k.label(l + 'k')
    sel_from(k, cfg, t + 1)

def zregion(k, d, base):
    k(f"""
    s_lshr_b32 s28, s22, 1
    s_xor_b32 s28, s28, s53
    s_and_b32 s28, s28, 1
    s_xor_b32 s28, s28, 1
    s_lshl_b32 s28, s28, 13
    s_lshl_b32 s{d}, s22, 20
    s_add_u32 s{d}, s{d}, s28
    s_add_u32 s{d}, s{d}, s{base}""")

RING = 64
def wrap(reg, base, stride, n=None):
    n = n or RING
    if n >= 64: return 's_nop 0'
    return f's_cmp_ge_u32 {reg}, {base + n*stride:#x}\ns_cselect_b32 s87, {n*stride:#x}, 0\ns_sub_u32 {reg}, {reg}, s87'

def maxtree(k, d, regs):
    k(f'v_max3_u32 v{d}, v{regs[0]}, v{regs[1]}, v{regs[2]}')
    i = 3
    while i + 1 < len(regs):
        k(f'v_max3_u32 v{d}, v{d}, v{regs[i]}, v{regs[i+1]}'); i += 2
    if i < len(regs): k(f'v_max_u32 v{d}, v{d}, v{regs[i]}')

def tmo(k, fail):
    k(f's_add_u32 s39, s39, 1')
    k(f's_cmp_gt_u32 s39, {TMO}')
    k(f's_cbranch_scc1 {fail}')

def memaddr_setup(k, MEMB):
    k(f"""
    s_lshl_b32 s28, s21, 10
    v_add_u32 v7, s28, v2
    v_add_u32 v4, {M_OFF}, v7
    v_add_u32 v5, {M_OFF + 4096}, v7
    v_add_u32 v7, {MEMB}, v7
    v_add_u32 v6, 3072, v5
    v_add_u32 v9, {MEMB}, v2""")
    for d in (4, 5, 6): v_mbmap(k, d, 11)
    k(f"""
    v_and_b32 v11, 2, v1
    v_mov_b32 v10, 0x4444
    v_mov_b32 v12, 0xeeee
    v_cmp_ne_u32 vcc, 0, v11
    s_nop 1
    v_cndmask_b32 v10, v10, v12, vcc""")

def poll_mem(k, p, fail, D=0):
    twait(k, D)
    k('s_mov_b32 s39, 0')
    k.label(f'{p}_poll')
    for i in range(3):
        k(f'buffer_load_dwordx4 {V(16+4*i,4)}, v{4+i}, s[8:11], s40 offen sc1')
    tmo(k, fail)
    k('s_waitcnt vmcnt(0)')
    k('ds_write_b128 v7, v[16:19]')
    k('ds_write_b128 v7, v[20:23] offset:4096')
    k('ds_write_b128 v8, v[24:27]')
    maxtree(k, 11, list(range(16, 28)))
    k('v_cmp_eq_u32 vcc, -1, v11')
    k(f's_cbranch_vccnz {p}_poll')
    k('s_waitcnt lgkmcnt(0)')
    k('s_barrier')
    tref(k, D)
    k('s_add_u32 s58, s58, s39')

def tref(k, D):
    if D: k('s_memtime s[54:55]')

def twait(k, D):
    if not D: return
    l = k.newlabel('L_tw')
    k.label(l)
    k(f"""
    s_memtime s[56:57]
    s_waitcnt lgkmcnt(0)
    s_sub_u32 s56, s56, s54
    s_cmp_lt_u32 s56, {D}
    s_cbranch_scc1 {l}""")

def wload8(wm, key):
    return [lambda r, key=key: f'ds_read_b128 {V(r,4)}, v3 offset:{WL + wm.slot[key]*1024}',
            lambda r, key=key: f'ds_read_b128 {V(r+4,4)}, v3 offset:{WL + wm.slot[key]*1024 + 1024}']

def pairpost(a, b, d):
    return [f'v_permlane32_swap_b32 v{a+i}, v{b+i}' for i in range(4)] + \
           [f'v_add_f32 v{a+i}, v{a+i}, v{b+i}' for i in range(4)] + \
           [f'v_cvt_pk_bf16_f32 v{d}, v{a}, v{a+1}', f'v_cvt_pk_bf16_f32 v{d+1}, v{a+2}, v{a+3}']

def xlane(k, op, m, t):
    k(f"""
    v_mov_b32 v{t}, v{m}
    s_nop 1
    v_permlane32_swap_b32 v{m}, v{t}
    {op} v{m}, v{m}, v{t}
    v_mov_b32 v{t}, v{m}
    s_nop 1
    v_permlane16_swap_b32 v{m}, v{t}
    {op} v{m}, v{m}, v{t}""")

def stamp(k, cfg, idx):
    if cfg.get('cprof'): return
    if cfg.get('hprof'):
        if idx == 4: k('s_memtime s[60:61]')
        if idx == 2 and len(cfg['hprof']) < 4: k('s_memtime s[68:69]')
        if idx == 0 and len(cfg['hprof']) < 3: k('s_memtime s[66:67]')
        return
    if cfg.get('trace') == 2:
        if idx in (2, 4): k(f's_memtime s[{60+2*idx}:{61+2*idx}]')
        return
    if cfg.get('trace'):
        k(f's_memrealtime s[{60+2*idx}:{61+2*idx}]'); return
    if cfg.get('stamp') is None: return
    l = k.newlabel('L_st')
    k(f's_cmp_lg_u32 s22, {cfg["stamp"]}')
    k(f's_cbranch_scc1 {l}')
    k(f'{"s_memtime" if cfg.get("cyc") else "s_memrealtime"} s[{60+2*idx}:{61+2*idx}]')
    k.label(l)

def trace_out(k, cfg, t0):
    if not cfg.get('trace'): return
    k(f"""
    s_waitcnt lgkmcnt(0)
    s_lshl_b32 s28, s25, 2
    s_add_u32 s28, s28, s21
    s_lshl_b32 s28, s28, 6
    s_add_u32 s28, s28, s22
    s_lshl_b32 s28, s28, 5
    s_add_u32 s28, s28, {TRACE:#x}
    v_mov_b32 v{t0}, s60
    v_mov_b32 v{t0+1}, s62
    v_mov_b32 v{t0+2}, s64
    v_mov_b32 v{t0+3}, s66
    v_mov_b32 v{t0+4}, s68
    v_mov_b32 v{t0+5}, s59
    v_mov_b32 v{t0+8}, 0
    buffer_store_dwordx4 {V(t0,4)}, v{t0+8}, s[8:11], s28 offen
    buffer_store_dwordx2 {V(t0+4,2)}, v{t0+8}, s[8:11], s28 offen offset:16
    s_nop 1""")

def ustamp(k, cfg, idx):
    if cfg.get('stamp') is None or (LST and idx < 5): return
    k(f's_memrealtime s[{60+2*idx}:{61+2*idx}]')

HU1, HU2 = 0xA0000, 0xA4000

def delay(k, n):
    if n >= 64: k(f's_sleep {n // 64}')
    r = (n % 64) // 4
    if r: k.nop(r)

def hu_wait(k, p, base, starget, t0, fail, cfg, line=0):
    depth = cfg.get('depth', 3)
    nref = cfg.get('nref', 1)
    k(f's_add_u32 s28, s55, {base:#x}\nv_mov_b32 v{t0}, s28')
    k('s_mov_b32 s39, 0')
    k('s_waitcnt vmcnt(0)')
    for i in range(depth):
        k(f'buffer_load_dword v{t0+1+i}, v{t0}, s[8:11], s52 offen sc1')
        if i + 1 < depth: k.nop(cfg.get('spr', 16))
    k.label(f'{p}_hu')
    for i in range(depth):
        k(f's_waitcnt vmcnt({depth-1})')
        k(f'v_cmp_gt_i32 vcc, {starget}, v{t0+1+i}')
        k(f's_cbranch_vccz {p}_hud')
        k(f'buffer_load_dword v{t0+1+i}, v{t0}, s[8:11], s52 offen sc1')
    tmo(k, fail)
    k(f's_branch {p}_hu')
    k.label(f'{p}_hud')

class Gaps:
    def __init__(self, k): self.k = k

def pf_setup(k, sreg, mul, add, cfg):
    k(f"""
    s_lshr_b32 s28, s20, 2
    s_and_b32 s54, s28, 3
    s_add_u32 s54, s54, {cfg.get('pfs', 4)}
    s_mul_i32 s28, s28, {mul}
    s_add_u32 s28, s28, {add}
    s_lshr_b32 s29, s28, 2
    s_lshl_b32 s29, s29, 17
    s_and_b32 s28, s28, 3
    s_lshl_b32 s28, s28, 13
    s_add_u32 s{sreg}, s28, s29
    s_and_b32 s28, s20, 3
    s_lshl_b32 s28, s28, 15
    s_add_u32 s{sreg}, s{sreg}, s28
    s_add_u32 s{sreg}, s{sreg}, {UF + cfg.get('pfa', 1) * 1310720:#x}""")

def mem_front(k, p, w, fail, cfg, own_ops, zero_regs, behind=None, nb=0):
    three = w in (1, 2)
    regs = [16 + 4 * w, 32 + 4 * w] + ([44 + 4 * w] if three else [])
    n = len(regs)
    lds_ = lambda i: f'buffer_load_dwordx4 {V(regs[i],4)}, v{4+i}, s[8:11], s40 offen sc1'
    wr_ = lambda i: f'ds_write_b128 v7, {V(regs[i],4)} offset:{(0, 4096, 7168)[i]}'
    def ld():
        for i in range(n): k(lds_(i))
    def take(x):
        k('s_waitcnt vmcnt(0)')
        for i in range(n): k(wr_(i))
        maxtree(k, 11, [r + j for r in regs for j in range(4)])
        k('v_cmp_eq_u32 vcc, -1, v11')
    ops = list(own_ops)
    fa = [ks for ks in range(4) if ks != w]
    k(lds_(0) + '\ns_barrier\n' + lds_(1) + '\ns_barrier')
    if three: k(lds_(2))
    if behind: behind()
    k('s_mov_b32 s39, 1')
    o0, o1 = regs[:2]; o2 = regs[-1]
    T = dict(a=f'v_max3_u32 v11, v{o0}, v{o0+1}, v{o0+2}', b=f'v_max_u32 v11, v11, v{o0+3}', c=f'v_max3_u32 v11, v{o1}, v{o1+1}, v{o1+2}', d=f'v_max_u32 v11, v11, v{o1+3}',
             e=f'v_max3_u32 v11, v11, v{o2}, v{o2+1}' if three else '', f=f'v_max3_u32 v11, v11, v{o2+2}, v{o2+3}' if three else '', C='v_cmp_eq_u32 vcc, -1, v11')
    plan = cfg.get('fplan', 'W1 a b C S S S S J1 BA r0 S r1 r2 S W2 S c S W3 S d e S f C L S S J2 BB') if len(ops) == 12 else \
           cfg.get('zplan', 'W1 a b C S S S J1 BA r0 r1 r2 W2 S c d S W3 e f C S L S S J2 BB S')
    done = []; snap = {}; tk = {}
    for tok in plan.split():
        if tok == 'S':
            done.append(ops.pop(0)); k(done[-1])
        elif tok[0] == 'J':
            k(f's_cbranch_vccnz {p}_slow{tok[1]}'); k.label(f'{p}_back{tok[1]}'); snap[tok[1]] = list(done)
        elif tok[0] == 'W':
            i = int(tok[1]) - 1
            if i < n:
                k(f's_waitcnt vmcnt({n-1-i+nb})'); tk[tok] = k.lds(wr_(i))
        elif tok[0] == 'r':
            ks = fa[int(tok[1])]; tk[tok] = k.lds(f'ds_read_b128 {V(16+4*ks,4)}, v9 offset:{1024*ks}')
        elif tok == 'BA':
            k.wl(tk['W1']); k('s_barrier')
        elif tok == 'L': k.wl(tk['r0'])
        elif tok == 'BB':
            k.wl_all(); k('s_barrier')
        elif T[tok]: k(T[tok])
    assert not ops
    if cfg.get('stamp') is not None: k('s_add_u32 s58, s58, s39')
    if cfg.get('trace'): k('s_mov_b32 s59, s39')
    def slow():
        for j in '12':
            k.label(f'{p}_slow{j}')
            k('s_mov_b64 exec, vcc')
            ld()
            k('s_mov_b64 exec, -1')
            k.nop(3)
            for r in zero_regs: k(f'v_mov_b32 v{r}, 0')
            tmo(k, fail)
            take(0)
            k(f's_cbranch_vccnz {p}_slow{j}')
            for s_ in snap[j]: k(s_)
            k(f's_waitcnt lgkmcnt(0)\ns_branch {p}_back{j}')
    return slow

def sched(k, mats, items, sm, pre_n=0, pre=None):
    tk = dict(pre or {}); vt = {}
    nq = [it for it in items if it['kind'] in ('n', 'bar')]
    vq = [it for it in items if it['kind'] in ('v', 'v2')]
    done = set(); pos = 0; matpos = {}
    def ready(it, i):
        if it.get('after', -1) > i: return False
        if any(d not in done for d in it.get('order', [])): return False
        st = it.get('states')
        if st is not None and (st[0] not in matpos or pos - matpos[st[0]] < st[1]): return False
        return True
    def emit(it):
        nonlocal pos
        n0 = len(k.L)
        for d in it.get('deps', []): k.wl(tk[d])
        for d in it.get('vdeps', []): k.wv(vt[d])
        if it.get('lds'): tk[it['id']] = k.lds(it['fn'])
        elif it.get('vm'): vt[it['id']] = k.vm(it['fn'])
        else: k(it['fn'])
        if it.get('label'):
            k.label(it['label']); n0 += 1
        done.add(it['id']); it['pos'] = pos + len(k.L) - n0
        matpos[it['id']] = it['pos']
        used = len(k.L) - n0 + (1 if it['kind'] == 'v2' else 0)
        pos += len(k.L) - n0
        return used
    def waitneed(i):
        return i < len(mats) and any(d in tk and tk[d] > k.ld for d in mats[i][1])
    for _ in range(pre_n): emit(nq.pop(0))
    for i, (fn, need) in enumerate(mats):
        for d in need:
            while d not in tk:
                it = nq.pop(0); assert ready(it, i), (it, i); emit(it)
        n0 = len(k.L)
        if need: k.wl(max(tk[d] for d in need))
        k(fn); pos += len(k.L) - n0; matpos[i] = pos
        slots = 2
        wantv = bool(vq) and ready(vq[0], i)
        nmax = 1 if wantv else 2
        if waitneed(i + 1) and all(d in tk for d in mats[i + 1][1]):
            look = [tk[d] for j in range(i + 1, min(i + 4, len(mats))) for d in mats[j][1] if d in tk and tk[d] <= k.lc - 2 or (j == i + 1)]
            k.wl(max(look)); pos += 1; slots -= 1; nmax -= 1
        while nmax > 0 and slots > 0 and nq and ready(nq[0], i):
            it_ = nq.pop(0); u = emit(it_); slots -= u; nmax -= u
            for _ in range(it_.get('glue', 0)): slots -= emit(nq.pop(0))
        nv = 0
        while slots > 0 and vq and ready(vq[0], i) and (nv == 0 or not sm[i]):
            it_ = vq.pop(0); slots -= emit(it_); nv += 1
            for x in list(nq):
                if x.get('now') == it_['id']:
                    nq.remove(x); slots -= emit(x)
        if nv == 0 and slots > 0 and vq and vq[0].get('states') and vq[0]['states'][0] in matpos and vq[0].get('after', -1) <= i + 3:
            k.nop(slots); pos += slots
    while nq or vq:
        cand = [q for q in (vq, nq) if q and ready(q[0], len(mats))]
        if cand: emit(cand[0].pop(0))
        else: k.nop(1); pos += 1
    return tk, pos, matpos

def gen_h(k, p, end, fail, cfg):
    keys = [(t, ks) for pr in range(3) for ks in range(10) for t in (2 * pr, 2 * pr + 1)]
    ldsk = [(t, ks) for pr in range(3) for ks in (8, 9) for t in (2 * pr, 2 * pr + 1)]
    wm = Wmap(keys, 8, set(ldsk))
    role_common(k, ('Wq', 'Wk'))
    def early():
        k(f's_lshl_b32 s28, s20, 7\nv_mov_b32 v122, s28\ns_mov_b32 s43, {FQK:#x}')
        k.vm('buffer_load_dword v24, v122, s[8:11], s43 offen sc1')
    gen_loader(k, 'QK', True, wm, early)
    ustamp(k, cfg, 5)
    k(f's_waitcnt vmcnt(0)\nv_min_u32 v24, v24, v20\nv_cmp_ne_u32 vcc, 0, v20\ns_cbranch_vccz {p}_sl')
    rot_check(k, 23)
    sel_from(k, cfg, 20)
    k(f's_branch {p}_sk')
    k.label(f'{p}_sl')
    load_sel(k, cfg)
    k.label(f'{p}_sk')
    MEMB = 98304; QKT = MEMB + 10240; ZER = QKT + 4 * CS + 128; KXB = 131072
    RING = [80, 88, 96, 104, 112]
    hu = cfg.get('hu', 1)
    memaddr_setup(k, MEMB)
    k(f"""
    v_and_b32 v11, 15, v1
    v_lshrrev_b32 v12, 2, v11
    v_mul_u32_u24 v12, 272, v12
    v_lshrrev_b32 v13, 4, v1
    v_lshl_add_u32 v121, v13, 4, v2
    v_add_u32 v121, {QKT}, v121
    v_lshl_add_u32 v12, v13, 5, v12
    v_and_b32 v13, 3, v1
    v_lshl_add_u32 v12, v13, 2, v12
    s_lshr_b32 s28, s21, 1
    s_lshl_b32 s28, s28, 7
    s_and_b32 s29, s21, 1
    s_mul_i32 s29, s29, 3264
    s_add_u32 s28, s28, s29
    s_add_u32 s28, s28, {QKT}
    v_add_u32 v120, s28, v12
    v_add_u32 v126, 1088, v120
    v_add_u32 v127, 2176, v120
    v_add_u32 v0, {KXB}, v2
    s_max_u32 s48, s21, 1
    s_sub_u32 s48, s48, 1
    s_lshl_b32 s48, s48, 12
    s_add_u32 s47, s48, {KXB}
    s_mul_i32 s28, s20, 24576
    s_add_u32 s48, s48, s28
    s_add_u32 s48, s48, {QF + 12288:#x}
    s_lshl_b32 s28, s20, 7
    v_mov_b32 v122, s28
    s_mov_b32 s43, {FQK:#x}""")
    def kxdma():
        k('s_mov_b32 m0, s49')
        k('s_xor_b32 s47, s47, 16384')
        for i in range(4):
            k(f'buffer_load_dwordx4 v2, s[8:11], s48 offen offset:{1024*i} sc1 lds')
        k('s_mov_b32 s49, s47')
        k('s_add_u32 s48, s48, 786432')
        k(wrap('s48', QF, 786432, RING2))
    k(f'v_cmp_ne_u32 vcc, 0, v24\ns_cbranch_vccnz {p}_pk')
    poll_flag(k, f'{p}_pz', 122, 's43', 17, fail, sleep=1)
    k.label(f'{p}_pk')
    k('s_mov_b32 s49, s47')
    kxdma()
    k(f's_sub_u32 s49, s47, {KXB + 16384 - 116736}')
    k(f"""
    v_lshrrev_b32 v13, 4, v1
    s_waitcnt lgkmcnt(0)
    s_mov_b32 s22, 0
    s_cmp_eq_u32 s21, 0
    s_cbranch_scc1 {p}_w0
    s_cmp_eq_u32 s21, 1
    s_cbranch_scc1 {p}_w1
    s_cmp_eq_u32 s21, 2
    s_cbranch_scc1 {p}_w2
    s_branch {p}_w3""")
    slows = []
    def main(pp, w):
        pr_ = [f'v_mov_b32 v{56+i}, 0' for i in range(24)] + [f(RING[i]) for i, key in enumerate(ldsk[:5]) for f in wload8(wm, key)]
        h1n = cfg.get('h1n', 3)
        if w == 3 and h1n >= 0: pr_.insert(h1n, 'buffer_store_dword v15, v123, s[8:11], s52 offen sc1\nv_mov_b32 v15, s22')
        if w == 3 and h1n < 0: pr_.append('v_mov_b32 v15, s22')
        for s_ in pr_: (k.lds if s_.startswith('ds_') else k)(s_)
        k('s_sub_u32 s46, s22, 1')
        region(k, 40, 's46')
        if w == 0: region(k, 41, 's22')
        if w >= 2: k(f's_cmp_lt_u32 s22, s54\ns_cselect_b32 s51, {XN:#x}, s50')
        k.wl_all()
        k('s_waitcnt vmcnt(0)')
        if cfg.get('trace'): stamp(k, cfg, 3)
        if hu and cfg.get('nref2', 1) > 1: k('s_barrier')
        if hu and w == cfg.get('hpw', 0):
            hu_wait(k, pp, HU2, 's46', 52 - 4 * (w == 0) * 8, fail, cfg, w)
        k('s_barrier')
        if cfg.get('trace'): stamp(k, cfg, 4)
        wreg = {key: R(wm.loc[key], 8) for key in wm.loc}
        for i, key in enumerate(ldsk): wreg[key] = V(RING[i % 5], 8)
        smt = lambda t, ks: f'{SM} {V(56+4*t,4)}, {V(16+4*ks,4)}, {wreg[(t,ks)]}, v10'
        rest = [ks for ks in range(8) if ks not in (w, w + 4)]
        fa, fb = rest[:3], rest[3:]
        def kxearly():
            k('s_barrier')
            k.nop(cfg.get('kxn', 0))
            if w > 0: kxdma()
        kxe = (kxearly, 4 if w > 0 else 0) if cfg.get('kxe', 1) else ()
        slows.append(mem_front(k, pp, w, fail, cfg, [smt(t, w) for t in range(6)] + [smt(t, w + 4) for t in range(4)] + [smt(0, fa[0]), smt(1, fa[0])], list(range(56, 80)), *kxe))
        if w == 0 or cfg.get('trace'): stamp(k, cfg, 0)
        order = [[fb[0], 8, fb[1], fb[2], 9], [fa[1], fa[2], 8, fb[0], fb[1], 9, fb[2]], [8, fa[0], 9, w + 4, fa[1], fa[2]] + fb]
        mats = []; items = []; idx = {}
        own3 = 7 + w if w in (1, 2) else None
        for ks in order[0]:
            if ks != own3: items.append(dict(id=('A', ks), kind='n', lds=True, fn=f'ds_read_b128 {V(16+4*ks,4)}, v9 offset:{1024*ks}'))
        for (t, ks) in [(0, fa[1]), (1, fa[1]), (0, fa[2]), (1, fa[2]), (2, fa[0]), (3, fa[0])]: mats.append((smt(t, ks), []))
        for pr in range(3):
            sq = [(t, ks) for ks in order[pr] for t in (2 * pr, 2 * pr + 1)]
            if pr == 2: sq = sq[:-6] + sq[-6::2] + sq[-5::2]
            for (t, ks) in sq:
                need = [('A', ks)] if pr == 0 and ks != own3 else []
                if (t, ks) in ldsk[5:]: need = need + [('W', t, ks, 1)]
                idx[(t, ks)] = len(mats)
                mats.append((smt(t, ks), need))
        nsm = len(mats)
        endp = [idx[(2 * pr + 1, order[pr][-1])] for pr in range(3)]
        ev = []
        for i, key in enumerate(ldsk[5:]):
            for h_, f in enumerate(wload8(wm, key)):
                ev.append((max(idx[ldsk[i]], idx[key] - 16), dict(id=('W',) + key + (h_,), kind='n', lds=True, fn=f(RING[i % 5]), after=idx[ldsk[i]])))
        for pr in range(3):
            a = 56 + 8 * pr
            e0 = idx[(2 * pr, order[pr][-1])]
            if pr == 2 and w != 0:
                items.append(dict(id=('p', pr, 0), kind='v', fn=f'v_pk_add_f32 {V(a,2)}, {V(a,2)}, {V(a+2,2)}', states=(e0, 8), after=endp[pr]))
                items.append(dict(id=('p', pr, 1), kind='v', fn=f'v_pk_add_f32 {V(a+4,2)}, {V(a+4,2)}, {V(a+6,2)}', states=(endp[pr], 8)))
            else:
                items.append(dict(id=('p', pr, 0), kind='v', fn=f'v_add_f32 v{a}, v{a}, v{a+2}', states=(e0, 8), after=e0 + 1))
                items.append(dict(id=('p', pr, 5), kind='v', fn=f'v_add_f32 v{a+1}, v{a+1}, v{a+3}'))
                items.append(dict(id=('p', pr, 1), kind='v', fn=f'v_add_f32 v{a+4}, v{a+4}, v{a+6}', states=(endp[pr], 8)))
                items.append(dict(id=('p', pr, 6), kind='v', fn=f'v_add_f32 v{a+5}, v{a+5}, v{a+7}'))
            items.append(dict(id=('p', pr, 2), kind='v', fn=f'v_cvt_pk_bf16_f32 v124, v{a}, v{a+4}'))
            items.append(dict(id=('p', pr, 3), kind='v', fn=f'v_cvt_pk_bf16_f32 v125, v{a+1}, v{a+5}'))
            wgap = endp[pr] + (8 if pr < 2 else 4)
            ev.append((wgap, dict(id=('pw', pr), kind='n', lds=True, fn=f'ds_write2_b32 v{(120,126,127)[pr]}, v124, v125 offset0:0 offset1:4', order=[('p', pr, 3)], now=('p', pr, 3) if pr == 2 else None)))
        if w > 0 and not cfg.get('kxe', 1):
            kd = K(); sv = k.L; k.L = kd.L; kxdma(); k.L = sv
            for i_, t_ in enumerate(kd.L): ev.append((cfg.get('kxg', 16) + (0, 0, 1, 3, 7, 9, 10, 10, 13, 13, 14)[i_], dict(id=('kx', i_), kind='n', fn=t_.strip())))
        if cfg.get('tb', 0) and w == 1:
            ev.append((3, dict(id='tb0', kind='n', fn=f's_add_u32 s28, s40, {0x300000 - 0x20000:#x}')))
            ev.append((3, dict(id='tb1', kind='n', fn=f's_min_u32 s28, s28, {WS_BYTES - 0x60000:#x}')))
            ev.append((4, dict(id='tb2', kind='n', fn='buffer_load_dword v12, v13, s[8:11], s28 offen')))
        if cfg.get('pf', 1) and w >= 2:
            ev.append((2, dict(id='pf', kind='n', fn='buffer_load_dword v12, v13, s[8:11], s51 offen sc1')))
            ev.append((2, dict(id='pf2', kind='n', fn='s_add_u32 s50, s50, 1310720')))
            for i_, t_ in enumerate(wrap('s50', UF, 1310720).split('\n')): ev.append((11 + i_ // 2, dict(id=('pfw', i_), kind='n', fn=t_)))
        bx = endp[1] + cfg.get('bx', 13)
        ev.append((bx, dict(id='barX', kind='bar', fn='s_barrier', deps=[('pw', 1)], after=bx, order=[('pw', 1)])))
        sm = [True] * nsm
        if w == 0:
            kko = [0, 3, 1, 4, 2, 5]
            kxo = [6 * kt + kk for kk in kko for kt in range(2)]
            kxr = [(16 + 4 * w, 4, None), (56, endp[0] + 10, ('p', 0, 3)), (60, endp[0] + 11, ('p', 0, 3))] + \
                  [(16 + 4 * ks, idx[(5, ks)], None) for ks in order[2]]
            kxreg = {}
            for i, (r, g_, o_) in zip(kxo, kxr):
                kxreg[i] = r
                ev.append((g_, dict(id=('K', i), kind='n', lds=True, fn=f'ds_read_b128 {V(r,4)}, v0 offset:{1024*i}', after=g_, order=[o_] if o_ else [])))
            seq = []
            for kk in kko[:4]: seq += [('x0', kk), ('x1', kk), ('m', kk)]
            seq += [('m', 2), ('m', 5), ('x1', 2), ('x1', 5), ('x0', 2), ('x0', 5)]
            by = nsm + cfg.get('by', 8)
            FR = {0: 96, 3: 100, 1: 80, 4: 84, 2: 88, 5: 92}
            for kk in kko:
                bar, g_ = {0: ('barX', bx), 1: ('barX', bx), 2: ('barY', by)}[kk % 3]
                ev.append((g_ + 0.5, dict(id=('F', kk), kind='n', lds=True, order=[bar], fn=f'ds_read_b128 {V(FR[kk],4)}, v121 offset:{1088*kk}')))
            ev.append((by, dict(id='barY', kind='bar', fn='s_barrier', deps=[('pw', 2)], after=by, order=[('pw', 2)], glue=2)))
            started = set()
            for j_, (ty, kk) in enumerate(seq):
                F = V(FR[kk], 4); d_ = {'x0': 'v[64:67]', 'x1': 'v[68:71]', 'm': 'v[116:119]'}[ty]
                c_ = d_ if ty in started else ('v[12:15]' if ty == 'm' else '0'); started.add(ty)
                i_ = kk + (6 if ty == 'x1' else 0)
                need = [('F', kk)] + ([] if ty == 'm' else [('K', i_)])
                if j_ == 0: need = [('F', 0), ('F', 3), ('K', 0), ('K', 6), ('K', 3), ('K', 9)]
                if j_ == 6: need = [('F', 1), ('F', 4), ('K', 1), ('K', 7), ('K', 4), ('K', 10)]
                mats.append((f'{MF} {d_}, {F if ty == "m" else V(kxreg[i_],4)}, {F}, {c_}', need))
                sm.append(False)
            lm = nsm + 13
            UP = 'row_ror:8 row_mask:0xf bank_mask:0xc'
            items.append(dict(id='c0', kind='v', fn='v_max3_f32 v72, v116, v117, v118', states=(lm, 8), after=lm))
            items.append(dict(id='c1', kind='v', fn='v_max_f32 v72, v72, v119'))
            items.append(dict(id='c2', kind='v', fn=f'v_mov_b32_dpp v116, v118 {UP}'))
            items.append(dict(id='c3', kind='v', fn=f'v_mov_b32_dpp v117, v119 {UP}'))
            items.append(dict(id='c4', kind='v', fn='v_max3_f32 v72, v72, v68, v69', states=(nsm + 15, 8)))
            items.append(dict(id='c5', kind='v', fn='v_max3_f32 v72, v72, v70, v71'))
            items.append(dict(id='c6', kind='v', fn='v_max3_f32 v72, v72, v64, v65', states=(nsm + 17, 8)))
        else:
            ev.append((nsm + 99, dict(id='barY', kind='bar', fn='s_barrier', deps=[('pw', 2)], order=[('pw', 2)])))
            if w == 3 and h1n < 0:
                g_ = {-1: nsm + 100, -2: nsm + 98}.get(h1n, nsm + 2 + h1n)
                ev.append((g_, dict(id='hu1', kind='n', fn='buffer_store_dword v15, v123, s[8:11], s52 offen sc1')))
        for i_, g_ in enumerate(cfg.get('hprof', ())):
            if g_ < len(mats): ev.append((g_ - 0.01, dict(id=('hp', i_), kind='n', fn=f's_memtime s[{62+2*i_}:{63+2*i_}]', after=g_)))
        ev.sort(key=lambda x: x[0])
        for g_, it in ev:
            it['after'] = max(it.get('after', -1), min(int(g_), len(mats)) if g_ < len(mats) else len(mats))
            items.append(it)
        sched(k, mats, items, sm, pre_n=1)
        if w == 0 or cfg.get('trace'): stamp(k, cfg, 1)
    def loop_end(pp):
        if not pp.endswith('w3'): trace_out(k, cfg, 56)
        k(f"""
        s_add_u32 s22, s22, 1
        s_cmp_lt_u32 s22, 64
        s_cbranch_scc1 {pp}_loop
        s_branch {end}""")
    k.label(f'{p}_w0')
    k(f"""
    s_mul_i32 s28, s20, 640
    v_and_b32 v12, 7, v1
    v_lshlrev_b32 v12, 4, v12
    v_lshl_add_u32 v122, v13, 7, v12
    v_lshrrev_b32 v14, 3, v11
    v_lshl_add_u32 v122, v14, 3, v122
    v_add_u32 v122, s28, v122
    v_lshl_add_u32 v123, v14, 2, v12
    v_and_b32 v14, 1, v13
    v_lshl_add_u32 v123, v14, 3, v123
    s_add_u32 s28, s28, 512
    v_add_u32 v123, s28, v123""")
    v_mbmap(k, 122, 12); v_mbmap(k, 123, 12)
    k(f"""
    v_cmp_lt_u32 s[44:45], 1, v13
    v_mov_b32 v12, {BIG:#x}
    v_cmp_lt_u32 vcc, 1, v13
    v_mov_b32 v1, {SCL!r}
    s_nop 0
    v_cndmask_b32 v123, v12, v123, vcc
    v_mov_b32 v12, 0xff800000
    v_cndmask_b32_e64 v12, v12, 0, vcc
    v_mov_b32 v13, v12
    v_mov_b32 v14, v12
    v_mov_b32 v15, v12
    s_mov_b32 s42, {SCL!r}
    s_mov_b32 s43, {SCL!r}""")
    k.label(f'{p}_w0_loop')
    main(f'{p}_w0', 0)
    UP = 'row_ror:8 row_mask:0xf bank_mask:0xc'
    HUS = 'buffer_store_dword v11, v1, s[8:11], s52 offen sc1'
    NEG = 'op_sel_hi:[1,1,0] neg_lo:[0,0,1] neg_hi:[0,0,1]'
    k(f"""
    v_max3_f32 v72, v72, v66, v67
    v_mov_b32 v73, v72
    v_mov_b32_dpp v64, v68 {UP}
    v_mov_b32_dpp v65, v69 {UP}
    v_permlane32_swap_b32 v72, v73
    v_max_f32 v72, v72, v73
    v_mov_b32 v73, v72
    v_mov_b32_dpp v66, v70 {UP}
    v_mov_b32_dpp v67, v71 {UP}
    v_permlane16_swap_b32 v72, v73
    v_max_f32 v72, v72, v73
    v_mul_f32 v74, v72, v1
    v_xor_b32 v0, 16384, v0
    v_mul_f32_dpp v74, v72, v1 {UP}
    v_pk_fma_f32 v[64:65], v[64:65], s[42:43], v[74:75] {NEG}
    v_pk_fma_f32 v[66:67], v[66:67], s[42:43], v[74:75] {NEG}
    v_pk_fma_f32 v[116:117], v[116:117], s[42:43], v[74:75] {NEG}
    v_exp_f32 v64, v64
    v_exp_f32 v65, v65
    v_exp_f32 v66, v66
    v_exp_f32 v67, v67
    v_exp_f32 v116, v116
    v_exp_f32 v117, v117
    v_pk_add_f32 v[72:73], v[64:65], v[66:67]
    v_pk_add_f32 v[72:73], v[72:73], v[116:117]
    v_add_f32 v72, v72, v73
    s_nop 0
    s_nop 0
    v_add_f32_dpp v72, v72, v72 row_ror:8 row_mask:0xf bank_mask:0xf""")
    xlane(k, 'v_add_f32', 72, 73)
    k(f"""
    v_rcp_f32 v72, v72
    s_nop 0
    v_pk_mul_f32 v[64:65], v[64:65], v[72:73] op_sel_hi:[1,0]
    v_pk_mul_f32 v[66:67], v[66:67], v[72:73] op_sel_hi:[1,0]
    v_cvt_pk_bf16_f32 v74, v64, v65
    v_cvt_pk_bf16_f32 v75, v66, v67
    buffer_store_dwordx2 v[74:75], v122, s[8:11], s41 offen sc1
    v_pk_mul_f32 v[116:117], v[116:117], v[72:73] op_sel_hi:[1,0]
    v_cvt_pk_bf16_f32 v76, v116, v117
    buffer_store_dword v76, v123, s[8:11], s41 offen sc1""")
    stamp(k, cfg, 2)
    loop_end(f'{p}_w0')
    k.label(f'{p}_w1')
    k(f"""
    v_mov_b32 v123, v122
    v_lshlrev_b32 v12, 4, v11
    v_lshl_add_u32 v122, v13, 7, v12
    v_subrev_u32 v122, 128, v122
    v_mov_b32 v12, {BIG:#x}
    v_cmp_lt_u32 vcc, 7, v11
    s_nop 1
    v_cndmask_b32 v122, v12, v122, vcc
    v_cmp_gt_u32 vcc, {FW}, v1
    v_lshl_add_u32 v123, v1, 2, v123
    s_nop 0
    v_cndmask_b32 v123, v12, v123, vcc
    v_mov_b32 v14, 1
    v_mov_b32 v13, 0
    s_mul_i32 s42, s20, 3072
    s_add_u32 s42, s42, {KM:#x}
    s_add_u32 s43, s56, {FKM:#x}""")
    k.label(f'{p}_w1_loop')
    main(f'{p}_w1', 1)
    delay(k, cfg.get('kmdelay', 0))
    tk = []
    for kk in range(6):
        tk.append(k.lds(f'ds_read_b128 {V(88+4*kk,4)}, v121 offset:{1088*kk}'))
    for kk in range(6):
        k.wl(tk[kk])
        k(f'buffer_store_dwordx4 {V(88+4*kk,4)}, v122, s[8:11], s42 offen offset:{512*kk} sc1')
    k(f"""
    s_waitcnt vmcnt(0)
    buffer_store_dword v14, v123, s[8:11], s43 offen sc1
    s_add_u32 s42, s42, 98304
    s_add_u32 s43, s43, 4096""")
    loop_end(f'{p}_w1')
    k.label(f'{p}_w2')
    pf_setup(k, 50, 2, 0, cfg)
    k('v_lshlrev_b32 v13, 7, v1')
    k.label(f'{p}_w2_loop')
    k(f's_add_u32 s43, s43, 4096')
    k(f's_min_u32 s43, s43, {FQK + 63*4096:#x}')
    k(f's_cmp_eq_u32 s22, 0\ns_cbranch_scc1 {p}_w2_go\ns_cmp_lg_u32 s22, 1\ns_cbranch_scc1 {p}_w2_n1\ns_sub_u32 s44, s43, 4096')
    poll_flag(k, f'{p}_w2_f1', 122, 's44', 16, fail, sleep=2)
    k(f's_mul_i32 s28, s20, 24576\ns_add_u32 s28, s28, {QF + 12288 + 786432:#x}')
    for j in range(3):
        k(f's_mov_b32 m0, {KXB + 16384 + 4096*j}\ns_add_u32 s29, s28, {4096*j}')
        for i in range(4): k(f'buffer_load_dwordx4 v2, s[8:11], s29 offen offset:{1024*i} sc1 lds')
    k.label(f'{p}_w2_n1')
    poll_flag(k, f'{p}_w2_fl', 122, 's43', 16, fail, sleep=2)
    k.label(f'{p}_w2_go')
    main(f'{p}_w2', 2)
    loop_end(f'{p}_w2')
    k.label(f'{p}_w3')
    k(f"""
    s_cmp_eq_u32 s20, {cfg.get('ref1', 0)}
    s_cselect_b32 s28, {cfg.get('nl', 16)}, 0
    v_cmp_gt_u32 vcc, s28, v1
    v_mul_u32_u24 v14, {cfg.get('lstride', 256)}, v1
    v_add_u32 v14, {HU1:#x}, v14
    v_mov_b32 v12, {BIG:#x}
    v_cndmask_b32 v123, v12, v14, vcc
    v_mov_b32 v15, -1
    v_lshlrev_b32 v13, 7, v1""")
    pf_setup(k, 50, 2, 1, cfg)
    k.label(f'{p}_w3_loop')
    main(f'{p}_w3', 3)
    loop_end(f'{p}_w3')
    for f in slows: f()

def gen_z(k, p, end, fail, cfg):
    keys = [('v', t, ks) for ks in range(10) for t in range(3)] + [('o', ci, ks) for ci in range(10) for ks in range(3)]
    l1 = [('v', 0, 8), ('v', 0, 9), ('v', 1, 8), ('v', 2, 8), ('v', 1, 9)]
    l2 = [('o', 1, 2), ('o', 3, 0), ('o', 4, 1), ('o', 5, 2), ('o', 7, 0), ('o', 8, 1), ('o', 9, 2)]
    wm = Wmap(keys, 8, set(l1 + l2))
    role_common(k, ('Wv', 'Wo'))
    gen_loader(k, 'VO', True, wm)
    ustamp(k, cfg, 5)
    k(f'v_cmp_ne_u32 vcc, 0, v20\ns_cbranch_vccz {p}_sl')
    rot_check(k, 23)
    sel_from(k, cfg, 20)
    k(f's_branch {p}_sk')
    k.label(f'{p}_sl')
    load_sel(k, cfg)
    k.label(f'{p}_sk')
    MEMB = 98304; VT = MEMB + 10240
    RING = [108, 116]
    hu = cfg.get('hu', 1)
    memaddr_setup(k, MEMB)
    def plane(d, c, t):
        k(f"""
        v_mul_u32_u24 v{d}, 768, v{c}
        v_and_b32 v{t}, 1, v{c}
        v_lshl_add_u32 v{d}, v{t}, 5, v{d}
        v_lshrrev_b32 v{t}, 1, v{c}
        v_lshl_add_u32 v{d}, v{t}, 7, v{d}""")
    k('v_and_b32 v11, 15, v1\nv_lshrrev_b32 v16, 4, v1\nv_and_b32 v17, 3, v1')
    plane(12, 16, 18); plane(14, 17, 18)
    k(f"""
    v_lshl_add_u32 v12, v11, 2, v12
    s_mul_i32 s28, s21, 192
    s_add_u32 s28, s28, {VT}
    v_add_u32 v12, s28, v12
    v_lshl_add_u32 v14, v16, 6, v14
    v_bfe_u32 v18, v1, 2, 2
    v_lshl_add_u32 v14, v18, 3, v14
    v_add_u32 v14, {VT}, v14
    v_lshlrev_b32 v15, 4, v11
    v_lshrrev_b32 v18, 1, v16
    v_lshl_add_u32 v15, v18, 3, v15
    v_and_b32 v18, 1, v16
    v_lshl_add_u32 v15, v18, 16, v15
    s_lshl_b32 s28, s20, 8
    s_lshl_b32 s42, s21, 14
    s_add_u32 s42, s42, s28
    s_add_u32 s42, s42, {ZM:#x}
    v_lshlrev_b32 v13, 7, v1
    s_add_u32 s30, s21, 15""")
    pf_setup(k, 44, 3, 's30', cfg)
    k(f"""
    s_mov_b32 s22, 0
    s_cmp_eq_u32 s21, 0
    s_cbranch_scc1 {p}_w0_loop
    s_cmp_eq_u32 s21, 1
    s_cbranch_scc1 {p}_w1_loop
    s_cmp_eq_u32 s21, 2
    s_cbranch_scc1 {p}_w2_loop
    s_branch {p}_w3_loop""")
    slows = []
    for w in range(4):
        pp = f'{p}_w{w}'
        k.label(f'{pp}_loop')
        for i in range(52): k(f'v_mov_b32 v{56+i}, 0')
        for i, key in enumerate(l1[:2]):
            for f in wload8(wm, key): k.lds(f(RING[i]))
        k('s_sub_u32 s46, s22, 1')
        region(k, 40, 's46')
        zregion(k, 43, 42)
        k(f's_cmp_lt_u32 s22, s54\ns_cselect_b32 s45, {XN:#x}, s44')
        for pr in range(1, 5): k(f's_add_u32 s{47+pr}, s43, {131072*pr}')
        k.wl_all()
        if hu and w < cfg.get('nref2', 1):
            k('s_sub_u32 s46, s22, 1')
            delay(k, cfg.get('zpre', 0))
            hu_wait(k, pp, HU2, 's46', 52 - 4 * (w == 0) * 8, fail, cfg, w)
            delay(k, cfg.get('d2', 0))
        k('s_barrier')
        if cfg.get('trace'):
            stamp(k, cfg, 4)
            if not cfg.get('hprof'): k('s_memtime s[66:67]')
        wreg = {key: R(wm.loc[key], 8) for key in wm.loc}
        l1r = [RING[0], RING[1], 16, 24, RING[0]]
        for key, r in zip(l1, l1r): wreg[key] = V(r, 8)
        smt = lambda t, ks: f'{SM} {V(56+4*t,4)}, {V(16+4*ks,4)}, {wreg[("v",t,ks)]}, v10'
        rest = [ks for ks in range(8) if ks not in (w, w + 4)]
        fa, fb = rest[:3], rest[3:]
        slows.append(mem_front(k, pp, w, fail, cfg, [smt(t, ks) for ks in (w, w + 4, fa[0]) for t in range(3)], list(range(56, 68))))
        stamp(k, cfg, 0)
        o0 = [8, fb[0], 9, fb[1], fb[2]]
        o1 = [fb[0], fb[1], 8, fb[2], 9]
        mats = []; items = []; idx = {}; ev = []
        own3 = 7 + w if w in (1, 2) else None
        for ks in o0:
            if ks != own3: items.append(dict(id=('A', ks), kind='n', lds=True, fn=f'ds_read_b128 {V(16+4*ks,4)}, v9 offset:{1024*ks}'))
        for ks in fa[1:]:
            for t in range(3): mats.append((smt(t, ks), []))
        for ks in o0:
            idx[('v', 0, ks)] = len(mats); mats.append((smt(0, ks), [('A', ks)] if ks != own3 else []))
        sq = [(t, ks) for ks in o1 for t in (1, 2)]
        sq = sq[:-6] + sq[-6::2] + sq[-5::2]
        for (t, ks) in sq:
            key = ('v', t, ks)
            idx[key] = len(mats); mats.append((smt(t, ks), [('W',) + key + (1,)] if key in l1[2:] else []))
        n1 = len(mats)
        for key, r, g_ in zip(l1[2:], l1r[2:], (5, 7, idx[l1[0]])):
            for h_, f in enumerate(wload8(wm, key)):
                ev.append((g_, dict(id=('W',) + key + (h_,), kind='n', lds=True, fn=f(r))))
        ends = [idx[('v', 0, o0[-1])], n1 - 4, n1 - 1]
        items.append(dict(id=('p', 0, 0), kind='v', fn='v_add_f32 v56, v56, v58', states=(ends[0], 8), after=ends[0]))
        items.append(dict(id=('p', 0, 5), kind='v', fn='v_add_f32 v57, v57, v59'))
        items.append(dict(id=('p', 0, 1), kind='v', fn='v_cvt_pk_bf16_f32 v124, v56, v57'))
        ev.append((ends[0] + 7, dict(id=('pw', 0), kind='n', lds=True, fn='ds_write_b32 v12, v124', order=[('p', 0, 1)])))
        items.append(dict(id=('p', 1, 0), kind='v', fn='v_pk_add_f32 v[60:61], v[60:61], v[62:63]', states=(ends[1], 8), after=n1))
        items.append(dict(id=('p', 1, 1), kind='v', fn='v_cvt_pk_bf16_f32 v125, v60, v61'))
        items.append(dict(id=('p', 2, 0), kind='v', fn='v_pk_add_f32 v[64:65], v[64:65], v[66:67]', states=(ends[2], 8)))
        items.append(dict(id=('p', 2, 1), kind='v', fn='v_cvt_pk_bf16_f32 v126, v64, v65'))
        free = lambda a_, b_: max(idx.get(('v', 2, ks), 0) for ks in (a_, b_))
        dst = sorted([(idx[l1[1]], RING[1]), (idx[l1[2]], 16), (idx[l1[3]], 24), (idx[l1[4]], RING[0]), (free(4, 5), 32), (free(6, 7), 40), (free(8, 9), 48)])
        late2 = []
        for n_, (key, (g_, r)) in enumerate(zip(l2, dst)):
            wreg[key] = V(r, 8)
            for h_, f in enumerate(wload8(wm, key)):
                it = dict(id=('W',) + key + (h_,), kind='n', lds=True, fn=f(r))
                if n_ < 3: ev.append((g_, it))
                else: late2.append(it)
        if cfg.get('tb', 0) and w == 0:
            ev.append((2, dict(id='tb0', kind='n', fn=f's_add_u32 s28, s40, {0x300000 - 0x20000:#x}')))
            ev.append((2, dict(id='tb1', kind='n', fn=f's_min_u32 s28, s28, {WS_BYTES - 0x60000:#x}')))
            ev.append((3, dict(id='tb2', kind='n', fn='buffer_load_dword v127, off, s[8:11], s28')))
        if cfg.get('pf', 1) and w >= 1:
            ev.append((3, dict(id='pf', kind='n', fn='buffer_load_dword v127, v13, s[8:11], s45 offen sc1')))
            ev.append((3, dict(id='pf2', kind='n', fn='s_add_u32 s44, s44, 1310720')))
            for i_, t_ in enumerate(wrap('s44', UF, 1310720).split('\n')): ev.append((4, dict(id=('pfw', i_), kind='n', fn=t_)))
        ev.append((n1 + 50, dict(id=('pw', 1), kind='n', lds=True, fn='ds_write2_b32 v12, v125, v126 offset0:16 offset1:32', order=[('p', 2, 1)])))
        ev.sort(key=lambda x: x[0])
        for g_, it in ev:
            it['after'] = min(g_, n1); items.append(it)
        sched(k, mats, items, [True] * n1, pre_n=1)
        k.wl_all()
        k('s_barrier')
        stamp(k, cfg, 1)
        mats = []; items = []
        for ks in range(3):
            for u in range(2):
                items.append(dict(id=('AV', ks, u), kind='n', lds=True, fn=f'ds_read_b64_tr_b16 {V(56+4*ks+2*u,2)}, v14 offset:{(64*ks+8*u)*4}'))
        for it in items: it['t'] = k.lds(it['fn'])
        tks = {ks: items[2 * ks + 1]['t'] for ks in range(3)}
        items = []
        for pr in range(5):
            for ci in (2 * pr, 2 * pr + 1):
                for ks in range(3):
                    pre_ = f's_waitcnt lgkmcnt({4 - 2*ks})\n' if pr == 0 and ci == 0 else ''
                    mats.append((pre_ + f'{SM} {V(68+4*ci,4)}, {V(56+4*ks,4)}, {wreg[("o",ci,ks)]}, v10', [('W', 'o', ci, ks, 1)] if ('o', ci, ks) in l2[3:] else []))
            a = 68 + 8 * pr; e_ = 6 * pr + 5
            if pr >= cfg.get('zpk', 4):
                items.append(dict(id=('q', pr, 0), kind='v', fn=f'v_pk_add_f32 {V(a,2)}, {V(a,2)}, {V(a+2,2)}', states=(e_ - 3, 8), after=e_ - 2))
                items.append(dict(id=('q', pr, 2), kind='v', fn=f'v_cvt_pk_bf16_f32 v{a+2}, v{a}, v{a+1}'))
                items.append(dict(id=('q', pr, 1), kind='v', fn=f'v_pk_add_f32 {V(a+4,2)}, {V(a+4,2)}, {V(a+6,2)}', states=(e_, 8)))
            else:
                items.append(dict(id=('q', pr, 0), kind='v', fn=f'v_add_f32 v{a}, v{a}, v{a+2}', states=(e_ - 3, 8), after=e_ - 2))
                items.append(dict(id=('q', pr, 6), kind='v', fn=f'v_add_f32 v{a+1}, v{a+1}, v{a+3}'))
                items.append(dict(id=('q', pr, 2), kind='v', fn=f'v_cvt_pk_bf16_f32 v{a+2}, v{a}, v{a+1}'))
                items.append(dict(id=('q', pr, 1), kind='v', fn=f'v_add_f32 v{a+4}, v{a+4}, v{a+6}', states=(e_, 8)))
                items.append(dict(id=('q', pr, 7), kind='v', fn=f'v_add_f32 v{a+5}, v{a+5}, v{a+7}'))
            items.append(dict(id=('q', pr, 3), kind='v', fn=f'v_cvt_pk_bf16_f32 v{a+3}, v{a+4}, v{a+5}'))
            items.append(dict(id=('q', pr, 4), kind='v2', fn=f'v_permlane16_swap_b32 v{a+2}, v{a+3}', states=(('q', pr, 3), 2)))
            items.append(dict(id=('q', pr, 5), kind='n', fn=f'buffer_store_dwordx2 {V(a+2,2)}, v15, s[8:11], {"s43" if pr == 0 else "s%d" % (47+pr)} offen sc1', order=[('q', pr, 4)]))
        for pr in range(4):
            i_ = [j for j, it in enumerate(items) if it['id'] == ('q', pr, 4)][0]
            j_ = [j for j, it in enumerate(items) if it['id'] == ('q', pr + 1, 0)][0]
            items.insert(j_, items.pop(i_))
        for it in late2: it['after'] = 2
        items = late2 + items
        k.ld = k.lc
        sched(k, mats, items, [True] * 30)
        stamp(k, cfg, 2)
        trace_out(k, cfg, 56)
        k(f"""
        s_add_u32 s22, s22, 1
        s_cmp_lt_u32 s22, 64
        s_cbranch_scc1 {pp}_loop
        s_branch {end}""")
    for f in slows: f()

def gen_c(k, p, end, fail, cfg):
    load_sel(k, cfg)
    RED = 0
    k(f"""
    v_lshlrev_b32 v2, 4, v1
    v_and_b32 v4, 7, v1
    v_bfe_u32 v5, v1, 3, 1
    v_lshrrev_b32 v6, 4, v1
    s_mul_i32 s28, s21, 5120
    v_mul_u32_u24 v7, 640, v5
    v_lshl_add_u32 v7, v6, 7, v7
    v_lshl_add_u32 v7, v4, 4, v7
    v_add_u32 v7, s28, v7""")
    for t in range(4):
        k(f'v_add_u32 v{16+t}, {1280*t}, v7')
    k(f"""
    v_lshl_add_u32 v7, v5, 2, v6
    v_mul_u32_u24 v7, 640, v7
    v_lshl_add_u32 v7, v4, 4, v7
    s_add_u32 s28, s28, 512
    v_add_u32 v20, s28, v7""")
    for t in range(5): v_mbmap(k, 16 + t, 7)
    k(f"""
    s_lshl_b32 s28, s21, 10
    v_lshlrev_b32 v21, 7, v4
    v_add_u32 v21, s28, v21
    v_lshlrev_b32 v28, 5, v6
    v_bfe_u32 v7, v1, 2, 1
    v_lshl_add_u32 v28, v7, 4, v28
    v_lshl_add_u32 v28, v5, 9, v28
    v_bfe_u32 v7, v1, 1, 1
    v_lshl_add_u32 v28, v7, 8, v28
    v_and_b32 v7, 1, v1
    v_lshl_add_u32 v28, v7, 3, v28
    v_lshlrev_b32 v22, 2, v1
    s_lshl_b32 s28, s20, 8
    s_add_u32 s28, s28, {M_OFF}
    v_add_u32 v22, s28, v22""")
    v_mbmap(k, 22, 7)
    k(f"""
    v_mov_b32 v7, {BIG:#x}
    v_cmp_ne_u32 s[44:45], 0, v5
    s_nop 1
    s_lshl_b32 s28, s21, 10
    v_add_u32 v23, s28, v2
    s_lshl_b32 s42, s20, 15
    s_lshl_b32 s28, s21, 13
    s_add_u32 s42, s42, s28
    s_add_u32 s42, s42, {UF:#x}
    s_lshl_b32 s48, s20, 14
    s_lshl_b32 s28, s21, 11
    s_add_u32 s48, s48, s28
    s_add_u32 s48, s48, {ZM:#x}
    v_mul_u32_u24 v26, {cfg.get('lstride', 256)}, v1
    v_add_u32 v26, {HU2:#x}, v26
    s_cmp_eq_u32 s20, {cfg.get('ref2', 0)}
    s_cselect_b32 s28, {cfg.get('nl', 16)}, 0
    s_cmp_eq_u32 s21, {cfg.get('huwave', 1)}
    s_cselect_b32 s28, s28, 0
    v_cmp_gt_u32 vcc, s28, v1
    s_nop 1
    v_cndmask_b32 v26, v7, v26, vcc
    s_mov_b32 s46, {FU:#x}
    s_mov_b32 s22, 0""")
    hupos = cfg.get('hupos', 9)
    hu = cfg.get('hu', 0 if cfg.get('hu') == 0 else 1)
    reg = lambda j: 64 + 4 * j
    def ld(j):
        if j < 2: k(f'buffer_load_dwordx4 {V(reg(j),4)}, v2, s[8:11], s43 offen offset:{1024*j} sc1')
        else:     k(f'buffer_load_dwordx4 {V(reg(j),4)}, v{14+j}, s[8:11], s40 offen sc1')
    UB = 8192
    k(f"""
    v_and_b32 v21, 31, v1
    v_lshlrev_b32 v21, 7, v21
    v_mov_b32 v25, 0
    s_lshl_b32 s28, s21, 13
    s_sub_u32 s42, s42, s28
    s_add_u32 s28, s28, {UB}
    v_add_u32 v3, s28, v2
    s_mul_i32 s50, s21, 11264
    s_min_u32 s50, s50, {21*1024}
    s_add_u32 s42, s42, s50
    s_add_u32 s50, s50, {UB}""")
    k.label(f'{p}_loop')
    zregion(k, 43, 48)
    region(k, 40, 's22')
    k(f'v_mov_b32 v27, s22\ns_cmp_eq_u32 s21, 3\ns_cbranch_scc1 {p}_w3\n' + ('' if cfg.get('ctrig', 1) else 's_waitcnt vmcnt(0)\n') + 's_barrier')
    for j in range(3):
        k(f's_add_u32 m0, s50, {4096*j}\ns_add_u32 s28, s42, {4096*j}')
        for i in range(4 if j < 2 else 3):
            k(f'buffer_load_dwordx4 v2, s[8:11], s28 offen offset:{1024*i} sc1 lds')
    k('s_add_u32 s42, s42, 1310720')
    k(wrap('s42', UF, 1310720))
    k('s_waitcnt vmcnt(0)')
    if cfg.get('trace'): stamp(k, cfg, 0)
    k(f's_branch {p}_go')
    k.label(f'{p}_w3')
    k(f's_cmp_lg_u32 s22, 0\ns_cbranch_scc1 {p}_n0')
    poll_flag(k, f'{p}_f00', 21, 's46', 24, fail, sleep=1)
    k(f's_add_u32 s47, s56, {FKM:#x}\nbuffer_load_dword v24, v21, s[8:11], s47 offen sc1\ns_barrier\ns_add_u32 s46, s46, 4096')
    k(f's_waitcnt vmcnt(0)\nv_cmp_eq_u32 vcc, 0, v24\ns_cbranch_vccz {p}_go')
    poll_flag(k, f'{p}_f0', 21, 's47', 24, fail, sleep=1)
    k(f's_branch {p}_go')
    k.label(f'{p}_n0')
    k('s_sub_u32 s47, s22, 1')
    if cfg.get('ctrig', 1): hu_wait(k, p + '_g', HU2, 's47', 108, fail, dict(cfg, depth=cfg.get('tdepth', 2)))
    k(f'v_cmp_eq_u32 vcc, 0, v25\ns_cbranch_vccz {p}_fk')
    poll_flag(k, f'{p}_fl', 21, 's46', 24, fail, sleep=2)
    k(f's_branch {p}_tg')
    k.label(f'{p}_fk')
    for i in range(cfg.get('textra', 1)):
        k('buffer_load_dword v109, v108, s[8:11], s52 offen sc1\ns_waitcnt vmcnt(0)')
    k.label(f'{p}_tg')
    k(f"""
    s_barrier
    s_add_u32 s46, s46, 4096
    buffer_load_dword v25, v21, s[8:11], s46 offen sc1
    s_add_u32 s28, s40, {0x100000 - 0x20000:#x}
    {'buffer_load_dword v29, off, s[8:11], s28' if cfg.get('tb', 0) else ''}
    """)
    hu_wait(k, p, HU1, 's22', 108, fail, cfg)
    k.label(f'{p}_go')
    k('s_barrier')
    stamp(k, cfg, 4)
    def cp(pos):
        if pos in cfg.get('cprof', ()):
            i_ = cfg['cprof'].index(pos); k(f's_memtime s[{62+2*i_}:{63+2*i_}]')
    if cfg.get('cprof'): k('s_memtime s[60:61]')
    k('s_mov_b32 s39, 1')
    def rnd(first):
        for j in range(7):
            ld(j)
            if first and j in cfg.get('cbar', (1, 2, 3, 4, 5)): k('s_barrier')
        if not first:
            k('s_mov_b64 exec, -1')
            tmo(k, fail)
        extra = 0
        def huf(pos):
            nonlocal extra
            if first and hu and pos == hupos:
                k('buffer_store_dword v27, v26, s[8:11], s52 offen sc1'); extra += 1
            if first and hu and pos + 20 == hupos:
                k('s_barrier')
                k('buffer_store_dword v27, v26, s[8:11], s52 offen sc1'); extra += 1
        huf(-1)
        if first:
            for i in range(8): k(f'ds_read_b128 {V(32+4*i,4)}, v3 offset:{1024*i}')
        k(f's_waitcnt vmcnt({5+extra}) lgkmcnt(0)')
        huf(0)
        if first: cp(0)
        maxtree(k, 24, list(range(64, 72)))
        for t in range(5):
            k(f's_waitcnt vmcnt({4-t+extra})')
            huf(t + 1)
            if first: cp(t + 1)
            b = 72 + 4 * t
            a0, a1 = (32 + 8 * t, 36 + 8 * t) if t < 4 else (64, 68)
            k(f'{MF} v[8:11], {V(a0,4)}, {V(b,4)}, {"0" if t == 0 else "v[8:11]"}')
            k(f'v_max3_u32 v24, v24, v{b}, v{b+1}')
            k(f'{MF} v[12:15], {V(a1,4)}, {V(b,4)}, {"0" if t == 0 else "v[12:15]"}')
            k(f'v_max3_u32 v24, v24, v{b+2}, v{b+3}')
        k('v_cmp_eq_u32 vcc, -1, v24')
    def fold():
        k.nop(6)
        for i in range(4):
            k(f'v_add_f32_dpp v{8+i}, v{12+i}, v{8+i} row_ror:8 row_mask:0xf bank_mask:0xf')
        k(f'ds_write_b128 v23, v[8:11] offset:{RED}')
    rnd(True)
    fold()
    cp(6)
    k(f's_cbranch_vccnz {p}_retry')
    k.label(f'{p}_ok')
    stamp(k, cfg, 1)
    if hu and hupos == 7: k('buffer_store_dword v27, v26, s[8:11], s52 offen sc1')
    if hu and hupos == 9: k('s_barrier\nbuffer_store_dword v27, v26, s[8:11], s52 offen sc1')
    k(f"""
    s_cmp_lg_u32 s21, 0
    s_waitcnt lgkmcnt(0)
    s_barrier""")
    cp(7)
    k(f"""
    s_cbranch_scc1 {p}_nx
    ds_read_b64 v[96:97], v28 offset:{RED}
    ds_read_b64 v[98:99], v28 offset:{RED + 1024}
    ds_read_b64 v[100:101], v28 offset:{RED + 2048}
    ds_read_b64 v[102:103], v28 offset:{RED + 3072}
    s_waitcnt lgkmcnt(2)
    v_pk_add_f32 v[96:97], v[96:97], v[98:99]
    s_waitcnt lgkmcnt(0)
    v_pk_add_f32 v[100:101], v[100:101], v[102:103]
    v_pk_add_f32 v[96:97], v[96:97], v[100:101]
    v_cvt_pk_bf16_f32 v8, v96, v97
    buffer_store_dword v8, v22, s[8:11], s40 offen sc1""")
    cp(8)
    stamp(k, cfg, 2)
    k.label(f'{p}_nx')
    if hu and hupos == 8: k('buffer_store_dword v27, v26, s[8:11], s52 offen sc1')
    if cfg.get('stamp') is not None: k('s_add_u32 s58, s58, s39')
    if cfg.get('trace'): k('s_mov_b32 s59, s39')
    trace_out(k, cfg, 116)
    k(f"""
    s_add_u32 s22, s22, 1
    s_cmp_lt_u32 s22, 63
    s_cbranch_scc1 {p}_loop""")
    k(f's_branch {end}')
    k.label(f'{p}_retry')
    k('s_mov_b64 exec, vcc')
    rnd(False)
    k(f's_cbranch_vccnz {p}_retry')
    fold()
    k(f's_branch {p}_ok')

def poll_flag(k, lab, vaddr, sreg, tmp, fail, sleep=0, slow=None):
    k('s_mov_b32 s39, 0')
    k.label(lab)
    k(f'buffer_load_dword v{tmp}, v{vaddr}, s[8:11], {sreg} offen sc1')
    tmo(k, fail)
    k(f's_waitcnt vmcnt(0)')
    k(f'v_cmp_eq_u32 vcc, 0, v{tmp}')
    if sleep:
        k(f's_cbranch_vccz {lab}_ok')
        k(f's_sleep {sleep}')
        if slow: k(f's_cmp_ge_i32 s22, {slow[0]}\ns_cbranch_scc1 {lab}\ns_sleep {slow[1]}')
        k(f's_branch {lab}')
        k.label(lab + '_ok')
    else:
        k(f's_cbranch_vccnz {lab}')

def softmax_regs(k, regs, t0):
    n = len(regs)
    k(f'v_max3_f32 v{t0}, v{regs[0]}, v{regs[1]}, v{regs[2]}')
    i = 3
    while i + 1 < n:
        k(f'v_max3_f32 v{t0}, v{t0}, v{regs[i]}, v{regs[i+1]}'); i += 2
    if i < n: k(f'v_max_f32 v{t0}, v{t0}, v{regs[i]}')
    xlane(k, 'v_max_f32', t0, t0 + 1)
    k(f'v_mul_f32 v{t0}, s42, v{t0}')
    for r in regs: k(f'v_fma_f32 v{r}, v{r}, s42, -v{t0}')
    for r in regs: k(f'v_exp_f32 v{r}, v{r}')
    k(f'v_pk_add_f32 {V(t0,2)}, {V(regs[0],2)}, {V(regs[2],2)}')
    for i in range(4, n, 2): k(f'v_pk_add_f32 {V(t0,2)}, {V(t0,2)}, {V(regs[i],2)}')
    k(f'v_add_f32 v{t0}, v{t0}, v{t0+1}')
    xlane(k, 'v_add_f32', t0, t0 + 1)
    k(f'v_rcp_f32 v{t0}, v{t0}')
    k('s_nop 0')
    for i in range(0, n, 2):
        k(f'v_pk_mul_f32 {V(regs[i],2)}, {V(regs[i],2)}, {V(t0,2)} op_sel_hi:[1,0]')

def gen_x(k, p, end, fail, cfg):
    k(f"""
    s_and_b32 s31, s20, 4
    s_add_u32 s31, s31, s21
    s_and_b32 s32, s20, 3
    s_lshl_b32 s30, s31, 2
    s_add_u32 s30, s30, s32
    v_lshlrev_b32 v2, 4, v1
    v_and_b32 v4, 15, v1
    v_lshrrev_b32 v5, 4, v1
    s_lshl_b32 s28, s30, 7
    v_mov_b32 v6, s28
    v_mov_b32 v7, {BIG:#x}
    v_cmp_gt_u32 vcc, {FW}, v1
    v_lshl_add_u32 v8, v1, 2, v6
    s_nop 0
    v_cndmask_b32 v8, v7, v8, vcc
    v_mov_b32 v9, 1
    v_and_b32 v10, 7, v1
    v_lshlrev_b32 v10, 4, v10
    v_lshl_add_u32 v10, v5, 7, v10
    v_lshlrev_b32 v11, 4, v4
    v_lshl_add_u32 v11, v5, 3, v11
    v_cmp_gt_u32 vcc, 2, v5
    s_nop 1
    v_cndmask_b32 v11, v7, v11, vcc
    v_mov_b32 v7, 0xff800000
    v_cndmask_b32_e64 v16, v7, 0, vcc
    v_mov_b32 v17, v16
    v_mov_b32 v18, v16
    v_mov_b32 v19, v16
    v_lshlrev_b32 v3, 2, v5""")
    for r in range(4):
        k(f"""
        v_add_u32 v20, {r}, v3
        v_cmp_le_u32 vcc, v20, v4
        s_nop 1
        v_cndmask_b32_e64 v{12+r}, v7, 0, vcc""")
    k(f"""
    v_and_b32 v23, 1, v1
    v_mul_u32_u24 v23, {FP1 - FQK:#x}, v23
    v_add_u32 v23, v23, v6
    v_add_u32 v22, 4096, v23
    v_add_u32 v21, {FKM - FQK:#x}, v6
    v_add_u32 v21, s56, v21
    v_cmp_gt_u32 vcc, 32, v1
    s_mul_i32 s45, s30, 3072
    s_add_u32 s45, s45, {KM:#x}
    v_cndmask_b32 v22, v21, v22, vcc
    v_mov_b32 v62, v21
    s_mul_i32 s33, s30, 24576
    s_add_u32 s33, s33, {QF:#x}
    s_lshl_b32 s47, s30, 11
    s_add_u32 s47, s47, {PX:#x}
    s_lshl_b32 s46, s31, 11
    s_lshl_b32 s28, s32, 8
    s_add_u32 s46, s46, s28
    s_add_u32 s46, s46, {PX + 65536:#x}
    s_lshl_b32 s44, s22, 12
    s_add_u32 s44, s44, {FQK:#x}
    s_mul_i32 s28, s22, 98304
    s_add_u32 s45, s45, s28
    s_and_b32 s28, s22, {RING2 - 1}
    s_mul_i32 s28, s28, 786432
    s_add_u32 s33, s33, s28
    s_mul_i32 s28, s22, 81920
    s_add_u32 s46, s46, s28
    s_add_u32 s47, s47, s28
    s_sub_u32 s27, s26, 1
    s_cmp_eq_u32 s22, s27
    s_cselect_b64 vcc, -1, 0
    v_cndmask_b32 v22, v22, v62, vcc
    s_mov_b32 s42, {SCL!r}
    v_mov_b32 v50, 0
    v_mov_b32 v51, 0""")
    RG = lambda st, i: V(64 + i, 4) if st == 0 else A(i, 4)
    def qkload(st):
        for j in range(6):
            k(f's_add_u32 s28, s33, {4096*j}')
            for i in range(4):
                k(f'buffer_load_dwordx4 {RG(st, 16*j+4*i)}, v2, s[8:11], s28 offen offset:{1024*i} sc1')
        k('s_add_u32 s33, s33, 786432')
        k(wrap('s33', QF, 786432, RING2))
    poll_flag(k, f'{p}_f1', 23, 's44', 20, fail, sleep=4)
    qkload(0)
    k('v_mov_b32 v63, 0\ns_waitcnt vmcnt(0)')
    for st in range(2):
        Q = lambda qt, kk: RG(st, 4 * (6 * qt + kk))
        Kf = lambda kt, kk: RG(st, 48 + 4 * (6 * kt + kk))
        k.label(f'{p}_loop{st}')
        stamp(k, cfg, 0)
        k('v_cmp_eq_u32 vcc, 0, v63')
        for kk in range(6):
            k(f'{MF} v[24:27], {Kf(0,kk)}, {Q(0,kk)}, {"v[12:15]" if kk == 0 else "v[24:27]"}')
            k(f'{MF} v[32:35], {Kf(0,kk)}, {Q(1,kk)}, {"0" if kk == 0 else "v[32:35]"}')
            k(f'{MF} v[36:39], {Kf(1,kk)}, {Q(1,kk)}, {"v[12:15]" if kk == 0 else "v[36:39]"}')
        k(f's_cbranch_vccz {p}_go{st}')
        poll_flag(k, f'{p}_f2{st}', 22, 's44', 20, fail, sleep=1, slow=(58, cfg.get('slowx', 3)))
        k.label(f'{p}_go{st}')
        stamp(k, cfg, 1)
        for kk in range(6):
            k(f'buffer_load_dwordx4 {V(160+4*kk,4)}, v10, s[8:11], s45 offen offset:{512*kk} sc1')
        def mm(x):
            for kk in range(6):
                k(f's_waitcnt vmcnt({5-kk+x})')
                k(f'{MF} v[40:43], {V(160+4*kk,4)}, {Q(1,kk)}, {"v[16:19]" if kk == 0 else "v[40:43]"}')
                k(f'{MF} v[28:31], {V(160+4*kk,4)}, {Q(0,kk)}, {"v[16:19]" if kk == 0 else "v[28:31]"}')
        if st == 0:
            k(f's_cmp_lg_u32 s22, s27\ns_cbranch_scc1 {p}_nq')
            mm(0)
            k(f's_branch {p}_nq2')
            k.label(f'{p}_nq')
        qkload(1 - st)
        mm(24)
        if st == 0: k.label(f'{p}_nq2')
        k.nop(7)
        softmax_regs(k, list(range(32, 44)), 20)
        for i in range(6): k(f'v_cvt_pk_bf16_f32 v{56+i}, v{32+2*i}, v{33+2*i}')
        k('buffer_store_dwordx4 v[56:59], v2, s[8:11], s47 offen offset:1024 sc1\nbuffer_store_dwordx2 v[60:61], v11, s[8:11], s46 offen offset:1024 sc1')
        softmax_regs(k, list(range(24, 32)), 44)
        k(f"""
        v_cvt_pk_bf16_f32 v48, v24, v25
        v_cvt_pk_bf16_f32 v49, v26, v27
        v_cvt_pk_bf16_f32 v52, v28, v29
        v_cvt_pk_bf16_f32 v53, v30, v31
        buffer_store_dwordx4 v[48:51], v2, s[8:11], s47 offen sc1
        buffer_store_dwordx2 v[52:53], v11, s[8:11], s46 offen sc1
        s_add_u32 s28, s44, {FPX - FQK:#x}
        s_add_u32 s28, s28, s56
        s_add_u32 s44, s44, 4096
        buffer_load_dword v63, v22, s[8:11], s44 offen sc1
        s_add_u32 s45, s45, 98304
        s_add_u32 s46, s46, 81920
        s_add_u32 s47, s47, 81920
        s_waitcnt vmcnt(1)
        buffer_store_dword v9, v8, s[8:11], s28 offen sc1""")
        stamp(k, cfg, 2)
        k('s_add_u32 s22, s22, 1\ns_waitcnt vmcnt(1)')
        if st == 0: k(f's_cmp_ge_u32 s22, s26\ns_cbranch_scc1 {end}')
    k(f's_branch {p}_loop0')

def gen_o(k, p, end, fail, cfg):
    k(f's_load_dwordx2 s[28:29], s[0:1], {KA["x"]}')
    k('s_waitcnt lgkmcnt(0)')
    k.srd(12, 28, 2048 * 1280)
    k(f"""
    v_lshlrev_b32 v2, 4, v1
    v_and_b32 v4, 7, v1
    v_lshlrev_b32 v4, 7, v4
    s_lshl_b32 s28, s21, 10
    v_add_u32 v4, s28, v4
    v_and_b32 v5, 15, v1
    v_lshrrev_b32 v6, 4, v1
    v_mul_u32_u24 v5, 1280, v5
    v_lshl_add_u32 v5, v6, 3, v5
    s_and_b32 s30, s21, 1
    s_mul_i32 s30, s30, 20480
    s_lshr_b32 s29, s21, 1
    s_lshl_b32 s28, s20, 1
    s_add_u32 s29, s29, s28
    s_lshl_b32 s28, s29, 6
    s_add_u32 s28, s28, s30
    v_add_u32 v5, s28, v5
    s_lshl_b32 s28, s29, 10
    s_add_u32 s28, s28, s30
    v_add_u32 v13, s28, v2
    s_lshl_b32 s28, s21, 13
    v_add_u32 v6, s28, v2
    s_lshl_b32 s28, s21, 11
    v_add_u32 v7, s28, v2
    s_lshl_b32 s50, s20, 16
    s_add_u32 s50, s50, s28
    s_add_u32 s50, s50, {ZM:#x}
    s_mov_b32 s48, 0xffff0000""")
    flag_addr(k, 14)
    NG = 3
    k(f"""
    v_add_u32 v8, 0x200000, v4
    v_add_u32 v3, {0x200000 + FU - FPX + NG*4096:#x}, v4
    v_subrev_u32 v3, s56, v3
    v_cmp_gt_u32 vcc, 32, v1
    s_mul_i32 s51, s22, 1310720
    s_lshl_b32 s29, s20, 17
    v_cndmask_b32 v3, v3, v8, vcc
    s_add_u32 s51, s51, s29
    s_lshl_b32 s29, s21, 13
    s_add_u32 s51, s51, s29
    s_add_u32 s51, s51, {UF:#x}
    s_lshl_b32 s43, s22, 12
    s_add_u32 s44, s43, {FU:#x}""")
    def uload():
        for ct in range(4):
            for j in range(2):
                k(f's_add_u32 s29, s51, {32768*ct + 4096*j}')
                for i in range(4):
                    k(f'buffer_load_dwordx4 {A(32*ct+16*j+4*i,4)}, v2, s[8:11], s29 offen offset:{1024*i} sc1')
        k(f's_add_u32 s51, s51, {NG*1310720}')
        k(wrap('s51', UF, 1310720))
    poll_flag(k, f'{p}_f1', 4, 's44', 20, fail, sleep=cfg.get('sl1', 8))
    uload()
    k.label(f'{p}_loop')
    stamp(k, cfg, 0)
    k('s_lshl_b32 s43, s22, 12\ns_add_u32 s43, s43, s56')
    k('s_mul_i32 s45, s22, 40960')
    k('buffer_load_dwordx2 v[16:17], v5, s[12:15], s45 offen')
    k('buffer_load_dwordx2 v[18:19], v5, s[12:15], s45 offen offset:32')
    k(f's_add_u32 s44, s43, {FKM:#x}')
    poll_flag(k, f'{p}_f3', 4, 's44', 20, fail, sleep=3, slow=(58, cfg.get('slowo', 6)))
    zregion(k, 47, 50)
    k('s_mov_b32 s39, 0')
    k.label(f'{p}_z')
    for ct in range(4):
        k(f's_add_u32 s49, s47, {16384*ct}')
        for b in range(2):
            k(f'buffer_load_dwordx4 {V(208+8*ct+4*b,4)}, v2, s[8:11], s49 offen offset:{1024*b} sc1')
    tmo(k, fail)
    k('s_waitcnt vmcnt(0)')
    maxtree(k, 20, list(range(208, 240)))
    k('v_cmp_eq_u32 vcc, -1, v20')
    k(f's_cbranch_vccnz {p}_z')
    k(f"""
    s_add_u32 s44, s43, {FPX - 0x200000:#x}
    s_cmp_lt_u32 s22, {64 - NG}
    s_cselect_b64 vcc, -1, 0
    v_cndmask_b32 v3, v8, v3, vcc
    s_mul_i32 s47, s22, 81920
    s_add_u32 s47, s47, {PX:#x}
    s_lshl_b32 s29, s21, 12
    s_add_u32 s46, s47, s29
    s_add_u32 s46, s46, 65536
    s_lshl_b32 s29, s21, 14
    s_add_u32 s47, s47, s29""")
    poll_flag(k, f'{p}_f2', 3, 's44', 20, fail, sleep=1, slow=(58, cfg.get('slowo', 6)))
    stamp(k, cfg, 1)
    def pxl(n):
        k(f'buffer_load_dwordx4 {V(128+4*n,4)}, v2, s[8:11], {"s47" if n < 16 else "s46"} offen offset:{1024*(n%4)} sc1')
        if n % 4 == 3 and n < 12: k('s_add_u32 s47, s47, 4096')
    UPF = cfg.get('oup', 10)
    for n in range(UPF): pxl(n)
    acc = lambda ct, qt: V(24 + 4 * (4 * (ct >> 1) + 2 * qt + (ct & 1)), 4)
    for n in range(20):
        k(f's_waitcnt vmcnt({min(UPF - 1, 19 - n)})')
        h, qt = n >> 1, n & 1
        for ct in range(4):
            a_ = A(32 * ct + 4 * h, 4) if h < 8 else V(208 + 8 * ct + 4 * (h - 8), 4)
            k(f'{MF} {acc(ct,qt)}, {a_}, {V(128+4*n,4)}, {"0" if h == 0 else acc(ct,qt)}')
            if ct == 0 and n + UPF < 20: pxl(n + UPF)
    k.nop(4)
    for t in (0, 1, 4, 5, 2, 3, 6, 7):
        k(f'ds_write_b128 v6, {V(24+4*t,4)} offset:{1024*t}')
    k("""
    s_waitcnt lgkmcnt(0)
    s_barrier""")
    for c in range(2):
        for i in range(4):
            k(f'ds_read_b128 {V(64+16*c+4*i,4)}, v7 offset:{8192*i + 1024*c}')
    for i in range(4):
        k(f'v_lshlrev_b32 v{24+2*i}, 16, v{16+i}')
        k(f'v_and_b32 v{25+2*i}, s48, v{16+i}')
    k(f's_add_u32 s45, s45, {HH:#x}\ns_add_u32 s44, s43, {FH:#x}')
    for c in range(2):
        b = 64 + 16 * c
        k(f"""
        s_waitcnt lgkmcnt({4 - 4*c})
        v_pk_add_f32 {V(b,2)}, {V(b,2)}, {V(b+4,2)}
        v_pk_add_f32 {V(b+2,2)}, {V(b+2,2)}, {V(b+6,2)}
        v_pk_add_f32 {V(b+8,2)}, {V(b+8,2)}, {V(b+12,2)}
        v_pk_add_f32 {V(b+10,2)}, {V(b+10,2)}, {V(b+14,2)}
        v_pk_add_f32 {V(b,2)}, {V(b,2)}, {V(24+4*c,2)}
        v_pk_add_f32 {V(b+2,2)}, {V(b+2,2)}, {V(26+4*c,2)}
        v_pk_add_f32 {V(b,2)}, {V(b,2)}, {V(b+8,2)}
        v_pk_add_f32 {V(b+2,2)}, {V(b+2,2)}, {V(b+10,2)}
        v_cvt_pk_bf16_f32 v{32+2*c}, v{b}, v{b+1}
        v_cvt_pk_bf16_f32 v{33+2*c}, v{b+2}, v{b+3}""")
    k(f"""
    buffer_store_dwordx4 v[32:35], v13, s[8:11], s45 offen sc1
    s_cmp_ge_u32 s22, {64 - NG}
    s_cbranch_scc1 {p}_last""")
    uload()
    k(f"""
    s_waitcnt vmcnt(32)
    s_barrier
    buffer_store_dword v15, v14, s[8:11], s44 offen sc1""")
    stamp(k, cfg, 2)
    k(f's_add_u32 s22, s22, {NG}\ns_branch {p}_loop')
    k.label(f'{p}_last')
    k(f"""
    s_waitcnt vmcnt(0)
    s_barrier
    buffer_store_dword v15, v14, s[8:11], s44 offen sc1""")
    stamp(k, cfg, 2)
    k(f's_branch {end}')

def mega_epilogue(k, name, cfg):
    k.label(name + '_fail')
    k(f"""
    v_mov_b32 v4, 16
    s_lshl_b32 s28, s25, 8
    s_add_u32 s28, s28, s22
    s_add_u32 s28, s28, 0x10000
    v_mov_b32 v5, s28
    buffer_store_dword v5, v4, s[88:91], 0 offen
    s_endpgm""")
    k.label(name + '_end')
    if cfg.get('stamp') is not None:
        l = k.newlabel('L_nost')
        k(f"""
        s_cmp_ge_u32 s2, 256
        s_cbranch_scc1 {l}
        s_cmp_lg_u32 s21, 0
        s_cbranch_scc1 {l}
        s_memrealtime s[72:73]
        s_memtime s[78:79]
        s_waitcnt lgkmcnt(0)
        s_sub_u32 s78, s78, s76
        s_lshl_b32 s28, s25, 2
        s_add_u32 s28, s28, {STAMPS + 0x4000:#x}
        v_mov_b32 v4, 0
        v_mov_b32 v8, s78
        v_mov_b32 v9, s58
        buffer_store_dword v8, v4, s[8:11], s28 offen
        buffer_store_dword v9, v4, s[8:11], s28 offen offset:1024
        s_lshl_b32 s28, s25, 5
        s_add_u32 s28, s28, {STAMPS:#x}
        v_mov_b32 v4, 0
        v_mov_b32 v8, s60
        v_mov_b32 v9, s62
        v_mov_b32 v10, s64
        v_mov_b32 v11, s66
        v_mov_b32 v12, s68
        v_mov_b32 v13, s70
        v_mov_b32 v14, s72
        v_mov_b32 v15, s74
        buffer_store_dwordx4 v[8:11], v4, s[8:11], s28 offen
        buffer_store_dwordx4 v[12:15], v4, s[8:11], s28 offen offset:16""")
        if cfg.get('dbgv') is not None:
            k(f's_cmp_lg_u32 s25, {cfg["dbgv"]}\ns_cbranch_scc1 {l}\ns_nop 1')
            for i in range(8): k(f'v_subrev_u32 v{8+i}, s74, v{8+i}')
            k('buffer_store_dwordx4 v[8:11], v4, s[88:91], 0 offen offset:32\nbuffer_store_dwordx4 v[12:15], v4, s[88:91], 0 offen offset:48')
        k.label(l)
    k('s_endpgm')

def vid(k):
    k("""
    s_add_u32 s29, s2, s23
    s_sub_u32 s29, s29, 1
    s_lshr_b32 s25, s2, 3
    s_lshl_b32 s25, s25, 2
    s_and_b32 s28, s29, 3
    s_add_u32 s25, s25, s28
    s_and_b32 s28, s29, 4
    s_lshl_b32 s28, s28, 5
    s_add_u32 s25, s25, s28""")

def rot_check(k, v):
    k(f'v_readfirstlane_b32 s28, v{v}\ns_cmp_lg_u32 s28, s23\ns_cbranch_scc1 mega_kernel_redo')

def rot_wait(k, t):
    l = k.newlabel('L_rw')
    k(f'v_mov_b32 v{t}, 140\ns_mov_b32 s39, 0')
    k.label(l)
    k(f'buffer_load_dword v{t+1}, v{t}, s[88:91], 0 offen sc1')
    tmo(k, FAIL)
    k(f's_waitcnt vmcnt(0)\nv_cmp_eq_u32 vcc, 0, v{t+1}\ns_cbranch_vccnz {l}')
    rot_check(k, t + 1)

def gen_mega_kernel(k, name, cfg):
    mega_prologue(k, name)
    dbg_srd(k)
    k(f"""
    s_getreg_b32 s23, hwreg(HW_REG_XCC_ID)
    s_sub_u32 s23, s23, s2
    s_add_u32 s23, s23, {cfg.get('rotbias', 0)}
    s_and_b32 s23, s23, 7
    s_add_u32 s23, s23, 1
    s_add_u32 s28, s2, s21
    s_cmp_lg_u32 s28, 0
    s_cbranch_scc1 {name}_disp
    v_mov_b32 v4, 140
    v_mov_b32 v5, s23
    buffer_store_dword v5, v4, s[88:91], 0 offen sc1
    s_waitcnt vmcnt(0)
    s_branch {name}_disp""")
    k.label(name + '_redo')
    k('s_mov_b32 s23, s28\ns_waitcnt vmcnt(0) lgkmcnt(0)\ns_barrier')
    k.label(name + '_disp')
    vid(k)
    if cfg.get('swap', (104, 160, 24)):
        a, b, n = cfg.get('swap', (104, 160, 24))
        k(f"""
        s_sub_u32 s28, s25, {a}
        s_sub_u32 s29, s25, {b}
        s_add_u32 s30, s28, {b}
        s_add_u32 s31, s29, {a}
        s_cmp_lt_u32 s28, {n}
        s_cselect_b32 s25, s30, s25
        s_cmp_lt_u32 s29, {n}
        s_cselect_b32 s25, s31, s25""")
    if cfg.get('stamp') is not None:
        for i in range(60, 76): k(f's_mov_b32 s{i}, 0')
        ustamp(k, cfg, 7)
        k('s_memtime s[76:77]')
    E_, F_ = name + '_end', name + '_fail'
    G3 = name + '_g3'
    k(f"""
    s_mov_b32 s22, 0
    s_mov_b32 s24, 1
    s_and_b32 s20, s25, 31
    s_cmp_lt_u32 s25, 32
    s_cbranch_scc1 {name}_h
    s_cmp_lt_u32 s25, 64
    s_cbranch_scc1 {name}_z
    s_cmp_lt_u32 s25, 80
    s_cbranch_scc1 {name}_c0
    s_sub_u32 s30, s25, 80
    s_cmp_lt_u32 s25, 128
    s_cbranch_scc1 {name}_il
    s_cmp_lt_u32 s25, 192
    s_cbranch_scc1 {name}_vu0
    s_cmp_lt_u32 s25, 224
    s_cbranch_scc1 {name}_qk
    s_sub_u32 s30, s25, 176
    s_branch {name}_il""")
    k.label(name + '_c0')
    k('s_sub_u32 s30, s25, 64')
    gen_init_x(k, name + '_ix')
    k(f's_sub_u32 s20, s25, 64\ns_branch {name}_c')
    k.label(name + '_il')
    gen_init_ln(k, name + '_il')
    if cfg.get('touch', 3) == 3:
        k(f"""
        s_and_b32 s28, s25, 0xfc
        s_cmp_eq_u32 s28, 84
        s_cselect_b32 s29, 1, 0
        s_cmp_eq_u32 s28, 240
        s_cselect_b32 s29, 1, s29
        s_cmp_eq_u32 s29, 0
        s_cbranch_scc1 {name}_nt
        s_load_dwordx8 s[40:47], s[0:1], {KA['w_in']}
        s_load_dwordx2 s[48:49], s[0:1], {KA['out']}
        s_cmp_ge_u32 s21, 2
        s_cbranch_scc1 {name}_nt2
        v_mul_u32_u24 v8, {0x200000 + 4352:#x}, v0
        buffer_load_dword v9, v8, s[8:11], 0 offen""")
        k.label(name + '_nt2')
        k(f's_waitcnt lgkmcnt(0)\ns_cmp_lg_u32 s21, 3\ns_cbranch_scc1 {name}_nt\nv_lshlrev_b32 v8, 20, v1')
        for base, nb in ((40, 640 * 3072), (42, 2048 * 4096), (44, 4096), (46, 768 * 1280), (48, 2048 * 1280)):
            k.srd(12, base, nb)
            k('buffer_load_dword v9, v8, s[12:15], 0 offen')
        k.label(name + '_nt')
    k(f's_sub_u32 s20, s25, 64\ns_cmp_lt_u32 s25, 104\ns_cbranch_scc1 {name}_c')
    load_sel(k, cfg)
    k(f"""
    s_and_b32 s20, s25, 7
    s_cmp_lt_u32 s25, 112
    s_cbranch_scc1 {name}_x
    s_cmp_lt_u32 s25, 128
    s_cbranch_scc1 {name}_g10
    s_cmp_ge_u32 s25, 254
    s_cbranch_scc1 {name}_wt
    s_sub_u32 s28, s25, 224
    s_mul_i32 s22, s28, 26
    s_lshr_b32 s22, s22, 8
    s_mul_i32 s29, s22, 10
    s_sub_u32 s20, s28, s29""")
    if 'O' in cfg.get('skip', ''): k(f's_branch {E_}')
    gen_o(k, name + '_o', G3, F_, cfg)
    k.label(name + '_wt')
    k('s_and_b32 s27, s25, 1\ns_lshl_b32 s27, s27, 4\ns_mov_b32 s26, 16')
    if 'W' in cfg.get('skip', ''): k(f's_branch {E_}')
    gen_wt(k, name + '_wt', name + '_wo', cfg)
    k.label(name + '_wo')
    k('s_and_b32 s20, s25, 1')
    k.label(name + '_wol')
    gen_wo(k, name + '_wo', cfg)
    k(f's_add_u32 s20, s20, 2\ns_cmp_lt_u32 s20, 5\ns_cbranch_scc1 {name}_wol\ns_branch {G3}')
    k.label(name + '_g10')
    if cfg.get('g1wait', 1):
        k(f'v_and_b32 v16, 31, v1\nv_lshlrev_b32 v16, 7, v16\ns_add_u32 s44, s56, {FKM:#x}')
        poll_flag(k, name + '_wf', 16, 's44', 17, F_, sleep=8)
    k('v_lshlrev_b32 v2, 4, v1')
    k('s_and_b32 s20, s25, 3\ns_bfe_u32 s22, s25, 0x20002\ns_cmp_eq_u32 s22, 3\ns_cselect_b32 s22, 0, s22\ns_cselect_b32 s28, 0, 4\ns_cselect_b32 s24, 1, 3\ns_cselect_b32 s26, 52, 64\ns_add_u32 s20, s20, s28')
    k.label(name + '_g1e')
    if '1' in cfg.get('skip', ''): k(f's_branch {E_}')
    gen_g1p(k, name + '_g1p', E_, F_, cfg)
    k.label(name + '_x')
    if 'X' in cfg.get('skip', ''): k(f's_branch {E_}')
    k('s_mov_b32 s26, 63')
    k.label(name + '_xe')
    gen_x(k, name + '_x', name + '_xd', F_, cfg)
    k.label(name + '_xd')
    k(f's_cmp_eq_u32 s26, 64\ns_cbranch_scc1 {G3}\ns_branch {E_}')
    k.label(name + '_c')
    gen_c(k, name + '_c', G3, F_, cfg)
    k.label(G3)
    if cfg.get('stamp') is not None and not LST: ustamp(k, cfg, 1 if cfg.get('stamp') == 98 else 5)
    k('s_cmp_lt_u32 s25, 224\ns_cselect_b32 s28, 8, 0\ns_add_u32 s28, s28, s25\ns_sub_u32 s28, s28, 96\ns_cmp_lt_u32 s25, 128\ns_cselect_b32 s20, s25, s28')
    if 'G' in cfg.get('skip', ''): k(f's_branch {E_}')
    gen_g3p(k, name + '_g3p', E_, F_, cfg)
    k.label(name + '_z')
    gen_z(k, name + '_z', G3, F_, cfg)
    k.label(name + '_h')
    gen_h(k, name + '_h', G3, F_, cfg)
    k.label(name + '_vu0')
    k('s_bfe_u32 s24, s25, 0x10005')
    gen_pj(k, name + '_pj', name + '_g2', cfg)
    k.label(name + '_g2')
    ustamp(k, cfg, 0)
    if 'G' in cfg.get('skip', ''): k(f's_branch {E_}')
    k('s_sub_u32 s27, s25, 96\ns_mov_b32 s26, 1')
    k.label(name + '_g2a')
    gen_wt(k, name + '_wt1', name + '_g2b', cfg, single=True)
    k.label(name + '_g2b')
    k(f's_add_u32 s27, s27, 32\ns_sub_u32 s28, s27, 96\ns_cmp_lt_u32 s28, 32\ns_cbranch_scc1 {name}_g2a')
    k('s_sub_u32 s20, s25, 128')
    gen_g2p(k, name + '_g2p', E_, F_, cfg)
    k.label(name + '_qk')
    gen_vu(k, name + '_vu', name + '_vue', F_, dict(cfg, stamp=cfg.get('stamp') if cfg.get('stamp') in (0, 97) else None))
    k.label(name + '_vue')
    k(f's_cmp_lt_u32 s25, 208\ns_cbranch_scc1 {G3}\ns_cmp_ge_u32 s25, 216\ns_cbranch_scc1 {name}_vug')
    k(f'v_mov_b32 v16, 0\ns_add_u32 s44, s56, {FKM + 61*4096:#x}')
    poll_flag(k, name + '_xw', 16, 's44', 17, F_, sleep=12)
    k(f's_and_b32 s20, s25, 7\ns_mov_b32 s22, 63\ns_mov_b32 s26, 64\ns_branch {name}_xe')
    k.label(name + '_vug')
    k(f's_and_b32 s20, s25, 3\ns_bfe_u32 s22, s25, 0x10002\ns_add_u32 s22, s22, 52\ns_mov_b32 s24, 2\ns_mov_b32 s26, 64\ns_branch {name}_g1e')
    mega_epilogue(k, name, cfg)

def mega_prologue(k, name, nwg=256):
    k.begin(name)
    k(f'''
    s_cmp_lt_u32 s2, {nwg}
    s_cbranch_scc1 {name}_in
    s_endpgm''')
    k.label(name + '_in')
    k(f'''
    s_load_dwordx4 s[4:7], s[0:1], {KA['dbg']}
    s_load_dwordx8 s[92:99], s[0:1], {KA['Wq']}
    v_and_b32 v1, 63, v0
    v_lshrrev_b32 v2, 6, v0
    s_nop 0
    v_readfirstlane_b32 s21, v2
    s_waitcnt lgkmcnt(0)''')
    k.srd(8, 6, WS_BYTES)

def far_branch(k, target):
    k(f's_branch {target}')

GC1 = -2.0 * (2.0 / 3.141592653589793) ** 0.5 * 1.4426950408889634
GC2 = GC1 * 0.044715

def gs(k, cfg, idx):
    if cfg.get('gstamp'): k(f's_memrealtime s[{60+2*idx}:{61+2*idx}]')

def gdump(k, cfg, n):
    if not cfg.get('gstamp'): return
    k(f"""
    s_waitcnt vmcnt(0)
    s_memrealtime s[74:75]
    s_waitcnt lgkmcnt(0)
    s_lshl_b32 s28, s2, 2
    s_add_u32 s28, s28, s21
    s_lshl_b32 s28, s28, 5
    s_add_u32 s28, s28, {TRACE + 0x200000 + n * 0x10000:#x}
    v_mov_b32 v4, 0""")
    for i in range(8): k(f'v_mov_b32 v{8+i}, s{60+2*i}')
    k('buffer_store_dwordx4 v[8:11], v4, s[8:11], s28 offen')
    k('buffer_store_dwordx4 v[12:15], v4, s[8:11], s28 offen offset:16')

def gen_wt(k, p, end, cfg, single=False):
    k(f's_load_dwordx2 s[28:29], s[0:1], {KA["w_sp"]}')
    k('s_waitcnt lgkmcnt(0)')
    k.srd(12, 28, 2048 * 4096)
    k(f"""
    v_lshlrev_b32 v2, 4, v1
    s_lshl_b32 s31, s21, 14
    s_lshl_b32 s30, s27, 16
    s_add_u32 s30, s30, s31
    s_lshl_b32 s28, s21, 6""")
    for r in range(4): k(f'v_xor_b32 v{4+r}, s28, v2\ns_add_u32 s28, s28, 16')
    k(f"""
    v_and_b32 v8, 15, v1
    v_lshrrev_b32 v9, 4, v1
    v_xor_b32 v9, v9, v8
    v_lshlrev_b32 v9, 4, v9
    v_lshl_add_u32 v9, v8, 12, v9
    s_lshl_b32 s28, s21, 10
    v_add_u32 v10, s28, v9
    v_xor_b32 v11, 64, v10
    v_xor_b32 v12, 128, v10
    v_xor_b32 v13, 192, v10
    s_mov_b32 s32, s27
    s_add_u32 s35, s32, s26""")
    def dma():
        for r in range(4):
            k(f's_add_u32 m0, s31, {4096*r}\ns_add_u32 s28, s30, {4096*r}')
            for i in range(4):
                k(f'buffer_load_dwordx4 v{4+r}, s[12:15], s28 offen offset:{1024*i} nt lds')
        k(f's_xor_b32 s31, s31, 65536\ns_add_u32 s30, s30, 65536\ns_and_b32 s30, s30, {2048*4096 - 1:#x}')
    dma()
    if not single: dma()
    k(f's_waitcnt vmcnt({0 if single else 16})')
    k.label(f'{p}_loop')
    k('s_barrier')
    for i in range(16): k(f'ds_read_b128 {V(16+4*i,4)}, v{10+i%4} offset:{256*(i//4)}')
    k(f"""
    s_lshr_b32 s28, s32, 1
    s_lshl_b32 s33, s28, 20
    s_and_b32 s28, s28, 15
    s_lshl_b32 s28, s28, 11
    s_add_u32 s33, s33, s28
    s_and_b32 s28, s32, 1
    s_mul_i32 s28, s28, {WST}
    s_add_u32 s33, s33, s28
    s_lshl_b32 s28, s21, 14
    s_add_u32 s33, s33, s28
    s_add_u32 s33, s33, {WSF:#x}""")
    for i in range(4): k(f'v_xor_b32 v{10+i}, 65536, v{10+i}')
    k('s_waitcnt lgkmcnt(0)')
    if not single:
        k('s_barrier')
        dma()
    for i in range(16):
        k(f'buffer_store_dwordx4 {V(16+4*i,4)}, v2, s[8:11], s33 offen offset:{1024*(i%4)} sc1')
        if i % 4 == 3: k('s_add_u32 s33, s33, 4096')
    k(f"""
    s_add_u32 s32, s32, 1
    s_cmp_lt_u32 s32, s35
    s_waitcnt vmcnt(32)
    s_cbranch_scc1 {p}_loop
    v_mov_b32 v6, {BIG:#x}
    v_lshlrev_b32 v7, 7, v0
    v_cmp_gt_u32 vcc, s26, v0
    s_lshl_b32 s28, s27, 7
    s_add_u32 s28, s28, {FWT:#x}
    v_cndmask_b32 v6, v6, v7, vcc
    v_mov_b32 v7, 1
    s_waitcnt vmcnt(0)
    s_barrier
    buffer_store_dword v7, v6, s[8:11], s28 offen sc1
    s_branch {end}""")

def gen_g1p(k, p, end, fail, cfg):
    SX = 81920; SA = SX + 512; SB = SA + 1024
    loc = {(t, kk): ('a', 4 * (3 * kk + t)) for kk in range(20) for t in range(3)}
    k(f's_load_dwordx2 s[28:29], s[0:1], {KA["w_in"]}')
    k('s_waitcnt lgkmcnt(0)')
    k.srd(12, 28, 640 * 3072)
    for i in range(3):
        k(f"""
        v_add_u32 v8, {64*i}, v1
        v_mul_u32_u24 v9, 2731, v8
        v_lshrrev_b32 v9, 16, v9
        v_mul_u32_u24 v10, 24, v9
        v_sub_u32 v10, v8, v10
        v_mul_u32_u24 v9, 3072, v9
        v_lshl_add_u32 v{144+i}, v10, 4, v9""")
    k(f"""
    v_lshrrev_b32 v11, 2, v1
    v_mul_u32_u24 v11, 384, v11
    v_and_b32 v10, 3, v1
    v_lshl_add_u32 v11, v10, 3, v11
    s_mul_i32 s28, s21, 96
    v_add_u32 v11, s28, v11
    s_mul_i32 s30, s20, 384
    s_mul_i32 s28, s21, {16*3072}
    s_add_u32 s30, s30, s28
    s_mul_i32 s32, s21, 6144""")
    k.vd = k.vc
    tick = {}
    def issue(c):
        for i in range(6):
            k(f's_add_u32 m0, s32, {(c%6)*24576 + i*1024}')
            k(f's_add_u32 s33, s30, {c*64*3072 + (i//3)*8*3072}')
            tick[c] = k.vm(f'buffer_load_dwordx4 v{144+i%3}, s[12:15], s33 offen lds')
    for c in range(6): issue(c)
    for c in range(10):
        k.wv(tick[c])
        k('s_barrier')
        k(f'v_add_u32 v13, {(c%6)*24576}, v11')
        for t in range(3):
            for k2 in range(2):
                for hf in range(2):
                    k(f'ds_read_b64_tr_b16 {R(loc[(t, 2*c+k2)], 2, 2*hf)}, v13 offset:{(32*k2+16*hf)*384 + t*32}')
        k('s_waitcnt lgkmcnt(0)')
        if c + 6 < 10 or c == 9: k('s_barrier')
        if c + 6 < 10: issue(c + 6)
    ustamp(k, cfg, 1)
    k(f"""
    v_mov_b32 v3, 9
    v_min_u32 v3, v3, v1
    v_lshlrev_b32 v3, 7, v3
    v_and_b32 v10, 15, v1
    v_lshrrev_b32 v11, 4, v1
    s_lshr_b32 s29, s21, 1
    s_mul_i32 s28, s29, 20480
    v_add_u32 v4, s28, v2
    v_lshrrev_b32 v12, 3, v10
    v_mul_u32_u24 v12, 20480, v12
    v_lshl_add_u32 v12, v11, 8, v12
    v_bfe_u32 v13, v10, 2, 1
    v_lshl_add_u32 v12, v13, 7, v12
    v_and_b32 v13, 3, v10
    v_lshl_add_u32 v12, v13, 4, v12
    s_lshl_b32 s28, s29, 6
    v_add_u32 v12, s28, v12
    s_cmp_ge_u32 s20, 4
    s_cselect_b64 vcc, -1, 0
    v_cndmask_b32 v4, v4, v12, vcc
    v_mov_b32 v5, v2
    s_mul_i32 s34, s21, 10240
    v_add_u32 v8, s34, v2
    s_and_b32 s35, s21, 1
    s_mul_i32 s35, s35, 10240
    s_add_u32 s35, s35, {HH:#x}
    v_mov_b32 v6, {BIG:#x}
    v_cmp_gt_u32 vcc, {FW}, v0
    v_lshlrev_b32 v7, 2, v0
    s_nop 0
    v_cndmask_b32 v6, v6, v7, vcc
    v_mov_b32 v7, 1
    s_lshl_b32 s28, s21, 7
    s_add_u32 s28, s28, {SX}
    v_lshlrev_b32 v9, 3, v10
    v_add_u32 v14, {SX}, v9
    v_add_u32 v9, s28, v9
    v_lshrrev_b32 v12, 2, v10
    v_cmp_eq_u32 vcc, v12, v11
    v_mov_b32 v12, {SB + 512}
    v_and_b32 v13, 1, v1
    v_cndmask_b32 v9, v12, v9, vcc
    v_cmp_ne_u32 s[48:49], 0, v13
    v_and_b32 v13, 2, v1
    v_cmp_ne_u32 s[50:51], 0, v13
    s_mov_b32 s45, {DUMMY:#x}
    v_lshlrev_b32 v15, 5, v11
    v_add_u32 v15, {SX}, v15
    s_mov_b32 s36, 0x3f803f80
    v_mov_b32 v16, s36
    v_mov_b32 v17, s36
    v_mov_b32 v18, s36
    v_mov_b32 v19, s36
    v_mov_b32 v20, {GC1!r}
    v_mov_b32 v22, {GC2!r}
    v_mov_b32 v24, 1.0
    s_mov_b32 s40, 0
    s_mov_b32 s41, 0
    s_cmp_ge_u32 s20, 4
    s_cbranch_scc1 {p}_z2""")
    CSR = 28
    acc = lambda tt, t3: 40 + 4 * (3 * tt + t3)
    def dma(seg):
        k(f's_mul_i32 s29, {seg}, 40960\ns_add_u32 s29, s29, s35\ns_add_u32 s28, s34, s40')
        for j in range(3):
            k(f's_add_u32 m0, s28, {4096*j}\ns_add_u32 s33, s29, {4096*j}')
            for i in range(4 if j < 2 else 2):
                k(f'buffer_load_dwordx4 v4, s[8:11], s33 offen offset:{1024*i} sc1 lds')
        k('s_xor_b32 s40, s40, 40960')
    def path(z2):
        q = f'{p}_{"b" if z2 else "a"}'
        mm = lambda d, w_, x_, c_: f'{MF} {d}, {x_}, {w_}, {c_}' if z2 else f'{MF} {d}, {w_}, {x_}, {c_}'
        for kk in range(20):
            for t in range(3):
                d = V(CSR + 4 * t, 4)
                k(mm(d, R(loc[(t, kk)], 4), 'v[16:19]', '0' if kk == 0 else d))
        k.label(f'{q}_loop')
        k(f's_cmp_lg_u32 s41, 0\ns_cbranch_scc1 {q}_have\ns_lshl_b32 s42, s22, 12\ns_add_u32 s42, s42, {FH:#x}\ns_add_u32 s42, s42, s56')
        poll_flag(k, f'{q}_f', 3, 's42', 26, fail, sleep=1, slow=(58, cfg.get('slow', 12)))
        dma('s22')
        k('s_waitcnt vmcnt(0)')
        k.label(f'{q}_have')
        stamp(k, cfg, 2)
        k(f"""
        s_add_u32 s43, s22, s24
        s_min_u32 s42, s43, 63
        s_lshl_b32 s42, s42, 12
        s_add_u32 s42, s42, {FH:#x}
        s_add_u32 s42, s42, s56
        s_waitcnt vmcnt({1 if z2 else 6})
        s_barrier
        buffer_load_dword v26, v3, s[8:11], s42 offen sc1""")
        mats = []; items = []; ev = []
        XR = [64 + 4 * i for i in range(8)]
        for kk in range(20):
            for tt in range(2):
                n_ = 2 * kk + tt; r = XR[n_ % 8]
                ev.append((max(3 * n_ - 15, 3 * (n_ - 8) + 2 if n_ >= 8 else -1), dict(id=('x', n_), kind='n', lds=True, fn=f'ds_read_b128 {V(r,4)}, v5 offset:{tt*20480 + kk*1024}')))
                for t in range(3):
                    d = V(acc(tt, t), 4)
                    mats.append((mm(d, R(loc[(t, kk)], 4), V(r, 4), '0' if kk == 0 else d), [('x', n_)]))
        smats = []
        for i in range(10):
            r = V(96 + 4 * i, 4)
            ev.append((1 + 3 * i, dict(id=('o', i), kind='n', lds=True, fn=f'ds_read_b128 {r}, v8 offset:{1024*i}')))
            smats.append((f'{MF} v[156:159], v[16:19], {r}, {"0" if i == 0 else "v[156:159]"}', [('o', i)]))
            smats.append((f'{MF} v[160:163], {r}, {r}, {"0" if i == 0 else "v[160:163]"}', []))
        SP = 42
        mats[SP:SP] = smats
        for j, (g_, it) in enumerate(ev):
            if it['id'][0] == 'x' and g_ >= SP: ev[j] = (g_ + 20, it)
        items.append(dict(id='s0', kind='v', fn='v_cndmask_b32 v160, v160, v161, s[48:49]', states=(SP + 19, 8), after=SP + 22))
        items.append(dict(id='s1', kind='v', fn='v_cndmask_b32 v162, v162, v163, s[48:49]'))
        items.append(dict(id='s2', kind='v', fn='v_cndmask_b32 v157, v160, v162, s[50:51]'))
        ev.append((SP + 26, dict(id='sw', kind='n', lds=True, fn='ds_write_b64 v9, v[156:157]', order=['s2'])))
        ev.append((SP + 31, dict(id='sv', kind='n', fn='s_waitcnt vmcnt(0)\nv_cmp_eq_u32 vcc, 0, v26')))
        ev.append((SP + 32, dict(id='sb', kind='bar', fn='s_barrier', deps=['sw'], order=['sw'])))
        kd = K(); k_save = k.L; k.L = kd.L
        k(f's_mov_b32 s41, 0\ns_cmp_ge_u32 s43, s26\ns_cbranch_scc1 {q}_nop\ns_cbranch_vccnz {q}_nop\ns_mov_b32 s41, 1')
        dma('s43')
        k.L = k_save
        if not z2: ev.append((SP + 32.5, dict(id='sf', kind='n', fn=f'buffer_store_dword v7, v6, s[8:11], s45 offen sc1')))
        ev.append((SP + 42, dict(id='sd', kind='n', fn='\n'.join(kd.L), label=f'{q}_nop')))
        RS, NB = 140, 148
        nst = 8 if z2 else 2
        if z2:
            for i in range(8):
                ev.append((SP + 33 + i, dict(id=('sr', i), kind='n', lds=True, fn=f'ds_read_b128 {V(96+4*i,4)}, v15 offset:{128*(i>>1) + 16*(i&1)}', order=['sb'])))
            src = lambda i: (96 + 16 * (i >> 2) + 2 * (i & 3), 104 + 16 * (i >> 2) + 2 * (i & 3))
            lastr = ('sr', 7)
        else:
            for i in range(4):
                ev.append((SP + 33 + i, dict(id=('sr', i), kind='n', lds=True, fn=f'ds_read_b64 {V(96+2*i,2)}, v14 offset:{128*i}', order=['sb'])))
            src = lambda i: (96 + 4 * i, 98 + 4 * i)
            lastr = ('sr', 3)
        fin = []
        for i in range(nst): fin.append(f'v_pk_add_f32 {V(src(i)[0],2)}, {V(src(i)[0],2)}, {V(src(i)[1],2)}')
        for i in range(nst): fin.append(f'v_pk_mul_f32 {V(src(i)[0],2)}, {V(src(i)[0],2)}, s[46:47]')
        for i in range(nst): fin.append(f'v_fma_f32 v{src(i)[0]+1}, -v{src(i)[0]}, v{src(i)[0]}, v{src(i)[0]+1}')
        for i in range(nst): fin.append(f'v_max_f32 v{src(i)[0]+1}, 0, v{src(i)[0]+1}')
        for i in range(nst): fin.append(f'v_add_f32 v{src(i)[0]+1}, 1e-5, v{src(i)[0]+1}')
        st = 1 if z2 else 2
        for i in range(nst): fin.append(f'v_rsq_f32 v{RS+st*i}, v{src(i)[0]+1}')
        fin.append('v_nop')
        for i in range(nst): fin.append(f'v_mul_f32_e64 v{NB+st*i}, -v{src(i)[0]}, v{RS+st*i}')
        for i, f_ in enumerate(fin):
            items.append(dict(id=('f', i), kind='v', fn=f_, deps=[lastr] if i == 0 else [], order=[lastr], after=SP + 46))
        ev.sort(key=lambda x: x[0])
        for g_, it in ev:
            it['after'] = g_; items.append(it)
        k(f's_mov_b32 s46, {1.0/640!r}\ns_mov_b32 s47, s46')
        sched(k, mats, items, [False] * 140, pre_n=3)
        stamp(k, cfg, 3)
        k('v_xor_b32 v5, 40960, v5\ns_nop 0\nv_add_u32 v8, s34, v5')
        for tt in range(2):
            for t in range(3):
                for h_ in range(2):
                    a = V(acc(tt, t) + 2 * h_, 2); c = V(CSR + 4 * t + 2 * h_, 2)
                    if z2:
                        k(f'v_pk_mul_f32 {a}, {a}, {V(RS+4*tt+2*h_,2)}')
                        k(f'v_pk_fma_f32 {a}, {c}, {V(NB+4*tt+2*h_,2)}, {a}')
                    else:
                        k(f'v_pk_mul_f32 {a}, {a}, {V(RS+2*tt,2)} op_sel_hi:[1,0]')
                        k(f'v_pk_fma_f32 {a}, {c}, {V(NB+2*tt,2)}, {a} op_sel_hi:[1,0,1]')
        for b in range(0, 24, 8):
            for i in range(0, 8, 2): k(f'v_pk_mul_f32 {V(64+i,2)}, {V(40+b+i,2)}, {V(40+b+i,2)}')
            for i in range(0, 8, 2): k(f'v_pk_fma_f32 {V(64+i,2)}, {V(64+i,2)}, v[22:23], v[20:21] op_sel_hi:[1,0,0]')
            for i in range(0, 8, 2): k(f'v_pk_mul_f32 {V(64+i,2)}, {V(64+i,2)}, {V(40+b+i,2)}')
            for i in range(8): k(f'v_exp_f32 v{64+i}, v{64+i}')
            for i in range(0, 8, 2): k(f'v_pk_add_f32 {V(64+i,2)}, {V(64+i,2)}, v[24:25] op_sel_hi:[1,0]')
            for i in range(8): k(f'v_rcp_f32 v{64+i}, v{64+i}')
            for i in range(0, 8, 2): k(f'v_pk_mul_f32 {V(40+b+i,2)}, {V(40+b+i,2)}, {V(64+i,2)}')
        if not z2:
            k(f"""
            s_mul_i32 s28, s20, 6144
            s_mul_i32 s29, s21, 1536
            s_add_u32 s28, s28, s29
            s_mul_i32 s29, s22, 49152
            s_add_u32 s28, s28, s29
            s_add_u32 s28, s28, {Z1F:#x}
            s_add_u32 s29, s28, 24576
            v_lshlrev_b32 v12, 3, v1""")
            for tt in range(2):
                for t3 in range(3):
                    a = acc(tt, t3); d = 72 + 2 * (2 * t3 + tt)
                    k(f'v_cvt_pk_bf16_f32 v{d}, v{a}, v{a+1}')
                    k(f'v_cvt_pk_bf16_f32 v{d+1}, v{a+2}, v{a+3}')
                    k(f'buffer_store_dwordx2 {V(d,2)}, v12, s[8:11], s{28+tt} offen offset:{512*t3} sc1')
        else:
            for tt in range(2):
                for r in range(4):
                    d = 96 + 8 * tt + 2 * r; a0, a1, a2 = (acc(tt, j) + r for j in range(3))
                    k(f'v_add_f32 v{d}, v{a0}, v{a1}')
                    k(f'v_mul_f32 v{d+1}, v{a0}, v{a0}')
                    k(f'v_add_f32 v{d}, v{d}, v{a2}')
                    k(f'v_fmac_f32 v{d+1}, v{a1}, v{a1}')
                    k(f'v_fmac_f32 v{d+1}, v{a2}, v{a2}')
            for sh in (8, 4, 2, 1):
                for i in range(16):
                    k(f'v_add_f32_dpp v{96+i}, v{96+i}, v{96+i} row_ror:{sh} row_mask:0xf bank_mask:0xf')
            k(f's_lshl_b32 s28, s21, 8\nv_add_u32 v13, s28, v15')
            for tt in range(2):
                k(f'ds_write_b128 v13, {V(96+8*tt,4)} offset:{SA - SX + 128*tt}')
                k(f'ds_write_b128 v13, {V(100+8*tt,4)} offset:{SA - SX + 128*tt + 16}')
            k(f"""
            s_waitcnt lgkmcnt(0)
            s_barrier
            s_cmp_lg_u32 s21, 0
            s_cbranch_scc1 {q}_w
            v_and_b32 v12, 31, v1
            v_lshlrev_b32 v12, 3, v12
            v_add_u32 v13, {SA}, v12
            ds_read_b64 v[96:97], v13
            ds_read_b64 v[98:99], v13 offset:256
            ds_read_b64 v[100:101], v13 offset:512
            ds_read_b64 v[102:103], v13 offset:768
            s_lshl_b32 s44, s22, 10
            s_add_u32 s44, s44, {ST:#x}
            s_add_u32 s44, s44, s56
            s_and_b32 s28, s20, 3
            s_lshl_b32 s28, s28, 8
            s_add_u32 s28, s28, s44
            s_waitcnt lgkmcnt(0)
            v_pk_add_f32 v[96:97], v[96:97], v[98:99]
            v_pk_add_f32 v[100:101], v[100:101], v[102:103]
            v_pk_add_f32 v[96:97], v[96:97], v[100:101]
            v_min_u32 v96, -2, v96
            v_min_u32 v97, -2, v97
            buffer_store_dwordx2 v[96:97], v12, s[8:11], s28 offen sc1
            s_mov_b32 s39, 0
            s_waitcnt vmcnt(0)""")
            k.label(f'{q}_sp')
            for i in range(4):
                k(f'buffer_load_dwordx2 {V(98+2*i,2)}, v12, s[8:11], s44 offen offset:{256*i} sc1')
            tmo(k, fail)
            k('s_waitcnt vmcnt(0)')
            maxtree(k, 10, list(range(98, 106)))
            k(f"""
            v_cmp_eq_u32 vcc, -1, v10
            s_cbranch_vccnz {q}_sp
            v_pk_add_f32 v[98:99], v[98:99], v[100:101]
            v_pk_add_f32 v[102:103], v[102:103], v[104:105]
            v_pk_add_f32 v[98:99], v[98:99], v[102:103]
            v_mul_f32 v98, {1.0/768!r}, v98
            v_mul_f32 v99, {1.0/768!r}, v99
            v_fma_f32 v99, -v98, v98, v99
            v_max_f32 v99, 0, v99
            v_add_f32 v99, 1e-5, v99
            v_rsq_f32 v100, v99
            s_nop 0
            v_mul_f32_e64 v101, -v98, v100
            ds_write_b64 v13, v[100:101] offset:{SB - SA}
            s_waitcnt lgkmcnt(0)""")
            k.label(f'{q}_w')
            k('s_barrier')
            for tt in range(2):
                k(f'ds_read_b128 {V(96+8*tt,4)}, v15 offset:{SB - SX + 128*tt}')
                k(f'ds_read_b128 {V(100+8*tt,4)}, v15 offset:{SB - SX + 128*tt + 16}')
            k(f"""
            s_sub_u32 s28, s20, 4
            s_mul_i32 s28, s28, 12
            s_mul_i32 s29, s21, 3
            s_add_u32 s28, s28, s29
            s_lshl_b32 s28, s28, 10
            s_mul_i32 s29, s22, 49152
            s_add_u32 s28, s28, s29
            s_add_u32 s28, s28, {Z2F:#x}
            s_waitcnt lgkmcnt(0)""")
            for t3 in range(3):
                d = 72 + 4 * t3
                for tt in range(2):
                    a = acc(tt, t3)
                    for r in range(4):
                        k(f'v_fma_f32 v{a+r}, v{a+r}, v{96+8*tt+2*r}, v{97+8*tt+2*r}')
                    k(f'v_cvt_pk_bf16_f32 v{d+2*tt}, v{a}, v{a+1}')
                    k(f'v_cvt_pk_bf16_f32 v{d+2*tt+1}, v{a+2}, v{a+3}')
                k(f'buffer_store_dwordx4 {V(d,4)}, v2, s[8:11], s28 offen offset:{1024*t3} sc1')
        k(f"""
        s_lshl_b32 s28, s20, 7
        s_add_u32 s28, s28, s22
        s_lshl_b32 s28, s28, 7
        s_add_u32 s28, s28, s56
        s_add_u32 s28, s28, {FG1:#x}""")
        if not z2:
            k(f's_mov_b32 s45, s28\ns_cmp_lt_u32 s43, s26\ns_cbranch_scc1 {q}_df')
        k(f"""
        s_waitcnt vmcnt(0)
        s_barrier
        buffer_store_dword v7, v6, s[8:11], s28 offen sc1""")
        k.label(f'{q}_df')
        stamp(k, cfg, 4)
        k(f"""
        s_mov_b32 s22, s43
        s_cmp_lt_u32 s22, s26
        s_cbranch_scc1 {q}_loop
        s_branch {end}""")
    path(False)
    k.label(f'{p}_z2')
    path(True)

def gen_g2p(k, p, end, fail, cfg):
    k(f's_load_dwordx2 s[28:29], s[0:1], {KA["b_sp"]}')
    k('s_waitcnt lgkmcnt(0)')
    k.srd(12, 28, 4096)
    acc = lambda tt, j: 64 + 4 * (6 * tt + j)
    k(f"""
    s_and_b32 s30, s20, 3
    s_lshl_b32 s30, s30, 2
    s_bfe_u32 s31, s20, 0x20002
    s_add_u32 s30, s30, s31
    s_lshr_b32 s31, s20, 4
    s_lshr_b32 s32, s21, 1
    s_and_b32 s33, s21, 1
    v_and_b32 v10, 15, v1
    v_lshlrev_b32 v10, 1, v10
    s_lshl_b32 s28, s30, 8
    s_lshl_b32 s29, s32, 7
    s_add_u32 s28, s28, s29""")
    for tt in range(4):
        k(f'buffer_load_ushort v{16+tt}, v10, s[12:15], s28 offen offset:{32*tt}')
    k(f"""
    s_add_u32 s28, s31, 4
    s_lshl_b32 s28, s28, 14
    s_add_u32 s28, s28, s56
    v_lshlrev_b32 v3, 7, v1
    v_add_u32 v3, s28, v3
    s_add_u32 s49, s28, {FG1 + 62*128:#x}
    v_mov_b32 v9, {BIG:#x}
    v_cmp_gt_u32 vcc, 62, v1
    s_lshl_b32 s28, s32, 13
    v_add_u32 v4, s28, v2
    v_cndmask_b32 v3, v9, v3, vcc
    s_mul_i32 s28, s33, 6144
    s_add_u32 s28, s28, 16384
    v_add_u32 v5, s28, v2
    s_lshl_b32 s36, s21, 12
    s_lshl_b32 s28, s30, 2
    s_add_u32 s28, s28, s21
    s_lshl_b32 s42, s28, 8
    s_add_u32 s42, s42, {FWT:#x}
    s_lshl_b32 s34, s28, 20
    s_and_b32 s28, s28, 15
    s_lshl_b32 s28, s28, 11
    s_add_u32 s34, s34, s28
    s_add_u32 s34, s34, {WSF:#x}
    v_add_u32 v12, {WST - 2048}, v2
    s_mul_i32 s37, s21, 6144
    s_add_u32 s37, s37, 16384
    s_mul_i32 s35, s31, 12288
    s_mul_i32 s28, s32, 49152
    s_add_u32 s35, s35, s28
    s_mul_i32 s28, s33, 6144
    s_add_u32 s35, s35, s28
    s_add_u32 s35, s35, {Z2F:#x}
    s_mov_b32 s38, {FG1:#x}
    v_mov_b32 v8, 0
    v_and_b32 v9, 1, v1
    v_lshlrev_b32 v9, 7, v9""")
    poll_flag(k, f'{p}_fw', 9, 's42', 11, fail, sleep=4)
    for tt in range(4):
        k(f'v_lshlrev_b32 v{16+tt}, 16, v{16+tt}')
        for i in range(24): k(f'v_mov_b32 v{acc(tt,0)+i}, v{16+tt}')
    k('s_mov_b32 s40, 0\ns_mov_b32 s22, -1\ns_barrier')
    k(f"""
    s_lshl_b32 s28, s30, 2
    s_lshl_b32 s29, s32, 1
    s_add_u32 s28, s28, s29
    s_lshl_b32 s42, s31, 7
    s_add_u32 s42, s42, s28
    s_lshl_b32 s42, s42, 7
    s_add_u32 s42, s42, {FG1:#x}
    s_add_u32 s42, s42, s56
    s_mul_i32 s43, s28, 49152
    s_lshl_b32 s29, s28, 20
    s_and_b32 s28, s28, 15
    s_lshl_b32 s28, s28, 11
    s_add_u32 s29, s29, s28
    s_add_u32 s29, s29, {WSF + 62*1024:#x}
    s_mul_i32 s28, s31, 6144
    s_add_u32 s43, s43, s28
    s_mul_i32 s28, s33, 3072
    s_add_u32 s43, s43, s28
    s_add_u32 s57, s43, {Z1F:#x}
    s_add_u32 s43, s43, {YF:#x}
    v_lshlrev_b32 v10, 3, v1
    s_mov_b32 s54, 0xffff0000""")
    for tt in range(4):
        k(f's_add_u32 s28, s29, {(tt>>1)*(0x100000 + 2048) + (tt&1)*WST}')
        for h_ in range(2): k(f'buffer_load_dwordx4 {A(160+8*tt+4*h_,4)}, v2, s[8:11], s28 offen offset:{1024*h_} sc1')
    def unpack(lo, hi):
        for i in range(lo, hi):
            k(f'v_lshlrev_b32 v{160+2*i}, 16, v{16+i}')
            k(f'v_and_b32 v{161+2*i}, s54, v{16+i}')
    def z1load(t0, t1):
        for tt in range(t0, t1):
            k(f's_add_u32 s28, s57, {24576*tt}')
            for j in range(6):
                k(f'buffer_load_dwordx2 {V(16+12*tt+2*j,2)}, v10, s[8:11], s28 offen offset:{512*j} sc1')
    NB = 11
    FLG = 'buffer_load_dword v8, v3, s[8:11], s38 offen sc1'
    batch = ['s_and_b32 s28, s40, 3\ns_mul_i32 s28, s28, 40960', 's_add_u32 m0, s28, s36\ns_add_u32 s40, s40, 1'] + \
            [f'buffer_load_dwordx4 v{(2,2,12,12)[i]}, s[8:11], s34 offen offset:{1024*i} sc1 lds' for i in range(4)] + \
            ['s_add_u32 m0, s28, s37\ns_add_u32 s34, s34, 2048'] + \
            [f'buffer_load_dwordx4 v2, s[8:11], s35 offen offset:{1024*i} sc1 lds' for i in range(3)] + \
            ['s_add_u32 m0, m0, 3072\ns_add_u32 s35, s35, 3072'] + \
            [f'buffer_load_dwordx4 v2, s[8:11], s35 offen offset:{1024*i} sc1 lds' for i in range(3)] + \
            [FLG + f'\ns_add_u32 s35, s35, {98304 - 3072}']
    rorder = []
    for h_ in range(2): rorder += [('z', h_, 0), ('w', h_, 0)] + [('z', h_, j) for j in range(1, 6)] + [('w', h_, t) for t in range(1, 4)]
    freg = lambda st, f: 80 * st + 40 * f[1] + (4 * f[2] if f[0] == 'z' else 24 + 4 * f[2])
    def reads(st):
        return [f'ds_read_b128 {A(freg(st,f),4)}, ' + (f'v7 offset:{12288*f[1] + 1024*f[2]}' if f[0] == 'z' else f'v6 offset:{2048*f[2] + 1024*f[1]}') for f in rorder]
    addr = 's_add_u32 s29, s22, 1\ns_and_b32 s29, s29, 3\ns_mul_i32 s29, s29, 40960\nv_add_u32 v6, s29, v4\nv_add_u32 v7, s29, v5'
    def mf(st, i):
        h_, tt, j = i // 24, (i % 24) // 6, i % 6
        return f'{MF} {V(acc(tt,j),4)}, {A(freg(st,("z",h_,j)),4)}, {A(freg(st,("w",h_,tt)),4)}, {V(acc(tt,j),4)}'
    rdy = 's_lshl_b32 s46, s40, 1\ns_add_u32 s46, s46, s32\ns_nop 0\ns_lshr_b64 s[44:45], s[44:45], s46\ns_nop 0\ns_nop 0'.split('\n')
    def late(st):
        k.label(f'{p}_late{st}')
        k(f's_cmp_eq_u32 s22, 30\ns_cbranch_scc1 {p}_fin\ns_mov_b32 s39, 0')
        k('s_lshl_b32 s46, s40, 1\ns_lshl_b64 s[50:51], 15, s46')
        k.label(f'{p}_lp{st}')
        k('s_mov_b64 exec, s[50:51]')
        k(FLG)
        k('s_mov_b64 exec, -1')
        tmo(k, fail)
        k('s_waitcnt vmcnt(0)\nv_cmp_ne_u32 s[44:45], 0, v8\ns_nop 3')
        for s_ in rdy: k(s_)
        k(f"""
        s_bitcmp1_b32 s44, 0
        s_cbranch_scc1 {p}_lr{st}
        s_mov_b32 s47, {st}
        s_cmp_eq_u32 s48, 0
        s_cbranch_scc1 {p}_tz""")
        k.label(f'{p}_tzr{st}')
        k(f"""
        s_sleep 1
        s_cmp_ge_i32 s22, 29
        s_cbranch_scc1 {p}_lp{st}
        s_sleep {2 * cfg.get('slow', 12)}
        s_branch {p}_lp{st}""")
        k.label(f'{p}_lr{st}')
        for s_ in batch: k(s_)
        k(addr)
        k(f's_bitcmp1_b32 s44, 2\ns_cbranch_scc0 {p}_l0{st}')
        for s_ in batch: k(s_)
        k(f's_waitcnt vmcnt({NB})\ns_branch {p}_l1{st}')
        k.label(f'{p}_l0{st}')
        k('s_waitcnt vmcnt(0)')
        k.label(f'{p}_l1{st}')
        k('s_barrier')
        for s_ in reads(st): k(s_)
        k(f's_add_u32 s22, s22, 1\ns_branch {p}_it{st}')
    k(f's_mov_b32 s48, 0\ns_branch {p}_late0')
    NF = 14
    for st in range(2):
        k.label(f'{p}_it{st}')
        if cfg.get('stamp') == 99 and st == 0:
            for i_, st_ in ((1, 0), (2, 8), (3, 16), (4, 24)): stamp(k, dict(stamp=st_), i_)
        waits = {0: 15, 4: 13, 6: 12, 12: 0}
        extra = {1: 'v_cmp_ne_u32 s[44:45], 0, v8', 2: 's_add_u32 s29, s22, 1\ns_and_b32 s29, s29, 3', 4: 's_mul_i32 s29, s29, 40960\nv_add_u32 v6, s29, v4',
                 6: 's_sub_u32 s41, s40, s22\nv_add_u32 v7, s29, v5', 7: rdy[0] + '\n' + rdy[1], 8: rdy[2] + '\n' + rdy[3], 9: rdy[4] + '\n' + rdy[5],
                 10: 's_cmp_lt_u32 s41, 4\ns_cselect_b32 s46, 5, 1', 12: 's_and_b32 s44, s44, s46\ns_cmp_eq_u32 s41, 4'}
        for i in range(NF):
            if i in waits: k(f's_waitcnt lgkmcnt({waits[i]})')
            k(mf(st, i))
            if i in extra: k(extra[i])
        k(f's_cbranch_scc0 {p}_n0{st}\ns_waitcnt vmcnt({2*NB})')
        k.label(f'{p}_n1{st}')
        k(mf(st, NF))
        k(f's_barrier\ns_cmp_eq_u32 s44, 1')
        k(mf(st, NF + 1))
        k(f's_cbranch_scc0 {p}_bd{st}')
        def rest(nb):
            r = reads(1 - st); b = list(batch) * nb if nb else [FLG]
            for i in range(NF + 2, 48):
                k(mf(st, i))
                n_ = i - NF - 2
                if n_ < 10:
                    k(r.pop(0)); k(r.pop(0))
                else:
                    for _ in range(2 if nb == 2 and len(b) > 47 - i else 1):
                        if b: k(b.pop(0))
                if i == 46: k('s_add_u32 s22, s22, 1')
            assert not r and not b
            k(f's_branch {p}_it{1-st}')
        rest(1)
        k.label(f'{p}_bd{st}')
        k(f's_cmp_eq_u32 s44, 5\ns_cbranch_scc1 {p}_d{st}')
        rest(0)
        k.label(f'{p}_d{st}')
        rest(2)
        k.label(f'{p}_n0{st}')
        k(f's_cmp_eq_u32 s41, 1\ns_cbranch_scc1 {p}_c{st}\ns_cmp_eq_u32 s41, 2\ns_cbranch_scc1 {p}_n00{st}\ns_waitcnt vmcnt({NB})\ns_branch {p}_n1{st}')
        k.label(f'{p}_n00{st}')
        k(f's_waitcnt vmcnt(0)\ns_branch {p}_n1{st}')
        k.label(f'{p}_c{st}')
        for i in range(NF, 48): k(mf(st, i))
        late(1 - st)
    k.label(f'{p}_tz')
    k(f'buffer_load_dword v11, v9, s[8:11], s42 offen sc1\ns_waitcnt vmcnt(0)\nv_cmp_eq_u32 vcc, 0, v11\ns_cbranch_vccnz {p}_tzn')
    z1load(0, 4)
    k('s_mov_b32 s48, 1\ns_waitcnt vmcnt(0)')
    unpack(0, 48)
    k.label(f'{p}_tzn')
    k(f's_cmp_eq_u32 s47, 0\ns_cbranch_scc1 {p}_tzr0\ns_branch {p}_tzr1')
    k.label(f'{p}_fin')
    k(f"""
    s_mul_i32 s35, s31, 12288
    s_mul_i32 s28, s33, 6144
    s_add_u32 s35, s35, s28
    s_add_u32 s35, s35, {Z2F + 62*49152:#x}
    v_mov_b32 v9, 0""")
    def last(h_, unp):
        q = f'{p}_{h_}{int(unp)}'
        if unp:
            poll_flag(k, f'{q}_fz', 9, 's42', 11, fail, sleep=1)
            z1load(2 * h_, 2 * h_ + 2)
        poll_flag(k, f'{q}_fl', 9, 's49', 11, fail, sleep=1)
        if h_ and cfg.get('stamp') == 63: ustamp(k, cfg, 2)
        k('s_add_u32 s28, s35, 3072')
        for j in range(6): k(f'buffer_load_dwordx4 {A(32+4*j,4)}, v2, s[8:11], {"s35" if j < 3 else "s28"} offen offset:{1024*(j%3)} sc1')
        if unp: unpack(24 * h_, 24 * h_ + 24)
        for j in range(6):
            k(f's_waitcnt vmcnt({5-j})')
            for tt in range(4): k(f'{MF} {V(acc(tt,j),4)}, {A(32+4*j,4)}, {A(160+8*tt+4*h_,4)}, {V(acc(tt,j),4)}')
        if h_ == 0: k('s_add_u32 s35, s35, 49152\ns_add_u32 s49, s49, 128\ns_add_u32 s42, s42, 128')
    k(f's_cmp_eq_u32 s48, 0\ns_cbranch_scc1 {p}_fin2')
    last(0, False); last(1, False)
    k(f's_branch {p}_epi')
    k.label(f'{p}_fin2')
    last(0, True); last(1, True)
    k.label(f'{p}_epi')
    if cfg.get('stamp') == 63: ustamp(k, cfg, 3)
    for j in range(3):
        for tt in range(4):
            d = 16 + 4 * (4 * j + tt); a = acc(tt, 2 * j)
            for i in range(4): k(f'v_pk_mul_f32 {V(a+2*i,2)}, {V(a+2*i,2)}, {V(96+a+2*i,2)}')
            k(f's_add_u32 s28, s43, {24576*tt}')
            for i in range(4): k(f'v_cvt_pk_bf16_f32 v{d+i}, v{a+2*i}, v{a+2*i+1}')
            k(f'buffer_store_dwordx4 {V(d,4)}, v2, s[8:11], s28 offen offset:{1024*j} sc1')
    k(f"""
    s_lshl_b32 s28, s30, 1
    s_add_u32 s28, s28, s32
    s_lshl_b32 s28, s28, 3
    s_lshl_b32 s29, s31, 1
    s_add_u32 s28, s28, s29
    s_add_u32 s28, s28, s33
    s_lshl_b32 s28, s28, 7
    s_add_u32 s28, s28, {FY:#x}
    v_mov_b32 v6, {BIG:#x}
    v_cmp_gt_u32 vcc, {FW}, v1
    v_lshlrev_b32 v7, 2, v1
    s_nop 0
    v_cndmask_b32 v6, v6, v7, vcc
    v_mov_b32 v7, 1
    s_waitcnt vmcnt(0)
    buffer_store_dword v7, v6, s[8:11], s28 offen sc1
    s_branch {end}""")

def gen_wo(k, p, cfg):
    k(f"""
    s_load_dwordx2 s[28:29], s[0:1], {KA['w_out']}
    v_lshrrev_b32 v4, 2, v1
    v_and_b32 v5, 3, v1
    v_mul_u32_u24 v6, 1280, v4
    v_lshl_add_u32 v6, v5, 4, v6
    v_lshlrev_b32 v7, 6, v4
    v_lshl_add_u32 v7, v5, 3, v7
    s_mul_i32 s32, s21, 24576
    v_add_u32 v7, s32, v7
    s_lshl_b32 s34, s20, 2
    s_add_u32 s34, s34, s21
    s_lshl_b32 s33, s34, 6
    s_mul_i32 s34, s34, 49152
    s_add_u32 s34, s34, {WOF:#x}
    s_mov_b32 s35, 2
    s_waitcnt lgkmcnt(0)""")
    k.srd(12, 28, 768 * 1280)
    k.label(f'{p}_r')
    for i in range(24):
        k(f's_add_u32 m0, s32, {1024*i}\ns_add_u32 s28, s33, {i*16*1280}')
        k('buffer_load_dwordx4 v6, s[12:15], s28 offen lds')
    k('s_waitcnt vmcnt(0)')
    for kk in range(12):
        for c in range(2):
            for hf in range(2):
                k(f'ds_read_b64_tr_b16 {V(16+8*kk+4*c+2*hf,2)}, v7 offset:{(32*kk+16*hf)*64 + 32*c}')
    k('s_waitcnt lgkmcnt(0)')
    for i in range(24):
        k(f'buffer_store_dwordx4 {V(16+4*i,4)}, v2, s[8:11], s34 offen offset:{1024*(i%4)} sc1')
        if i % 4 == 3: k('s_add_u32 s34, s34, 4096')
    k(f's_add_u32 s33, s33, {24*16*1280}\ns_sub_u32 s35, s35, 1\ns_cmp_lg_u32 s35, 0\ns_cbranch_scc1 {p}_r')
    flag_addr(k, 6)
    k(f's_mov_b32 s28, {FWO:#x}\ns_waitcnt vmcnt(0)\ns_barrier\nbuffer_store_dword v7, v6, s[8:11], s28 offen sc1')

def gen_g3p(k, p, end, fail, cfg):
    k(f"""
    s_load_dwordx2 s[28:29], s[0:1], {KA['out']}
    v_mbcnt_lo_u32_b32 v1, -1, 0
    v_mbcnt_hi_u32_b32 v1, -1, v1
    s_and_b32 s22, s20, 31
    s_lshr_b32 s20, s20, 5
    v_lshlrev_b32 v2, 4, v1
    v_mov_b32 v9, 0
    s_lshl_b32 s42, s20, 7
    s_add_u32 s42, s42, {FWO:#x}
    s_waitcnt vmcnt(0) lgkmcnt(0)
    s_barrier""")
    k.srd(16, 28, 2048 * 1280)
    poll_flag(k, f'{p}_fw', 9, 's42', 11, fail, sleep=8)
    k(f"""
    s_lshl_b32 s33, s20, 2
    s_add_u32 s33, s33, s21
    s_mul_i32 s34, s33, 49152
    s_add_u32 s34, s34, {WOF:#x}""")
    for i in range(48):
        k(f'buffer_load_dwordx4 {A(4*i,4)}, v2, s[8:11], s34 offen offset:{1024*(i%4)} sc1')
        if i % 4 == 3: k('s_add_u32 s34, s34, 4096')
    k(f"""
    s_mul_i32 s32, s21, 24576
    v_and_b32 v8, 15, v1
    v_lshrrev_b32 v9, 4, v1
    v_mul_u32_u24 v8, 1280, v8
    v_and_b32 v10, 1, v9
    v_lshl_add_u32 v8, v10, 5, v8
    v_lshrrev_b32 v10, 1, v9
    v_lshl_add_u32 v8, v10, 4, v8
    s_mul_i32 s36, s22, 81920
    s_lshl_b32 s37, s33, 10
    s_add_u32 s37, s37, s36
    s_add_u32 s37, s37, {HH:#x}
    s_lshl_b32 s28, s33, 6
    s_add_u32 s36, s36, s28
    v_and_b32 v9, 7, v1
    v_lshlrev_b32 v9, 7, v9
    s_lshl_b32 s42, s22, 10
    s_add_u32 s42, s42, {FY:#x}
    s_mul_i32 s34, s22, 98304
    s_add_u32 s34, s34, s32
    s_add_u32 s34, s34, {YF:#x}
    v_add_u32 v10, 49152, v2
    s_waitcnt vmcnt(0)
    s_cmp_lg_u32 s21, 0
    s_cbranch_scc1 {p}_go""")
    ustamp(k, cfg, 2) if cfg.get('stamp') == 98 else None
    k(f'v_mov_b32 v12, 0\ns_add_u32 s43, s56, {(FH + 63*4096, FG1 + 62*128, FG1 + 4*16384 + 62*128)[cfg.get("g3c", 2)]:#x}')
    poll_flag(k, f'{p}_fe', 12, 's43', 11, fail, sleep=cfg.get('g3s', 16))
    if cfg.get('g3one', 0):
        k('s_lshl_b32 s43, s20, 7\ns_add_u32 s43, s43, s42')
        poll_flag(k, f'{p}_fo', 12, 's43', 11, fail, sleep=cfg.get('sl5', 2))
    poll_flag(k, f'{p}_fy', 9, 's42', 11, fail, sleep=cfg.get('sl5', 2))
    k.label(f'{p}_go')
    k('s_barrier')
    ustamp(k, cfg, 3) if cfg.get('stamp') == 98 else None
    k.vd = k.vc
    acc = lambda tt, c: 32 + 8 * tt + 4 * c
    mats = []; items = []; ev = []
    NUP = cfg.get('g3up', 3)
    for j in range(6):
        g_ = -9 if j < NUP else 18 * (j - NUP) + 1
        ev.append((g_, dict(id=('m', j), kind='n', fn=f's_add_u32 m0, s32, {4096*j}\ns_add_u32 s28, s34, {4096*j}')))
        for i in range(4):
            ev.append((g_ if j < NUP else g_ + 2 + 4 * i, dict(id=('d', 4 * j + i), kind='n', vm=True, fn=f'buffer_load_dwordx4 v2, s[8:11], s28 offen offset:{1024*i} sc1 lds')))
    for tt in range(4):
        ev.append((81 + 4 * tt, dict(id=('h', tt), kind='n', vm=True, fn=f's_add_u32 s28, s37, {20480*tt}\nbuffer_load_dwordx4 {V(16+4*tt,4)}, v2, s[8:11], s28 offen sc1')))
    XR = [64 + 4 * i for i in range(12)]
    stages = {0: 1, 2: 3, 4: 7, 8: 11, 12: 15, 16: 19, 20: 23}
    for kk in range(24):
        if kk in stages:
            g_ = max(8 * kk - 12, -1)
            ev.append((g_ - 0.4, dict(id=('b', kk), kind='bar', fn='s_barrier', vdeps=[('d', stages[kk])], g=g_)))
        for tt in range(4):
            n = 4 * kk + tt; r = XR[n % 12]
            ev.append((max(2 * n - 12, -1), dict(id=('x', n), kind='n', lds=True, fn=f'ds_read_b128 {V(r,4)}, {"v2" if tt < 2 else "v10"} offset:{(tt&1)*24576 + kk*1024}')))
            for c in range(2):
                a = V(acc(tt, c), 4)
                mats.append((f'{MF} {a}, {A(8*kk+4*c,4)}, {V(r,4)}, {"0" if kk == 0 else a}', [('x', n)]))
    ev.sort(key=lambda x: x[0])
    for g_, it in ev:
        it['after'] = it.get('g', g_); items.append(it)
    sched(k, mats, items, [False] * 192, pre_n=5 * NUP + 7)
    ustamp(k, cfg, 4) if cfg.get('stamp') == 98 else None
    k('s_mov_b32 s46, 0xffff0000\ns_waitcnt vmcnt(0)')
    for tt in range(4):
        for i in range(4):
            k(f'v_lshlrev_b32 v{64+2*i}, 16, v{16+4*tt+i}')
            k(f'v_and_b32 v{65+2*i}, s46, v{16+4*tt+i}')
        for i in range(4):
            a = acc(tt, 0) + 2 * i
            k(f'v_pk_add_f32 {V(a,2)}, {V(a,2)}, {V(64+2*i,2)}')
        for i in range(4):
            a = acc(tt, 0) + 2 * i
            k(f'v_cvt_pk_bf16_f32 v{16+4*tt+i}, v{a}, v{a+1}')
        k(f's_add_u32 s28, s36, {20480*tt}\nv_permlane16_swap_b32 v{16+4*tt}, v{18+4*tt}\nv_permlane16_swap_b32 v{17+4*tt}, v{19+4*tt}')
        k(f'buffer_store_dwordx4 {V(16+4*tt,4)}, v8, s[16:19], s28 offen{cfg.get("ost", " sc1")}')
    k(f's_branch {end}')

def header():
    ref = open('cdna_kernels/' + NAME + '.s.ref').read().split('\n')
    out = []
    for line in ref:
        if line.startswith('; Override') : break
        out.append(line)
    return '\n'.join(out) + '\n'

def build_all(cfg):
    global NT1, NT2, RING, RING2, LST, TOUCH, FW, CORD
    CORD = cfg.get('cord', [0, 1, 2, 3, 4, 5, 7, 8, 9, 6])
    FW = cfg.get('fw', 32)
    TOUCH = cfg.get('touch', 3)
    LST = cfg.get('stamp') == 97
    RING = cfg.get('ring', 64); RING2 = cfg.get('ring2', 64)
    NT1 = ' nt' if cfg.get('nt1', 1) else ''
    NT2 = ' nt' if cfg.get('nt2', 1) else ''
    k = K()
    gen_mega_kernel(k, 'mega_kernel', cfg)
    body = k.text().replace('mega_kernel_', 'M_')
    kn = 'mega_kernel' if cfg.get('list', 1) else NAME + '_kernel'
    la = f'; @launch {"kernel=mega_kernel " if cfg.get("list", 1) else ""}grid=(256,1,1) block=(256,1,1) lds={LDS_BYTES}\n'
    return header() + la + '.amdgcn_target "amdgcn-amd-amdhsa--gfx950"\n.text\n' + body.replace('mega_kernel', kn) + '.section .rodata,"a"\n' + descriptor(kn, 512, 256)

if __name__ == '__main__':
    cfg = eval(sys.argv[2]) if len(sys.argv) > 2 else {}
    txt = build_all(cfg)
    open(sys.argv[1] if len(sys.argv) > 1 else 'cur.s', 'w').write(txt)
```
